```python
import torch

def _softmax(x, axis=-1):
    return torch.softmax(x, dim=axis)

def _gelu(x):
    return torch.nn.functional.gelu(x, approximate='tanh')

def _silu(x):
    return torch.nn.functional.silu(x)

def _sigmoid(x):
    return torch.sigmoid(x)

def _layernorm(x, axis=-1, eps=1e-05):
    m = x.mean(dim=axis, keepdim=True)
    v = x.var(dim=axis, keepdim=True, unbiased=False)
    return (x - m) / torch.sqrt(v + eps)

def _scatter_add(tgt, idx, src, axis=0):
    return tgt.clone().index_add_(axis, idx, src)

def _segment_sum(src, seg, n):
    out = torch.zeros((n,) + src.shape[1:], dtype=src.dtype)
    return out.index_add_(0, seg, src)

def _pad(x, pw):
    flat = tuple((v for pair in reversed(pw) for v in pair))
    return torch.nn.functional.pad(x, flat)
kernel_name = 'adaLN_cond__compressed_kv_cla__glu_gated_glu__decode'

def setup_inputs():

    _w = lambda a: (lambda t: t.to(torch.bfloat16) if t.is_floating_point() else t)(torch.as_tensor(a))

    def _A_setup():
        B, H, Sq, Sk, D, M = (2, 32, 1, 4096, 128, 640)
        Dc = 4 * D
        return {'x': _w((lambda *s: torch.randn(*s, dtype=torch.bfloat16) * 0.05)(B, Sq, M)), 'c_kv': _w((lambda *s: torch.randn(*s, dtype=torch.bfloat16) * 1.6)(B, Sk, Dc)), 'w_q': _w((lambda *s: torch.randn(*s, dtype=torch.bfloat16) * 0.8)(M, H, D) * M ** (-0.5)), 'w_uk': _w((lambda *s: torch.randn(*s, dtype=torch.bfloat16) * 0.8)(Dc, H, D) * Dc ** (-0.5)), 'w_uv': _w((lambda *s: torch.randn(*s, dtype=torch.bfloat16) * 1.6)(Dc, H, D) * Dc ** (-0.5)), 'w_o': _w((lambda *s: torch.randn(*s, dtype=torch.bfloat16) * 1.6)(H, D, M) * (H * D) ** (-0.5))}
    _A_in = _A_setup()

    def _B_setup():
        B, S, D, F = (2, 1, 640, 1728)
        return {'x': _w((lambda *s: torch.randn(*s, dtype=torch.bfloat16) * 0.05)(B, S, D)), 'w_gate': _w((lambda *s: torch.randn(*s, dtype=torch.bfloat16) * 0.05)(D, F)), 'w_up': _w((lambda *s: torch.randn(*s, dtype=torch.bfloat16) * 0.05)(D, F)), 'w_down': _w((lambda *s: torch.randn(*s, dtype=torch.bfloat16) * 0.05)(F, D))}
    _B_in = _B_setup()
    return {'A_x': _A_in['x'], 'A_c_kv': _A_in['c_kv'], 'A_w_q': _A_in['w_q'], 'A_w_uk': _A_in['w_uk'], 'A_w_uv': _A_in['w_uv'], 'A_w_o': _A_in['w_o'], 'B_x': _B_in['x'], 'B_w_gate': _B_in['w_gate'], 'B_w_up': _B_in['w_up'], 'B_w_down': _B_in['w_down'], 'c': _w((lambda *s: torch.randn(*s, dtype=torch.bfloat16) * 0.1)(2, 640) * 8.0), 'w_mod': _w((lambda *s: torch.randn(*s, dtype=torch.bfloat16) * 0.1)(640, 6 * 640) * 640 ** (-0.5) * 8.0)}

def reference(A_x, A_c_kv, A_w_q, A_w_uk, A_w_uv, A_w_o, B_x, B_w_gate, B_w_up, B_w_down, c, w_mod):

    def _A_ref(x, c_kv, w_q, w_uk, w_uv, w_o):
        B, Sq, M = (x.shape[0], x.shape[1], x.shape[2])
        Sk = c_kv.shape[1]
        H, D = (w_q.shape[1], w_q.shape[2])
        q = torch.einsum('bqm,mhd->bhqd', x, w_q)
        k = torch.einsum('bkc,chd->bhkd', c_kv, w_uk)
        v = torch.einsum('bkc,chd->bhkd', c_kv, w_uv)
        scores = torch.einsum('bhqd,bhkd->bhqk', q, k) * D ** (-0.5)
        off = Sk - Sq
        qi = torch.arange(Sq)[:, None]
        kj = torch.arange(Sk)[None, :]
        cmask = kj <= qi + off
        scores = torch.where(cmask[None, None], scores, -1000000000.0)
        p = _softmax(scores, axis=-1)
        ctx = torch.einsum('bhqk,bhkd->bhqd', p, v)
        return torch.einsum('bhqd,hdm->bqm', ctx, w_o)

    def _B_ref(x, w_gate, w_up, w_down):
        g = torch.einsum('bsd,df->bsf', x, w_gate)
        u = torch.einsum('bsd,df->bsf', x, w_up)
        h = _sigmoid(g) * u
        return torch.einsum('bsf,fd->bsd', h, w_down)
    x = A_x
    mod = (_silu(c) @ w_mod).reshape(c.shape[0], 6, 1, -1)
    sa, ca, ga, sb, cb, gb = (mod[:, 0].clone(), mod[:, 1].clone(), mod[:, 2].clone(), mod[:, 3].clone(), mod[:, 4].clone(), mod[:, 5].clone())
    h = _layernorm(x, axis=-1) * (1 + ca) + sa
    x = x + ga * _A_ref(h, A_c_kv, A_w_q, A_w_uk, A_w_uv, A_w_o)
    h = _layernorm(x, axis=-1) * (1 + cb) + sb
    x = x + gb * _B_ref(h, B_w_gate, B_w_up, B_w_down)
    return x
```

```python
import sys

NAME = 'adaLN_cond__compressed_kv_cla__glu_gated_glu__decode'
STAMP = int(sys.argv[2]) if len(sys.argv) > 2 else 0
SPIN_LIMIT = 200000

EPOCH = 0
FLAGS = 4096
MOD = 8192
QP = 40960
QA = 172032
ML = 237568
AP = 253952
FP = 335872
STP = 475136
OP = 524288
WS_BYTES = OP + 2 * 32 * 32 * 1024

CKS = 1040
L_CK = 0
L_X = 128 * CKS
L_HD = L_X
L_RED = L_X + 2048
L_QT2 = L_X + 2048 + 8192
L_QT = L_X
L_PT = L_X + 16 * CKS
PTS = 272
L_MX = L_PT + 16 * PTS
LDS_BYTES = L_MX + 512
L_WT0 = 0
L_WT1 = 20480
L_ST = 40960
L_D_WD = 45056
L_D_CD = 46080
L_D_RED = 49152
L_D_RED2 = 53248
L_E_STAT = 45056
L_E_X1 = 45312
L_E_HT = 48128
L_E_RED = 53248
L_E_HH = 57344

TAGC_LO = 0x7F4A7C15
TAGC_HI = 0x9E3779B9

lines = []
def I(s): lines.append('    ' + s)
def L(s): lines.append(s + ':')
def C(s): lines.append('    ; ' + s)
def nop(n):
    while n > 0:
        k = min(n, 16)
        I(f's_nop {k-1}')
        n -= k
_uid = [0]
def uid(p):
    _uid[0] += 1
    return f'L_{p}_{_uid[0]}'
def vr(a, n=4): return f'v[{a}:{a+n-1}]'

PTR = {k: 64 + 2 * i for i, k in enumerate(
    ['x', 'ckv', 'wq', 'wuk', 'wuv', 'wo', 'bx', 'wg', 'wu', 'wd', 'c', 'wmod', 'out', 'dbg', 'ws'])}
NBYTES = dict(x=2560, ckv=8388608, wq=5242880, wuk=4194304, wuv=4194304, wo=5242880, wg=2211840, wu=2211840,
              wd=2211840, c=2560, wmod=4915200, out=2560, ws=WS_BYTES)
def srd(d, name):
    p = PTR[name]
    I(f's_mov_b32 s{d}, s{p}')
    I(f's_and_b32 s{d+1}, s{p+1}, 0xffff')
    I(f's_mov_b32 s{d+2}, {NBYTES[name]}')
    I(f's_mov_b32 s{d+3}, 0x00020000')
def S(d): return f's[{d}:{d+3}]'
WS = 8

def setexec(lo, hi=0):
    I(f's_mov_b32 exec_lo, 0x{lo:x}')
    I(f's_mov_b32 exec_hi, 0x{hi:x}')

def barrier():
    I('s_barrier')

def stamp(idx):
    if not STAMP: return
    skip = uid('st')
    I('s_cmp_lg_u32 s3, 0')
    I(f's_cbranch_scc1 {skip}')
    I('s_memrealtime s[60:61]')
    I('s_waitcnt lgkmcnt(0)')
    I('v_mov_b32 v254, s60')
    I('v_mov_b32 v255, s61')
    I(f's_lshl_b32 s62, s2, 7')
    I(f's_add_u32 s62, s62, {STP + idx*8}')
    I('v_mov_b32 v253, 0')
    I('s_mov_b64 s[58:59], exec')
    I('s_mov_b64 exec, 1')
    I(f'buffer_store_dwordx2 v[254:255], v253, {S(WS)}, s62 offen')
    I('s_mov_b64 exec, s[58:59]')
    L(skip)

def spin_begin():
    I('s_mov_b32 s98, 0')
    lab = uid('spin')
    L(lab)
    return lab
def spin_end(lab):
    done = uid('spd')
    I(f's_cbranch_vccz {done}')
    I('s_add_u32 s98, s98, 1')
    I(f's_cmp_gt_u32 s98, {SPIN_LIMIT}')
    I('s_cbranch_scc1 L_end')
    I('s_sleep 1')
    I(f's_branch {lab}')
    L(done)

def anysent(regs, tmp):
    regs = list(regs)
    cur = regs[0]; rest = regs[1:]
    while rest:
        if len(rest) >= 2:
            I(f'v_max3_u32 v{tmp}, v{cur}, v{rest[0]}, v{rest[1]}'); rest = rest[2:]
        else:
            I(f'v_max_u32 v{tmp}, v{cur}, v{rest[0]}'); rest = rest[1:]
        cur = tmp
    I(f'v_cmp_eq_u32 vcc, -1, v{cur}')

def allreduce(op, x, tmp, rows_only=False, skip_row=False):
    if not skip_row:
        for ctl in ['quad_perm:[1,0,3,2]', 'quad_perm:[2,3,0,1]', 'row_half_mirror', 'row_mirror']:
            nop(2)
            I(f'{op}_dpp v{x}, v{x}, v{x} {ctl} row_mask:0xf bank_mask:0xf')
    if rows_only: return
    for sw in ['v_permlane16_swap_b32', 'v_permlane32_swap_b32']:
        I(f'v_mov_b32 v{tmp}, v{x}')
        nop(2)
        I(f'{sw} v{x}, v{tmp}')
        nop(1)
        I(f'{op} v{x}, v{x}, v{tmp}')

def bfround(x, tmp=None):
    I(f'v_cvt_pk_bf16_f32 v{x}, v{x}, v{x}')
    I(f'v_and_b32 v{x}, 0xffff0000, v{x}')

def make_masks(m, single):
    I('v_and_b32 v2, 1, v1')
    I('v_cmp_eq_u32 vcc, 1, v2')
    I('v_mov_b32 v3, 0xffff')
    I('v_mov_b32 v2, 0xffff0000')
    nop(1)
    I('v_cndmask_b32 v3, v3, v2, vcc')
    if single:
        I('v_and_b32 v2, 8, v1')
        I('v_cmp_eq_u32 vcc, 0, v2')
        nop(2)
        I('v_cndmask_b32 v3, 0, v3, vcc')
    I('v_bfe_u32 v2, v1, 1, 2')
    for d in range(4):
        I(f'v_cmp_eq_u32 vcc, {d}, v2')
        nop(2)
        I(f'v_cndmask_b32 v{m+d}, 0, v3, vcc')

def gemv_diag(T, aval, masks, abuf, bq, accs):
    def build(t):
        a = abuf[t % 2]
        for d in range(4):
            I(f'v_and_b32 v{a+d}, v{masks+d}, v{aval(t)}')
    build(0)
    for t in range(T):
        a = abuf[t % 2]
        if t + 1 < T:
            build(t + 1)
        else:
            nop(2)
        for blk, acc in enumerate(accs):
            c = '0' if t == 0 else vr(acc)
            I(f'v_mfma_f32_16x16x32_bf16 {vr(acc)}, {vr(a)}, {vr(bq(blk, t))}, {c}')
    nop(9)

def flags_wait():
    I('v_lshlrev_b32 v2, 4, v1')
    I(f'v_add_u32 v2, {FLAGS}, v2')
    lab = spin_begin()
    I(f'buffer_load_dwordx4 v[4:7], v2, {S(WS)}, 0 offen sc1')
    I(f'buffer_load_dwordx4 v[8:11], v2, {S(WS)}, 0 offen offset:1024 sc1')
    I('s_waitcnt vmcnt(0)')
    for r in range(4, 12):
        I(f'v_xor_b32 v{r}, s{96 + (r & 1)}, v{r}')
    I('v_or3_b32 v4, v4, v5, v6')
    I('v_or3_b32 v4, v4, v7, v8')
    I('v_or3_b32 v4, v4, v9, v10')
    I('v_or_b32 v4, v4, v11')
    I('v_cmp_ne_u32 vcc, 0, v4')
    spin_end(lab)

def flag_store():
    I('s_waitcnt vmcnt(0) lgkmcnt(0)')
    I(f's_add_u32 s96, s94, 0x{TAGC_LO:x}')
    I(f's_addc_u32 s97, s95, 0x{TAGC_HI:x}')
    I('v_mov_b32 v4, s96')
    I('v_mov_b32 v5, s97')
    I('s_lshl_b32 s4, s2, 3')
    I(f's_add_u32 s4, s4, {FLAGS}')
    I('v_mov_b32 v6, 0')
    I('s_mov_b64 exec, 1')
    I(f'buffer_store_dwordx2 v[4:5], v6, {S(WS)}, s4 offen sc1')
    I('s_mov_b64 exec, -1')

def tag_compute():
    I('s_waitcnt lgkmcnt(0)')
    I(f's_add_u32 s96, s94, 0x{TAGC_LO:x}')
    I(f's_addc_u32 s97, s95, 0x{TAGC_HI:x}')

def prologue():
    I('s_cmp_ge_u32 s2, 256')
    I('s_cbranch_scc1 L_end')
    I('s_load_dwordx16 s[64:79], s[0:1], 0')
    I('s_load_dwordx8 s[80:87], s[0:1], 64')
    I('s_load_dwordx4 s[88:91], s[0:1], 96')
    I('s_load_dwordx2 s[92:93], s[0:1], 112')
    I('v_lshrrev_b32 v1, 6, v0')
    nop(1)
    I('v_readfirstlane_b32 s3, v1')
    I('v_and_b32 v1, 63, v0')
    I('s_waitcnt lgkmcnt(0)')
    I('s_load_dwordx2 s[94:95], s[92:93], 0')
    srd(WS, 'ws')
    stamp(0)
    I('s_cmp_ge_u32 s2, 128')
    I('s_cbranch_scc1 L_de')

def role_A():
    X_, WQ, WUK, CKV = 12, 16, 20, 24
    srd(X_, 'x'); srd(WQ, 'wq'); srd(WUK, 'wuk'); srd(CKV, 'ckv')
    I('s_lshr_b32 s40, s2, 2')
    I('s_and_b32 s41, s2, 3')
    I('s_lshr_b32 s4, s2, 4')
    I('s_lshl_b32 s4, s4, 3')
    I('s_and_b32 s5, s2, 7')
    I('s_add_u32 s4, s4, s5')
    I('s_lshr_b32 s42, s4, 5')
    I('s_and_b32 s43, s4, 31')
    I('s_bfe_u32 s44, s2, 0x10003')
    I('v_lshrrev_b32 v14, 4, v1')
    I('v_and_b32 v15, 15, v1')
    sk = uid('noclr')
    I('s_cmp_lg_u32 s3, 7')
    I(f's_cbranch_scc1 {sk}')
    for r in range(4, 8): I(f'v_mov_b32 v{r}, -1')
    I('v_lshlrev_b32 v2, 4, v1')
    I('s_lshl_b32 s4, s2, 10')
    I(f's_add_u32 s4, s4, {QP}')
    I(f'buffer_store_dwordx4 v[4:7], v2, {S(WS)}, s4 offen sc1')
    I('v_lshlrev_b32 v3, 15, v14')
    I('v_lshl_add_u32 v3, v15, 4, v3')
    I('s_lshl_b32 s4, s40, 10')
    I('s_lshl_b32 s5, s41, 8')
    I('s_add_u32 s4, s4, s5')
    I(f's_add_u32 s4, s4, {QA}')
    setexec(0xffffffff)
    I(f'buffer_store_dwordx4 v[4:7], v3, {S(WS)}, s4 offen sc1')
    I('v_lshlrev_b32 v3, 8, v1')
    I('s_lshl_b32 s4, s42, 13')
    I('s_lshl_b32 s5, s44, 12')
    I('s_add_u32 s4, s4, s5')
    I('s_lshl_b32 s5, s43, 3')
    I('s_add_u32 s4, s4, s5')
    I(f's_add_u32 s4, s4, {ML}')
    setexec(0xffff)
    I(f'buffer_store_dwordx2 v[4:5], v3, {S(WS)}, s4 offen sc1')
    I('s_mov_b64 exec, -1')
    I('s_lshl_b32 s4, s42, 20')
    I('s_lshl_b32 s5, s44, 19')
    I('s_add_u32 s4, s4, s5')
    I('s_lshl_b32 s5, s43, 10')
    I('s_add_u32 s4, s4, s5')
    I(f's_add_u32 s4, s4, {OP}')
    for i in range(16):
        I(f'buffer_store_dwordx4 v[4:7], v2, {S(WS)}, s4 offen sc1')
        if i < 15: I('s_add_u32 s4, s4, 32768')
    flag_store()
    L(sk)
    I('v_lshlrev_b32 v2, 2, v1')
    for b in range(2):
        for k in range(5):
            I(f'buffer_load_dword v{64 + b*5 + k}, v2, {S(X_)}, 0 offen offset:{b*1280 + k*256}')
    I('v_cmp_le_u32 vcc, 160, v0')
    nop(2)
    I('v_cndmask_b32 v4, 0, 1, vcc')
    I('v_mul_u32_u24 v5, 160, v4')
    I('v_sub_u32 v5, v0, v5')
    I('s_mul_i32 s45, s41, 160')
    I('v_add_u32 v6, s45, v5')
    I('v_mul_u32_u24 v7, 640, v4')
    I('v_add_u32 v7, v7, v6')
    I('v_lshlrev_b32 v7, 1, v7')
    I(f'buffer_load_ushort v74, v7, {S(X_)}, 0 offen')
    I('v_mul_u32_u24 v8, 3840, v4')
    I('v_add_u32 v8, v8, v6')
    I('v_lshlrev_b32 v8, 2, v8')
    I(f'v_add_u32 v8, {MOD}, v8')
    I('v_mul_u32_u24 v9, 3277, v5')
    I('v_lshrrev_b32 v9, 16, v9')
    I('v_mul_u32_u24 v10, 20, v9')
    I('v_sub_u32 v10, v5, v10')
    I('v_mul_u32_u24 v11, 13, v10')
    I('v_lshrrev_b32 v11, 6, v11')
    I('v_mul_u32_u24 v12, 5, v11')
    I('v_sub_u32 v12, v10, v12')
    I('v_lshl_add_u32 v9, v4, 3, v9')
    I('v_lshl_add_u32 v9, v9, 2, v11')
    I('v_lshlrev_b32 v9, 5, v9')
    I('v_lshl_add_u32 v9, v12, 2, v9')
    I(f'v_add_u32 v9, {L_HD}, v9')
    I('v_mul_u32_u24 v2, 5, v14')
    I('v_lshlrev_b32 v2, 13, v2')
    I('v_lshl_add_u32 v2, v15, 4, v2')
    I('s_mul_i32 s4, s3, 20')
    I('s_add_u32 s4, s4, s45')
    I('s_lshl_b32 s4, s4, 13')
    I('s_lshl_b32 s5, s40, 8')
    I('s_add_u32 s4, s4, s5')
    for t in range(5):
        I(f'buffer_load_dwordx4 {vr(20+4*t)}, v2, {S(WQ)}, s4 offen nt')
        if t < 4: I('s_add_u32 s4, s4, 8192')
    I('v_lshlrev_b32 v2, 13, v15')
    I('v_lshl_add_u32 v2, v14, 4, v2')
    I('s_lshl_b32 s4, s41, 7')
    I('s_lshl_b32 s6, s3, 4')
    I('s_add_u32 s4, s4, s6')
    I('s_lshl_b32 s4, s4, 13')
    I('s_add_u32 s4, s4, s5')
    for t in range(4):
        I(f'buffer_load_dwordx4 {vr(40+4*t)}, v2, {S(WUK)}, s4 offen offset:{t*64} nt')
    I('v_lshlrev_b32 v13, 4, v1')
    I('s_lshl_b32 s46, s42, 22')
    I('s_lshl_b32 s4, s43, 17')
    I('s_add_u32 s46, s46, s4')
    def dma_rows(first_row_sgpr_expr_rows, n):
        I('s_lshl_b32 s4, s47, 10')
        I('s_add_u32 s4, s4, s46')
        I(f's_mul_i32 s5, s47, {CKS}')
        for r in range(n):
            I('s_mov_b32 m0, s5')
            nop(1)
            I(f'buffer_load_dwordx4 v13, {S(CKV)}, s4 offen nt lds')
            if r < n - 1:
                I('s_add_u32 s4, s4, 1024')
                I(f's_add_u32 s5, s5, {CKS}')
    I('s_lshl_b32 s47, s3, 3')
    dma_rows(None, 8)
    make_masks(16, False)
    I('s_waitcnt vmcnt(17)')
    for b in range(2):
        src = 64 + b * 5
        for k in range(5):
            I(f'v_lshlrev_b32 v{80+2*k}, 16, v{src+k}')
            I(f'v_and_b32 v{81+2*k}, 0xffff0000, v{src+k}')
        I('v_add_f32 v90, v80, v81')
        for k in range(2, 10): I(f'v_add_f32 v90, v90, v{80+k}')
        allreduce('v_add_f32', 90, 91)
        I('v_mul_f32 v90, 0x3acccccd, v90')
        for k in range(10): I(f'v_sub_f32 v{80+k}, v{80+k}, v90')
        I('v_mul_f32 v92, v80, v80')
        for k in range(1, 10): I(f'v_fmac_f32 v92, v{80+k}, v{80+k}')
        allreduce('v_add_f32', 92, 91)
        I('v_mul_f32 v92, 0x3acccccd, v92')
        bfround(90); bfround(92)
        I('v_add_f32 v92, 0x3727c5ac, v92')
        bfround(92)
        I('v_sqrt_f32 v92, v92')
        nop(1)
        bfround(92)
        I(f'v_mov_b32 v{76+2*b}, v90')
        I(f'v_mov_b32 v{77+2*b}, v92')
    I('v_cmp_eq_u32 vcc, 1, v4')
    nop(2)
    I('v_cndmask_b32 v90, v76, v78, vcc')
    I('v_cndmask_b32 v92, v77, v79, vcc')
    I('v_lshlrev_b32 v74, 16, v74')
    I('v_sub_f32 v74, v74, v90')
    bfround(74)
    I('v_rcp_f32 v92, v92')
    nop(1)
    I('v_mul_f32 v74, v74, v92')
    bfround(74)
    tag_compute()
    sk = uid('nofw')
    I('s_cmp_lg_u32 s3, 0')
    I(f's_cbranch_scc1 {sk}')
    I('v_mov_b32 v75, v4')
    I('v_mov_b32 v73, v8')
    I('v_mov_b32 v72, v9')
    flags_wait()
    I('v_mov_b32 v4, v75')
    I('v_mov_b32 v8, v73')
    I('v_mov_b32 v9, v72')
    sk2 = uid('noep')
    I('s_cmp_lg_u32 s2, 0')
    I(f's_cbranch_scc1 {sk2}')
    I('v_mov_b32 v10, s96')
    I('v_mov_b32 v11, s97')
    I('v_mov_b32 v12, 0')
    I('s_mov_b64 exec, 1')
    I(f'buffer_store_dwordx2 v[10:11], v12, {S(WS)}, 0 offen sc1')
    I('s_mov_b64 exec, -1')
    L(sk2)
    L(sk)
    barrier()
    stamp(1)
    sk = uid('noh1')
    I('s_cmp_gt_u32 s3, 4')
    I(f's_cbranch_scc1 {sk}')
    lab = spin_begin()
    I(f'buffer_load_dword v10, v8, {S(WS)}, 0 offen sc1')
    I(f'buffer_load_dword v11, v8, {S(WS)}, 0 offen offset:2560 sc1')
    I('s_waitcnt vmcnt(0)')
    anysent([10, 11], 12)
    spin_end(lab)
    I('v_add_f32 v11, 1.0, v11')
    bfround(11)
    I('v_mul_f32 v11, v74, v11')
    bfround(11)
    I('v_add_f32 v11, v11, v10')
    I('v_cvt_pk_bf16_f32 v11, v11, v11')
    I('ds_write_b32 v9, v11')
    L(sk)
    I('s_waitcnt vmcnt(0) lgkmcnt(0)')
    barrier()
    stamp(2)
    I('v_bfe_u32 v2, v1, 3, 1')
    I('v_lshlrev_b32 v2, 10, v2')
    I('v_lshl_add_u32 v2, v14, 5, v2')
    I('s_lshl_b32 s4, s3, 7')
    I(f's_add_u32 s4, s4, {L_HD}')
    I('v_add_u32 v2, s4, v2')
    I('ds_read_b128 v[4:7], v2')
    I('ds_read_b32 v8, v2 offset:16')
    I('s_waitcnt lgkmcnt(0)')
    gemv_diag(5, lambda t: 4 + t, 16, [56, 60], lambda blk, t: 20 + 4 * t, [64])
    I('v_lshrrev_b32 v2, 1, v14')
    I('v_lshlrev_b32 v2, 9, v2')
    I('v_lshl_add_u32 v2, v15, 5, v2')
    I('v_and_b32 v3, 1, v14')
    I('v_lshl_add_u32 v2, v3, 4, v2')
    I('s_lshl_b32 s4, s3, 10')
    I(f's_add_u32 s4, s4, {L_RED}')
    I('v_add_u32 v2, s4, v2')
    I('ds_write_b128 v2, v[64:67]')
    sk = uid('nob2')
    I('s_cmp_lt_u32 s3, 4')
    I(f's_cbranch_scc1 {sk}')
    I('s_lshl_b32 s47, s3, 3')
    I('s_add_u32 s47, s47, 32')
    dma_rows(None, 8)
    L(sk)
    I('s_waitcnt lgkmcnt(0)')
    barrier()
    sk = uid('nop1r')
    I('s_cmp_lg_u32 s3, 0')
    I(f's_cbranch_scc1 {sk}')
    I(f'v_add_u32 v2, {L_RED}, v13')
    for w in range(8):
        I(f'ds_read_b128 {vr(64+4*w)}, v2 offset:{w*1024}')
    I('s_waitcnt lgkmcnt(0)')
    for w in range(1, 8):
        for r in range(4):
            I(f'v_add_f32 v{64+r}, v{64+r}, v{64+4*w+r}')
    for r in range(4): I(f'v_min_u32 v{64+r}, 0xfffffffe, v{64+r}')
    I('s_lshl_b32 s4, s2, 10')
    I(f's_add_u32 s4, s4, {QP}')
    I(f'buffer_store_dwordx4 v[64:67], v13, {S(WS)}, s4 offen sc1')
    stamp(3)
    I('s_lshl_b32 s4, s40, 12')
    I(f's_add_u32 s4, s4, {QP}')
    lab = spin_begin()
    for k in range(4):
        I(f'buffer_load_dwordx4 {vr(68+4*k)}, v13, {S(WS)}, s4 offen offset:{k*1024} sc1')
    I('s_waitcnt vmcnt(0)')
    anysent(range(68, 84), 2)
    spin_end(lab)
    for r in range(4):
        I(f'v_add_f32 v{68+r}, v{68+r}, v{72+r}')
        I(f'v_add_f32 v{76+r}, v{76+r}, v{80+r}')
        I(f'v_add_f32 v{68+r}, v{68+r}, v{76+r}')
    I('v_cvt_pk_bf16_f32 v64, v68, v69')
    I('v_cvt_pk_bf16_f32 v65, v70, v71')
    I('v_lshlrev_b32 v2, 3, v1')
    I(f'v_add_u32 v2, {L_QT2}, v2')
    I('ds_write_b64 v2, v[64:65]')
    I('s_waitcnt lgkmcnt(0)')
    L(sk)
    barrier()
    stamp(4)
    I('v_and_b32 v2, 1, v15')
    I('v_lshlrev_b32 v2, 8, v2')
    I('v_lshl_add_u32 v2, v14, 4, v2')
    I(f'v_add_u32 v2, {L_QT2}, v2')
    for t in range(4):
        I(f'ds_read_b128 {vr(64+4*t)}, v2 offset:{t*64}')
    I('s_waitcnt lgkmcnt(0)')
    for t in range(4):
        c = '0' if t == 0 else 'v[80:83]'
        I(f'v_mfma_f32_16x16x32_bf16 v[80:83], {vr(40+4*t)}, {vr(64+4*t)}, {c}')
    nop(9)
    I('s_mov_b32 s4, 0x3e0293ee')
    for r in range(4): I(f'v_mul_f32 v{80+r}, s4, v{80+r}')
    I('v_cvt_pk_bf16_f32 v84, v80, v81')
    I('v_cvt_pk_bf16_f32 v85, v82, v83')
    I('v_min_u32 v84, 0xfffffffe, v84')
    I('v_min_u32 v85, 0xfffffffe, v85')
    I('v_lshlrev_b32 v2, 15, v15')
    I('v_lshl_add_u32 v2, v14, 3, v2')
    I('s_lshl_b32 s4, s40, 10')
    I('s_lshl_b32 s5, s41, 8')
    I('s_add_u32 s4, s4, s5')
    I('s_lshl_b32 s5, s3, 5')
    I('s_add_u32 s4, s4, s5')
    I(f's_add_u32 s4, s4, {QA}')
    I('s_mov_b32 s6, 0x00030003')
    I('s_mov_b32 s7, 0x00030003')
    I('s_mov_b64 exec, s[6:7]')
    I(f'buffer_store_dwordx2 v[84:85], v2, {S(WS)}, s4 offen sc1')
    I('s_mov_b64 exec, -1')
    stamp(5)
    sk = uid('nob3')
    I('s_cmp_lt_u32 s3, 4')
    I(f's_cbranch_scc1 {sk}')
    I('s_lshl_b32 s47, s3, 3')
    I('s_add_u32 s47, s47, 64')
    dma_rows(None, 8)
    L(sk)
    I('s_waitcnt vmcnt(0)')
    barrier()
    I(f'v_mul_u32_u24 v2, {CKS}, v15')
    I('v_lshl_add_u32 v2, v14, 4, v2')
    I(f's_mul_i32 s4, s3, {16*CKS}')
    I('v_add_u32 v2, s4, v2')
    for t in range(16):
        I(f'ds_read_b128 {vr(64+4*t)}, v2 offset:{t*64}')
    I('v_lshrrev_b32 v2, 2, v15')
    I('v_lshl_add_u32 v2, v14, 3, v2')
    I(f'v_mul_u32_u24 v2, {CKS}, v2')
    I('v_and_b32 v3, 3, v15')
    I('v_lshl_add_u32 v2, v3, 5, v2')
    I('s_lshl_b32 s4, s3, 7')
    I('v_add_u32 v2, s4, v2')
    I(f'v_add_u32 v3, {64*CKS}, v2')
    for n in range(4):
        for t in range(4):
            base = 128 + 16 * n + 4 * t
            a = 'v2' if t < 2 else 'v3'
            off = (t % 2) * 32 * CKS + n * 8
            I(f'ds_read_b64_tr_b16 {vr(base,2)}, {a} offset:{off}')
            I(f'ds_read_b64_tr_b16 {vr(base+2,2)}, {a} offset:{off + 4*CKS}')
    I('s_lshl_b32 s4, s42, 15')
    I('s_lshl_b32 s5, s44, 14')
    I('s_add_u32 s4, s4, s5')
    I('s_lshl_b32 s5, s3, 11')
    I('s_add_u32 s4, s4, s5')
    I(f's_add_u32 s4, s4, {QA}')
    stamp(6)
    lab = spin_begin()
    I(f'buffer_load_dwordx4 v[20:23], v13, {S(WS)}, s4 offen sc1')
    I(f'buffer_load_dwordx4 v[24:27], v13, {S(WS)}, s4 offen offset:1024 sc1')
    I('s_waitcnt vmcnt(0)')
    anysent(range(20, 28), 2)
    spin_end(lab)
    I(f's_mul_i32 s4, s3, {2*CKS}')
    I(f's_add_u32 s4, s4, {L_QT}')
    I('v_add_u32 v2, s4, v13')
    I('ds_write_b128 v2, v[20:23]')
    I(f'ds_write_b128 v2, v[24:27] offset:{CKS}')
    I('s_waitcnt lgkmcnt(0)')
    barrier()
    stamp(7)
    I(f'v_mul_u32_u24 v2, {CKS}, v15')
    I('v_lshl_add_u32 v2, v14, 4, v2')
    I(f'v_add_u32 v2, {L_QT}, v2')
    for t in range(16):
        I(f'ds_read_b128 {vr(192+4*t)}, v2 offset:{t*64}')
    for t in range(16):
        I(f's_waitcnt lgkmcnt({15-t})')
        c = '0' if t == 0 else 'v[20:23]'
        I(f'v_mfma_f32_16x16x32_bf16 v[20:23], {vr(64+4*t)}, {vr(192+4*t)}, {c}')
    nop(9)
    I('v_max_f32 v24, v20, v21')
    I('v_max3_f32 v24, v24, v22, v23')
    allreduce('v_max_f32', 24, 25, skip_row=True)
    I('v_lshlrev_b32 v2, 5, v15')
    I(f'v_add_u32 v2, {L_MX}, v2')
    I('s_lshl_b32 s4, s3, 2')
    I('v_add_u32 v3, s4, v2')
    I('ds_write_b32 v3, v24')
    I('s_waitcnt lgkmcnt(0)')
    barrier()
    I('ds_read_b128 v[28:31], v2')
    I('ds_read_b128 v[32:35], v2 offset:16')
    I('s_waitcnt lgkmcnt(0)')
    I('v_max3_f32 v24, v28, v29, v30')
    I('v_max3_f32 v24, v24, v31, v32')
    I('v_max3_f32 v24, v24, v33, v34')
    I('v_max_f32 v24, v24, v35')
    for r in range(4):
        I(f'v_sub_f32 v{20+r}, v{20+r}, v24')
        I(f'v_exp_f32 v{20+r}, v{20+r}')
    nop(1)
    I('v_cvt_pk_bf16_f32 v26, v20, v21')
    I('v_cvt_pk_bf16_f32 v27, v22, v23')
    I(f'v_mul_u32_u24 v2, {PTS}, v15')
    I(f'v_add_u32 v2, {L_PT}, v2')
    I('v_lshl_add_u32 v3, v14, 3, v2')
    I('s_lshl_b32 s4, s3, 5')
    I('v_add_u32 v3, s4, v3')
    I('ds_write_b64 v3, v[26:27]')
    I('s_waitcnt lgkmcnt(0)')
    barrier()
    I('v_lshl_add_u32 v2, v14, 4, v2')
    for t in range(4):
        I(f'ds_read_b128 {vr(28+4*t)}, v2 offset:{t*64}')
    for r in range(4): I(f'v_mov_b32 v{60+r}, 0x3f803f80')
    I('s_waitcnt lgkmcnt(0)')
    for t in range(4):
        for n in range(4):
            c = '0' if t == 0 else vr(64 + 4 * n)
            I(f'v_mfma_f32_16x16x32_bf16 {vr(64+4*n)}, {vr(128+16*n+4*t)}, {vr(28+4*t)}, {c}')
    for t in range(4):
        c = '0' if t == 0 else 'v[80:83]'
        I(f'v_mfma_f32_16x16x32_bf16 v[80:83], v[60:63], {vr(28+4*t)}, {c}')
    nop(4)
    for n in range(4):
        I(f'v_cvt_pk_bf16_f32 v{84+2*n}, v{64+4*n}, v{65+4*n}')
        I(f'v_cvt_pk_bf16_f32 v{85+2*n}, v{66+4*n}, v{67+4*n}')
    for r in range(8): I(f'v_min_u32 v{84+r}, 0xfffffffe, v{84+r}')
    I('v_lshlrev_b32 v2, 15, v15')
    I('v_lshl_add_u32 v2, v14, 5, v2')
    I('s_lshl_b32 s4, s42, 20')
    I('s_lshl_b32 s5, s44, 19')
    I('s_add_u32 s4, s4, s5')
    I('s_lshl_b32 s5, s43, 10')
    I('s_add_u32 s4, s4, s5')
    I('s_lshl_b32 s5, s3, 7')
    I('s_add_u32 s4, s4, s5')
    I(f's_add_u32 s4, s4, {OP}')
    I(f'buffer_store_dwordx4 v[84:87], v2, {S(WS)}, s4 offen sc1')
    I(f'buffer_store_dwordx4 v[88:91], v2, {S(WS)}, s4 offen offset:16 sc1')
    sk = uid('noml')
    I('s_cmp_lg_u32 s3, 7')
    I(f's_cbranch_scc1 {sk}')
    I('v_min_u32 v24, 0xfffffffe, v24')
    I('v_min_u32 v25, 0xfffffffe, v80')
    I('v_lshlrev_b32 v3, 8, v1')
    I('s_lshl_b32 s4, s42, 13')
    I('s_lshl_b32 s5, s44, 12')
    I('s_add_u32 s4, s4, s5')
    I('s_lshl_b32 s5, s43, 3')
    I('s_add_u32 s4, s4, s5')
    I(f's_add_u32 s4, s4, {ML}')
    setexec(0xffff)
    I(f'buffer_store_dwordx2 v[24:25], v3, {S(WS)}, s4 offen sc1')
    I('s_mov_b64 exec, -1')
    L(sk)
    stamp(8)
    I('s_branch L_end')

def role_DE_common():
    L('L_de')
    C_, WM = 12, 16
    srd(C_, 'c'); srd(WM, 'wmod')
    I('s_sub_u32 s40, s2, 128')
    I('s_and_b32 s4, s40, 7')
    I('s_lshr_b32 s5, s40, 3')
    I('s_lshr_b32 s6, s5, 2')
    I('s_lshl_b32 s6, s6, 5')
    I('s_lshl_b32 s4, s4, 2')
    I('s_add_u32 s6, s6, s4')
    I('s_and_b32 s5, s5, 3')
    I('s_add_u32 s41, s6, s5')
    I('v_lshrrev_b32 v14, 4, v1')
    I('v_and_b32 v15, 15, v1')
    I('v_lshlrev_b32 v13, 4, v1')
    I('s_cmp_ge_u32 s40, 64')
    I('s_cbranch_scc1 L_dec_e')
    I('s_lshr_b32 s4, s40, 4')
    I('s_lshl_b32 s4, s4, 3')
    I('s_and_b32 s5, s40, 7')
    I('s_add_u32 s42, s4, s5')
    I('s_bfe_u32 s43, s40, 0x10003')
    I('s_branch L_dec_done')
    L('L_dec_e')
    I('s_sub_u32 s6, s40, 64')
    I('s_lshr_b32 s4, s6, 4')
    I('s_lshl_b32 s4, s4, 3')
    I('s_and_b32 s5, s6, 7')
    I('s_add_u32 s42, s4, s5')
    I('s_bfe_u32 s43, s6, 0x10003')
    I('s_cmp_lt_u32 s6, 48')
    I('s_cbranch_scc1 L_dec_done')
    I('s_sub_u32 s6, s6, 48')
    I('s_cmp_ge_u32 s6, 3')
    I('s_cselect_b32 s43, 1, 0')
    I('s_mul_i32 s4, s43, 3')
    I('s_sub_u32 s6, s6, s4')
    I('s_add_u32 s42, s6, 24')
    L('L_dec_done')
    sk = uid('nodma')
    I('s_cmp_gt_u32 s3, 1')
    I(f's_cbranch_scc1 {sk}')
    I('s_lshl_b32 s44, s3, 7')
    I('s_add_u32 s44, s44, s41')
    I('s_cmp_ge_u32 s44, 240')
    I(f's_cbranch_scc1 {sk}')
    I('v_lshrrev_b32 v2, 1, v1')
    I('v_mul_u32_u24 v2, 7680, v2')
    I('v_and_b32 v3, 1, v1')
    I('v_lshl_add_u32 v2, v3, 4, v2')
    I('s_lshl_b32 s4, s44, 5')
    I(f's_mul_i32 s5, s3, {L_WT1}')
    for q in range(20):
        I('s_mov_b32 m0, s5')
        nop(1)
        I(f'buffer_load_dwordx4 v2, {S(WM)}, s4 offen nt lds')
        if q < 19:
            I('s_add_u32 s4, s4, 245760')
            I('s_add_u32 s5, s5, 1024')
    L(sk)
    sk = uid('noclr')
    I('s_cmp_lg_u32 s3, 7')
    I(f's_cbranch_scc1 {sk}')
    for r in range(4, 8): I(f'v_mov_b32 v{r}, -1')
    I('v_bfe_u32 v2, v1, 3, 1')
    I('v_lshlrev_b32 v2, 13, v2')
    I('v_bfe_u32 v3, v1, 2, 1')
    I('v_mul_u32_u24 v3, 15360, v3')
    I('v_add_u32 v2, v2, v3')
    I('v_and_b32 v3, 3, v1')
    I('v_lshl_add_u32 v2, v3, 4, v2')
    I('s_lshl_b32 s4, s41, 6')
    I(f's_add_u32 s4, s4, {MOD}')
    I('s_cmp_lt_u32 s41, 112')
    I('s_movk_i32 s6, 0xff')
    I('s_mov_b32 s7, 0xffff')
    I('s_cselect_b32 s6, s7, s6')
    I('s_mov_b32 s7, 0')
    I('s_mov_b64 exec, s[6:7]')
    I(f'buffer_store_dwordx4 v[4:7], v2, {S(WS)}, s4 offen sc1')
    I('s_mov_b64 exec, -1')
    I('s_cmp_ge_u32 s40, 64')
    I('s_cbranch_scc1 L_clr_e')
    I('s_lshl_b32 s4, s43, 5')
    I('s_add_u32 s4, s4, s42')
    I('s_mul_i32 s4, s4, 1280')
    I(f's_add_u32 s4, s4, {AP}')
    I(f'buffer_store_dwordx4 v[4:7], v13, {S(WS)}, s4 offen sc1')
    setexec(0xffff)
    I(f'buffer_store_dwordx4 v[4:7], v13, {S(WS)}, s4 offen offset:1024 sc1')
    I('s_mov_b64 exec, -1')
    I('s_branch L_clr_done')
    L('L_clr_e')
    I('s_cmp_ge_u32 s40, 118')
    I('s_cbranch_scc1 L_clr_done')
    I('s_mul_i32 s4, s43, 27')
    I('s_add_u32 s4, s4, s42')
    I('s_mul_i32 s4, s4, 2560')
    I(f's_add_u32 s4, s4, {FP}')
    I(f'buffer_store_dwordx4 v[4:7], v13, {S(WS)}, s4 offen sc1')
    I(f'buffer_store_dwordx4 v[4:7], v13, {S(WS)}, s4 offen offset:1024 sc1')
    setexec(0xffffffff)
    I(f'buffer_store_dwordx4 v[4:7], v13, {S(WS)}, s4 offen offset:2048 sc1')
    I('s_mov_b64 exec, -1')
    L('L_clr_done')
    flag_store()
    L(sk)
    sk = uid('nost')
    I('s_sub_u32 s4, s3, 2')
    I('s_cmp_gt_u32 s4, 4')
    I(f's_cbranch_scc1 {sk}')
    I('v_subrev_u32 v12, 128, v0')
    I('v_lshlrev_b32 v2, 3, v12')
    I(f'buffer_load_dwordx2 v[4:5], v2, {S(C_)}, 0 offen')
    I('v_cmp_le_u32 vcc, 160, v12')
    nop(2)
    I('v_cndmask_b32 v6, 0, 1, vcc')
    I('v_mul_u32_u24 v7, 160, v6')
    I('v_sub_u32 v7, v12, v7')
    I('v_lshrrev_b32 v8, 3, v7')
    I('v_and_b32 v9, 3, v7')
    I('v_bfe_u32 v10, v7, 2, 1')
    I('v_mul_u32_u24 v6, 1280, v6')
    I('v_lshl_add_u32 v6, v8, 6, v6')
    I('v_lshl_add_u32 v6, v9, 4, v6')
    I('v_lshl_add_u32 v6, v10, 3, v6')
    I(f'v_add_u32 v6, {L_ST}, v6')
    I('s_waitcnt vmcnt(0)')
    I('v_lshlrev_b32 v8, 16, v4')
    I('v_and_b32 v9, 0xffff0000, v4')
    I('v_lshlrev_b32 v10, 16, v5')
    I('v_and_b32 v11, 0xffff0000, v5')
    for r in range(4):
        I(f'v_mul_f32 v{16+r}, 0xbfb8aa3b, v{8+r}')
        I(f'v_exp_f32 v{16+r}, v{16+r}')
        nop(1)
        I(f'v_add_f32 v{16+r}, 1.0, v{16+r}')
        I(f'v_rcp_f32 v{16+r}, v{16+r}')
        nop(1)
        I(f'v_mul_f32 v{16+r}, v{8+r}, v{16+r}')
    I('v_cvt_pk_bf16_f32 v4, v16, v17')
    I('v_cvt_pk_bf16_f32 v5, v18, v19')
    I('ds_write_b64 v6, v[4:5]')
    I('s_waitcnt lgkmcnt(0)')
    L(sk)
    barrier()
    sk = uid('nop0')
    I('s_cmp_gt_u32 s3, 1')
    I(f's_cbranch_scc1 {sk}')
    I('s_cmp_ge_u32 s44, 240')
    I(f's_cbranch_scc1 {sk}')
    I('v_and_b32 v2, 1, v15')
    I('v_mul_u32_u24 v2, 1280, v2')
    I('v_lshl_add_u32 v2, v14, 4, v2')
    I(f'v_add_u32 v2, {L_ST}, v2')
    for t in range(20):
        I(f'ds_read_b128 {vr(20+4*t)}, v2 offset:{t*64}')
    I('v_lshlrev_b32 v3, 3, v1')
    I(f's_mul_i32 s5, s3, {L_WT1}')
    I('v_add_u32 v3, s5, v3')
    I('s_waitcnt vmcnt(0)')
    for t in range(20):
        I(f'ds_read_b64_tr_b16 {vr(100+4*t,2)}, v3 offset:{t*1024}')
        I(f'ds_read_b64_tr_b16 {vr(102+4*t,2)}, v3 offset:{t*1024+512}')
    I('s_waitcnt lgkmcnt(0)')
    for t in range(20):
        c = '0' if t == 0 else 'v[4:7]'
        I(f'v_mfma_f32_16x16x32_bf16 v[4:7], {vr(100+4*t)}, {vr(20+4*t)}, {c}')
    nop(9)
    for r in range(4): bfround(4 + r)
    I('v_mul_u32_u24 v2, 15360, v15')
    I('v_lshl_add_u32 v2, v14, 4, v2')
    I('s_lshl_b32 s4, s44, 6')
    I(f's_add_u32 s4, s4, {MOD}')
    I('s_mov_b32 s6, 0x00030003')
    I('s_mov_b32 s7, 0x00030003')
    I('s_mov_b64 exec, s[6:7]')
    I(f'buffer_store_dwordx4 v[4:7], v2, {S(WS)}, s4 offen sc1')
    I('s_mov_b64 exec, -1')
    L(sk)
    stamp(1)
    tag_compute()
    I('s_cmp_ge_u32 s40, 118')
    I('s_cbranch_scc1 L_end')
    I('s_cmp_ge_u32 s40, 64')
    I('s_cbranch_scc1 L_role_e')

def role_D():
    WUV, WO = 20, 24
    srd(WUV, 'wuv'); srd(WO, 'wo')
    make_masks(16, True)
    I('v_lshlrev_b32 v2, 17, v14')
    I('v_lshl_add_u32 v2, v15, 4, v2')
    I('s_lshl_b32 s4, s3, 19')
    I('s_lshl_b32 s5, s42, 8')
    I('s_add_u32 s4, s4, s5')
    for t in range(16):
        I(f'buffer_load_dwordx4 {vr(20+4*t)}, v2, {S(WUV)}, s4 offen nt')
        if t < 15: I('s_add_u32 s4, s4, 8192')
    I('v_mul_u32_u24 v2, 5120, v14')
    I('v_lshl_add_u32 v2, v15, 4, v2')
    I('s_mul_i32 s4, s42, 163840')
    I('s_mul_i32 s5, s3, 20480')
    I('s_add_u32 s4, s4, s5')
    for t in range(4):
        for blk in range(5):
            I(f'buffer_load_dwordx4 {vr(84+16*blk+4*t)}, v2, {S(WO)}, s4 offen offset:{blk*256} nt')
        if t < 3: I('s_add_u32 s4, s4, 1280')
    sk = uid('nofw')
    I('s_cmp_lg_u32 s3, 0')
    I(f's_cbranch_scc1 {sk}')
    flags_wait()
    L(sk)
    barrier()
    stamp(2)
    sk = uid('noz')
    I('s_cmp_gt_u32 s3, 3')
    I(f's_cbranch_scc1 {sk}')
    I('v_and_b32 v2, 31, v1')
    I('v_lshlrev_b32 v2, 3, v2')
    I('s_lshl_b32 s4, s43, 5')
    I('s_add_u32 s4, s4, s42')
    I('s_lshl_b32 s5, s4, 8')
    I(f's_add_u32 s5, s5, {ML}')
    I('v_lshlrev_b32 v3, 13, v14')
    I('v_lshl_add_u32 v3, v15, 4, v3')
    I('s_lshl_b32 s6, s4, 15')
    I('s_lshl_b32 s7, s3, 8')
    I('s_add_u32 s6, s6, s7')
    I(f's_add_u32 s6, s6, {OP}')
    I('s_add_u32 s7, s6, 4096')
    lab = spin_begin()
    I(f'buffer_load_dwordx2 v[4:5], v2, {S(WS)}, s5 offen sc1')
    for t in range(8):
        so = 's6' if t < 4 else 's7'
        I(f'buffer_load_dwordx4 {vr(164+4*t)}, v3, {S(WS)}, {so} offen offset:{(t%4)*1024} sc1')
    I('s_waitcnt vmcnt(0)')
    anysent([4, 5] + list(range(164, 196)), 6)
    spin_end(lab)
    stamp(3)
    I('v_mov_b32 v6, v4')
    allreduce('v_max_f32', 6, 7)
    I('v_sub_f32 v4, v4, v6')
    I('v_exp_f32 v4, v4')
    nop(1)
    I('v_cvt_pk_bf16_f32 v8, v4, v4')
    I('v_and_b32 v4, 0xffff0000, v8')
    I('v_mul_f32 v5, v4, v5')
    allreduce('v_add_f32', 5, 7)
    I('v_rcp_f32 v5, v5')
    I('v_and_b32 v2, 31, v1')
    I('v_lshlrev_b32 v2, 2, v2')
    I('s_lshl_b32 s4, s3, 7')
    I(f's_add_u32 s4, s4, {L_D_WD}')
    I('v_add_u32 v2, s4, v2')
    I('ds_write_b32 v2, v8')
    I('v_lshlrev_b32 v2, 5, v14')
    I('v_add_u32 v2, s4, v2')
    I('v_add_f32 v5, v5, v5')
    I('s_waitcnt lgkmcnt(0)')
    I('ds_read_b128 v[196:199], v2')
    I('ds_read_b128 v[200:203], v2 offset:16')
    I('s_waitcnt lgkmcnt(0)')
    gemv_diag(8, lambda t: 196 + t, 16, [204, 208], lambda blk, t: 164 + 4 * t, [212])
    for r in range(4):
        I(f'v_mul_f32 v{212+r}, v{212+r}, v5')
        I(f'v_cvt_pk_bf16_f32 v{212+r}, v{212+r}, v{212+r}')
    I('v_lshlrev_b32 v2, 5, v15')
    I('v_lshl_add_u32 v2, v14, 4, v2')
    I('s_lshl_b32 s4, s3, 9')
    I(f's_add_u32 s4, s4, {L_D_CD}')
    I('v_add_u32 v2, s4, v2')
    setexec(0xffffffff)
    I('ds_write_b128 v2, v[212:215]')
    I('s_mov_b64 exec, -1')
    I('s_waitcnt lgkmcnt(0)')
    L(sk)
    I('s_waitcnt vmcnt(0)')
    barrier()
    stamp(4)
    I('v_lshlrev_b32 v2, 6, v14')
    I('s_lshl_b32 s4, s3, 8')
    I(f's_add_u32 s4, s4, {L_D_CD}')
    I('v_add_u32 v2, s4, v2')
    for q in range(4):
        I(f'ds_read_b128 {vr(164+4*q)}, v2 offset:{q*16}')
    I('s_waitcnt lgkmcnt(0)')
    gemv_diag(16, lambda t: 164 + t, 16, [204, 208], lambda blk, t: 20 + 4 * t, [212])
    I('v_lshlrev_b32 v2, 5, v15')
    I('v_lshl_add_u32 v2, v14, 4, v2')
    I('s_lshl_b32 s4, s3, 9')
    I(f's_add_u32 s4, s4, {L_D_RED}')
    I('v_add_u32 v3, s4, v2')
    setexec(0xffffffff)
    I('ds_write_b128 v3, v[212:215]')
    I('s_mov_b64 exec, -1')
    I('s_waitcnt lgkmcnt(0)')
    barrier()
    I('v_lshlrev_b32 v3, 4, v14')
    I('s_lshl_b32 s4, s3, 6')
    I(f's_add_u32 s4, s4, {L_D_RED}')
    I('v_add_u32 v3, s4, v3')
    for w in range(8):
        I(f'ds_read_b128 {vr(164+4*w)}, v3 offset:{w*512}')
    I('s_waitcnt lgkmcnt(0)')
    for w in range(1, 8):
        for r in range(4):
            I(f'v_add_f32 v{164+r}, v{164+r}, v{164+4*w+r}')
    for r in range(4): I(f'v_cvt_pk_bf16_f32 v{164+r}, v{164+r}, v{164+r}')
    gemv_diag(4, lambda t: 164 + t, 16, [204, 208], lambda blk, t: 84 + 16 * blk + 4 * t,
              [212, 216, 220, 224, 228])
    I('s_mul_i32 s4, s3, 2560')
    I(f's_add_u32 s4, s4, {L_D_RED2}')
    I('v_add_u32 v3, s4, v2')
    setexec(0xffffffff)
    for blk in range(5):
        I(f'ds_write_b128 v3, {vr(212+4*blk)} offset:{blk*512}')
    I('s_mov_b64 exec, -1')
    I('s_waitcnt lgkmcnt(0)')
    barrier()
    I('s_cmp_gt_u32 s3, 2')
    I('s_cbranch_scc1 L_end')
    I('v_cmp_gt_u32 vcc, 160, v0')
    I('s_and_saveexec_b64 s[6:7], vcc')
    I('v_lshlrev_b32 v3, 4, v0')
    I(f'v_add_u32 v3, {L_D_RED2}, v3')
    for w in range(8):
        I(f'ds_read_b128 {vr(164+4*w)}, v3 offset:{w*2560}')
    I('s_waitcnt lgkmcnt(0)')
    for w in range(1, 8):
        for r in range(4):
            I(f'v_add_f32 v{164+r}, v{164+r}, v{164+4*w+r}')
    I('v_cvt_pk_bf16_f32 v4, v164, v165')
    I('v_cvt_pk_bf16_f32 v5, v166, v167')
    I('v_min_u32 v4, 0xfffffffe, v4')
    I('v_min_u32 v5, 0xfffffffe, v5')
    I('v_lshlrev_b32 v3, 3, v0')
    I('s_lshl_b32 s4, s43, 5')
    I('s_add_u32 s4, s4, s42')
    I('s_mul_i32 s4, s4, 1280')
    I(f's_add_u32 s4, s4, {AP}')
    I(f'buffer_store_dwordx2 v[4:5], v3, {S(WS)}, s4 offen sc1')
    I('s_mov_b64 exec, -1')
    stamp(5)
    I('s_branch L_end')

def role_E():
    L('L_role_e')
    WG, WU, WD, X_, OUT = 20, 24, 28, 32, 36
    srd(WG, 'wg'); srd(WU, 'wu'); srd(WD, 'wd'); srd(X_, 'x'); srd(OUT, 'out')
    make_masks(16, True)
    I('v_mul_u32_u24 v2, 69120, v14')
    I('v_and_b32 v3, 7, v15')
    I('v_lshl_add_u32 v2, v3, 4, v2')
    I('s_mul_i32 s4, s3, 276480')
    I('s_lshl_b32 s5, s42, 7')
    I('s_add_u32 s4, s4, s5')
    I('s_mov_b32 s6, 0x00ff00ff')
    I('s_mov_b32 s7, 0x00ff00ff')
    I('s_mov_b32 s48, 0xff00ff00')
    I('s_mov_b32 s49, 0xff00ff00')
    I('s_mov_b32 s5, s4')
    I('s_mov_b64 exec, s[6:7]')
    for t in range(20):
        I(f'buffer_load_dwordx4 {vr(20+4*t)}, v2, {S(WG)}, s4 offen nt')
        if t < 19: I('s_add_u32 s4, s4, 3456')
    I('s_mov_b64 exec, s[48:49]')
    for t in range(20):
        I(f'buffer_load_dwordx4 {vr(20+4*t)}, v2, {S(WU)}, s5 offen nt')
        if t < 19: I('s_add_u32 s5, s5, 3456')
    I('s_mov_b64 exec, -1')
    sk = uid('nodn')
    I('s_cmp_gt_u32 s3, 4')
    I(f's_cbranch_scc1 {sk}')
    I('v_mul_u32_u24 v2, 20480, v14')
    I('v_lshl_add_u32 v2, v15, 4, v2')
    I('s_mul_i32 s4, s42, 81920')
    I('s_lshl_b32 s5, s3, 8')
    I('s_add_u32 s4, s4, s5')
    for t in range(16):
        I(f'buffer_load_dwordx4 {vr(100+4*t)}, v2, {S(WD)}, s4 offen nt')
        if t < 15: I('s_add_u32 s4, s4, 1280')
    L(sk)
    sk = uid('nofw')
    I('s_cmp_lg_u32 s3, 0')
    I(f's_cbranch_scc1 {sk}')
    flags_wait()
    L(sk)
    barrier()
    stamp(2)
    I('v_and_b32 v2, 1, v14')
    I('v_lshlrev_b32 v2, 2, v2')
    I('v_lshl_add_u32 v2, v15, 3, v2')
    I('s_lshl_b32 s4, s3, 7')
    I('v_add_u32 v12, s4, v2')
    sk5 = uid('w5')
    I('s_cmp_gt_u32 s3, 4')
    I(f's_cbranch_scc1 {sk5}')
    I('v_lshlrev_b32 v2, 1, v12')
    I('s_mul_i32 s4, s43, 1280')
    I(f'buffer_load_dwordx2 v[4:5], v2, {S(X_)}, s4 offen')
    I('v_lshlrev_b32 v2, 2, v12')
    I('s_mul_i32 s4, s43, 15360')
    I(f's_add_u32 s4, s4, {MOD + 2*2560}')
    I('s_add_u32 s5, s4, 2560')
    I('s_add_u32 s6, s4, 5120')
    lab = spin_begin()
    I(f'buffer_load_dwordx4 v[164:167], v2, {S(WS)}, s4 offen sc1')
    I(f'buffer_load_dwordx4 v[168:171], v2, {S(WS)}, s5 offen sc1')
    I(f'buffer_load_dwordx4 v[172:175], v2, {S(WS)}, s6 offen sc1')
    I('s_waitcnt vmcnt(0)')
    anysent(range(164, 176), 6)
    spin_end(lab)
    I('v_lshlrev_b32 v176, 16, v4')
    I('v_and_b32 v177, 0xffff0000, v4')
    I('v_lshlrev_b32 v178, 16, v5')
    I('v_and_b32 v179, 0xffff0000, v5')
    for r in range(4):
        I(f'v_add_f32 v{172+r}, 1.0, v{172+r}')
        bfround(172 + r)
    for d in range(4): I(f'v_and_b32 v{204+d}, 0x3f803f80, v{16+d}')
    I('v_mul_u32_u24 v3, 10240, v14')
    I('v_lshl_add_u32 v3, v15, 4, v3')
    I('s_mul_i32 s4, s43, 40960')
    I('s_lshl_b32 s5, s3, 8')
    I('s_add_u32 s4, s4, s5')
    I(f's_add_u32 s4, s4, {AP}')
    I('s_add_u32 s5, s4, 3840')
    I('s_add_u32 s6, s4, 7680')
    lab = spin_begin()
    for t in range(8):
        so = ['s4', 's5', 's6'][t // 3]
        I(f'buffer_load_dwordx4 {vr(208+4*t)}, v3, {S(WS)}, {so} offen offset:{(t%3)*1280} sc1')
    I('s_waitcnt vmcnt(0)')
    anysent(range(208, 240), 6)
    spin_end(lab)
    stamp(3)
    for t in range(8):
        c = '0' if t == 0 else 'v[180:183]'
        I(f'v_mfma_f32_16x16x32_bf16 v[180:183], v[204:207], {vr(208+4*t)}, {c}')
    nop(9)
    for r in range(4):
        bfround(180 + r)
        I(f'v_mul_f32 v{180+r}, v{164+r}, v{180+r}')
        bfround(180 + r)
        I(f'v_add_f32 v{180+r}, v{176+r}, v{180+r}')
        bfround(180 + r)
    I('v_cmp_gt_u32 vcc, 32, v1')
    I('v_add_f32 v6, v180, v181')
    I('v_add_f32 v7, v182, v183')
    I('v_add_f32 v6, v6, v7')
    I('v_cndmask_b32 v6, 0, v6, vcc')
    allreduce('v_add_f32', 6, 7)
    I('v_mul_f32 v6, 0x3c000000, v6')
    for r in range(4): I(f'v_sub_f32 v{184+r}, v{180+r}, v6')
    I('v_mul_f32 v8, v184, v184')
    for r in range(1, 4): I(f'v_fmac_f32 v8, v{184+r}, v{184+r}')
    I('v_cndmask_b32 v8, 0, v8, vcc')
    allreduce('v_add_f32', 8, 7)
    I('v_mov_b32 v7, v8')
    I('s_lshl_b32 s4, s3, 3')
    I(f's_add_u32 s4, s4, {L_E_STAT}')
    I('v_mov_b32 v2, s4')
    I('v_lshlrev_b32 v3, 2, v12')
    I(f'v_add_u32 v3, {L_E_X1}, v3')
    I('s_mov_b64 exec, 1')
    I('ds_write_b64 v2, v[6:7]')
    setexec(0xffffffff)
    I('ds_write_b128 v3, v[180:183]')
    I('s_mov_b64 exec, -1')
    I('s_waitcnt lgkmcnt(0)')
    L(sk5)
    barrier()
    sk5 = uid('w5b')
    I('s_cmp_gt_u32 s3, 4')
    I(f's_cbranch_scc1 {sk5}')
    I(f'v_mov_b32 v2, {L_E_STAT}')
    I('ds_read_b128 v[184:187], v2')
    I('ds_read_b128 v[188:191], v2 offset:16')
    I('ds_read_b64 v[192:193], v2 offset:32')
    I('s_waitcnt lgkmcnt(0)')
    I('v_add_f32 v6, v184, v186')
    I('v_add_f32 v6, v6, v188')
    I('v_add_f32 v6, v6, v190')
    I('v_add_f32 v6, v6, v192')
    I('v_mul_f32 v6, 0x3e4ccccd, v6')
    I('v_add_f32 v7, v185, v187')
    I('v_add_f32 v7, v7, v189')
    I('v_add_f32 v7, v7, v191')
    I('v_add_f32 v7, v7, v193')
    for k in range(5):
        I(f'v_sub_f32 v8, v{184+2*k}, v6')
        I('v_mul_f32 v8, v8, v8')
        I('v_fmac_f32 v7, 0x43000000, v8')
    I('v_mul_f32 v7, 0x3acccccd, v7')
    bfround(6); bfround(7)
    I('v_add_f32 v7, 0x3727c5ac, v7')
    bfround(7)
    I('v_sqrt_f32 v7, v7')
    nop(1)
    bfround(7)
    I('v_rcp_f32 v7, v7')
    for r in range(4):
        I(f'v_sub_f32 v{184+r}, v{180+r}, v6')
        bfround(184 + r)
        I(f'v_mul_f32 v{184+r}, v{184+r}, v7')
        bfround(184 + r)
        I(f'v_mul_f32 v{184+r}, v{184+r}, v{172+r}')
        bfround(184 + r)
        I(f'v_add_f32 v{184+r}, v{184+r}, v{168+r}')
        I(f'v_cvt_pk_bf16_f32 v{184+r}, v{184+r}, v{184+r}')
    I('v_lshlrev_b32 v3, 2, v12')
    I(f'v_add_u32 v3, {L_E_HT}, v3')
    setexec(0xffffffff)
    I('ds_write_b128 v3, v[184:187]')
    I('s_mov_b64 exec, -1')
    I('s_waitcnt lgkmcnt(0)')
    L(sk5)
    I('s_waitcnt vmcnt(0)')
    barrier()
    stamp(4)
    I('v_mul_u32_u24 v2, 80, v14')
    I('s_mul_i32 s4, s3, 320')
    I(f's_add_u32 s4, s4, {L_E_HT}')
    I('v_add_u32 v2, s4, v2')
    for q in range(5):
        I(f'ds_read_b128 {vr(164+4*q)}, v2 offset:{q*16}')
    I('s_waitcnt lgkmcnt(0)')
    gemv_diag(20, lambda t: 164 + t, 16, [204, 208], lambda blk, t: 20 + 4 * t, [212])
    I('v_lshlrev_b32 v2, 5, v15')
    I('v_lshl_add_u32 v2, v14, 4, v2')
    I('s_lshl_b32 s4, s3, 9')
    I(f's_add_u32 s4, s4, {L_E_RED}')
    I('v_add_u32 v3, s4, v2')
    setexec(0xffffffff)
    I('ds_write_b128 v3, v[212:215]')
    I('s_mov_b64 exec, -1')
    I('s_waitcnt lgkmcnt(0)')
    barrier()
    sk = uid('nohh')
    I('s_cmp_lg_u32 s3, 0')
    I(f's_cbranch_scc1 {sk}')
    I(f'v_add_u32 v3, {L_E_RED}, v13')
    setexec(0xffff)
    for w in range(8):
        I(f'ds_read_b128 {vr(164+4*w)}, v3 offset:{w*512}')
        I(f'ds_read_b128 {vr(208+4*w)}, v3 offset:{w*512+256}')
    I('s_waitcnt lgkmcnt(0)')
    for w in range(1, 8):
        for r in range(4):
            I(f'v_add_f32 v{164+r}, v{164+r}, v{164+4*w+r}')
            I(f'v_add_f32 v{208+r}, v{208+r}, v{208+4*w+r}')
    for r in range(4):
        bfround(164 + r); bfround(208 + r)
        I(f'v_mul_f32 v{164+r}, 0xbfb8aa3b, v{164+r}')
        I(f'v_exp_f32 v{164+r}, v{164+r}')
        nop(1)
        I(f'v_add_f32 v{164+r}, 1.0, v{164+r}')
        I(f'v_rcp_f32 v{164+r}, v{164+r}')
        nop(1)
        bfround(164 + r)
        I(f'v_mul_f32 v{164+r}, v{164+r}, v{208+r}')
        I(f'v_cvt_pk_bf16_f32 v{164+r}, v{164+r}, v{164+r}')
    I(f'v_add_u32 v3, {L_E_HH}, v13')
    I('ds_write_b128 v3, v[164:167]')
    I('s_mov_b64 exec, -1')
    I('s_waitcnt lgkmcnt(0)')
    L(sk)
    barrier()
    I('s_cmp_gt_u32 s3, 4')
    I('s_cbranch_scc1 L_final')
    I('v_lshlrev_b32 v2, 6, v14')
    I(f'v_add_u32 v2, {L_E_HH}, v2')
    for q in range(4):
        I(f'ds_read_b128 {vr(164+4*q)}, v2 offset:{q*16}')
    I('s_waitcnt lgkmcnt(0)')
    gemv_diag(16, lambda t: 164 + t, 16, [204, 208], lambda blk, t: 100 + 4 * t, [212])
    for r in range(4): I(f'v_min_u32 v{212+r}, 0xfffffffe, v{212+r}')
    I('v_lshlrev_b32 v2, 2, v12')
    I('s_mul_i32 s4, s43, 27')
    I('s_add_u32 s4, s4, s42')
    I('s_mul_i32 s4, s4, 2560')
    I(f's_add_u32 s4, s4, {FP}')
    setexec(0xffffffff)
    I(f'buffer_store_dwordx4 v[212:215], v2, {S(WS)}, s4 offen sc1')
    I('s_mov_b64 exec, -1')
    stamp(5)
    I('s_branch L_end')
    L('L_final')
    I('s_cmp_lg_u32 s3, 5')
    I('s_cbranch_scc1 L_end')
    I('s_cmp_ge_u32 s42, 10')
    I('s_cbranch_scc1 L_end')
    I('s_lshl_b32 s4, s42, 6')
    I('v_add_u32 v12, s4, v1')
    I('v_lshlrev_b32 v2, 2, v12')
    I(f'v_add_u32 v3, {L_E_X1}, v2')
    I('ds_read_b32 v10, v3')
    I('s_mul_i32 s4, s43, 15360')
    I(f's_add_u32 s4, s4, {MOD + 5*2560}')
    I('s_mul_i32 s5, s43, 69120')
    I(f's_add_u32 s5, s5, {FP}')
    lab = spin_begin()
    I(f'buffer_load_dword v11, v2, {S(WS)}, s4 offen sc1')
    I('s_mov_b32 s6, s5')
    for p in range(27):
        I(f'buffer_load_dword v{20+p}, v2, {S(WS)}, s6 offen sc1')
        if p < 26: I('s_add_u32 s6, s6, 2560')
    I('s_waitcnt vmcnt(0)')
    anysent([11] + list(range(20, 47)), 6)
    spin_end(lab)
    for p in range(1, 27): I(f'v_add_f32 v20, v20, v{20+p}')
    bfround(20)
    I('v_mul_f32 v20, v11, v20')
    bfround(20)
    I('s_waitcnt lgkmcnt(0)')
    I('v_add_f32 v20, v10, v20')
    I('v_cvt_pk_bf16_f32 v20, v20, v20')
    I('v_lshlrev_b32 v2, 1, v12')
    I('s_mul_i32 s4, s43, 1280')
    I(f'buffer_store_short v20, v2, {S(OUT)}, s4 offen')
    if STAMP:
        I('s_mov_b32 s3, 0')
        stamp(6)

prologue()
role_A()
role_DE_common()
role_D()
role_E()
L('L_end')
I('s_endpgm')

hdr = open('cdna_kernels/' + NAME + '.s.ref').read().split('\n')
out = []
for ln in hdr:
    if ln.startswith('; @launch'):
        out.append(f'; @launch grid=(256,1,1) block=(512,1,1) lds={LDS_BYTES}')
    elif ln.startswith(';'):
        out.append(ln)
    else:
        break
out += ['.amdgcn_target "amdgcn-amd-amdhsa--gfx950"', '.text', f'.globl {NAME}_kernel', '.p2align 8',
        f'.type {NAME}_kernel,@function', f'{NAME}_kernel:']
out += lines
out += ['.section .rodata,"a"', '.p2align 6', f'.amdhsa_kernel {NAME}_kernel',
        '  .amdhsa_next_free_vgpr 256', '  .amdhsa_next_free_sgpr 102', '  .amdhsa_accum_offset 256',
        '  .amdhsa_group_segment_fixed_size 0', '  .amdhsa_kernarg_size 120', '  .amdhsa_user_sgpr_count 2',
        '  .amdhsa_user_sgpr_kernarg_segment_ptr 1', '  .amdhsa_system_sgpr_workgroup_id_x 1',
        '.end_amdhsa_kernel', '']
open(sys.argv[1], 'w').write('\n'.join(out))
```

```python
import sys

NAME = 'adaLN_cond__compressed_kv_cla__glu_gated_glu__decode'
STAMP = int(sys.argv[2]) if len(sys.argv) > 2 else 0
SPIN_LIMIT = 200000

EPOCH = 0
FLAGS = 2048
MOD = 8192
QP = 131072
QA = 262144
ML = 327680
AP = 360448
FP = 442368
STP = 589824
OP = 1048576
WS_BYTES = OP + 2 * 32 * 32 * 1024

CKS = 1040
L_WU = 0
L_HD = 66560
L_RED = L_HD + 2560
L_QT2 = L_RED + 5120
L_CK = 0
L_QT = 0
PTS = 272
L_PT = 133120
L_MX = L_PT + 32 * PTS
LDS_BYTES = L_MX + 1024
L_WT0 = 0
L_WT1 = 20480
L_ST = 40960
L_FC = 44032
L_D_WD = 45056
L_D_CD = 46080
L_D_RED = 49152
L_D_RED2 = 53248
L_E_STAT = 45056
L_E_X1 = 45312
L_E_HT = 48128
L_E_RED = 53248
L_E_HH = 57344
PACE = int(sys.argv[3]) if len(sys.argv) > 3 else 6
SLOWN = int(sys.argv[4]) if len(sys.argv) > 4 else 6
DRY = int(sys.argv[5]) if len(sys.argv) > 5 else 0
EGATE = int(sys.argv[6]) if len(sys.argv) > 6 else 1
EPACE = int(sys.argv[7]) if len(sys.argv) > 7 else 6
SLOWP = int(sys.argv[8]) if len(sys.argv) > 8 else 2
LATEC = int(sys.argv[9]) if len(sys.argv) > 9 else 0
CK0 = int(sys.argv[10]) if len(sys.argv) > 10 else 4
CK1 = int(sys.argv[11]) if len(sys.argv) > 11 else 6
W1GATE = int(sys.argv[12]) if len(sys.argv) > 12 else 0
XSPLIT = int(sys.argv[13]) if len(sys.argv) > 13 else 0
P3GATE = int(sys.argv[14]) if len(sys.argv) > 14 else 0

TAGC_LO = 0x7F4A7C15
TAGC_HI = 0x9E3779B9

lines = []
def I(s): lines.append('    ' + s)
def L(s): lines.append(s + ':')
def C(s): lines.append('    ; ' + s)
def nop(n):
    while n > 0:
        k = min(n, 16)
        I(f's_nop {k-1}')
        n -= k
_uid = [0]
def uid(p):
    _uid[0] += 1
    return f'L_{p}_{_uid[0]}'
def vr(a, n=4): return f'v[{a}:{a+n-1}]'

PTR = {k: 64 + 2 * i for i, k in enumerate(
    ['x', 'ckv', 'wq', 'wuk', 'wuv', 'wo', 'bx', 'wg', 'wu', 'wd', 'c', 'wmod', 'out', 'dbg', 'ws'])}
NBYTES = dict(x=2560, ckv=8388608, wq=5242880, wuk=4194304, wuv=4194304, wo=5242880, wg=2211840, wu=2211840,
              wd=2211840, c=2560, wmod=4915200, out=2560, ws=WS_BYTES)
def srd(d, name):
    p = PTR[name]
    I(f's_mov_b32 s{d}, s{p}')
    I(f's_and_b32 s{d+1}, s{p+1}, 0xffff')
    I(f's_mov_b32 s{d+2}, {NBYTES[name]}')
    I(f's_mov_b32 s{d+3}, 0x00020000')
def S(d): return f's[{d}:{d+3}]'
WS = 8

def setexec(lo, hi=0):
    I(f's_and_b32 exec_lo, s100, 0x{lo:x}')
    if hi: I(f's_and_b32 exec_hi, s100, 0x{hi:x}')
    else: I('s_mov_b32 exec_hi, 0')
def fullexec():
    I('s_mov_b64 exec, s[100:101]')
def skip_if(lab):
    I('s_cselect_b32 s99, s100, 0')
    I('s_cmp_lg_u32 s99, 0')
    I(f's_cbranch_scc1 {lab}')
def barrier():
    o = uid('bar')
    I('s_cmp_eq_u32 s100, 0')
    I(f's_cbranch_scc1 {o}')
    I('s_barrier')
    L(o)
def enter_dry(target):
    I('s_mov_b64 s[100:101], 0')
    I('s_mov_b64 exec, 0')
    I(f's_branch {target}')
def role_end(back):
    I('s_cmp_lg_u32 s100, 0')
    I('s_cbranch_scc1 L_end')
    I('s_mov_b64 s[100:101], -1')
    I('s_mov_b64 exec, -1')
    I(f's_branch {back}')

def stamp(idx, wave=0):
    if not STAMP: return
    skip = uid('st')
    I(f's_cmp_lg_u32 s3, {wave}')
    I(f's_cbranch_scc1 {skip}')
    I('s_memrealtime s[60:61]')
    I('s_waitcnt lgkmcnt(0)')
    I('v_mov_b32 v254, s60')
    I('v_mov_b32 v255, s61')
    I(f's_lshl_b32 s62, s2, 7')
    I(f's_add_u32 s62, s62, {STP + idx*8}')
    I('v_mov_b32 v253, 0')
    I('s_mov_b64 s[58:59], exec')
    setexec(1)
    I(f'buffer_store_dwordx2 v[254:255], v253, {S(WS)}, s62 offen')
    I('s_mov_b64 exec, s[58:59]')
    L(skip)

def spin_begin():
    I('s_mov_b32 s98, 0')
    lab = uid('spin')
    L(lab)
    return lab
def spin_end(lab, sleep=1):
    done = uid('spd')
    I(f's_cbranch_vccz {done}')
    I('s_add_u32 s98, s98, 1')
    I(f's_cmp_gt_u32 s98, {SPIN_LIMIT}')
    I('s_cbranch_scc1 L_end')
    I(f's_sleep {sleep}')
    I(f's_branch {lab}')
    L(done)

def anysent(regs, tmp):
    regs = list(regs)
    cur = regs[0]; rest = regs[1:]
    while rest:
        if len(rest) >= 2:
            I(f'v_max3_u32 v{tmp}, v{cur}, v{rest[0]}, v{rest[1]}'); rest = rest[2:]
        else:
            I(f'v_max_u32 v{tmp}, v{cur}, v{rest[0]}'); rest = rest[1:]
        cur = tmp
    I(f'v_cmp_eq_u32 vcc, -1, v{cur}')

def allreduce(op, x, tmp, rows_only=False, skip_row=False):
    if not skip_row:
        for ctl in ['quad_perm:[1,0,3,2]', 'quad_perm:[2,3,0,1]', 'row_half_mirror', 'row_mirror']:
            nop(2)
            I(f'{op}_dpp v{x}, v{x}, v{x} {ctl} row_mask:0xf bank_mask:0xf')
    if rows_only: return
    for sw in ['v_permlane16_swap_b32', 'v_permlane32_swap_b32']:
        I(f'v_mov_b32 v{tmp}, v{x}')
        nop(2)
        I(f'{sw} v{x}, v{tmp}')
        nop(1)
        I(f'{op} v{x}, v{x}, v{tmp}')

def bfround(x, tmp=None):
    I(f'v_cvt_pk_bf16_f32 v{x}, v{x}, v{x}')
    I(f'v_and_b32 v{x}, 0xffff0000, v{x}')

def make_masks(m, single):
    I('v_and_b32 v2, 1, v1')
    I('v_cmp_eq_u32 vcc, 1, v2')
    I('v_mov_b32 v3, 0xffff')
    I('v_mov_b32 v2, 0xffff0000')
    nop(1)
    I('v_cndmask_b32 v3, v3, v2, vcc')
    if single:
        I('v_and_b32 v2, 8, v1')
        I('v_cmp_eq_u32 vcc, 0, v2')
        nop(2)
        I('v_cndmask_b32 v3, 0, v3, vcc')
    I('v_bfe_u32 v2, v1, 1, 2')
    for d in range(4):
        I(f'v_cmp_eq_u32 vcc, {d}, v2')
        nop(2)
        I(f'v_cndmask_b32 v{m+d}, 0, v3, vcc')

def gemv_diag(T, aval, masks, abuf, bq, accs):
    def build(t):
        a = abuf[t % 2]
        for d in range(4):
            I(f'v_and_b32 v{a+d}, v{masks+d}, v{aval(t)}')
    build(0)
    for t in range(T):
        a = abuf[t % 2]
        if t + 1 < T:
            build(t + 1)
        else:
            nop(2)
        for blk, acc in enumerate(accs):
            c = '0' if t == 0 else vr(acc)
            I(f'v_mfma_f32_16x16x32_bf16 {vr(acc)}, {vr(a)}, {vr(bq(blk, t))}, {c}')
    nop(9)

def flags_wait(which, first=0, count=256, sleep=1):
    I('v_lshlrev_b32 v2, 4, v1')
    I(f'v_add_u32 v2, {FLAGS + 2048*which + 8*first}, v2')
    if count == 64: setexec(0xffffffff)
    lab = spin_begin()
    I(f'buffer_load_dwordx4 v[4:7], v2, {S(WS)}, 0 offen sc1')
    if count == 256:
        I(f'buffer_load_dwordx4 v[8:11], v2, {S(WS)}, 0 offen offset:1024 sc1')
    I('s_waitcnt vmcnt(0)')
    n = 12 if count == 256 else 8
    for r in range(4, n):
        I(f'v_xor_b32 v{r}, s{96 + (r & 1)}, v{r}')
    I('v_or3_b32 v4, v4, v5, v6')
    if count == 256:
        I('v_or3_b32 v4, v4, v7, v8')
        I('v_or3_b32 v4, v4, v9, v10')
        I('v_or_b32 v4, v4, v11')
    else:
        I('v_or_b32 v4, v4, v7')
    I('v_cmp_ne_u32 vcc, 0, v4')
    spin_end(lab, sleep)
    if count == 64: fullexec()

def flag_store(which, t0=4):
    I('s_waitcnt vmcnt(0) lgkmcnt(0)')
    I(f's_add_u32 s96, s94, 0x{TAGC_LO:x}')
    I(f's_addc_u32 s97, s95, 0x{TAGC_HI:x}')
    I(f'v_mov_b32 v{t0}, s96')
    I(f'v_mov_b32 v{t0+1}, s97')
    I('s_lshl_b32 s4, s2, 3')
    I(f's_add_u32 s4, s4, {FLAGS + 2048*which}')
    I(f'v_mov_b32 v{t0+2}, 0')
    setexec(1)
    I(f'buffer_store_dwordx2 v[{t0}:{t0+1}], v{t0+2}, {S(WS)}, s4 offen sc1')
    fullexec()

def lds_gate():
    I(f'v_mov_b32 v4, {L_FC}')
    lab = spin_begin()
    I('ds_read_b32 v5, v4')
    I('s_waitcnt lgkmcnt(0)')
    I('v_cmp_ne_u32 vcc, 1, v5')
    spin_end(lab, 2)

def paced(loads, depth):
    for i, ld in enumerate(loads):
        if i >= depth: I(f's_waitcnt vmcnt({depth-1})')
        for x in ld: I(x)

def tag_compute():
    I('s_waitcnt lgkmcnt(0)')
    I(f's_add_u32 s96, s94, 0x{TAGC_LO:x}')
    I(f's_addc_u32 s97, s95, 0x{TAGC_HI:x}')

def prologue():
    I('s_cmp_ge_u32 s2, 256')
    I('s_cbranch_scc1 L_end')
    I('s_mov_b64 s[100:101], -1')
    if XSPLIT:
        I('s_lshr_b32 s4, s2, 3')
        I('s_lshl_b32 s4, s4, 2')
        I('s_and_b32 s5, s2, 3')
        I('s_add_u32 s4, s4, s5')
        I('s_bfe_u32 s5, s2, 0x10002')
        I('s_lshl_b32 s5, s5, 7')
        I('s_add_u32 s2, s4, s5')
    I('s_load_dwordx16 s[64:79], s[0:1], 0')
    I('s_load_dwordx8 s[80:87], s[0:1], 64')
    I('s_load_dwordx4 s[88:91], s[0:1], 96')
    I('s_load_dwordx2 s[92:93], s[0:1], 112')
    I('v_lshrrev_b32 v1, 6, v0')
    nop(1)
    I('v_readfirstlane_b32 s3, v1')
    I('v_and_b32 v1, 63, v0')
    I('s_waitcnt lgkmcnt(0)')
    I('s_load_dwordx2 s[94:95], s[92:93], 0')
    srd(WS, 'ws')
    stamp(0)
    I('v_lshrrev_b32 v14, 4, v1')
    I('v_and_b32 v15, 15, v1')
    I('v_lshlrev_b32 v13, 4, v1')
    I('s_cmp_ge_u32 s2, 128')
    I('s_cbranch_scc1 L_de')
    I('s_cmp_ge_u32 s2, 64')
    I('s_cbranch_scc1 L_p3')

def role_P12():
    X_, WQ, WUK = 12, 16, 20
    srd(X_, 'x'); srd(WQ, 'wq'); srd(WUK, 'wuk')
    I('s_lshr_b32 s40, s2, 1')
    I('s_and_b32 s41, s2, 1')
    I('s_mul_i32 s45, s41, 320')
    I('s_cmp_lg_u32 s3, 7')
    I('s_cbranch_scc1 L_a_init')
    for r in range(4, 8): I(f'v_mov_b32 v{r}, -1')
    I('s_lshl_b32 s4, s2, 10')
    I(f's_add_u32 s4, s4, {QP}')
    I(f'buffer_store_dwordx4 v[4:7], v13, {S(WS)}, s4 offen sc1')
    I('v_lshrrev_b32 v3, 5, v1')
    I('v_lshlrev_b32 v3, 15, v3')
    I('v_and_b32 v2, 31, v1')
    I('v_lshl_add_u32 v3, v2, 4, v3')
    I('s_lshl_b32 s4, s2, 9')
    I(f's_add_u32 s4, s4, {QA}')
    I(f'buffer_store_dwordx4 v[4:7], v3, {S(WS)}, s4 offen sc1')
    flag_store(0, 8)
    stamp(9, 7)
    I('s_branch L_a_main')
    L('L_a_init')
    I('s_cmp_gt_u32 s3, 4')
    I('s_cbranch_scc1 L_a_h1')
    I('v_lshlrev_b32 v2, 17, v14')
    I('v_lshl_add_u32 v2, v15, 4, v2')
    I('s_lshl_b32 s4, s3, 6')
    I('s_add_u32 s4, s4, s45')
    I('s_lshl_b32 s4, s4, 13')
    I('s_lshl_b32 s5, s40, 8')
    I('s_add_u32 s4, s4, s5')
    for t in range(16):
        I(f'buffer_load_dwordx4 {vr(20+4*t)}, v2, {S(WQ)}, s4 offen nt')
        if t < 15: I('s_add_u32 s4, s4, 8192')
    I('v_lshlrev_b32 v2, 13, v14')
    I('v_lshl_add_u32 v2, v15, 4, v2')
    I('s_lshl_b32 s4, s41, 21')
    I('s_lshl_b32 s5, s40, 8')
    I('s_add_u32 s4, s4, s5')
    I('s_mul_i32 s6, s3, 13')
    I('s_lshl_b32 s5, s6, 15')
    I('s_add_u32 s4, s4, s5')
    I('s_mul_i32 s5, s6, 1040')
    for q in range(13):
        if q == 12:
            I('s_cmp_eq_u32 s3, 4')
            I('s_cbranch_scc1 L_a_dmadone')
        I('s_mov_b32 m0, s5')
        nop(1)
        I(f'buffer_load_dwordx4 v2, {S(WUK)}, s4 offen nt lds')
        if q < 12:
            I('s_add_u32 s4, s4, 32768')
            I('s_add_u32 s5, s5, 1040')
    L('L_a_dmadone')
    make_masks(16, False)
    tag_compute()
    I('s_waitcnt vmcnt(0)')
    stamp(10, 4)
    I('s_branch L_a_main')
    L('L_a_h1')
    I('s_sub_u32 s46, s3, 5')
    I('s_mul_i32 s4, s46, 1280')
    I('v_lshlrev_b32 v3, 2, v1')
    for k in range(5):
        I(f'buffer_load_dword v{80 + k}, v3, {S(X_)}, s4 offen offset:{k*256}')
    I('s_lshl_b32 s5, s45, 1')
    I('s_add_u32 s5, s5, s4')
    I(f'buffer_load_dwordx4 v[84+4:84+7], v13, {S(X_)}, s5 offen'.replace('84+4', '88').replace('84+7', '91'))
    tag_compute()
    I('s_waitcnt vmcnt(0)')
    for k in range(5):
        I(f'v_lshlrev_b32 v{96+2*k}, 16, v{80+k}')
        I(f'v_and_b32 v{97+2*k}, 0xffff0000, v{80+k}')
    I('v_add_f32 v92, v96, v97')
    for k in range(2, 10): I(f'v_add_f32 v92, v92, v{96+k}')
    allreduce('v_add_f32', 92, 93)
    I('v_mul_f32 v92, 0x3acccccd, v92')
    for k in range(10): I(f'v_sub_f32 v{96+k}, v{96+k}, v92')
    I('v_mul_f32 v94, v96, v96')
    for k in range(1, 10): I(f'v_fmac_f32 v94, v{96+k}, v{96+k}')
    allreduce('v_add_f32', 94, 93)
    I('v_mul_f32 v94, 0x3acccccd, v94')
    bfround(92); bfround(94)
    I('v_add_f32 v94, 0x3727c5ac, v94')
    bfround(94)
    I('v_sqrt_f32 v94, v94')
    nop(1)
    bfround(94)
    I('v_rcp_f32 v94, v94')
    for k in range(4):
        I(f'v_lshlrev_b32 v{72+2*k}, 16, v{88+k}')
        I(f'v_and_b32 v{73+2*k}, 0xffff0000, v{88+k}')
    for r in range(8):
        I(f'v_sub_f32 v{72+r}, v{72+r}, v92')
        bfround(72 + r)
        I(f'v_mul_f32 v{72+r}, v{72+r}, v94')
        bfround(72 + r)
    flags_wait(0, 128, 128)
    stamp(1, 5)
    I('s_mul_i32 s4, s46, 15360')
    I('s_lshl_b32 s5, s45, 2')
    I('s_add_u32 s4, s4, s5')
    I(f's_add_u32 s48, s4, {MOD}')
    for kq in range(1, 4): I(f's_add_u32 s{48+kq}, s48, {kq*30720}')
    I('v_lshlrev_b32 v2, 5, v1')
    I('s_mul_i32 s4, s46, 1280')
    I(f's_add_u32 s4, s4, {L_HD}')
    I('v_add_u32 v3, s4, v2')
    setexec(0xffffffff, 0xff)
    lab = spin_begin()
    for kq in range(4):
        I(f'buffer_load_dwordx4 {vr(96+16*kq)}, v2, {S(WS)}, s{48+kq} offen sc1')
        I(f'buffer_load_dwordx4 {vr(100+16*kq)}, v2, {S(WS)}, s{48+kq} offen offset:16 sc1')
        I(f'buffer_load_dwordx4 {vr(104+16*kq)}, v2, {S(WS)}, s{48+kq} offen offset:2560 sc1')
        I(f'buffer_load_dwordx4 {vr(108+16*kq)}, v2, {S(WS)}, s{48+kq} offen offset:2576 sc1')
    I('s_waitcnt vmcnt(0)')
    anysent(range(96, 160), 12)
    spin_end(lab)
    for r in range(16):
        I(f'v_add_f32 v{96+r}, v{96+r}, v{112+r}')
        I(f'v_add_f32 v{128+r}, v{128+r}, v{144+r}')
        I(f'v_add_f32 v{96+r}, v{96+r}, v{128+r}')
        bfround(96 + r)
    for r in range(8):
        I(f'v_add_f32 v{104+r}, 1.0, v{104+r}')
        bfround(104 + r)
        I(f'v_mul_f32 v{104+r}, v{72+r}, v{104+r}')
        bfround(104 + r)
        I(f'v_add_f32 v{104+r}, v{104+r}, v{96+r}')
        I(f'v_cvt_pk_bf16_f32 v{104+r}, v{104+r}, v{104+r}')
    I('ds_write_b128 v3, v[104:107]')
    I('ds_write_b128 v3, v[108:111] offset:16')
    fullexec()
    I('s_waitcnt lgkmcnt(0)')
    L('L_a_main')
    barrier()
    stamp(2)
    sk = uid('nofc')
    I('s_cmp_lg_u32 s3, 6')
    I(f's_cbranch_scc1 {sk}')
    flag_store(2, 8)
    L(sk)
    sk = uid('nop1')
    I('s_cmp_gt_u32 s3, 4')
    I(f's_cbranch_scc1 {sk}')
    I('v_bfe_u32 v2, v1, 3, 1')
    I('v_mul_u32_u24 v2, 1280, v2')
    I('v_lshl_add_u32 v2, v14, 6, v2')
    I('s_lshl_b32 s4, s3, 8')
    I(f's_add_u32 s4, s4, {L_HD}')
    I('v_add_u32 v2, s4, v2')
    for q in range(4):
        I(f'ds_read_b128 {vr(84+4*q)}, v2 offset:{q*16}')
    I('v_lshrrev_b32 v2, 1, v14')
    I('v_lshlrev_b32 v2, 9, v2')
    I('v_lshl_add_u32 v2, v15, 5, v2')
    I('v_and_b32 v3, 1, v14')
    I('v_lshl_add_u32 v2, v3, 4, v2')
    I('s_lshl_b32 s4, s3, 10')
    I(f's_add_u32 s4, s4, {L_RED}')
    I('v_add_u32 v2, s4, v2')
    I('s_waitcnt lgkmcnt(0)')
    gemv_diag(16, lambda t: 84 + t, 16, [100, 104], lambda blk, t: 20 + 4 * t, [108])
    I('ds_write_b128 v2, v[108:111]')
    I('s_waitcnt lgkmcnt(0)')
    L(sk)
    barrier()
    sk = uid('nop1r')
    I('s_cmp_lg_u32 s3, 0')
    I(f's_cbranch_scc1 {sk}')
    I(f'v_add_u32 v2, {L_RED}, v13')
    for w in range(5):
        I(f'ds_read_b128 {vr(164+4*w)}, v2 offset:{w*1024}')
    I('s_lshl_b32 s4, s2, 10')
    I(f's_add_u32 s4, s4, {QP}')
    I('s_waitcnt lgkmcnt(0)')
    for r in range(4):
        I(f'v_add_f32 v{164+r}, v{164+r}, v{168+r}')
        I(f'v_add_f32 v{172+r}, v{172+r}, v{176+r}')
        I(f'v_add_f32 v{164+r}, v{164+r}, v{180+r}')
        I(f'v_add_f32 v{164+r}, v{164+r}, v{172+r}')
        I(f'v_min_u32 v{164+r}, 0xfffffffe, v{164+r}')
    I(f'buffer_store_dwordx4 v[164:167], v13, {S(WS)}, s4 offen sc1')
    stamp(3)
    flags_wait(0, 0, 128)
    sk2 = uid('noep')
    I('s_cmp_lg_u32 s2, 0')
    I(f's_cbranch_scc1 {sk2}')
    I('v_mov_b32 v10, s96')
    I('v_mov_b32 v11, s97')
    I('v_mov_b32 v12, 0')
    setexec(1)
    I(f'buffer_store_dwordx2 v[10:11], v12, {S(WS)}, 0 offen sc1')
    fullexec()
    L(sk2)
    I('s_xor_b32 s4, s2, 1')
    I('s_lshl_b32 s4, s4, 10')
    I(f's_add_u32 s4, s4, {QP}')
    lab = spin_begin()
    I(f'buffer_load_dwordx4 v[168:171], v13, {S(WS)}, s4 offen sc1')
    I('s_waitcnt vmcnt(0)')
    anysent(range(168, 172), 2)
    spin_end(lab)
    for r in range(4):
        I(f'v_add_f32 v{168+r}, v{168+r}, v{164+r}')
    I('v_cvt_pk_bf16_f32 v172, v168, v169')
    I('v_cvt_pk_bf16_f32 v173, v170, v171')
    I('v_lshlrev_b32 v2, 3, v1')
    I(f'v_add_u32 v2, {L_QT2}, v2')
    I('ds_write_b64 v2, v[172:173]')
    L(sk)
    I('s_waitcnt lgkmcnt(0)')
    barrier()
    stamp(4)
    I('v_and_b32 v2, 1, v15')
    I('v_lshlrev_b32 v2, 8, v2')
    I('v_lshl_add_u32 v2, v14, 4, v2')
    I(f'v_add_u32 v2, {L_QT2}, v2')
    for t in range(4):
        I(f'ds_read_b128 {vr(164+4*t)}, v2 offset:{t*64}')
    I('v_lshrrev_b32 v2, 2, v15')
    I('v_mul_u32_u24 v2, 1040, v2')
    I('v_and_b32 v3, 3, v15')
    I('v_lshl_add_u32 v2, v3, 8, v2')
    I('v_lshl_add_u32 v2, v14, 4, v2')
    I('s_mul_i32 s4, s3, 8320')
    I(f's_add_u32 s4, s4, {L_WU}')
    I('v_add_u32 v2, s4, v2')
    for t in range(4):
        for n in range(2):
            I(f'ds_read_b128 {vr(20+16*n+4*t)}, v2 offset:{n*4160 + t*64}')
    I('v_lshlrev_b32 v2, 15, v15')
    I('v_lshl_add_u32 v2, v14, 3, v2')
    I('s_lshl_b32 s4, s2, 9')
    I('s_lshl_b32 s5, s3, 6')
    I('s_add_u32 s4, s4, s5')
    I(f's_add_u32 s4, s4, {QA}')
    I('s_mov_b32 s5, 0x3e0293ee')
    for t in range(4):
        I(f's_waitcnt lgkmcnt({6-2*t})')
        for n in range(2):
            c = '0' if t == 0 else vr(180 + 4 * n)
            I(f'v_mfma_f32_16x16x32_bf16 {vr(180+4*n)}, {vr(20+16*n+4*t)}, {vr(164+4*t)}, {c}')
    nop(9)
    for r in range(8): I(f'v_mul_f32 v{180+r}, s5, v{180+r}')
    for q in range(4):
        I(f'v_cvt_pk_bf16_f32 v{188+q}, v{180+2*q}, v{181+2*q}')
        I(f'v_min_u32 v{188+q}, 0xfffffffe, v{188+q}')
    setexec(0x00030003, 0x00030003)
    I(f'buffer_store_dwordx2 v[188:189], v2, {S(WS)}, s4 offen sc1')
    I(f'buffer_store_dwordx2 v[190:191], v2, {S(WS)}, s4 offen offset:32 sc1')
    fullexec()
    stamp(5)
    I('s_branch L_end')

def role_P3():
    L('L_p3')
    CKV = 12
    srd(CKV, 'ckv')
    I('s_sub_u32 s40, s2, 64')
    I('s_lshr_b32 s42, s40, 5')
    I('s_and_b32 s43, s40, 31')
    sk = uid('nofa')
    I('s_cmp_lg_u32 s3, 7')
    I(f's_cbranch_scc1 {sk}')
    flag_store(0, 8)
    L(sk)
    tag_compute()
    if P3GATE:
        flags_wait(2, 0, 64, 4)
    I('s_lshl_b32 s4, s40, 17')
    I('s_lshl_b32 s5, s3, 14')
    I('s_add_u32 s4, s4, s5')
    I(f's_mul_i32 s5, s3, {16*CKS}')
    for r in range(16):
        I('s_mov_b32 m0, s5')
        nop(1)
        I(f'buffer_load_dwordx4 v13, {S(CKV)}, s4 offen nt lds')
        if r < 15:
            I('s_add_u32 s4, s4, 1024')
            I(f's_add_u32 s5, s5, {CKS}')
    I('s_waitcnt vmcnt(0)')
    barrier()
    stamp(1)
    I(f'v_mul_u32_u24 v2, {CKS}, v15')
    I('v_lshl_add_u32 v2, v14, 4, v2')
    I(f's_mul_i32 s4, s3, {16*CKS}')
    I('v_add_u32 v2, s4, v2')
    for t in range(16):
        I(f'ds_read_b128 {vr(20+4*t)}, v2 offset:{t*64}')
    I('v_lshrrev_b32 v2, 2, v15')
    I('v_lshl_add_u32 v2, v14, 3, v2')
    I(f'v_mul_u32_u24 v2, {CKS}, v2')
    I('v_and_b32 v3, 3, v15')
    I('v_lshl_add_u32 v2, v3, 5, v2')
    I('s_lshl_b32 s4, s3, 7')
    I('v_add_u32 v2, s4, v2')
    I(f'v_add_u32 v3, {64*CKS}, v2')
    for n in range(4):
        for t in range(4):
            base = 84 + 16 * n + 4 * t
            ad = 'v2' if t < 2 else 'v3'
            off = (t % 2) * 32 * CKS + n * 8
            I(f'ds_read_b64_tr_b16 {vr(base,2)}, {ad} offset:{off}')
            I(f'ds_read_b64_tr_b16 {vr(base+2,2)}, {ad} offset:{off + 4*CKS}')
    for r in range(4): I(f'v_mov_b32 v{16+r}, 0x3f803f80')
    I('s_waitcnt lgkmcnt(0)')
    sk = uid('noh2l')
    I('s_cmp_lg_u32 s3, 0')
    I(f's_cbranch_scc1 {sk}')
    flags_wait(0, 0, 64)
    flags_wait(1, 192, 64)
    I('v_lshlrev_b32 v2, 9, v1')
    I('s_lshl_b32 s4, s42, 15')
    I(f's_add_u32 s4, s4, {QA + 508}')
    lab = spin_begin()
    I(f'buffer_load_dword v4, v2, {S(WS)}, s4 offen sc1')
    I('s_waitcnt vmcnt(0)')
    I('v_cmp_eq_u32 vcc, -1, v4')
    spin_end(lab, 1)
    L(sk)
    barrier()
    stamp(6)
    I('s_lshl_b32 s4, s42, 15')
    I('s_lshl_b32 s5, s3, 12')
    I('s_add_u32 s4, s4, s5')
    I(f's_add_u32 s4, s4, {QA}')
    lab = spin_begin()
    for k in range(4):
        I(f'buffer_load_dwordx4 {vr(148+4*k)}, v13, {S(WS)}, s4 offen offset:{k*1024} sc1')
    I('s_waitcnt vmcnt(0)')
    anysent(range(148, 164), 2)
    spin_end(lab)
    I(f's_mul_i32 s4, s3, {4*CKS}')
    I(f's_add_u32 s4, s4, {L_QT}')
    I('v_add_u32 v2, s4, v13')
    for k in range(4):
        I(f'ds_write_b128 v2, {vr(148+4*k)} offset:{k*CKS}')
    I(f'v_mul_u32_u24 v2, {CKS}, v15')
    I('v_lshl_add_u32 v2, v14, 4, v2')
    I(f'v_add_u32 v2, {L_QT}, v2')
    I('v_lshlrev_b32 v4, 5, v15')
    I(f'v_add_u32 v4, {L_MX}, v4')
    I('s_lshl_b32 s4, s3, 2')
    I('v_add_u32 v3, s4, v4')
    I('s_waitcnt lgkmcnt(0)')
    barrier()
    stamp(7)
    for t in range(16):
        I(f'ds_read_b128 {vr(148+4*t)}, v2 offset:{t*64}')
    for t in range(16):
        I(f's_waitcnt lgkmcnt({15 if t else 15})') if False else I('s_waitcnt lgkmcnt(15)')
        c = '0' if t == 0 else 'v[212:215]'
        I(f'v_mfma_f32_16x16x32_bf16 v[212:215], {vr(20+4*t)}, {vr(148+4*t)}, {c}')
        I(f'ds_read_b128 {vr(148+4*t)}, v2 offset:{16*CKS + t*64}')
    for t in range(16):
        I(f's_waitcnt lgkmcnt({15-t})')
        c = '0' if t == 0 else 'v[216:219]'
        I(f'v_mfma_f32_16x16x32_bf16 v[216:219], {vr(20+4*t)}, {vr(148+4*t)}, {c}')
    I('v_max_f32 v220, v212, v213')
    I('v_max3_f32 v220, v220, v214, v215')
    allreduce('v_max_f32', 220, 222, skip_row=True)
    I('v_max_f32 v221, v216, v217')
    I('v_max3_f32 v221, v221, v218, v219')
    allreduce('v_max_f32', 221, 222, skip_row=True)
    I('ds_write_b32 v3, v220')
    I('ds_write_b32 v3, v221 offset:512')
    I(f'v_mul_u32_u24 v5, {PTS}, v15')
    I(f'v_add_u32 v5, {L_PT}, v5')
    I('v_lshl_add_u32 v3, v14, 3, v5')
    I('s_lshl_b32 s4, s3, 5')
    I('v_add_u32 v3, s4, v3')
    I('v_lshl_add_u32 v5, v14, 4, v5')
    I('s_waitcnt lgkmcnt(0)')
    barrier()
    for ht in range(2):
        I(f'ds_read_b128 {vr(148+8*ht)}, v4 offset:{ht*512}')
        I(f'ds_read_b128 {vr(152+8*ht)}, v4 offset:{ht*512+16}')
    I('s_waitcnt lgkmcnt(0)')
    for ht in range(2):
        q = 148 + 8 * ht
        I(f'v_max3_f32 v{220+ht}, v{q}, v{q+1}, v{q+2}')
        I(f'v_max3_f32 v{220+ht}, v{220+ht}, v{q+3}, v{q+4}')
        I(f'v_max3_f32 v{220+ht}, v{220+ht}, v{q+5}, v{q+6}')
        I(f'v_max_f32 v{220+ht}, v{220+ht}, v{q+7}')
    for ht in range(2):
        for r in range(4):
            I(f'v_sub_f32 v{212+4*ht+r}, v{212+4*ht+r}, v{220+ht}')
    for r in range(8):
        I(f'v_exp_f32 v{212+r}, v{212+r}')
    nop(1)
    for q in range(4):
        I(f'v_cvt_pk_bf16_f32 v{224+q}, v{212+2*q}, v{213+2*q}')
    I('ds_write_b64 v3, v[224:225]')
    I(f'ds_write_b64 v3, v[226:227] offset:{16*PTS}')
    I('v_lshlrev_b32 v2, 15, v15')
    I('v_lshl_add_u32 v2, v14, 5, v2')
    I('s_lshl_b32 s4, s42, 20')
    I('s_lshl_b32 s5, s43, 10')
    I('s_add_u32 s4, s4, s5')
    I('s_lshl_b32 s5, s3, 7')
    I('s_add_u32 s4, s4, s5')
    I(f's_add_u32 s4, s4, {OP}')
    I('s_add_u32 s5, s4, 0x80000')
    I('s_waitcnt lgkmcnt(0)')
    barrier()
    for ht in range(2):
        for t in range(4):
            I(f'ds_read_b128 {vr(148+16*ht+4*t)}, v5 offset:{ht*16*PTS + t*64}')
    for ht in range(2):
        for t in range(4):
            I(f's_waitcnt lgkmcnt({7-4*ht-t})')
            for n in range(4):
                acc = 180 + 16 * ht + 4 * n
                c = '0' if t == 0 else vr(acc)
                I(f'v_mfma_f32_16x16x32_bf16 {vr(acc)}, {vr(84+16*n+4*t)}, {vr(148+16*ht+4*t)}, {c}')
    nop(1)
    for ht in range(2):
        for n in range(4):
            I(f'v_cvt_pk_bf16_f32 v{20+8*ht+2*n}, v{180+16*ht+4*n}, v{181+16*ht+4*n}')
            I(f'v_cvt_pk_bf16_f32 v{21+8*ht+2*n}, v{182+16*ht+4*n}, v{183+16*ht+4*n}')
        for r in range(8): I(f'v_min_u32 v{20+8*ht+r}, 0xfffffffe, v{20+8*ht+r}')
        so = 's4' if ht == 0 else 's5'
        I(f'buffer_store_dwordx4 {vr(20+8*ht)}, v2, {S(WS)}, {so} offen sc1')
        I(f'buffer_store_dwordx4 {vr(24+8*ht)}, v2, {S(WS)}, {so} offen offset:16 sc1')
    I('s_cmp_gt_u32 s3, 1')
    I('s_cbranch_scc1 L_p3_done')
    for ht in range(2):
        for t in range(4):
            acc = 36 + 4 * ht
            c = '0' if t == 0 else vr(acc)
            I(f'v_mfma_f32_16x16x32_bf16 {vr(acc)}, v[16:19], {vr(148+16*ht+4*t)}, {c}')
    I('v_lshlrev_b32 v3, 8, v1')
    I('s_lshl_b32 s4, s42, 13')
    I('s_lshl_b32 s5, s3, 12')
    I('s_add_u32 s4, s4, s5')
    I('s_lshl_b32 s5, s43, 3')
    I('s_add_u32 s4, s4, s5')
    I(f's_add_u32 s4, s4, {ML}')
    I('s_cmp_eq_u32 s3, 0')
    I('s_cselect_b64 vcc, -1, 0')
    nop(2)
    I('v_cndmask_b32 v44, v221, v220, vcc')
    I('v_cndmask_b32 v45, v40, v36, vcc')
    I('v_min_u32 v44, 0xfffffffe, v44')
    I('v_min_u32 v45, 0xfffffffe, v45')
    setexec(0xffff)
    I(f'buffer_store_dwordx2 v[44:45], v3, {S(WS)}, s4 offen sc1')
    fullexec()
    L('L_p3_done')
    stamp(8)
    I('s_branch L_end')

def role_DE_common():
    L('L_de')
    C_, WM = 12, 16
    srd(C_, 'c'); srd(WM, 'wmod')
    I('s_sub_u32 s40, s2, 128')
    I('v_lshrrev_b32 v14, 4, v1')
    I('v_and_b32 v15, 15, v1')
    I('v_lshlrev_b32 v13, 4, v1')
    if XSPLIT:
        I('s_and_b32 s4, s40, 63')
        I('s_and_b32 s5, s4, 3')
        I('s_lshr_b32 s6, s4, 3')
        I('s_lshl_b32 s6, s6, 2')
        I('s_add_u32 s42, s6, s5')
        I('s_bfe_u32 s43, s4, 0x10002')
        I('s_mov_b32 s47, 0')
        I('s_cmp_lt_u32 s40, 64')
        I('s_cbranch_scc1 L_dec_done')
        I('s_cmp_ge_u32 s42, 27')
        I('s_cselect_b32 s47, 1, 0')
    else:
        I('s_cmp_ge_u32 s40, 118')
        I('s_cselect_b32 s47, 1, 0')
        I('s_cmp_ge_u32 s40, 64')
        I('s_cbranch_scc1 L_dec_e')
        I('s_lshr_b32 s4, s40, 4')
        I('s_lshl_b32 s4, s4, 3')
        I('s_and_b32 s5, s40, 7')
        I('s_add_u32 s42, s4, s5')
        I('s_bfe_u32 s43, s40, 0x10003')
        I('s_branch L_dec_done')
        L('L_dec_e')
        I('s_sub_u32 s6, s40, 64')
        I('s_lshr_b32 s4, s6, 4')
        I('s_lshl_b32 s4, s4, 3')
        I('s_and_b32 s5, s6, 7')
        I('s_add_u32 s42, s4, s5')
        I('s_bfe_u32 s43, s6, 0x10003')
        I('s_cmp_lt_u32 s6, 48')
        I('s_cbranch_scc1 L_dec_done')
        I('s_sub_u32 s6, s6, 48')
        I('s_cmp_ge_u32 s6, 3')
        I('s_cselect_b32 s43, 1, 0')
        I('s_mul_i32 s4, s43, 3')
        I('s_sub_u32 s6, s6, s4')
        I('s_add_u32 s42, s6, 24')
    L('L_dec_done')
    sk = uid('noclr')
    I('s_cmp_lg_u32 s3, 7')
    I(f's_cbranch_scc1 {sk}')
    for r in range(4, 8): I(f'v_mov_b32 v{r}, -1')
    I('v_lshrrev_b32 v2, 5, v1')
    I('v_lshlrev_b32 v2, 13, v2')
    I('v_bfe_u32 v3, v1, 4, 1')
    I('v_mul_u32_u24 v3, 15360, v3')
    I('v_add_u32 v2, v2, v3')
    I('v_lshl_add_u32 v2, v15, 4, v2')
    I('s_and_b32 s4, s40, 3')
    I('s_mul_i32 s4, s4, 30720')
    I('s_lshr_b32 s5, s40, 2')
    I('s_lshl_b32 s5, s5, 8')
    I('s_add_u32 s4, s4, s5')
    I(f's_add_u32 s4, s4, {MOD}')
    I('s_cmp_lt_u32 s40, 112')
    I('s_cselect_b32 exec_hi, -1, 0')
    I(f'buffer_store_dwordx4 v[4:7], v2, {S(WS)}, s4 offen sc1')
    fullexec()
    I('s_cmp_ge_u32 s40, 64')
    I('s_cbranch_scc1 L_clr_e')
    I('s_lshl_b32 s4, s43, 5')
    I('s_add_u32 s4, s4, s42')
    I('s_mul_i32 s4, s4, 1280')
    I(f's_add_u32 s4, s4, {AP}')
    I(f'buffer_store_dwordx4 v[4:7], v13, {S(WS)}, s4 offen sc1')
    setexec(0xffff)
    I(f'buffer_store_dwordx4 v[4:7], v13, {S(WS)}, s4 offen offset:1024 sc1')
    fullexec()
    I('s_branch L_clr_done')
    L('L_clr_e')
    I('s_cmp_lg_u32 s47, 0')
    I('s_cbranch_scc1 L_clr_done')
    I('s_mul_i32 s4, s43, 27')
    I('s_add_u32 s4, s4, s42')
    I('s_mul_i32 s4, s4, 2560')
    I(f's_add_u32 s4, s4, {FP}')
    I(f'buffer_store_dwordx4 v[4:7], v13, {S(WS)}, s4 offen sc1')
    I(f'buffer_store_dwordx4 v[4:7], v13, {S(WS)}, s4 offen offset:1024 sc1')
    setexec(0xffffffff)
    I(f'buffer_store_dwordx4 v[4:7], v13, {S(WS)}, s4 offen offset:2048 sc1')
    fullexec()
    L('L_clr_done')
    flag_store(0, 8)
    stamp(9, 7)
    L(sk)
    I('s_lshl_b32 s44, s3, 7')
    I('s_add_u32 s44, s44, s40')
    I('s_and_b32 s45, s44, 3')
    I('s_lshr_b32 s46, s44, 2')
    def unit_dma(wave):
        sk = uid('nodma')
        I(f's_cmp_lg_u32 s3, {wave}')
        I(f's_cbranch_scc1 {sk}')
        I('s_cmp_ge_u32 s44, 240')
        I(f's_cbranch_scc1 {sk}')
        I('v_lshrrev_b32 v2, 3, v1')
        I('v_and_b32 v3, 7, v1')
        I('v_xor_b32 v3, v3, v2')
        I('v_mul_u32_u24 v2, 7680, v2')
        I('v_lshl_add_u32 v2, v3, 4, v2')
        I('s_mul_i32 s4, s45, 1228800')
        I('s_lshl_b32 s5, s46, 7')
        I('s_add_u32 s4, s4, s5')
        I(f's_mul_i32 s5, s3, {L_WT1}')
        for q in range(20):
            I('s_mov_b32 m0, s5')
            nop(1)
            I(f'buffer_load_dwordx4 v2, {S(WM)}, s4 offen nt lds')
            if q < 19:
                I('s_add_u32 s4, s4, 61440')
                I('s_add_u32 s5, s5, 1024')
        L(sk)
    unit_dma(0)
    sk = uid('nost')
    I('s_sub_u32 s4, s3, 2')
    I('s_cmp_gt_u32 s4, 4')
    I(f's_cbranch_scc1 {sk}')
    I('v_subrev_u32 v12, 128, v0')
    I('v_lshlrev_b32 v2, 3, v12')
    I(f'buffer_load_dwordx2 v[4:5], v2, {S(C_)}, 0 offen')
    I('v_cmp_le_u32 vcc, 160, v12')
    nop(2)
    I('v_cndmask_b32 v6, 0, 1, vcc')
    I('v_mul_u32_u24 v7, 160, v6')
    I('v_sub_u32 v7, v12, v7')
    I('v_lshrrev_b32 v8, 3, v7')
    I('v_and_b32 v9, 3, v7')
    I('v_bfe_u32 v10, v7, 2, 1')
    I('v_mul_u32_u24 v6, 1280, v6')
    I('v_lshl_add_u32 v6, v8, 6, v6')
    I('v_lshl_add_u32 v6, v9, 4, v6')
    I('v_lshl_add_u32 v6, v10, 3, v6')
    I(f'v_add_u32 v6, {L_ST}, v6')
    I('s_waitcnt vmcnt(0)')
    I('v_lshlrev_b32 v8, 16, v4')
    I('v_and_b32 v9, 0xffff0000, v4')
    I('v_lshlrev_b32 v10, 16, v5')
    I('v_and_b32 v11, 0xffff0000, v5')
    for r in range(4):
        I(f'v_mul_f32 v{16+r}, 0xbfb8aa3b, v{8+r}')
        I(f'v_exp_f32 v{16+r}, v{16+r}')
        nop(1)
        I(f'v_add_f32 v{16+r}, 1.0, v{16+r}')
        I(f'v_rcp_f32 v{16+r}, v{16+r}')
        nop(1)
        I(f'v_mul_f32 v{16+r}, v{8+r}, v{16+r}')
    I('v_cvt_pk_bf16_f32 v4, v16, v17')
    I('v_cvt_pk_bf16_f32 v5, v18, v19')
    I('ds_write_b64 v6, v[4:5]')
    I('s_waitcnt lgkmcnt(0)')
    L(sk)
    sk = uid('nogi')
    I('s_cmp_lg_u32 s3, 2')
    I(f's_cbranch_scc1 {sk}')
    I(f'v_mov_b32 v4, {L_FC}')
    I('v_mov_b32 v5, 0')
    I('ds_write_b32 v4, v5')
    I('s_waitcnt lgkmcnt(0)')
    L(sk)
    barrier()
    tag_compute()
    sk = uid('noopc')
    I('s_cmp_lt_u32 s40, 64')
    I(f's_cbranch_scc1 {sk}')
    I('s_cmp_lg_u32 s3, 3')
    I(f's_cbranch_scc1 {sk}')
    if W1GATE: lds_gate()
    for r in range(4, 8): I(f'v_mov_b32 v{r}, -1')
    I('s_sub_u32 s6, s40, 64')
    I('s_lshl_b32 s7, s6, 15')
    I(f's_add_u32 s7, s7, {OP}')
    for i in range(32):
        I(f'buffer_store_dwordx4 v[4:7], v13, {S(WS)}, s7 offen offset:{(i%4)*1024} sc1')
        if i % 4 == 3 and i < 31: I('s_add_u32 s7, s7, 4096')
    I('s_lshl_b32 s7, s6, 8')
    I(f's_add_u32 s7, s7, {ML}')
    setexec(0xffff)
    I(f'buffer_store_dwordx4 v[4:7], v13, {S(WS)}, s7 offen sc1')
    fullexec()
    flag_store(1, 8)
    stamp(10, 3)
    L(sk)
    sk = uid('now2')
    I('s_cmp_lg_u32 s3, 2')
    I(f's_cbranch_scc1 {sk}')
    flags_wait(2, 0, 64, 2)
    I(f'v_mov_b32 v4, {L_FC}')
    I('v_mov_b32 v5, 1')
    I('ds_write_b32 v4, v5')
    I('s_waitcnt lgkmcnt(0)')
    L(sk)
    if W1GATE:
        sk = uid('now1')
        I('s_cmp_lg_u32 s3, 1')
        I(f's_cbranch_scc1 {sk}')
        lds_gate()
        L(sk)
    unit_dma(1)
    sk = uid('nop0')
    I('s_cmp_gt_u32 s3, 1')
    I(f's_cbranch_scc1 {sk}')
    I('s_cmp_ge_u32 s44, 240')
    I(f's_cbranch_scc1 {sk}')
    I('v_and_b32 v2, 1, v15')
    I('v_mul_u32_u24 v2, 1280, v2')
    I('v_lshl_add_u32 v2, v14, 4, v2')
    I('s_mul_i32 s4, s45, 320')
    I(f's_add_u32 s4, s4, {L_ST}')
    I('v_add_u32 v2, s4, v2')
    for t in range(5):
        I(f'ds_read_b128 {vr(20+4*t)}, v2 offset:{t*64}')
    I('v_lshrrev_b32 v2, 2, v15')
    I('v_lshl_add_u32 v2, v14, 2, v2')
    I('v_and_b32 v3, 7, v2')
    I('v_bfe_u32 v4, v15, 1, 1')
    I('v_xor_b32 v3, v3, v4')
    I('v_lshlrev_b32 v2, 7, v2')
    I('v_and_b32 v4, 1, v15')
    I('v_lshl_add_u32 v2, v4, 3, v2')
    I(f's_mul_i32 s5, s3, {L_WT1}')
    I('v_add_u32 v2, s5, v2')
    for n in range(4):
        I(f'v_xor_b32 v4, {2*n}, v3')
        I(f'v_lshl_add_u32 v{8+n}, v4, 4, v2')
    I('s_waitcnt vmcnt(0)')
    for n in range(4):
        for t in range(5):
            I(f'ds_read_b64_tr_b16 {vr(40+20*n+4*t,2)}, v{8+n} offset:{t*4096}')
            I(f'ds_read_b64_tr_b16 {vr(42+20*n+4*t,2)}, v{8+n} offset:{t*4096+2048}')
    I('s_waitcnt lgkmcnt(0)')
    for t in range(5):
        for n in range(4):
            c = '0' if t == 0 else vr(120 + 4 * n)
            I(f'v_mfma_f32_16x16x32_bf16 {vr(120+4*n)}, {vr(40+20*n+4*t)}, {vr(20+4*t)}, {c}')
    nop(9)
    for r in range(16): I(f'v_min_u32 v{120+r}, 0xfffffffe, v{120+r}')
    I('v_mul_u32_u24 v2, 15360, v15')
    I('v_lshl_add_u32 v2, v14, 4, v2')
    I('s_mul_i32 s4, s45, 30720')
    I('s_lshl_b32 s5, s46, 8')
    I('s_add_u32 s4, s4, s5')
    I(f's_add_u32 s4, s4, {MOD}')
    setexec(0x00030003, 0x00030003)
    for n in range(4):
        I(f'buffer_store_dwordx4 {vr(120+4*n)}, v2, {S(WS)}, s4 offen offset:{n*64} sc1')
    fullexec()
    L(sk)
    stamp(1)
    I('s_cmp_ge_u32 s40, 64')
    I('s_cbranch_scc1 L_role_e')

def role_D():
    WUV, WO = 20, 24
    srd(WUV, 'wuv'); srd(WO, 'wo')
    make_masks(16, True)
    if DRY:
        I('s_cmp_lg_u32 s3, 7')
        I('s_cbranch_scc1 L_d_init')
        enter_dry('L_d_main')
    L('L_d_init')
    I('v_lshlrev_b32 v2, 17, v14')
    I('v_lshl_add_u32 v2, v15, 4, v2')
    I('s_lshl_b32 s4, s3, 19')
    I('s_lshl_b32 s5, s42, 8')
    I('s_add_u32 s4, s4, s5')
    I('v_mul_u32_u24 v3, 5120, v14')
    I('v_lshl_add_u32 v3, v15, 4, v3')
    I('s_mul_i32 s5, s42, 163840')
    I('s_mul_i32 s6, s3, 20480')
    I('s_add_u32 s5, s5, s6')
    lds = []
    for t in range(16):
        lds.append(([] if t == 0 else ['s_add_u32 s4, s4, 8192']) +
                   [f'buffer_load_dwordx4 {vr(20+4*t)}, v2, {S(WUV)}, s4 offen nt'])
    for t in range(4):
        for blk in range(5):
            lds.append((['s_add_u32 s5, s5, 1280'] if (blk == 0 and t > 0) else []) +
                       [f'buffer_load_dwordx4 {vr(84+16*blk+4*t)}, v3, {S(WO)}, s5 offen offset:{blk*256} nt'])
    paced(lds[:SLOWN], SLOWP)
    if SLOWN < 36: lds_gate()
    paced(lds[SLOWN:], PACE)
    L('L_d_main')
    stamp(2)
    sk = uid('nolp')
    I('s_cmp_lg_u32 s3, 0')
    skip_if(sk)
    flags_wait(1, 192, 64)
    I('v_and_b32 v2, 31, v1')
    I('v_lshlrev_b32 v2, 3, v2')
    I('s_lshl_b32 s4, s43, 5')
    I('s_add_u32 s4, s4, s42')
    I('s_lshl_b32 s5, s4, 8')
    I(f's_add_u32 s5, s5, {ML}')
    lab = spin_begin()
    I(f'buffer_load_dwordx2 v[4:5], v2, {S(WS)}, s5 offen sc1')
    I('s_waitcnt vmcnt(0)')
    anysent([4, 5], 6)
    spin_end(lab, 2)
    L(sk)
    barrier()
    stamp(6)
    sk = uid('noz')
    I('s_cmp_gt_u32 s3, 3')
    skip_if(sk)
    I('v_and_b32 v2, 31, v1')
    I('v_lshlrev_b32 v2, 3, v2')
    I('s_lshl_b32 s4, s43, 5')
    I('s_add_u32 s4, s4, s42')
    I('s_lshl_b32 s5, s4, 8')
    I(f's_add_u32 s5, s5, {ML}')
    I('v_lshlrev_b32 v3, 13, v14')
    I('v_lshl_add_u32 v3, v15, 4, v3')
    I('s_lshl_b32 s6, s4, 15')
    I('s_lshl_b32 s7, s3, 8')
    I('s_add_u32 s6, s6, s7')
    I(f's_add_u32 s48, s6, {OP}')
    I('s_add_u32 s49, s48, 4096')
    lab = spin_begin()
    I(f'buffer_load_dwordx2 v[4:5], v2, {S(WS)}, s5 offen sc1')
    for t in range(8):
        I(f'buffer_load_dwordx4 {vr(164+4*t)}, v3, {S(WS)}, s{48+t//4} offen offset:{(t%4)*1024} sc1')
    I('s_waitcnt vmcnt(0)')
    anysent([4, 5] + list(range(164, 196)), 6)
    spin_end(lab)
    stamp(3)
    I('v_mov_b32 v6, v4')
    allreduce('v_max_f32', 6, 7)
    I('v_sub_f32 v4, v4, v6')
    I('v_exp_f32 v4, v4')
    nop(1)
    I('v_cvt_pk_bf16_f32 v8, v4, v4')
    I('v_and_b32 v4, 0xffff0000, v8')
    I('v_mul_f32 v5, v4, v5')
    allreduce('v_add_f32', 5, 7)
    I('v_rcp_f32 v5, v5')
    I('v_lshlrev_b32 v2, 2, v1')
    I('s_lshl_b32 s4, s3, 8')
    I(f's_add_u32 s4, s4, {L_D_WD}')
    I('v_add_u32 v2, s4, v2')
    I('ds_write_b32 v2, v8')
    I('v_lshlrev_b32 v2, 5, v14')
    I('v_add_u32 v2, s4, v2')
    I('v_add_f32 v5, v5, v5')
    I('s_waitcnt lgkmcnt(0)')
    for q in range(2):
        I(f'ds_read_b128 {vr(228+4*q)}, v2 offset:{q*16}')
    I('s_waitcnt lgkmcnt(0)')
    gemv_diag(8, lambda t: 228 + t, 16, [244, 248], lambda blk, t: 164 + 4 * t, [8])
    for r in range(4):
        I(f'v_mul_f32 v{8+r}, v{8+r}, v5')
        I(f'v_cvt_pk_bf16_f32 v{8+r}, v{8+r}, v{8+r}')
    I('v_lshlrev_b32 v2, 5, v15')
    I('v_lshl_add_u32 v2, v14, 4, v2')
    I('s_lshl_b32 s4, s3, 9')
    I(f's_add_u32 s4, s4, {L_D_CD}')
    I('v_add_u32 v2, s4, v2')
    setexec(0xffffffff)
    I('ds_write_b128 v2, v[8:11]')
    fullexec()
    I('s_waitcnt lgkmcnt(0)')
    L(sk)
    I('s_waitcnt vmcnt(0)')
    barrier()
    stamp(4)
    I('v_lshlrev_b32 v2, 6, v14')
    I('s_lshl_b32 s4, s3, 8')
    I(f's_add_u32 s4, s4, {L_D_CD}')
    I('v_add_u32 v2, s4, v2')
    for q in range(4):
        I(f'ds_read_b128 {vr(164+4*q)}, v2 offset:{q*16}')
    I('s_waitcnt lgkmcnt(0)')
    gemv_diag(16, lambda t: 164 + t, 16, [204, 208], lambda blk, t: 20 + 4 * t, [212])
    I('v_lshlrev_b32 v2, 5, v15')
    I('v_lshl_add_u32 v2, v14, 4, v2')
    I('s_lshl_b32 s4, s3, 9')
    I(f's_add_u32 s4, s4, {L_D_RED}')
    I('v_add_u32 v3, s4, v2')
    setexec(0xffffffff)
    I('ds_write_b128 v3, v[212:215]')
    fullexec()
    I('s_waitcnt lgkmcnt(0)')
    barrier()
    I('v_lshlrev_b32 v3, 4, v14')
    I('s_lshl_b32 s4, s3, 6')
    I(f's_add_u32 s4, s4, {L_D_RED}')
    I('v_add_u32 v3, s4, v3')
    for w in range(8):
        I(f'ds_read_b128 {vr(164+4*w)}, v3 offset:{w*512}')
    I('s_waitcnt lgkmcnt(0)')
    for w in range(1, 8):
        for r in range(4):
            I(f'v_add_f32 v{164+r}, v{164+r}, v{164+4*w+r}')
    for r in range(4): I(f'v_cvt_pk_bf16_f32 v{164+r}, v{164+r}, v{164+r}')
    gemv_diag(4, lambda t: 164 + t, 16, [204, 208], lambda blk, t: 84 + 16 * blk + 4 * t,
              [212, 216, 220, 224, 228])
    I('s_mul_i32 s4, s3, 2560')
    I(f's_add_u32 s4, s4, {L_D_RED2}')
    I('v_add_u32 v3, s4, v2')
    setexec(0xffffffff)
    for blk in range(5):
        I(f'ds_write_b128 v3, {vr(212+4*blk)} offset:{blk*512}')
    fullexec()
    I('s_waitcnt lgkmcnt(0)')
    barrier()
    I('s_cmp_gt_u32 s3, 2')
    skip_if('L_end')
    I('v_cmp_gt_u32 vcc, 160, v0')
    I('s_and_saveexec_b64 s[6:7], vcc')
    I('v_lshlrev_b32 v3, 4, v0')
    I(f'v_add_u32 v3, {L_D_RED2}, v3')
    for w in range(8):
        I(f'ds_read_b128 {vr(164+4*w)}, v3 offset:{w*2560}')
    I('s_waitcnt lgkmcnt(0)')
    for w in range(1, 8):
        for r in range(4):
            I(f'v_add_f32 v{164+r}, v{164+r}, v{164+4*w+r}')
    I('v_cvt_pk_bf16_f32 v4, v164, v165')
    I('v_cvt_pk_bf16_f32 v5, v166, v167')
    I('v_min_u32 v4, 0xfffffffe, v4')
    I('v_min_u32 v5, 0xfffffffe, v5')
    I('v_lshlrev_b32 v3, 3, v0')
    I('s_lshl_b32 s4, s43, 5')
    I('s_add_u32 s4, s4, s42')
    I('s_mul_i32 s4, s4, 1280')
    I(f's_add_u32 s4, s4, {AP}')
    I(f'buffer_store_dwordx2 v[4:5], v3, {S(WS)}, s4 offen sc1')
    fullexec()
    stamp(5)
    role_end('L_d_init')

def role_E():
    L('L_role_e')
    WG, WU, WD, X_, OUT = 20, 24, 28, 32, 36
    srd(WG, 'wg'); srd(WU, 'wu'); srd(WD, 'wd'); srd(X_, 'x'); srd(OUT, 'out')
    make_masks(16, True)
    if DRY:
        I('s_cmp_lg_u32 s3, 7')
        I('s_cbranch_scc1 L_e_init')
        I('s_cmp_lg_u32 s47, 0')
        I('s_cbranch_scc1 L_e_init')
        enter_dry('L_e_main')
    L('L_e_init')
    if EGATE: lds_gate()
    I('s_cmp_lg_u32 s47, 0')
    I('s_cbranch_scc1 L_end')
    I('v_mul_u32_u24 v2, 69120, v14')
    I('v_and_b32 v3, 7, v15')
    I('v_lshl_add_u32 v2, v3, 4, v2')
    I('s_mul_i32 s4, s3, 276480')
    I('s_lshl_b32 s5, s42, 7')
    I('s_add_u32 s4, s4, s5')
    I('s_mov_b32 s6, 0x00ff00ff')
    I('s_mov_b32 s7, 0x00ff00ff')
    I('s_mov_b32 s48, 0xff00ff00')
    I('s_mov_b32 s49, 0xff00ff00')
    lds = []
    for t in range(20):
        lds.append(([] if t == 0 else ['s_add_u32 s4, s4, 3456']) + ['s_mov_b64 exec, s[6:7]',
                   f'buffer_load_dwordx4 {vr(20+4*t)}, v2, {S(WG)}, s4 offen nt'])
        lds.append(['s_mov_b64 exec, s[48:49]', f'buffer_load_dwordx4 {vr(20+4*t)}, v2, {S(WU)}, s4 offen nt'])
    paced(lds, 2 * EPACE)
    fullexec()
    sk = uid('nodn')
    I('s_cmp_gt_u32 s3, 4')
    I(f's_cbranch_scc1 {sk}')
    I('v_mul_u32_u24 v2, 20480, v14')
    I('v_lshl_add_u32 v2, v15, 4, v2')
    I('s_mul_i32 s4, s42, 81920')
    I('s_lshl_b32 s5, s3, 8')
    I('s_add_u32 s4, s4, s5')
    lds = []
    for t in range(16):
        lds.append(([] if t == 0 else ['s_add_u32 s4, s4, 1280']) +
                   [f'buffer_load_dwordx4 {vr(100+4*t)}, v2, {S(WD)}, s4 offen nt'])
    I(f's_waitcnt vmcnt({EPACE})')
    paced(lds, EPACE)
    L(sk)
    L('L_e_main')
    sk = uid('nofw')
    I('s_cmp_lg_u32 s3, 0')
    skip_if(sk)
    flags_wait(0)
    L(sk)
    barrier()
    stamp(2)
    I('v_and_b32 v2, 1, v14')
    I('v_lshlrev_b32 v2, 2, v2')
    I('v_lshl_add_u32 v2, v15, 3, v2')
    I('s_lshl_b32 s4, s3, 7')
    I('v_add_u32 v12, s4, v2')
    sk5 = uid('w5')
    I('s_cmp_gt_u32 s3, 4')
    skip_if(sk5)
    I('v_lshlrev_b32 v2, 1, v12')
    I('s_mul_i32 s4, s43, 1280')
    I(f'buffer_load_dwordx2 v[4:5], v2, {S(X_)}, s4 offen')
    I('v_lshlrev_b32 v2, 2, v12')
    I('s_mul_i32 s4, s43, 15360')
    I(f's_add_u32 s48, s4, {MOD + 2*2560}')
    for i in range(1, 12):
        p, kq = i % 3, i // 3
        I(f's_add_u32 s{48+i}, s48, {p*2560 + kq*30720}')
    lab = spin_begin()
    for i in range(12):
        I(f'buffer_load_dwordx4 {vr(164+4*i)}, v2, {S(WS)}, s{48+i} offen sc1')
    I('s_waitcnt vmcnt(0)')
    anysent(range(164, 212), 6)
    spin_end(lab)
    for p in range(3):
        for r in range(4):
            a = 164 + 4 * p + r
            I(f'v_add_f32 v{a}, v{a}, v{a+12}')
            I(f'v_add_f32 v{a+24}, v{a+24}, v{a+36}')
            I(f'v_add_f32 v{a}, v{a}, v{a+24}')
            bfround(a)
    I('v_lshlrev_b32 v176, 16, v4')
    I('v_and_b32 v177, 0xffff0000, v4')
    I('v_lshlrev_b32 v178, 16, v5')
    I('v_and_b32 v179, 0xffff0000, v5')
    for r in range(4):
        I(f'v_add_f32 v{172+r}, 1.0, v{172+r}')
        bfround(172 + r)
    for d in range(4): I(f'v_and_b32 v{204+d}, 0x3f803f80, v{16+d}')
    I('v_mul_u32_u24 v3, 10240, v14')
    I('v_lshl_add_u32 v3, v15, 4, v3')
    I('s_mul_i32 s4, s43, 40960')
    I('s_lshl_b32 s5, s3, 8')
    I('s_add_u32 s4, s4, s5')
    I(f's_add_u32 s4, s4, {AP}')
    I('s_add_u32 s5, s4, 3840')
    I('s_add_u32 s6, s4, 7680')
    L(sk5)
    sk = uid('nolp')
    I('s_cmp_lg_u32 s3, 5')
    skip_if(sk)
    I('v_and_b32 v2, 31, v1')
    I('v_mul_u32_u24 v2, 1280, v2')
    I('s_mul_i32 s4, s43, 40960')
    I(f's_add_u32 s4, s4, {AP + 1276}')
    lab = spin_begin()
    I(f'buffer_load_dword v4, v2, {S(WS)}, s4 offen sc1')
    I('s_waitcnt vmcnt(0)')
    I('v_cmp_eq_u32 vcc, -1, v4')
    spin_end(lab, 2)
    L(sk)
    barrier()
    stamp(6)
    sk5 = uid('w5a')
    I('s_cmp_gt_u32 s3, 4')
    skip_if(sk5)
    lab = spin_begin()
    for t in range(8):
        so = ['s4', 's5', 's6'][t // 3]
        I(f'buffer_load_dwordx4 {vr(208+4*t)}, v3, {S(WS)}, {so} offen offset:{(t%3)*1280} sc1')
    I('s_waitcnt vmcnt(0)')
    anysent(range(208, 240), 6)
    spin_end(lab)
    stamp(3)
    for t in range(8):
        c = '0' if t == 0 else 'v[180:183]'
        I(f'v_mfma_f32_16x16x32_bf16 v[180:183], v[204:207], {vr(208+4*t)}, {c}')
    nop(9)
    for r in range(4):
        bfround(180 + r)
        I(f'v_mul_f32 v{180+r}, v{164+r}, v{180+r}')
        bfround(180 + r)
        I(f'v_add_f32 v{180+r}, v{176+r}, v{180+r}')
        bfround(180 + r)
    I('v_cmp_gt_u32 vcc, 32, v1')
    I('v_add_f32 v6, v180, v181')
    I('v_add_f32 v7, v182, v183')
    I('v_add_f32 v6, v6, v7')
    I('v_cndmask_b32 v6, 0, v6, vcc')
    allreduce('v_add_f32', 6, 7)
    I('v_mul_f32 v6, 0x3c000000, v6')
    for r in range(4): I(f'v_sub_f32 v{184+r}, v{180+r}, v6')
    I('v_mul_f32 v8, v184, v184')
    for r in range(1, 4): I(f'v_fmac_f32 v8, v{184+r}, v{184+r}')
    I('v_cndmask_b32 v8, 0, v8, vcc')
    allreduce('v_add_f32', 8, 7)
    I('v_mov_b32 v7, v8')
    I('s_lshl_b32 s4, s3, 3')
    I(f's_add_u32 s4, s4, {L_E_STAT}')
    I('v_mov_b32 v2, s4')
    I('v_lshlrev_b32 v3, 2, v12')
    I(f'v_add_u32 v3, {L_E_X1}, v3')
    setexec(1)
    I('ds_write_b64 v2, v[6:7]')
    setexec(0xffffffff)
    I('ds_write_b128 v3, v[180:183]')
    fullexec()
    I('s_waitcnt lgkmcnt(0)')
    L(sk5)
    barrier()
    sk5 = uid('w5b')
    I('s_cmp_gt_u32 s3, 4')
    skip_if(sk5)
    I(f'v_mov_b32 v2, {L_E_STAT}')
    I('ds_read_b128 v[184:187], v2')
    I('ds_read_b128 v[188:191], v2 offset:16')
    I('ds_read_b64 v[192:193], v2 offset:32')
    I('s_waitcnt lgkmcnt(0)')
    I('v_add_f32 v6, v184, v186')
    I('v_add_f32 v6, v6, v188')
    I('v_add_f32 v6, v6, v190')
    I('v_add_f32 v6, v6, v192')
    I('v_mul_f32 v6, 0x3e4ccccd, v6')
    I('v_add_f32 v7, v185, v187')
    I('v_add_f32 v7, v7, v189')
    I('v_add_f32 v7, v7, v191')
    I('v_add_f32 v7, v7, v193')
    for k in range(5):
        I(f'v_sub_f32 v8, v{184+2*k}, v6')
        I('v_mul_f32 v8, v8, v8')
        I('v_fmac_f32 v7, 0x43000000, v8')
    I('v_mul_f32 v7, 0x3acccccd, v7')
    bfround(6); bfround(7)
    I('v_add_f32 v7, 0x3727c5ac, v7')
    bfround(7)
    I('v_sqrt_f32 v7, v7')
    nop(1)
    bfround(7)
    I('v_rcp_f32 v7, v7')
    for r in range(4):
        I(f'v_sub_f32 v{184+r}, v{180+r}, v6')
        bfround(184 + r)
        I(f'v_mul_f32 v{184+r}, v{184+r}, v7')
        bfround(184 + r)
        I(f'v_mul_f32 v{184+r}, v{184+r}, v{172+r}')
        bfround(184 + r)
        I(f'v_add_f32 v{184+r}, v{184+r}, v{168+r}')
        I(f'v_cvt_pk_bf16_f32 v{184+r}, v{184+r}, v{184+r}')
    I('v_lshlrev_b32 v3, 2, v12')
    I(f'v_add_u32 v3, {L_E_HT}, v3')
    setexec(0xffffffff)
    I('ds_write_b128 v3, v[184:187]')
    fullexec()
    I('s_waitcnt lgkmcnt(0)')
    L(sk5)
    I('s_waitcnt vmcnt(0)')
    barrier()
    stamp(4)
    I('v_mul_u32_u24 v2, 80, v14')
    I('s_mul_i32 s4, s3, 320')
    I(f's_add_u32 s4, s4, {L_E_HT}')
    I('v_add_u32 v2, s4, v2')
    for q in range(5):
        I(f'ds_read_b128 {vr(164+4*q)}, v2 offset:{q*16}')
    I('s_waitcnt lgkmcnt(0)')
    gemv_diag(20, lambda t: 164 + t, 16, [204, 208], lambda blk, t: 20 + 4 * t, [212])
    I('v_lshlrev_b32 v2, 5, v15')
    I('v_lshl_add_u32 v2, v14, 4, v2')
    I('s_lshl_b32 s4, s3, 9')
    I(f's_add_u32 s4, s4, {L_E_RED}')
    I('v_add_u32 v3, s4, v2')
    setexec(0xffffffff)
    I('ds_write_b128 v3, v[212:215]')
    fullexec()
    I('s_waitcnt lgkmcnt(0)')
    barrier()
    sk = uid('nohh')
    I('s_cmp_lg_u32 s3, 0')
    skip_if(sk)
    I(f'v_add_u32 v3, {L_E_RED}, v13')
    setexec(0xffff)
    for w in range(8):
        I(f'ds_read_b128 {vr(164+4*w)}, v3 offset:{w*512}')
        I(f'ds_read_b128 {vr(208+4*w)}, v3 offset:{w*512+256}')
    I('s_waitcnt lgkmcnt(0)')
    for w in range(1, 8):
        for r in range(4):
            I(f'v_add_f32 v{164+r}, v{164+r}, v{164+4*w+r}')
            I(f'v_add_f32 v{208+r}, v{208+r}, v{208+4*w+r}')
    for r in range(4):
        bfround(164 + r); bfround(208 + r)
        I(f'v_mul_f32 v{164+r}, 0xbfb8aa3b, v{164+r}')
        I(f'v_exp_f32 v{164+r}, v{164+r}')
        nop(1)
        I(f'v_add_f32 v{164+r}, 1.0, v{164+r}')
        I(f'v_rcp_f32 v{164+r}, v{164+r}')
        nop(1)
        bfround(164 + r)
        I(f'v_mul_f32 v{164+r}, v{164+r}, v{208+r}')
        I(f'v_cvt_pk_bf16_f32 v{164+r}, v{164+r}, v{164+r}')
    I(f'v_add_u32 v3, {L_E_HH}, v13')
    I('ds_write_b128 v3, v[164:167]')
    fullexec()
    I('s_waitcnt lgkmcnt(0)')
    L(sk)
    barrier()
    I('s_cmp_gt_u32 s3, 4')
    skip_if('L_final')
    I('v_lshlrev_b32 v2, 6, v14')
    I(f'v_add_u32 v2, {L_E_HH}, v2')
    for q in range(4):
        I(f'ds_read_b128 {vr(164+4*q)}, v2 offset:{q*16}')
    I('s_waitcnt lgkmcnt(0)')
    gemv_diag(16, lambda t: 164 + t, 16, [204, 208], lambda blk, t: 100 + 4 * t, [212])
    for r in range(4): I(f'v_min_u32 v{212+r}, 0xfffffffe, v{212+r}')
    I('v_lshlrev_b32 v2, 2, v12')
    I('s_mul_i32 s4, s43, 27')
    I('s_add_u32 s4, s4, s42')
    I('s_mul_i32 s4, s4, 2560')
    I(f's_add_u32 s4, s4, {FP}')
    setexec(0xffffffff)
    I(f'buffer_store_dwordx4 v[212:215], v2, {S(WS)}, s4 offen sc1')
    fullexec()
    stamp(5)
    I('s_cmp_lg_u32 s100, 0')
    I('s_cbranch_scc1 L_end')
    L('L_final')
    I('s_cmp_lg_u32 s3, 5')
    skip_if('L_end')
    I('s_cmp_ge_u32 s42, 10')
    skip_if('L_end')
    I('s_lshl_b32 s4, s42, 6')
    I('v_add_u32 v12, s4, v1')
    I('v_lshlrev_b32 v2, 2, v12')
    I(f'v_add_u32 v3, {L_E_X1}, v2')
    I('ds_read_b32 v10, v3')
    I('s_mul_i32 s4, s43, 15360')
    I(f's_add_u32 s4, s4, {MOD + 5*2560}')
    I('s_mul_i32 s5, s43, 69120')
    I(f's_add_u32 s5, s5, {FP}')
    lab = spin_begin()
    I('s_mov_b32 s6, s4')
    for kq in range(4):
        I(f'buffer_load_dword v{48+kq}, v2, {S(WS)}, s6 offen sc1')
        if kq < 3: I('s_add_u32 s6, s6, 30720')
    I('s_mov_b32 s6, s5')
    for p in range(27):
        I(f'buffer_load_dword v{20+p}, v2, {S(WS)}, s6 offen sc1')
        if p < 26: I('s_add_u32 s6, s6, 2560')
    I('s_waitcnt vmcnt(0)')
    anysent(list(range(48, 52)) + list(range(20, 47)), 6)
    spin_end(lab)
    I('v_add_f32 v11, v48, v49')
    I('v_add_f32 v50, v50, v51')
    I('v_add_f32 v11, v11, v50')
    bfround(11)
    for p in range(1, 27): I(f'v_add_f32 v20, v20, v{20+p}')
    bfround(20)
    I('v_mul_f32 v20, v11, v20')
    bfround(20)
    I('s_waitcnt lgkmcnt(0)')
    I('v_add_f32 v20, v10, v20')
    I('v_cvt_pk_bf16_f32 v20, v20, v20')
    I('v_lshlrev_b32 v2, 1, v12')
    I('s_mul_i32 s4, s43, 1280')
    I(f'buffer_store_short v20, v2, {S(OUT)}, s4 offen')
    stamp(7, 5)
    role_end('L_e_init')

prologue()
role_P12()
role_P3()
role_DE_common()
role_D()
role_E()
L('L_end')
I('s_endpgm')

hdr = open('cdna_kernels/' + NAME + '.s.ref').read().split('\n')
out = []
for ln in hdr:
    if ln.startswith('; @launch'):
        out.append(f'; @launch grid=(256,1,1) block=(512,1,1) lds={LDS_BYTES}')
    elif ln.startswith(';'):
        out.append(ln)
    else:
        break
out += ['.amdgcn_target "amdgcn-amd-amdhsa--gfx950"', '.text', f'.globl {NAME}_kernel', '.p2align 8',
        f'.type {NAME}_kernel,@function', f'{NAME}_kernel:']
out += lines
out += ['.section .rodata,"a"', '.p2align 6', f'.amdhsa_kernel {NAME}_kernel',
        '  .amdhsa_next_free_vgpr 256', '  .amdhsa_next_free_sgpr 102', '  .amdhsa_accum_offset 256',
        '  .amdhsa_group_segment_fixed_size 0', '  .amdhsa_kernarg_size 120', '  .amdhsa_user_sgpr_count 2',
        '  .amdhsa_user_sgpr_kernarg_segment_ptr 1', '  .amdhsa_system_sgpr_workgroup_id_x 1',
        '.end_amdhsa_kernel', '']
open(sys.argv[1], 'w').write('\n'.join(out))
```

```python
import sys

NAME = 'adaLN_cond__compressed_kv_cla__glu_gated_glu__decode'
STAMP = int(sys.argv[2]) if len(sys.argv) > 2 else 0
DBGT = (STAMP == 2)
if DBGT: STAMP = 0
SPIN_LIMIT = 200000

EPOCH = 0
FLAGS = 2048
MOD = 8192
QP = 131072
QA = 262144
ML = 327680
AP = 360448
FP = 442368
STP = 589824
OP = 1048576
WS_BYTES = OP + 2 * 32 * 32 * 1024

CKS = 1040
L_WU = 0
L_HD = 66560
L_RED = L_HD + 2560
L_QT2 = L_RED + 5120
L_CK = 0
L_QT = 0
PTS = 272
L_PT = 133120
L_MX = L_PT + 32 * PTS
LDS_BYTES = L_MX + 1024
L_WT0 = 0
L_WT1 = 20480
L_ST = 40960
L_FC = 44032
L_D_WD = 45056
L_D_CD = 46080
L_D_RED = 49152
L_D_RED2 = 53248
L_E_STAT = 45056
L_E_X1 = 45312
L_E_HT = 48128
L_E_RED = 53248
L_E_HH = 57344
PACE = int(sys.argv[3]) if len(sys.argv) > 3 else 6
SLOWN = int(sys.argv[4]) if len(sys.argv) > 4 else 6
DRY = int(sys.argv[5]) if len(sys.argv) > 5 else 0
EGATE = int(sys.argv[6]) if len(sys.argv) > 6 else 1
EPACE = int(sys.argv[7]) if len(sys.argv) > 7 else 6
SLOWP = int(sys.argv[8]) if len(sys.argv) > 8 else 2
LATEC = int(sys.argv[9]) if len(sys.argv) > 9 else 0
CK0 = int(sys.argv[10]) if len(sys.argv) > 10 else 4
CK1 = int(sys.argv[11]) if len(sys.argv) > 11 else 6
W1GATE = int(sys.argv[12]) if len(sys.argv) > 12 else 0
XSPLIT = int(sys.argv[13]) if len(sys.argv) > 13 else 0
P3GATE = int(sys.argv[14]) if len(sys.argv) > 14 else 0

TAGC_LO = 0x7F4A7C15
TAGC_HI = 0x9E3779B9

lines = []
def I(s): lines.append('    ' + s)
def L(s): lines.append(s + ':')
def C(s): lines.append('    ; ' + s)
def nop(n):
    while n > 0:
        k = min(n, 16)
        I(f's_nop {k-1}')
        n -= k
_uid = [0]
def uid(p):
    _uid[0] += 1
    return f'L_{p}_{_uid[0]}'
def vr(a, n=4): return f'v[{a}:{a+n-1}]'

PTR = {k: 64 + 2 * i for i, k in enumerate(
    ['x', 'ckv', 'wq', 'wuk', 'wuv', 'wo', 'bx', 'wg', 'wu', 'wd', 'c', 'wmod', 'out', 'dbg', 'ws'])}
NBYTES = dict(x=2560, ckv=8388608, wq=5242880, wuk=4194304, wuv=4194304, wo=5242880, wg=2211840, wu=2211840,
              wd=2211840, c=2560, wmod=4915200, out=2560, ws=WS_BYTES)
def srd(d, name):
    p = PTR[name]
    I(f's_mov_b32 s{d}, s{p}')
    I(f's_and_b32 s{d+1}, s{p+1}, 0xffff')
    I(f's_mov_b32 s{d+2}, {NBYTES[name]}')
    I(f's_mov_b32 s{d+3}, 0x00020000')
def S(d): return f's[{d}:{d+3}]'
WS = 8

def setexec(lo, hi=0):
    I(f's_and_b32 exec_lo, s100, 0x{lo:x}')
    if hi: I(f's_and_b32 exec_hi, s100, 0x{hi:x}')
    else: I('s_mov_b32 exec_hi, 0')
def fullexec():
    I('s_mov_b64 exec, s[100:101]')
def skip_if(lab):
    I('s_cselect_b32 s99, s100, 0')
    I('s_cmp_lg_u32 s99, 0')
    I(f's_cbranch_scc1 {lab}')
def barrier():
    o = uid('bar')
    I('s_cmp_eq_u32 s100, 0')
    I(f's_cbranch_scc1 {o}')
    I('s_barrier')
    L(o)
def enter_dry(target):
    I('s_mov_b64 s[100:101], 0')
    I('s_mov_b64 exec, 0')
    I(f's_branch {target}')
def role_end(back):
    I('s_cmp_lg_u32 s100, 0')
    I('s_cbranch_scc1 L_end')
    I('s_mov_b64 s[100:101], -1')
    I('s_mov_b64 exec, -1')
    I(f's_branch {back}')

def stamp(idx, wave=0):
    if not STAMP: return
    skip = uid('st')
    I(f's_cmp_lg_u32 s3, {wave}')
    I(f's_cbranch_scc1 {skip}')
    I('s_memrealtime s[60:61]')
    I('s_waitcnt lgkmcnt(0)')
    I('v_mov_b32 v254, s60')
    I('v_mov_b32 v255, s61')
    I(f's_lshl_b32 s62, s2, 7')
    I(f's_add_u32 s62, s62, {STP + idx*8}')
    I('v_mov_b32 v253, 0')
    I('s_mov_b64 s[58:59], exec')
    setexec(1)
    I(f'buffer_store_dwordx2 v[254:255], v253, {S(WS)}, s62 offen')
    I('s_mov_b64 exec, s[58:59]')
    L(skip)

def spin_begin():
    I('s_mov_b32 s98, 0')
    lab = uid('spin')
    L(lab)
    return lab
def spin_end(lab, sleep=1):
    done = uid('spd')
    I(f's_cbranch_vccz {done}')
    I('s_add_u32 s98, s98, 1')
    I(f's_cmp_gt_u32 s98, {SPIN_LIMIT}')
    I('s_cbranch_scc1 L_end')
    I(f's_sleep {sleep}')
    I(f's_branch {lab}')
    L(done)

def anysent(regs, tmp):
    regs = list(regs)
    cur = regs[0]; rest = regs[1:]
    while rest:
        if len(rest) >= 2:
            I(f'v_max3_u32 v{tmp}, v{cur}, v{rest[0]}, v{rest[1]}'); rest = rest[2:]
        else:
            I(f'v_max_u32 v{tmp}, v{cur}, v{rest[0]}'); rest = rest[1:]
        cur = tmp
    I(f'v_cmp_eq_u32 vcc, -1, v{cur}')

def allreduce(op, x, tmp, rows_only=False, skip_row=False):
    if not skip_row:
        for ctl in ['quad_perm:[1,0,3,2]', 'quad_perm:[2,3,0,1]', 'row_half_mirror', 'row_mirror']:
            nop(2)
            I(f'{op}_dpp v{x}, v{x}, v{x} {ctl} row_mask:0xf bank_mask:0xf')
    if rows_only: return
    for sw in ['v_permlane16_swap_b32', 'v_permlane32_swap_b32']:
        I(f'v_mov_b32 v{tmp}, v{x}')
        nop(2)
        I(f'{sw} v{x}, v{tmp}')
        nop(1)
        I(f'{op} v{x}, v{x}, v{tmp}')

def bfround(x, tmp=None):
    I(f'v_cvt_pk_bf16_f32 v{x}, v{x}, v{x}')
    I(f'v_and_b32 v{x}, 0xffff0000, v{x}')

def make_masks(m, single):
    I('v_and_b32 v2, 1, v1')
    I('v_cmp_eq_u32 vcc, 1, v2')
    I('v_mov_b32 v3, 0xffff')
    I('v_mov_b32 v2, 0xffff0000')
    nop(1)
    I('v_cndmask_b32 v3, v3, v2, vcc')
    if single:
        I('v_and_b32 v2, 8, v1')
        I('v_cmp_eq_u32 vcc, 0, v2')
        nop(2)
        I('v_cndmask_b32 v3, 0, v3, vcc')
    I('v_bfe_u32 v2, v1, 1, 2')
    for d in range(4):
        I(f'v_cmp_eq_u32 vcc, {d}, v2')
        nop(2)
        I(f'v_cndmask_b32 v{m+d}, 0, v3, vcc')

def gemv_diag(T, aval, masks, abuf, bq, accs):
    def build(t):
        a = abuf[t % 2]
        for d in range(4):
            I(f'v_and_b32 v{a+d}, v{masks+d}, v{aval(t)}')
    build(0)
    for t in range(T):
        a = abuf[t % 2]
        if t + 1 < T:
            build(t + 1)
        else:
            nop(2)
        for blk, acc in enumerate(accs):
            c = '0' if t == 0 else vr(acc)
            I(f'v_mfma_f32_16x16x32_bf16 {vr(acc)}, {vr(a)}, {vr(bq(blk, t))}, {c}')
    nop(9)

def flags_wait(which, first=0, count=256, sleep=1):
    I('v_lshlrev_b32 v2, 4, v1')
    I(f'v_add_u32 v2, {FLAGS + 2048*which + 8*first}, v2')
    if count == 64: setexec(0xffffffff)
    lab = spin_begin()
    I(f'buffer_load_dwordx4 v[4:7], v2, {S(WS)}, 0 offen sc1')
    if count == 256:
        I(f'buffer_load_dwordx4 v[8:11], v2, {S(WS)}, 0 offen offset:1024 sc1')
    I('s_waitcnt vmcnt(0)')
    n = 12 if count == 256 else 8
    for r in range(4, n):
        I(f'v_xor_b32 v{r}, s{96 + (r & 1)}, v{r}')
    I('v_or3_b32 v4, v4, v5, v6')
    if count == 256:
        I('v_or3_b32 v4, v4, v7, v8')
        I('v_or3_b32 v4, v4, v9, v10')
        I('v_or_b32 v4, v4, v11')
    else:
        I('v_or_b32 v4, v4, v7')
    I('v_cmp_ne_u32 vcc, 0, v4')
    spin_end(lab, sleep)
    if count == 64: fullexec()

def flag_store(which, t0=4):
    I('s_waitcnt vmcnt(0) lgkmcnt(0)')
    I(f's_add_u32 s96, s94, 0x{TAGC_LO:x}')
    I(f's_addc_u32 s97, s95, 0x{TAGC_HI:x}')
    I(f'v_mov_b32 v{t0}, s96')
    I(f'v_mov_b32 v{t0+1}, s97')
    I('s_lshl_b32 s4, s2, 3')
    I(f's_add_u32 s4, s4, {FLAGS + 2048*which}')
    I(f'v_mov_b32 v{t0+2}, 0')
    setexec(1)
    I(f'buffer_store_dwordx2 v[{t0}:{t0+1}], v{t0+2}, {S(WS)}, s4 offen sc1')
    fullexec()

def lds_gate():
    I(f'v_mov_b32 v4, {L_FC}')
    lab = spin_begin()
    I('ds_read_b32 v5, v4')
    I('s_waitcnt lgkmcnt(0)')
    I('v_cmp_ne_u32 vcc, 1, v5')
    spin_end(lab, 2)

def paced(loads, depth):
    for i, ld in enumerate(loads):
        if i >= depth: I(f's_waitcnt vmcnt({depth-1})')
        for x in ld: I(x)

def tag_compute():
    I('s_waitcnt lgkmcnt(0)')
    I(f's_add_u32 s96, s94, 0x{TAGC_LO:x}')
    I(f's_addc_u32 s97, s95, 0x{TAGC_HI:x}')

def prologue():
    I('s_cmp_ge_u32 s2, 256')
    I('s_cbranch_scc1 L_end')
    I('s_mov_b64 s[100:101], -1')
    if XSPLIT:
        I('s_lshr_b32 s4, s2, 3')
        I('s_lshl_b32 s4, s4, 2')
        I('s_and_b32 s5, s2, 3')
        I('s_add_u32 s4, s4, s5')
        I('s_bfe_u32 s5, s2, 0x10002')
        I('s_lshl_b32 s5, s5, 7')
        I('s_add_u32 s2, s4, s5')
    if DBGT: I('s_memrealtime s[56:57]')
    I('s_load_dwordx16 s[64:79], s[0:1], 0')
    I('s_load_dwordx8 s[80:87], s[0:1], 64')
    I('s_load_dwordx4 s[88:91], s[0:1], 96')
    I('s_load_dwordx2 s[92:93], s[0:1], 112')
    I('v_lshrrev_b32 v1, 6, v0')
    nop(1)
    I('v_readfirstlane_b32 s3, v1')
    I('v_and_b32 v1, 63, v0')
    I('s_waitcnt lgkmcnt(0)')
    I('s_load_dwordx2 s[94:95], s[92:93], 0')
    srd(WS, 'ws')
    stamp(0)
    I('v_lshrrev_b32 v14, 4, v1')
    I('v_and_b32 v15, 15, v1')
    I('v_lshlrev_b32 v13, 4, v1')
    I('s_cmp_ge_u32 s2, 128')
    I('s_cbranch_scc1 L_de')
    I('s_cmp_ge_u32 s2, 64')
    I('s_cbranch_scc1 L_p3')

def role_P12():
    X_, WQ, WUK = 12, 16, 20
    srd(X_, 'x'); srd(WQ, 'wq'); srd(WUK, 'wuk')
    I('s_lshr_b32 s40, s2, 1')
    I('s_and_b32 s41, s2, 1')
    I('s_mul_i32 s45, s41, 320')
    I('s_cmp_lg_u32 s3, 7')
    I('s_cbranch_scc1 L_a_init')
    for r in range(4, 8): I(f'v_mov_b32 v{r}, -1')
    I('s_lshl_b32 s4, s2, 10')
    I(f's_add_u32 s4, s4, {QP}')
    I(f'buffer_store_dwordx4 v[4:7], v13, {S(WS)}, s4 offen sc1')
    I('v_lshrrev_b32 v3, 5, v1')
    I('v_lshlrev_b32 v3, 15, v3')
    I('v_and_b32 v2, 31, v1')
    I('v_lshl_add_u32 v3, v2, 4, v3')
    I('s_lshl_b32 s4, s2, 9')
    I(f's_add_u32 s4, s4, {QA}')
    I(f'buffer_store_dwordx4 v[4:7], v3, {S(WS)}, s4 offen sc1')
    flag_store(0, 8)
    stamp(9, 7)
    I('s_branch L_a_main')
    L('L_a_init')
    I('s_cmp_gt_u32 s3, 4')
    I('s_cbranch_scc1 L_a_h1')
    I('v_lshlrev_b32 v2, 17, v14')
    I('v_lshl_add_u32 v2, v15, 4, v2')
    I('s_lshl_b32 s4, s3, 6')
    I('s_add_u32 s4, s4, s45')
    I('s_lshl_b32 s4, s4, 13')
    I('s_lshl_b32 s5, s40, 8')
    I('s_add_u32 s4, s4, s5')
    for t in range(16):
        I(f'buffer_load_dwordx4 {vr(20+4*t)}, v2, {S(WQ)}, s4 offen nt')
        if t < 15: I('s_add_u32 s4, s4, 8192')
    I('v_lshlrev_b32 v2, 13, v14')
    I('v_lshl_add_u32 v2, v15, 4, v2')
    I('s_lshl_b32 s4, s41, 21')
    I('s_lshl_b32 s5, s40, 8')
    I('s_add_u32 s4, s4, s5')
    I('s_mul_i32 s6, s3, 13')
    I('s_lshl_b32 s5, s6, 15')
    I('s_add_u32 s4, s4, s5')
    I('s_mul_i32 s5, s6, 1040')
    for q in range(13):
        if q == 12:
            I('s_cmp_eq_u32 s3, 4')
            I('s_cbranch_scc1 L_a_dmadone')
        I('s_mov_b32 m0, s5')
        nop(1)
        I(f'buffer_load_dwordx4 v2, {S(WUK)}, s4 offen nt lds')
        if q < 12:
            I('s_add_u32 s4, s4, 32768')
            I('s_add_u32 s5, s5, 1040')
    L('L_a_dmadone')
    make_masks(16, False)
    tag_compute()
    I('s_waitcnt vmcnt(0)')
    stamp(10, 4)
    I('s_branch L_a_main')
    L('L_a_h1')
    I('s_sub_u32 s46, s3, 5')
    I('s_mul_i32 s4, s46, 1280')
    I('v_lshlrev_b32 v3, 2, v1')
    for k in range(5):
        I(f'buffer_load_dword v{80 + k}, v3, {S(X_)}, s4 offen offset:{k*256}')
    I('s_lshl_b32 s5, s45, 1')
    I('s_add_u32 s5, s5, s4')
    I(f'buffer_load_dwordx4 v[84+4:84+7], v13, {S(X_)}, s5 offen'.replace('84+4', '88').replace('84+7', '91'))
    tag_compute()
    I('s_waitcnt vmcnt(0)')
    for k in range(5):
        I(f'v_lshlrev_b32 v{96+2*k}, 16, v{80+k}')
        I(f'v_and_b32 v{97+2*k}, 0xffff0000, v{80+k}')
    I('v_add_f32 v92, v96, v97')
    for k in range(2, 10): I(f'v_add_f32 v92, v92, v{96+k}')
    allreduce('v_add_f32', 92, 93)
    I('v_mul_f32 v92, 0x3acccccd, v92')
    for k in range(10): I(f'v_sub_f32 v{96+k}, v{96+k}, v92')
    I('v_mul_f32 v94, v96, v96')
    for k in range(1, 10): I(f'v_fmac_f32 v94, v{96+k}, v{96+k}')
    allreduce('v_add_f32', 94, 93)
    I('v_mul_f32 v94, 0x3acccccd, v94')
    bfround(92); bfround(94)
    I('v_add_f32 v94, 0x3727c5ac, v94')
    bfround(94)
    I('v_sqrt_f32 v94, v94')
    nop(1)
    bfround(94)
    I('v_rcp_f32 v94, v94')
    for k in range(4):
        I(f'v_lshlrev_b32 v{72+2*k}, 16, v{88+k}')
        I(f'v_and_b32 v{73+2*k}, 0xffff0000, v{88+k}')
    for r in range(8):
        I(f'v_sub_f32 v{72+r}, v{72+r}, v92')
        bfround(72 + r)
        I(f'v_mul_f32 v{72+r}, v{72+r}, v94')
        bfround(72 + r)
    flags_wait(0, 128, 128)
    stamp(1, 5)
    I('s_mul_i32 s4, s46, 15360')
    I('s_lshl_b32 s5, s45, 2')
    I('s_add_u32 s4, s4, s5')
    I(f's_add_u32 s48, s4, {MOD}')
    for kq in range(1, 4): I(f's_add_u32 s{48+kq}, s48, {kq*30720}')
    I('v_lshlrev_b32 v2, 5, v1')
    I('s_mul_i32 s4, s46, 1280')
    I(f's_add_u32 s4, s4, {L_HD}')
    I('v_add_u32 v3, s4, v2')
    setexec(0xffffffff, 0xff)
    lab = spin_begin()
    for kq in range(4):
        I(f'buffer_load_dwordx4 {vr(96+16*kq)}, v2, {S(WS)}, s{48+kq} offen sc1')
        I(f'buffer_load_dwordx4 {vr(100+16*kq)}, v2, {S(WS)}, s{48+kq} offen offset:16 sc1')
        I(f'buffer_load_dwordx4 {vr(104+16*kq)}, v2, {S(WS)}, s{48+kq} offen offset:2560 sc1')
        I(f'buffer_load_dwordx4 {vr(108+16*kq)}, v2, {S(WS)}, s{48+kq} offen offset:2576 sc1')
    I('s_waitcnt vmcnt(0)')
    anysent(range(96, 160), 12)
    spin_end(lab)
    for r in range(16):
        I(f'v_add_f32 v{96+r}, v{96+r}, v{112+r}')
        I(f'v_add_f32 v{128+r}, v{128+r}, v{144+r}')
        I(f'v_add_f32 v{96+r}, v{96+r}, v{128+r}')
        bfround(96 + r)
    for r in range(8):
        I(f'v_add_f32 v{104+r}, 1.0, v{104+r}')
        bfround(104 + r)
        I(f'v_mul_f32 v{104+r}, v{72+r}, v{104+r}')
        bfround(104 + r)
        I(f'v_add_f32 v{104+r}, v{104+r}, v{96+r}')
        I(f'v_cvt_pk_bf16_f32 v{104+r}, v{104+r}, v{104+r}')
    I('ds_write_b128 v3, v[104:107]')
    I('ds_write_b128 v3, v[108:111] offset:16')
    fullexec()
    I('s_waitcnt lgkmcnt(0)')
    L('L_a_main')
    barrier()
    stamp(2)
    sk = uid('nofc')
    I('s_cmp_lg_u32 s3, 6')
    I(f's_cbranch_scc1 {sk}')
    flag_store(2, 8)
    L(sk)
    sk = uid('nop1')
    I('s_cmp_gt_u32 s3, 4')
    I(f's_cbranch_scc1 {sk}')
    I('v_bfe_u32 v2, v1, 3, 1')
    I('v_mul_u32_u24 v2, 1280, v2')
    I('v_lshl_add_u32 v2, v14, 6, v2')
    I('s_lshl_b32 s4, s3, 8')
    I(f's_add_u32 s4, s4, {L_HD}')
    I('v_add_u32 v2, s4, v2')
    for q in range(4):
        I(f'ds_read_b128 {vr(84+4*q)}, v2 offset:{q*16}')
    I('v_lshrrev_b32 v2, 1, v14')
    I('v_lshlrev_b32 v2, 9, v2')
    I('v_lshl_add_u32 v2, v15, 5, v2')
    I('v_and_b32 v3, 1, v14')
    I('v_lshl_add_u32 v2, v3, 4, v2')
    I('s_lshl_b32 s4, s3, 10')
    I(f's_add_u32 s4, s4, {L_RED}')
    I('v_add_u32 v2, s4, v2')
    I('s_waitcnt lgkmcnt(0)')
    gemv_diag(16, lambda t: 84 + t, 16, [100, 104], lambda blk, t: 20 + 4 * t, [108])
    I('ds_write_b128 v2, v[108:111]')
    I('s_waitcnt lgkmcnt(0)')
    L(sk)
    barrier()
    sk = uid('nop1r')
    I('s_cmp_lg_u32 s3, 0')
    I(f's_cbranch_scc1 {sk}')
    I(f'v_add_u32 v2, {L_RED}, v13')
    for w in range(5):
        I(f'ds_read_b128 {vr(164+4*w)}, v2 offset:{w*1024}')
    I('s_lshl_b32 s4, s2, 10')
    I(f's_add_u32 s4, s4, {QP}')
    I('s_waitcnt lgkmcnt(0)')
    for r in range(4):
        I(f'v_add_f32 v{164+r}, v{164+r}, v{168+r}')
        I(f'v_add_f32 v{172+r}, v{172+r}, v{176+r}')
        I(f'v_add_f32 v{164+r}, v{164+r}, v{180+r}')
        I(f'v_add_f32 v{164+r}, v{164+r}, v{172+r}')
        I(f'v_min_u32 v{164+r}, 0xfffffffe, v{164+r}')
    I(f'buffer_store_dwordx4 v[164:167], v13, {S(WS)}, s4 offen sc1')
    stamp(3)
    flags_wait(0, 0, 128)
    sk2 = uid('noep')
    I('s_cmp_lg_u32 s2, 0')
    I(f's_cbranch_scc1 {sk2}')
    I('v_mov_b32 v10, s96')
    I('v_mov_b32 v11, s97')
    I('v_mov_b32 v12, 0')
    setexec(1)
    I(f'buffer_store_dwordx2 v[10:11], v12, {S(WS)}, 0 offen sc1')
    fullexec()
    L(sk2)
    I('s_xor_b32 s4, s2, 1')
    I('s_lshl_b32 s4, s4, 10')
    I(f's_add_u32 s4, s4, {QP}')
    lab = spin_begin()
    I(f'buffer_load_dwordx4 v[168:171], v13, {S(WS)}, s4 offen sc1')
    I('s_waitcnt vmcnt(0)')
    anysent(range(168, 172), 2)
    spin_end(lab)
    for r in range(4):
        I(f'v_add_f32 v{168+r}, v{168+r}, v{164+r}')
    I('v_cvt_pk_bf16_f32 v172, v168, v169')
    I('v_cvt_pk_bf16_f32 v173, v170, v171')
    I('v_lshlrev_b32 v2, 3, v1')
    I(f'v_add_u32 v2, {L_QT2}, v2')
    I('ds_write_b64 v2, v[172:173]')
    L(sk)
    I('s_waitcnt lgkmcnt(0)')
    barrier()
    stamp(4)
    I('v_and_b32 v2, 1, v15')
    I('v_lshlrev_b32 v2, 8, v2')
    I('v_lshl_add_u32 v2, v14, 4, v2')
    I(f'v_add_u32 v2, {L_QT2}, v2')
    for t in range(4):
        I(f'ds_read_b128 {vr(164+4*t)}, v2 offset:{t*64}')
    I('v_lshrrev_b32 v2, 2, v15')
    I('v_mul_u32_u24 v2, 1040, v2')
    I('v_and_b32 v3, 3, v15')
    I('v_lshl_add_u32 v2, v3, 8, v2')
    I('v_lshl_add_u32 v2, v14, 4, v2')
    I('s_mul_i32 s4, s3, 8320')
    I(f's_add_u32 s4, s4, {L_WU}')
    I('v_add_u32 v2, s4, v2')
    for t in range(4):
        for n in range(2):
            I(f'ds_read_b128 {vr(20+16*n+4*t)}, v2 offset:{n*4160 + t*64}')
    I('v_lshlrev_b32 v2, 15, v15')
    I('v_lshl_add_u32 v2, v14, 3, v2')
    I('s_lshl_b32 s4, s2, 9')
    I('s_lshl_b32 s5, s3, 6')
    I('s_add_u32 s4, s4, s5')
    I(f's_add_u32 s4, s4, {QA}')
    I('s_mov_b32 s5, 0x3e0293ee')
    for t in range(4):
        I(f's_waitcnt lgkmcnt({6-2*t})')
        for n in range(2):
            c = '0' if t == 0 else vr(180 + 4 * n)
            I(f'v_mfma_f32_16x16x32_bf16 {vr(180+4*n)}, {vr(20+16*n+4*t)}, {vr(164+4*t)}, {c}')
    nop(9)
    for r in range(8): I(f'v_mul_f32 v{180+r}, s5, v{180+r}')
    for q in range(4):
        I(f'v_cvt_pk_bf16_f32 v{188+q}, v{180+2*q}, v{181+2*q}')
        I(f'v_min_u32 v{188+q}, 0xfffffffe, v{188+q}')
    setexec(0x00030003, 0x00030003)
    I(f'buffer_store_dwordx2 v[188:189], v2, {S(WS)}, s4 offen sc1')
    I(f'buffer_store_dwordx2 v[190:191], v2, {S(WS)}, s4 offen offset:32 sc1')
    fullexec()
    stamp(5)
    I('s_branch L_end')

def role_P3():
    L('L_p3')
    CKV = 12
    srd(CKV, 'ckv')
    I('s_sub_u32 s40, s2, 64')
    I('s_lshr_b32 s42, s40, 5')
    I('s_and_b32 s43, s40, 31')
    sk = uid('nofa')
    I('s_cmp_lg_u32 s3, 7')
    I(f's_cbranch_scc1 {sk}')
    flag_store(0, 8)
    L(sk)
    tag_compute()
    if P3GATE:
        flags_wait(2, 0, 64, 4)
    I('s_lshl_b32 s4, s40, 17')
    I('s_lshl_b32 s5, s3, 14')
    I('s_add_u32 s4, s4, s5')
    I(f's_mul_i32 s5, s3, {16*CKS}')
    for r in range(16):
        I('s_mov_b32 m0, s5')
        nop(1)
        I(f'buffer_load_dwordx4 v13, {S(CKV)}, s4 offen nt lds')
        if r < 15:
            I('s_add_u32 s4, s4, 1024')
            I(f's_add_u32 s5, s5, {CKS}')
    I('s_waitcnt vmcnt(0)')
    barrier()
    stamp(1)
    I(f'v_mul_u32_u24 v2, {CKS}, v15')
    I('v_lshl_add_u32 v2, v14, 4, v2')
    I(f's_mul_i32 s4, s3, {16*CKS}')
    I('v_add_u32 v2, s4, v2')
    for t in range(16):
        I(f'ds_read_b128 {vr(20+4*t)}, v2 offset:{t*64}')
    I('v_lshrrev_b32 v2, 2, v15')
    I('v_lshl_add_u32 v2, v14, 3, v2')
    I(f'v_mul_u32_u24 v2, {CKS}, v2')
    I('v_and_b32 v3, 3, v15')
    I('v_lshl_add_u32 v2, v3, 5, v2')
    I('s_lshl_b32 s4, s3, 7')
    I('v_add_u32 v2, s4, v2')
    I(f'v_add_u32 v3, {64*CKS}, v2')
    for n in range(4):
        for t in range(4):
            base = 84 + 16 * n + 4 * t
            ad = 'v2' if t < 2 else 'v3'
            off = (t % 2) * 32 * CKS + n * 8
            I(f'ds_read_b64_tr_b16 {vr(base,2)}, {ad} offset:{off}')
            I(f'ds_read_b64_tr_b16 {vr(base+2,2)}, {ad} offset:{off + 4*CKS}')
    for r in range(4): I(f'v_mov_b32 v{16+r}, 0x3f803f80')
    I('s_waitcnt lgkmcnt(0)')
    sk = uid('noh2l')
    I('s_cmp_lg_u32 s3, 0')
    I(f's_cbranch_scc1 {sk}')
    flags_wait(0, 0, 64)
    flags_wait(1, 192, 64)
    I('v_lshlrev_b32 v2, 9, v1')
    I('s_lshl_b32 s4, s42, 15')
    I(f's_add_u32 s4, s4, {QA + 508}')
    lab = spin_begin()
    I(f'buffer_load_dword v4, v2, {S(WS)}, s4 offen sc1')
    I('s_waitcnt vmcnt(0)')
    I('v_cmp_eq_u32 vcc, -1, v4')
    spin_end(lab, 1)
    L(sk)
    barrier()
    stamp(6)
    I('s_lshl_b32 s4, s42, 15')
    I('s_lshl_b32 s5, s3, 12')
    I('s_add_u32 s4, s4, s5')
    I(f's_add_u32 s4, s4, {QA}')
    lab = spin_begin()
    for k in range(4):
        I(f'buffer_load_dwordx4 {vr(148+4*k)}, v13, {S(WS)}, s4 offen offset:{k*1024} sc1')
    I('s_waitcnt vmcnt(0)')
    anysent(range(148, 164), 2)
    spin_end(lab)
    I(f's_mul_i32 s4, s3, {4*CKS}')
    I(f's_add_u32 s4, s4, {L_QT}')
    I('v_add_u32 v2, s4, v13')
    for k in range(4):
        I(f'ds_write_b128 v2, {vr(148+4*k)} offset:{k*CKS}')
    I(f'v_mul_u32_u24 v2, {CKS}, v15')
    I('v_lshl_add_u32 v2, v14, 4, v2')
    I(f'v_add_u32 v2, {L_QT}, v2')
    I('v_lshlrev_b32 v4, 5, v15')
    I(f'v_add_u32 v4, {L_MX}, v4')
    I('s_lshl_b32 s4, s3, 2')
    I('v_add_u32 v3, s4, v4')
    I('s_waitcnt lgkmcnt(0)')
    barrier()
    stamp(7)
    for t in range(16):
        I(f'ds_read_b128 {vr(148+4*t)}, v2 offset:{t*64}')
    for t in range(16):
        I(f's_waitcnt lgkmcnt({15 if t else 15})') if False else I('s_waitcnt lgkmcnt(15)')
        c = '0' if t == 0 else 'v[212:215]'
        I(f'v_mfma_f32_16x16x32_bf16 v[212:215], {vr(20+4*t)}, {vr(148+4*t)}, {c}')
        I(f'ds_read_b128 {vr(148+4*t)}, v2 offset:{16*CKS + t*64}')
    for t in range(16):
        I(f's_waitcnt lgkmcnt({15-t})')
        c = '0' if t == 0 else 'v[216:219]'
        I(f'v_mfma_f32_16x16x32_bf16 v[216:219], {vr(20+4*t)}, {vr(148+4*t)}, {c}')
    I('v_max_f32 v220, v212, v213')
    I('v_max3_f32 v220, v220, v214, v215')
    allreduce('v_max_f32', 220, 222, skip_row=True)
    I('v_max_f32 v221, v216, v217')
    I('v_max3_f32 v221, v221, v218, v219')
    allreduce('v_max_f32', 221, 222, skip_row=True)
    I('ds_write_b32 v3, v220')
    I('ds_write_b32 v3, v221 offset:512')
    I(f'v_mul_u32_u24 v5, {PTS}, v15')
    I(f'v_add_u32 v5, {L_PT}, v5')
    I('v_lshl_add_u32 v3, v14, 3, v5')
    I('s_lshl_b32 s4, s3, 5')
    I('v_add_u32 v3, s4, v3')
    I('v_lshl_add_u32 v5, v14, 4, v5')
    I('s_waitcnt lgkmcnt(0)')
    barrier()
    for ht in range(2):
        I(f'ds_read_b128 {vr(148+8*ht)}, v4 offset:{ht*512}')
        I(f'ds_read_b128 {vr(152+8*ht)}, v4 offset:{ht*512+16}')
    I('s_waitcnt lgkmcnt(0)')
    for ht in range(2):
        q = 148 + 8 * ht
        I(f'v_max3_f32 v{220+ht}, v{q}, v{q+1}, v{q+2}')
        I(f'v_max3_f32 v{220+ht}, v{220+ht}, v{q+3}, v{q+4}')
        I(f'v_max3_f32 v{220+ht}, v{220+ht}, v{q+5}, v{q+6}')
        I(f'v_max_f32 v{220+ht}, v{220+ht}, v{q+7}')
    for ht in range(2):
        for r in range(4):
            I(f'v_sub_f32 v{212+4*ht+r}, v{212+4*ht+r}, v{220+ht}')
    for r in range(8):
        I(f'v_exp_f32 v{212+r}, v{212+r}')
    nop(1)
    for q in range(4):
        I(f'v_cvt_pk_bf16_f32 v{224+q}, v{212+2*q}, v{213+2*q}')
    I('ds_write_b64 v3, v[224:225]')
    I(f'ds_write_b64 v3, v[226:227] offset:{16*PTS}')
    I('v_lshlrev_b32 v2, 15, v15')
    I('v_lshl_add_u32 v2, v14, 5, v2')
    I('s_lshl_b32 s4, s42, 20')
    I('s_lshl_b32 s5, s43, 10')
    I('s_add_u32 s4, s4, s5')
    I('s_lshl_b32 s5, s3, 7')
    I('s_add_u32 s4, s4, s5')
    I(f's_add_u32 s4, s4, {OP}')
    I('s_add_u32 s5, s4, 0x80000')
    I('s_waitcnt lgkmcnt(0)')
    barrier()
    for ht in range(2):
        for t in range(4):
            I(f'ds_read_b128 {vr(148+16*ht+4*t)}, v5 offset:{ht*16*PTS + t*64}')
    for ht in range(2):
        for t in range(4):
            I(f's_waitcnt lgkmcnt({7-4*ht-t})')
            for n in range(4):
                acc = 180 + 16 * ht + 4 * n
                c = '0' if t == 0 else vr(acc)
                I(f'v_mfma_f32_16x16x32_bf16 {vr(acc)}, {vr(84+16*n+4*t)}, {vr(148+16*ht+4*t)}, {c}')
    nop(1)
    for ht in range(2):
        for n in range(4):
            I(f'v_cvt_pk_bf16_f32 v{20+8*ht+2*n}, v{180+16*ht+4*n}, v{181+16*ht+4*n}')
            I(f'v_cvt_pk_bf16_f32 v{21+8*ht+2*n}, v{182+16*ht+4*n}, v{183+16*ht+4*n}')
        for r in range(8): I(f'v_min_u32 v{20+8*ht+r}, 0xfffffffe, v{20+8*ht+r}')
        so = 's4' if ht == 0 else 's5'
        I(f'buffer_store_dwordx4 {vr(20+8*ht)}, v2, {S(WS)}, {so} offen sc1')
        I(f'buffer_store_dwordx4 {vr(24+8*ht)}, v2, {S(WS)}, {so} offen offset:16 sc1')
    I('s_cmp_gt_u32 s3, 1')
    I('s_cbranch_scc1 L_p3_done')
    for ht in range(2):
        for t in range(4):
            acc = 36 + 4 * ht
            c = '0' if t == 0 else vr(acc)
            I(f'v_mfma_f32_16x16x32_bf16 {vr(acc)}, v[16:19], {vr(148+16*ht+4*t)}, {c}')
    I('v_lshlrev_b32 v3, 8, v1')
    I('s_lshl_b32 s4, s42, 13')
    I('s_lshl_b32 s5, s3, 12')
    I('s_add_u32 s4, s4, s5')
    I('s_lshl_b32 s5, s43, 3')
    I('s_add_u32 s4, s4, s5')
    I(f's_add_u32 s4, s4, {ML}')
    I('s_cmp_eq_u32 s3, 0')
    I('s_cselect_b64 vcc, -1, 0')
    nop(2)
    I('v_cndmask_b32 v44, v221, v220, vcc')
    I('v_cndmask_b32 v45, v40, v36, vcc')
    I('v_min_u32 v44, 0xfffffffe, v44')
    I('v_min_u32 v45, 0xfffffffe, v45')
    setexec(0xffff)
    I(f'buffer_store_dwordx2 v[44:45], v3, {S(WS)}, s4 offen sc1')
    fullexec()
    L('L_p3_done')
    stamp(8)
    I('s_branch L_end')

def role_DE_common():
    L('L_de')
    C_, WM = 12, 16
    srd(C_, 'c'); srd(WM, 'wmod')
    I('s_sub_u32 s40, s2, 128')
    I('v_lshrrev_b32 v14, 4, v1')
    I('v_and_b32 v15, 15, v1')
    I('v_lshlrev_b32 v13, 4, v1')
    if XSPLIT:
        I('s_and_b32 s4, s40, 63')
        I('s_and_b32 s5, s4, 3')
        I('s_lshr_b32 s6, s4, 3')
        I('s_lshl_b32 s6, s6, 2')
        I('s_add_u32 s42, s6, s5')
        I('s_bfe_u32 s43, s4, 0x10002')
        I('s_mov_b32 s47, 0')
        I('s_cmp_lt_u32 s40, 64')
        I('s_cbranch_scc1 L_dec_done')
        I('s_cmp_ge_u32 s42, 27')
        I('s_cselect_b32 s47, 1, 0')
    else:
        I('s_cmp_ge_u32 s40, 118')
        I('s_cselect_b32 s47, 1, 0')
        I('s_cmp_ge_u32 s40, 64')
        I('s_cbranch_scc1 L_dec_e')
        I('s_lshr_b32 s4, s40, 4')
        I('s_lshl_b32 s4, s4, 3')
        I('s_and_b32 s5, s40, 7')
        I('s_add_u32 s42, s4, s5')
        I('s_bfe_u32 s43, s40, 0x10003')
        I('s_branch L_dec_done')
        L('L_dec_e')
        I('s_sub_u32 s6, s40, 64')
        I('s_lshr_b32 s4, s6, 4')
        I('s_lshl_b32 s4, s4, 3')
        I('s_and_b32 s5, s6, 7')
        I('s_add_u32 s42, s4, s5')
        I('s_bfe_u32 s43, s6, 0x10003')
        I('s_cmp_lt_u32 s6, 48')
        I('s_cbranch_scc1 L_dec_done')
        I('s_sub_u32 s6, s6, 48')
        I('s_cmp_ge_u32 s6, 3')
        I('s_cselect_b32 s43, 1, 0')
        I('s_mul_i32 s4, s43, 3')
        I('s_sub_u32 s6, s6, s4')
        I('s_add_u32 s42, s6, 24')
    L('L_dec_done')
    sk = uid('noclr')
    I('s_cmp_lg_u32 s3, 7')
    I(f's_cbranch_scc1 {sk}')
    for r in range(4, 8): I(f'v_mov_b32 v{r}, -1')
    I('v_lshrrev_b32 v2, 5, v1')
    I('v_lshlrev_b32 v2, 13, v2')
    I('v_bfe_u32 v3, v1, 4, 1')
    I('v_mul_u32_u24 v3, 15360, v3')
    I('v_add_u32 v2, v2, v3')
    I('v_lshl_add_u32 v2, v15, 4, v2')
    I('s_and_b32 s4, s40, 3')
    I('s_mul_i32 s4, s4, 30720')
    I('s_lshr_b32 s5, s40, 2')
    I('s_lshl_b32 s5, s5, 8')
    I('s_add_u32 s4, s4, s5')
    I(f's_add_u32 s4, s4, {MOD}')
    I('s_cmp_lt_u32 s40, 112')
    I('s_cselect_b32 exec_hi, -1, 0')
    I(f'buffer_store_dwordx4 v[4:7], v2, {S(WS)}, s4 offen sc1')
    fullexec()
    I('s_cmp_ge_u32 s40, 64')
    I('s_cbranch_scc1 L_clr_e')
    I('s_lshl_b32 s4, s43, 5')
    I('s_add_u32 s4, s4, s42')
    I('s_mul_i32 s4, s4, 1280')
    I(f's_add_u32 s4, s4, {AP}')
    I(f'buffer_store_dwordx4 v[4:7], v13, {S(WS)}, s4 offen sc1')
    setexec(0xffff)
    I(f'buffer_store_dwordx4 v[4:7], v13, {S(WS)}, s4 offen offset:1024 sc1')
    fullexec()
    I('s_branch L_clr_done')
    L('L_clr_e')
    I('s_cmp_lg_u32 s47, 0')
    I('s_cbranch_scc1 L_clr_done')
    I('s_mul_i32 s4, s43, 27')
    I('s_add_u32 s4, s4, s42')
    I('s_mul_i32 s4, s4, 2560')
    I(f's_add_u32 s4, s4, {FP}')
    I(f'buffer_store_dwordx4 v[4:7], v13, {S(WS)}, s4 offen sc1')
    I(f'buffer_store_dwordx4 v[4:7], v13, {S(WS)}, s4 offen offset:1024 sc1')
    setexec(0xffffffff)
    I(f'buffer_store_dwordx4 v[4:7], v13, {S(WS)}, s4 offen offset:2048 sc1')
    fullexec()
    L('L_clr_done')
    flag_store(0, 8)
    stamp(9, 7)
    L(sk)
    I('s_lshl_b32 s44, s3, 7')
    I('s_add_u32 s44, s44, s40')
    I('s_and_b32 s45, s44, 3')
    I('s_lshr_b32 s46, s44, 2')
    def unit_dma(wave):
        sk = uid('nodma')
        I(f's_cmp_lg_u32 s3, {wave}')
        I(f's_cbranch_scc1 {sk}')
        I('s_cmp_ge_u32 s44, 240')
        I(f's_cbranch_scc1 {sk}')
        I('v_lshrrev_b32 v2, 3, v1')
        I('v_and_b32 v3, 7, v1')
        I('v_xor_b32 v3, v3, v2')
        I('v_mul_u32_u24 v2, 7680, v2')
        I('v_lshl_add_u32 v2, v3, 4, v2')
        I('s_mul_i32 s4, s45, 1228800')
        I('s_lshl_b32 s5, s46, 7')
        I('s_add_u32 s4, s4, s5')
        I(f's_mul_i32 s5, s3, {L_WT1}')
        for q in range(20):
            I('s_mov_b32 m0, s5')
            nop(1)
            I(f'buffer_load_dwordx4 v2, {S(WM)}, s4 offen nt lds')
            if q < 19:
                I('s_add_u32 s4, s4, 61440')
                I('s_add_u32 s5, s5, 1024')
        L(sk)
    unit_dma(0)
    sk = uid('nost')
    I('s_sub_u32 s4, s3, 2')
    I('s_cmp_gt_u32 s4, 4')
    I(f's_cbranch_scc1 {sk}')
    I('v_subrev_u32 v12, 128, v0')
    I('v_lshlrev_b32 v2, 3, v12')
    I(f'buffer_load_dwordx2 v[4:5], v2, {S(C_)}, 0 offen')
    I('v_cmp_le_u32 vcc, 160, v12')
    nop(2)
    I('v_cndmask_b32 v6, 0, 1, vcc')
    I('v_mul_u32_u24 v7, 160, v6')
    I('v_sub_u32 v7, v12, v7')
    I('v_lshrrev_b32 v8, 3, v7')
    I('v_and_b32 v9, 3, v7')
    I('v_bfe_u32 v10, v7, 2, 1')
    I('v_mul_u32_u24 v6, 1280, v6')
    I('v_lshl_add_u32 v6, v8, 6, v6')
    I('v_lshl_add_u32 v6, v9, 4, v6')
    I('v_lshl_add_u32 v6, v10, 3, v6')
    I(f'v_add_u32 v6, {L_ST}, v6')
    I('s_waitcnt vmcnt(0)')
    I('v_lshlrev_b32 v8, 16, v4')
    I('v_and_b32 v9, 0xffff0000, v4')
    I('v_lshlrev_b32 v10, 16, v5')
    I('v_and_b32 v11, 0xffff0000, v5')
    for r in range(4):
        I(f'v_mul_f32 v{16+r}, 0xbfb8aa3b, v{8+r}')
        I(f'v_exp_f32 v{16+r}, v{16+r}')
        nop(1)
        I(f'v_add_f32 v{16+r}, 1.0, v{16+r}')
        I(f'v_rcp_f32 v{16+r}, v{16+r}')
        nop(1)
        I(f'v_mul_f32 v{16+r}, v{8+r}, v{16+r}')
    I('v_cvt_pk_bf16_f32 v4, v16, v17')
    I('v_cvt_pk_bf16_f32 v5, v18, v19')
    I('ds_write_b64 v6, v[4:5]')
    I('s_waitcnt lgkmcnt(0)')
    L(sk)
    sk = uid('nogi')
    I('s_cmp_lg_u32 s3, 2')
    I(f's_cbranch_scc1 {sk}')
    I(f'v_mov_b32 v4, {L_FC}')
    I('v_mov_b32 v5, 0')
    I('ds_write_b32 v4, v5')
    I('s_waitcnt lgkmcnt(0)')
    L(sk)
    barrier()
    tag_compute()
    sk = uid('noopc')
    I('s_cmp_lt_u32 s40, 64')
    I(f's_cbranch_scc1 {sk}')
    I('s_cmp_lg_u32 s3, 3')
    I(f's_cbranch_scc1 {sk}')
    if W1GATE: lds_gate()
    for r in range(4, 8): I(f'v_mov_b32 v{r}, -1')
    I('s_sub_u32 s6, s40, 64')
    I('s_lshl_b32 s7, s6, 15')
    I(f's_add_u32 s7, s7, {OP}')
    for i in range(32):
        I(f'buffer_store_dwordx4 v[4:7], v13, {S(WS)}, s7 offen offset:{(i%4)*1024} sc1')
        if i % 4 == 3 and i < 31: I('s_add_u32 s7, s7, 4096')
    I('s_lshl_b32 s7, s6, 8')
    I(f's_add_u32 s7, s7, {ML}')
    setexec(0xffff)
    I(f'buffer_store_dwordx4 v[4:7], v13, {S(WS)}, s7 offen sc1')
    fullexec()
    flag_store(1, 8)
    stamp(10, 3)
    L(sk)
    sk = uid('now2')
    I('s_cmp_lg_u32 s3, 2')
    I(f's_cbranch_scc1 {sk}')
    flags_wait(2, 0, 64, 2)
    I(f'v_mov_b32 v4, {L_FC}')
    I('v_mov_b32 v5, 1')
    I('ds_write_b32 v4, v5')
    I('s_waitcnt lgkmcnt(0)')
    L(sk)
    if W1GATE:
        sk = uid('now1')
        I('s_cmp_lg_u32 s3, 1')
        I(f's_cbranch_scc1 {sk}')
        lds_gate()
        L(sk)
    unit_dma(1)
    sk = uid('nop0')
    I('s_cmp_gt_u32 s3, 1')
    I(f's_cbranch_scc1 {sk}')
    I('s_cmp_ge_u32 s44, 240')
    I(f's_cbranch_scc1 {sk}')
    I('v_and_b32 v2, 1, v15')
    I('v_mul_u32_u24 v2, 1280, v2')
    I('v_lshl_add_u32 v2, v14, 4, v2')
    I('s_mul_i32 s4, s45, 320')
    I(f's_add_u32 s4, s4, {L_ST}')
    I('v_add_u32 v2, s4, v2')
    for t in range(5):
        I(f'ds_read_b128 {vr(20+4*t)}, v2 offset:{t*64}')
    I('v_lshrrev_b32 v2, 2, v15')
    I('v_lshl_add_u32 v2, v14, 2, v2')
    I('v_and_b32 v3, 7, v2')
    I('v_bfe_u32 v4, v15, 1, 1')
    I('v_xor_b32 v3, v3, v4')
    I('v_lshlrev_b32 v2, 7, v2')
    I('v_and_b32 v4, 1, v15')
    I('v_lshl_add_u32 v2, v4, 3, v2')
    I(f's_mul_i32 s5, s3, {L_WT1}')
    I('v_add_u32 v2, s5, v2')
    for n in range(4):
        I(f'v_xor_b32 v4, {2*n}, v3')
        I(f'v_lshl_add_u32 v{8+n}, v4, 4, v2')
    I('s_waitcnt vmcnt(0)')
    for n in range(4):
        for t in range(5):
            I(f'ds_read_b64_tr_b16 {vr(40+20*n+4*t,2)}, v{8+n} offset:{t*4096}')
            I(f'ds_read_b64_tr_b16 {vr(42+20*n+4*t,2)}, v{8+n} offset:{t*4096+2048}')
    I('s_waitcnt lgkmcnt(0)')
    for t in range(5):
        for n in range(4):
            c = '0' if t == 0 else vr(120 + 4 * n)
            I(f'v_mfma_f32_16x16x32_bf16 {vr(120+4*n)}, {vr(40+20*n+4*t)}, {vr(20+4*t)}, {c}')
    nop(9)
    for r in range(16): I(f'v_min_u32 v{120+r}, 0xfffffffe, v{120+r}')
    I('v_mul_u32_u24 v2, 15360, v15')
    I('v_lshl_add_u32 v2, v14, 4, v2')
    I('s_mul_i32 s4, s45, 30720')
    I('s_lshl_b32 s5, s46, 8')
    I('s_add_u32 s4, s4, s5')
    I(f's_add_u32 s4, s4, {MOD}')
    setexec(0x00030003, 0x00030003)
    for n in range(4):
        I(f'buffer_store_dwordx4 {vr(120+4*n)}, v2, {S(WS)}, s4 offen offset:{n*64} sc1')
    fullexec()
    L(sk)
    stamp(1)
    I('s_cmp_ge_u32 s40, 64')
    I('s_cbranch_scc1 L_role_e')

def role_D():
    WUV, WO = 20, 24
    srd(WUV, 'wuv'); srd(WO, 'wo')
    make_masks(16, True)
    if DRY:
        I('s_cmp_lg_u32 s3, 7')
        I('s_cbranch_scc1 L_d_init')
        enter_dry('L_d_main')
    L('L_d_init')
    I('v_lshlrev_b32 v2, 17, v14')
    I('v_lshl_add_u32 v2, v15, 4, v2')
    I('s_lshl_b32 s4, s3, 19')
    I('s_lshl_b32 s5, s42, 8')
    I('s_add_u32 s4, s4, s5')
    I('v_mul_u32_u24 v3, 5120, v14')
    I('v_lshl_add_u32 v3, v15, 4, v3')
    I('s_mul_i32 s5, s42, 163840')
    I('s_mul_i32 s6, s3, 20480')
    I('s_add_u32 s5, s5, s6')
    lds = []
    for t in range(16):
        lds.append(([] if t == 0 else ['s_add_u32 s4, s4, 8192']) +
                   [f'buffer_load_dwordx4 {vr(20+4*t)}, v2, {S(WUV)}, s4 offen nt'])
    for t in range(4):
        for blk in range(5):
            lds.append((['s_add_u32 s5, s5, 1280'] if (blk == 0 and t > 0) else []) +
                       [f'buffer_load_dwordx4 {vr(84+16*blk+4*t)}, v3, {S(WO)}, s5 offen offset:{blk*256} nt'])
    paced(lds[:SLOWN], SLOWP)
    if SLOWN < 36: lds_gate()
    paced(lds[SLOWN:], PACE)
    L('L_d_main')
    stamp(2)
    sk = uid('nolp')
    I('s_cmp_lg_u32 s3, 0')
    skip_if(sk)
    flags_wait(1, 192, 64)
    I('v_and_b32 v2, 31, v1')
    I('v_lshlrev_b32 v2, 3, v2')
    I('s_lshl_b32 s4, s43, 5')
    I('s_add_u32 s4, s4, s42')
    I('s_lshl_b32 s5, s4, 8')
    I(f's_add_u32 s5, s5, {ML}')
    lab = spin_begin()
    I(f'buffer_load_dwordx2 v[4:5], v2, {S(WS)}, s5 offen sc1')
    I('s_waitcnt vmcnt(0)')
    anysent([4, 5], 6)
    spin_end(lab, 2)
    L(sk)
    barrier()
    stamp(6)
    sk = uid('noz')
    I('s_cmp_gt_u32 s3, 3')
    skip_if(sk)
    I('v_and_b32 v2, 31, v1')
    I('v_lshlrev_b32 v2, 3, v2')
    I('s_lshl_b32 s4, s43, 5')
    I('s_add_u32 s4, s4, s42')
    I('s_lshl_b32 s5, s4, 8')
    I(f's_add_u32 s5, s5, {ML}')
    I('v_lshlrev_b32 v3, 13, v14')
    I('v_lshl_add_u32 v3, v15, 4, v3')
    I('s_lshl_b32 s6, s4, 15')
    I('s_lshl_b32 s7, s3, 8')
    I('s_add_u32 s6, s6, s7')
    I(f's_add_u32 s48, s6, {OP}')
    I('s_add_u32 s49, s48, 4096')
    lab = spin_begin()
    I(f'buffer_load_dwordx2 v[4:5], v2, {S(WS)}, s5 offen sc1')
    for t in range(8):
        I(f'buffer_load_dwordx4 {vr(164+4*t)}, v3, {S(WS)}, s{48+t//4} offen offset:{(t%4)*1024} sc1')
    I('s_waitcnt vmcnt(0)')
    anysent([4, 5] + list(range(164, 196)), 6)
    spin_end(lab)
    stamp(3)
    I('v_mov_b32 v6, v4')
    allreduce('v_max_f32', 6, 7)
    I('v_sub_f32 v4, v4, v6')
    I('v_exp_f32 v4, v4')
    nop(1)
    I('v_cvt_pk_bf16_f32 v8, v4, v4')
    I('v_and_b32 v4, 0xffff0000, v8')
    I('v_mul_f32 v5, v4, v5')
    allreduce('v_add_f32', 5, 7)
    I('v_rcp_f32 v5, v5')
    I('v_lshlrev_b32 v2, 2, v1')
    I('s_lshl_b32 s4, s3, 8')
    I(f's_add_u32 s4, s4, {L_D_WD}')
    I('v_add_u32 v2, s4, v2')
    I('ds_write_b32 v2, v8')
    I('v_lshlrev_b32 v2, 5, v14')
    I('v_add_u32 v2, s4, v2')
    I('v_add_f32 v5, v5, v5')
    I('s_waitcnt lgkmcnt(0)')
    for q in range(2):
        I(f'ds_read_b128 {vr(228+4*q)}, v2 offset:{q*16}')
    I('s_waitcnt lgkmcnt(0)')
    gemv_diag(8, lambda t: 228 + t, 16, [244, 248], lambda blk, t: 164 + 4 * t, [8])
    for r in range(4):
        I(f'v_mul_f32 v{8+r}, v{8+r}, v5')
        I(f'v_cvt_pk_bf16_f32 v{8+r}, v{8+r}, v{8+r}')
    I('v_lshlrev_b32 v2, 5, v15')
    I('v_lshl_add_u32 v2, v14, 4, v2')
    I('s_lshl_b32 s4, s3, 9')
    I(f's_add_u32 s4, s4, {L_D_CD}')
    I('v_add_u32 v2, s4, v2')
    setexec(0xffffffff)
    I('ds_write_b128 v2, v[8:11]')
    fullexec()
    I('s_waitcnt lgkmcnt(0)')
    L(sk)
    I('s_waitcnt vmcnt(0)')
    barrier()
    stamp(4)
    I('v_lshlrev_b32 v2, 6, v14')
    I('s_lshl_b32 s4, s3, 8')
    I(f's_add_u32 s4, s4, {L_D_CD}')
    I('v_add_u32 v2, s4, v2')
    for q in range(4):
        I(f'ds_read_b128 {vr(164+4*q)}, v2 offset:{q*16}')
    I('s_waitcnt lgkmcnt(0)')
    gemv_diag(16, lambda t: 164 + t, 16, [204, 208], lambda blk, t: 20 + 4 * t, [212])
    I('v_lshlrev_b32 v2, 5, v15')
    I('v_lshl_add_u32 v2, v14, 4, v2')
    I('s_lshl_b32 s4, s3, 9')
    I(f's_add_u32 s4, s4, {L_D_RED}')
    I('v_add_u32 v3, s4, v2')
    setexec(0xffffffff)
    I('ds_write_b128 v3, v[212:215]')
    fullexec()
    I('s_waitcnt lgkmcnt(0)')
    barrier()
    I('v_lshlrev_b32 v3, 4, v14')
    I('s_lshl_b32 s4, s3, 6')
    I(f's_add_u32 s4, s4, {L_D_RED}')
    I('v_add_u32 v3, s4, v3')
    for w in range(8):
        I(f'ds_read_b128 {vr(164+4*w)}, v3 offset:{w*512}')
    I('s_waitcnt lgkmcnt(0)')
    for w in range(1, 8):
        for r in range(4):
            I(f'v_add_f32 v{164+r}, v{164+r}, v{164+4*w+r}')
    for r in range(4): I(f'v_cvt_pk_bf16_f32 v{164+r}, v{164+r}, v{164+r}')
    gemv_diag(4, lambda t: 164 + t, 16, [204, 208], lambda blk, t: 84 + 16 * blk + 4 * t,
              [212, 216, 220, 224, 228])
    I('s_mul_i32 s4, s3, 2560')
    I(f's_add_u32 s4, s4, {L_D_RED2}')
    I('v_add_u32 v3, s4, v2')
    setexec(0xffffffff)
    for blk in range(5):
        I(f'ds_write_b128 v3, {vr(212+4*blk)} offset:{blk*512}')
    fullexec()
    I('s_waitcnt lgkmcnt(0)')
    barrier()
    I('s_cmp_gt_u32 s3, 2')
    skip_if('L_end')
    I('v_cmp_gt_u32 vcc, 160, v0')
    I('s_and_saveexec_b64 s[6:7], vcc')
    I('v_lshlrev_b32 v3, 4, v0')
    I(f'v_add_u32 v3, {L_D_RED2}, v3')
    for w in range(8):
        I(f'ds_read_b128 {vr(164+4*w)}, v3 offset:{w*2560}')
    I('s_waitcnt lgkmcnt(0)')
    for w in range(1, 8):
        for r in range(4):
            I(f'v_add_f32 v{164+r}, v{164+r}, v{164+4*w+r}')
    I('v_cvt_pk_bf16_f32 v4, v164, v165')
    I('v_cvt_pk_bf16_f32 v5, v166, v167')
    I('v_min_u32 v4, 0xfffffffe, v4')
    I('v_min_u32 v5, 0xfffffffe, v5')
    I('v_lshlrev_b32 v3, 3, v0')
    I('s_lshl_b32 s4, s43, 5')
    I('s_add_u32 s4, s4, s42')
    I('s_mul_i32 s4, s4, 1280')
    I(f's_add_u32 s4, s4, {AP}')
    I(f'buffer_store_dwordx2 v[4:5], v3, {S(WS)}, s4 offen sc1')
    fullexec()
    stamp(5)
    role_end('L_d_init')

def role_E():
    L('L_role_e')
    WG, WU, WD, X_, OUT = 20, 24, 28, 32, 36
    srd(WG, 'wg'); srd(WU, 'wu'); srd(WD, 'wd'); srd(X_, 'x'); srd(OUT, 'out')
    make_masks(16, True)
    if DRY:
        I('s_cmp_lg_u32 s3, 7')
        I('s_cbranch_scc1 L_e_init')
        I('s_cmp_lg_u32 s47, 0')
        I('s_cbranch_scc1 L_e_init')
        enter_dry('L_e_main')
    L('L_e_init')
    if EGATE: lds_gate()
    I('s_cmp_lg_u32 s47, 0')
    I('s_cbranch_scc1 L_end')
    I('v_mul_u32_u24 v2, 69120, v14')
    I('v_and_b32 v3, 7, v15')
    I('v_lshl_add_u32 v2, v3, 4, v2')
    I('s_mul_i32 s4, s3, 276480')
    I('s_lshl_b32 s5, s42, 7')
    I('s_add_u32 s4, s4, s5')
    I('s_mov_b32 s6, 0x00ff00ff')
    I('s_mov_b32 s7, 0x00ff00ff')
    I('s_mov_b32 s48, 0xff00ff00')
    I('s_mov_b32 s49, 0xff00ff00')
    lds = []
    for t in range(20):
        lds.append(([] if t == 0 else ['s_add_u32 s4, s4, 3456']) + ['s_mov_b64 exec, s[6:7]',
                   f'buffer_load_dwordx4 {vr(20+4*t)}, v2, {S(WG)}, s4 offen nt'])
        lds.append(['s_mov_b64 exec, s[48:49]', f'buffer_load_dwordx4 {vr(20+4*t)}, v2, {S(WU)}, s4 offen nt'])
    paced(lds, 2 * EPACE)
    fullexec()
    sk = uid('nodn')
    I('s_cmp_gt_u32 s3, 4')
    I(f's_cbranch_scc1 {sk}')
    I('v_mul_u32_u24 v2, 20480, v14')
    I('v_lshl_add_u32 v2, v15, 4, v2')
    I('s_mul_i32 s4, s42, 81920')
    I('s_lshl_b32 s5, s3, 8')
    I('s_add_u32 s4, s4, s5')
    lds = []
    for t in range(16):
        lds.append(([] if t == 0 else ['s_add_u32 s4, s4, 1280']) +
                   [f'buffer_load_dwordx4 {vr(100+4*t)}, v2, {S(WD)}, s4 offen nt'])
    I(f's_waitcnt vmcnt({EPACE})')
    paced(lds, EPACE)
    L(sk)
    L('L_e_main')
    sk = uid('nofw')
    I('s_cmp_lg_u32 s3, 0')
    skip_if(sk)
    flags_wait(0)
    L(sk)
    barrier()
    stamp(2)
    I('v_and_b32 v2, 1, v14')
    I('v_lshlrev_b32 v2, 2, v2')
    I('v_lshl_add_u32 v2, v15, 3, v2')
    I('s_lshl_b32 s4, s3, 7')
    I('v_add_u32 v12, s4, v2')
    sk5 = uid('w5')
    I('s_cmp_gt_u32 s3, 4')
    skip_if(sk5)
    I('v_lshlrev_b32 v2, 1, v12')
    I('s_mul_i32 s4, s43, 1280')
    I(f'buffer_load_dwordx2 v[4:5], v2, {S(X_)}, s4 offen')
    I('v_lshlrev_b32 v2, 2, v12')
    I('s_mul_i32 s4, s43, 15360')
    I(f's_add_u32 s48, s4, {MOD + 2*2560}')
    for i in range(1, 12):
        p, kq = i % 3, i // 3
        I(f's_add_u32 s{48+i}, s48, {p*2560 + kq*30720}')
    lab = spin_begin()
    for i in range(12):
        I(f'buffer_load_dwordx4 {vr(164+4*i)}, v2, {S(WS)}, s{48+i} offen sc1')
    I('s_waitcnt vmcnt(0)')
    anysent(range(164, 212), 6)
    spin_end(lab)
    for p in range(3):
        for r in range(4):
            a = 164 + 4 * p + r
            I(f'v_add_f32 v{a}, v{a}, v{a+12}')
            I(f'v_add_f32 v{a+24}, v{a+24}, v{a+36}')
            I(f'v_add_f32 v{a}, v{a}, v{a+24}')
            bfround(a)
    I('v_lshlrev_b32 v176, 16, v4')
    I('v_and_b32 v177, 0xffff0000, v4')
    I('v_lshlrev_b32 v178, 16, v5')
    I('v_and_b32 v179, 0xffff0000, v5')
    for r in range(4):
        I(f'v_add_f32 v{172+r}, 1.0, v{172+r}')
        bfround(172 + r)
    for d in range(4): I(f'v_and_b32 v{204+d}, 0x3f803f80, v{16+d}')
    I('v_mul_u32_u24 v3, 10240, v14')
    I('v_lshl_add_u32 v3, v15, 4, v3')
    I('s_mul_i32 s4, s43, 40960')
    I('s_lshl_b32 s5, s3, 8')
    I('s_add_u32 s4, s4, s5')
    I(f's_add_u32 s4, s4, {AP}')
    I('s_add_u32 s5, s4, 3840')
    I('s_add_u32 s6, s4, 7680')
    L(sk5)
    sk = uid('nolp')
    I('s_cmp_lg_u32 s3, 5')
    skip_if(sk)
    I('v_and_b32 v2, 31, v1')
    I('v_mul_u32_u24 v2, 1280, v2')
    I('s_mul_i32 s4, s43, 40960')
    I(f's_add_u32 s4, s4, {AP + 1276}')
    lab = spin_begin()
    I(f'buffer_load_dword v4, v2, {S(WS)}, s4 offen sc1')
    I('s_waitcnt vmcnt(0)')
    I('v_cmp_eq_u32 vcc, -1, v4')
    spin_end(lab, 2)
    L(sk)
    barrier()
    stamp(6)
    sk5 = uid('w5a')
    I('s_cmp_gt_u32 s3, 4')
    skip_if(sk5)
    lab = spin_begin()
    for t in range(8):
        so = ['s4', 's5', 's6'][t // 3]
        I(f'buffer_load_dwordx4 {vr(208+4*t)}, v3, {S(WS)}, {so} offen offset:{(t%3)*1280} sc1')
    I('s_waitcnt vmcnt(0)')
    anysent(range(208, 240), 6)
    spin_end(lab)
    stamp(3)
    for t in range(8):
        c = '0' if t == 0 else 'v[180:183]'
        I(f'v_mfma_f32_16x16x32_bf16 v[180:183], v[204:207], {vr(208+4*t)}, {c}')
    nop(9)
    for r in range(4):
        bfround(180 + r)
        I(f'v_mul_f32 v{180+r}, v{164+r}, v{180+r}')
        bfround(180 + r)
        I(f'v_add_f32 v{180+r}, v{176+r}, v{180+r}')
        bfround(180 + r)
    I('v_cmp_gt_u32 vcc, 32, v1')
    I('v_add_f32 v6, v180, v181')
    I('v_add_f32 v7, v182, v183')
    I('v_add_f32 v6, v6, v7')
    I('v_cndmask_b32 v6, 0, v6, vcc')
    allreduce('v_add_f32', 6, 7)
    I('v_mul_f32 v6, 0x3c000000, v6')
    for r in range(4): I(f'v_sub_f32 v{184+r}, v{180+r}, v6')
    I('v_mul_f32 v8, v184, v184')
    for r in range(1, 4): I(f'v_fmac_f32 v8, v{184+r}, v{184+r}')
    I('v_cndmask_b32 v8, 0, v8, vcc')
    allreduce('v_add_f32', 8, 7)
    I('v_mov_b32 v7, v8')
    I('s_lshl_b32 s4, s3, 3')
    I(f's_add_u32 s4, s4, {L_E_STAT}')
    I('v_mov_b32 v2, s4')
    I('v_lshlrev_b32 v3, 2, v12')
    I(f'v_add_u32 v3, {L_E_X1}, v3')
    setexec(1)
    I('ds_write_b64 v2, v[6:7]')
    setexec(0xffffffff)
    I('ds_write_b128 v3, v[180:183]')
    fullexec()
    I('s_waitcnt lgkmcnt(0)')
    L(sk5)
    barrier()
    sk5 = uid('w5b')
    I('s_cmp_gt_u32 s3, 4')
    skip_if(sk5)
    I(f'v_mov_b32 v2, {L_E_STAT}')
    I('ds_read_b128 v[184:187], v2')
    I('ds_read_b128 v[188:191], v2 offset:16')
    I('ds_read_b64 v[192:193], v2 offset:32')
    I('s_waitcnt lgkmcnt(0)')
    I('v_add_f32 v6, v184, v186')
    I('v_add_f32 v6, v6, v188')
    I('v_add_f32 v6, v6, v190')
    I('v_add_f32 v6, v6, v192')
    I('v_mul_f32 v6, 0x3e4ccccd, v6')
    I('v_add_f32 v7, v185, v187')
    I('v_add_f32 v7, v7, v189')
    I('v_add_f32 v7, v7, v191')
    I('v_add_f32 v7, v7, v193')
    for k in range(5):
        I(f'v_sub_f32 v8, v{184+2*k}, v6')
        I('v_mul_f32 v8, v8, v8')
        I('v_fmac_f32 v7, 0x43000000, v8')
    I('v_mul_f32 v7, 0x3acccccd, v7')
    bfround(6); bfround(7)
    I('v_add_f32 v7, 0x3727c5ac, v7')
    bfround(7)
    I('v_sqrt_f32 v7, v7')
    nop(1)
    bfround(7)
    I('v_rcp_f32 v7, v7')
    for r in range(4):
        I(f'v_sub_f32 v{184+r}, v{180+r}, v6')
        bfround(184 + r)
        I(f'v_mul_f32 v{184+r}, v{184+r}, v7')
        bfround(184 + r)
        I(f'v_mul_f32 v{184+r}, v{184+r}, v{172+r}')
        bfround(184 + r)
        I(f'v_add_f32 v{184+r}, v{184+r}, v{168+r}')
        I(f'v_cvt_pk_bf16_f32 v{184+r}, v{184+r}, v{184+r}')
    I('v_lshlrev_b32 v3, 2, v12')
    I(f'v_add_u32 v3, {L_E_HT}, v3')
    setexec(0xffffffff)
    I('ds_write_b128 v3, v[184:187]')
    fullexec()
    I('s_waitcnt lgkmcnt(0)')
    L(sk5)
    I('s_waitcnt vmcnt(0)')
    barrier()
    stamp(4)
    I('v_mul_u32_u24 v2, 80, v14')
    I('s_mul_i32 s4, s3, 320')
    I(f's_add_u32 s4, s4, {L_E_HT}')
    I('v_add_u32 v2, s4, v2')
    for q in range(5):
        I(f'ds_read_b128 {vr(164+4*q)}, v2 offset:{q*16}')
    I('s_waitcnt lgkmcnt(0)')
    gemv_diag(20, lambda t: 164 + t, 16, [204, 208], lambda blk, t: 20 + 4 * t, [212])
    I('v_lshlrev_b32 v2, 5, v15')
    I('v_lshl_add_u32 v2, v14, 4, v2')
    I('s_lshl_b32 s4, s3, 9')
    I(f's_add_u32 s4, s4, {L_E_RED}')
    I('v_add_u32 v3, s4, v2')
    setexec(0xffffffff)
    I('ds_write_b128 v3, v[212:215]')
    fullexec()
    I('s_waitcnt lgkmcnt(0)')
    barrier()
    sk = uid('nohh')
    I('s_cmp_lg_u32 s3, 0')
    skip_if(sk)
    I(f'v_add_u32 v3, {L_E_RED}, v13')
    setexec(0xffff)
    for w in range(8):
        I(f'ds_read_b128 {vr(164+4*w)}, v3 offset:{w*512}')
        I(f'ds_read_b128 {vr(208+4*w)}, v3 offset:{w*512+256}')
    I('s_waitcnt lgkmcnt(0)')
    for w in range(1, 8):
        for r in range(4):
            I(f'v_add_f32 v{164+r}, v{164+r}, v{164+4*w+r}')
            I(f'v_add_f32 v{208+r}, v{208+r}, v{208+4*w+r}')
    for r in range(4):
        bfround(164 + r); bfround(208 + r)
        I(f'v_mul_f32 v{164+r}, 0xbfb8aa3b, v{164+r}')
        I(f'v_exp_f32 v{164+r}, v{164+r}')
        nop(1)
        I(f'v_add_f32 v{164+r}, 1.0, v{164+r}')
        I(f'v_rcp_f32 v{164+r}, v{164+r}')
        nop(1)
        bfround(164 + r)
        I(f'v_mul_f32 v{164+r}, v{164+r}, v{208+r}')
        I(f'v_cvt_pk_bf16_f32 v{164+r}, v{164+r}, v{164+r}')
    I(f'v_add_u32 v3, {L_E_HH}, v13')
    I('ds_write_b128 v3, v[164:167]')
    fullexec()
    I('s_waitcnt lgkmcnt(0)')
    L(sk)
    barrier()
    I('s_cmp_gt_u32 s3, 4')
    skip_if('L_final')
    I('v_lshlrev_b32 v2, 6, v14')
    I(f'v_add_u32 v2, {L_E_HH}, v2')
    for q in range(4):
        I(f'ds_read_b128 {vr(164+4*q)}, v2 offset:{q*16}')
    I('s_waitcnt lgkmcnt(0)')
    gemv_diag(16, lambda t: 164 + t, 16, [204, 208], lambda blk, t: 100 + 4 * t, [212])
    for r in range(4): I(f'v_min_u32 v{212+r}, 0xfffffffe, v{212+r}')
    I('v_lshlrev_b32 v2, 2, v12')
    I('s_mul_i32 s4, s43, 27')
    I('s_add_u32 s4, s4, s42')
    I('s_mul_i32 s4, s4, 2560')
    I(f's_add_u32 s4, s4, {FP}')
    setexec(0xffffffff)
    I(f'buffer_store_dwordx4 v[212:215], v2, {S(WS)}, s4 offen sc1')
    fullexec()
    stamp(5)
    I('s_cmp_lg_u32 s100, 0')
    I('s_cbranch_scc1 L_end')
    L('L_final')
    I('s_cmp_lg_u32 s3, 5')
    skip_if('L_end')
    I('s_cmp_ge_u32 s42, 10')
    skip_if('L_end')
    I('s_lshl_b32 s4, s42, 6')
    I('v_add_u32 v12, s4, v1')
    I('v_lshlrev_b32 v2, 2, v12')
    I(f'v_add_u32 v3, {L_E_X1}, v2')
    I('ds_read_b32 v10, v3')
    I('s_mul_i32 s4, s43, 15360')
    I(f's_add_u32 s4, s4, {MOD + 5*2560}')
    I('s_mul_i32 s5, s43, 69120')
    I(f's_add_u32 s5, s5, {FP}')
    lab = spin_begin()
    I('s_mov_b32 s6, s4')
    for kq in range(4):
        I(f'buffer_load_dword v{48+kq}, v2, {S(WS)}, s6 offen sc1')
        if kq < 3: I('s_add_u32 s6, s6, 30720')
    I('s_mov_b32 s6, s5')
    for p in range(27):
        I(f'buffer_load_dword v{20+p}, v2, {S(WS)}, s6 offen sc1')
        if p < 26: I('s_add_u32 s6, s6, 2560')
    I('s_waitcnt vmcnt(0)')
    anysent(list(range(48, 52)) + list(range(20, 47)), 6)
    spin_end(lab)
    I('v_add_f32 v11, v48, v49')
    I('v_add_f32 v50, v50, v51')
    I('v_add_f32 v11, v11, v50')
    bfround(11)
    for p in range(1, 27): I(f'v_add_f32 v20, v20, v{20+p}')
    bfround(20)
    I('v_mul_f32 v20, v11, v20')
    bfround(20)
    I('s_waitcnt lgkmcnt(0)')
    I('v_add_f32 v20, v10, v20')
    I('v_cvt_pk_bf16_f32 v20, v20, v20')
    I('v_lshlrev_b32 v2, 1, v12')
    I('s_mul_i32 s4, s43, 1280')
    I(f'buffer_store_short v20, v2, {S(OUT)}, s4 offen')
    stamp(7, 5)
    if DBGT:
        I('s_memrealtime s[60:61]')
        I('s_mov_b32 s20, s90')
        I('s_and_b32 s21, s91, 0xffff')
        I('s_mov_b32 s22, 256')
        I('s_mov_b32 s23, 0x00020000')
        I('s_waitcnt lgkmcnt(0)')
        I('s_sub_u32 s60, s60, s56')
        I('v_mov_b32 v4, s60')
        I('s_mul_i32 s5, s43, 10')
        I('s_add_u32 s5, s5, s42')
        I('s_lshl_b32 s5, s5, 2')
        I('v_mov_b32 v5, 0')
        setexec(1)
        I('buffer_store_dword v4, v5, s[20:23], s5 offen')
        fullexec()
    role_end('L_e_init')

prologue()
role_P12()
role_P3()
role_DE_common()
role_D()
role_E()
L('L_end')
I('s_endpgm')

hdr = open('cdna_kernels/' + NAME + '.s.ref').read().split('\n')
out = []
for ln in hdr:
    if ln.startswith('; @launch'):
        out.append(f'; @launch grid=(256,1,1) block=(512,1,1) lds={LDS_BYTES}')
    elif ln.startswith(';'):
        out.append(ln)
    else:
        break
out += ['.amdgcn_target "amdgcn-amd-amdhsa--gfx950"', '.text', f'.globl {NAME}_kernel', '.p2align 8',
        f'.type {NAME}_kernel,@function', f'{NAME}_kernel:']
out += lines
out += ['.section .rodata,"a"', '.p2align 6', f'.amdhsa_kernel {NAME}_kernel',
        '  .amdhsa_next_free_vgpr 256', '  .amdhsa_next_free_sgpr 102', '  .amdhsa_accum_offset 256',
        '  .amdhsa_group_segment_fixed_size 0', '  .amdhsa_kernarg_size 120', '  .amdhsa_user_sgpr_count 2',
        '  .amdhsa_user_sgpr_kernarg_segment_ptr 1', '  .amdhsa_system_sgpr_workgroup_id_x 1',
        '.end_amdhsa_kernel', '']
open(sys.argv[1], 'w').write('\n'.join(out))
```

```python
import sys, re

NAME = 'adaLN_cond__compressed_kv_cla__glu_gated_glu__decode'
STAMP = int(sys.argv[2]) if len(sys.argv) > 2 else 0
DBGT = (STAMP == 2)
if DBGT: STAMP = 0
SPIN_LIMIT = 200000

EPOCH = 0
FLAGS = 2048
MOD = 8192
QP = 131072
QA = 262144
ML = 327680
AP = 360448
FP = 442368
STP = 589824
OP = 1048576
WS_BYTES = OP + 2 * 32 * 32 * 1024

CKS = 1040
L_WU = 0
L_HD = 66560
L_RED = L_HD + 2560
L_QT2 = L_RED + 5120
L_CK = 0
L_QT = 0
PTS = 272
L_PT = 133120
L_MX = L_PT + 32 * PTS
LDS_BYTES = L_MX + 1024
L_WT0 = 0
L_WT1 = 20480
L_ST = 40960
L_FC = 44032
L_D_WD = 45056
L_D_CD = 46080
L_D_RED = 49152
L_D_RED2 = 53248
L_E_STAT = 45056
L_E_X1 = 45312
L_E_HT = 48128
L_E_RED = 53248
L_E_HH = 57344
PACE = int(sys.argv[3]) if len(sys.argv) > 3 else 6
SLOWN = int(sys.argv[4]) if len(sys.argv) > 4 else 6
DRY = int(sys.argv[5]) if len(sys.argv) > 5 else 0
EGATE = int(sys.argv[6]) if len(sys.argv) > 6 else 1
EPACE = int(sys.argv[7]) if len(sys.argv) > 7 else 6
SLOWP = int(sys.argv[8]) if len(sys.argv) > 8 else 2
LATEC = int(sys.argv[9]) if len(sys.argv) > 9 else 0
CK0 = int(sys.argv[10]) if len(sys.argv) > 10 else 4
CK1 = int(sys.argv[11]) if len(sys.argv) > 11 else 6
W1GATE = int(sys.argv[12]) if len(sys.argv) > 12 else 0
XSPLIT = int(sys.argv[13]) if len(sys.argv) > 13 else 0
P3GATE = int(sys.argv[14]) if len(sys.argv) > 14 else 0

TAGC_LO = 0x7F4A7C15
TAGC_HI = 0x9E3779B9

lines = []
def I(s): lines.append('    ' + s)
def L(s): lines.append(s + ':')
def C(s): lines.append('    ; ' + s)
def nop(n):
    while n > 0:
        k = min(n, 16)
        I(f's_nop {k-1}')
        n -= k
_uid = [0]
def uid(p):
    _uid[0] += 1
    return f'L_{p}_{_uid[0]}'
def vr(a, n=4): return f'v[{a}:{a+n-1}]'

PTR = {k: 64 + 2 * i for i, k in enumerate(
    ['x', 'ckv', 'wq', 'wuk', 'wuv', 'wo', 'bx', 'wg', 'wu', 'wd', 'c', 'wmod', 'out', 'dbg', 'ws'])}
NBYTES = dict(x=2560, ckv=8388608, wq=5242880, wuk=4194304, wuv=4194304, wo=5242880, wg=2211840, wu=2211840,
              wd=2211840, c=2560, wmod=4915200, out=2560, ws=WS_BYTES)
def srd(d, name):
    p = PTR[name]
    I(f's_mov_b32 s{d}, s{p}')
    I(f's_and_b32 s{d+1}, s{p+1}, 0xffff')
    I(f's_mov_b32 s{d+2}, {NBYTES[name]}')
    I(f's_mov_b32 s{d+3}, 0x00020000')
def S(d): return f's[{d}:{d+3}]'
WS = 8

def setexec(lo, hi=0):
    I(f's_and_b32 exec_lo, s100, 0x{lo:x}')
    if hi: I(f's_and_b32 exec_hi, s100, 0x{hi:x}')
    else: I('s_mov_b32 exec_hi, 0')
def fullexec():
    I('s_mov_b64 exec, s[100:101]')
def skip_if(lab):
    I('s_cselect_b32 s99, s100, 0')
    I('s_cmp_lg_u32 s99, 0')
    I(f's_cbranch_scc1 {lab}')
def barrier():
    o = uid('bar')
    I('s_cmp_eq_u32 s100, 0')
    I(f's_cbranch_scc1 {o}')
    I('s_barrier')
    L(o)
def enter_dry(target):
    I('s_mov_b64 s[100:101], 0')
    I('s_mov_b64 exec, 0')
    I(f's_branch {target}')
def role_end(back):
    I('s_cmp_lg_u32 s100, 0')
    I('s_cbranch_scc1 L_end')
    I('s_mov_b64 s[100:101], -1')
    I('s_mov_b64 exec, -1')
    I(f's_branch {back}')

def stamp(idx, wave=0):
    if not STAMP: return
    skip = uid('st')
    I(f's_cmp_lg_u32 s3, {wave}')
    I(f's_cbranch_scc1 {skip}')
    I('s_memrealtime s[60:61]')
    I('s_waitcnt lgkmcnt(0)')
    I('v_mov_b32 v254, s60')
    I('v_mov_b32 v255, s61')
    I(f's_lshl_b32 s62, s2, 7')
    I(f's_add_u32 s62, s62, {STP + idx*8}')
    I('v_mov_b32 v253, 0')
    I('s_mov_b64 s[58:59], exec')
    setexec(1)
    I(f'buffer_store_dwordx2 v[254:255], v253, {S(WS)}, s62 offen')
    I('s_mov_b64 exec, s[58:59]')
    L(skip)

def spin_begin():
    lab = uid('spin')
    I(f's_cbranch_execz {lab}_x')
    I('s_mov_b32 s98, 0')
    L(lab)
    return lab
def spin_end(lab, sleep=1):
    done = uid('spd')
    I(f's_cbranch_vccz {done}')
    I('s_add_u32 s98, s98, 1')
    I(f's_cmp_gt_u32 s98, {SPIN_LIMIT}')
    I('s_cbranch_scc1 L_end')
    I(f's_sleep {sleep}')
    I(f's_branch {lab}')
    L(done)
    L(f'{lab}_x')

def anysent(regs, tmp):
    regs = list(regs)
    cur = regs[0]; rest = regs[1:]
    while rest:
        if len(rest) >= 2:
            I(f'v_max3_u32 v{tmp}, v{cur}, v{rest[0]}, v{rest[1]}'); rest = rest[2:]
        else:
            I(f'v_max_u32 v{tmp}, v{cur}, v{rest[0]}'); rest = rest[1:]
        cur = tmp
    I(f'v_cmp_eq_u32 vcc, -1, v{cur}')

def allreduce(op, x, tmp, rows_only=False, skip_row=False):
    if not skip_row:
        for ctl in ['quad_perm:[1,0,3,2]', 'quad_perm:[2,3,0,1]', 'row_half_mirror', 'row_mirror']:
            nop(2)
            I(f'{op}_dpp v{x}, v{x}, v{x} {ctl} row_mask:0xf bank_mask:0xf')
    if rows_only: return
    for sw in ['v_permlane16_swap_b32', 'v_permlane32_swap_b32']:
        I(f'v_mov_b32 v{tmp}, v{x}')
        nop(2)
        I(f'{sw} v{x}, v{tmp}')
        nop(1)
        I(f'{op} v{x}, v{x}, v{tmp}')

def bfround(x, tmp=None):
    I(f'v_cvt_pk_bf16_f32 v{x}, v{x}, v{x}')
    I(f'v_and_b32 v{x}, 0xffff0000, v{x}')

def make_masks(m, single):
    I('v_and_b32 v2, 1, v1')
    I('v_cmp_eq_u32 vcc, 1, v2')
    I('v_mov_b32 v3, 0xffff')
    I('v_mov_b32 v2, 0xffff0000')
    nop(1)
    I('v_cndmask_b32 v3, v3, v2, vcc')
    if single:
        I('v_and_b32 v2, 8, v1')
        I('v_cmp_eq_u32 vcc, 0, v2')
        nop(2)
        I('v_cndmask_b32 v3, 0, v3, vcc')
    I('v_bfe_u32 v2, v1, 1, 2')
    for d in range(4):
        I(f'v_cmp_eq_u32 vcc, {d}, v2')
        nop(2)
        I(f'v_cndmask_b32 v{m+d}, 0, v3, vcc')

def gemv_diag(T, aval, masks, abuf, bq, accs):
    def build(t):
        a = abuf[t % 2]
        for d in range(4):
            I(f'v_and_b32 v{a+d}, v{masks+d}, v{aval(t)}')
    build(0)
    for t in range(T):
        a = abuf[t % 2]
        if t + 1 < T:
            build(t + 1)
        else:
            nop(2)
        for blk, acc in enumerate(accs):
            c = '0' if t == 0 else vr(acc)
            I(f'v_mfma_f32_16x16x32_bf16 {vr(acc)}, {vr(a)}, {vr(bq(blk, t))}, {c}')
    nop(9)

def flags_wait(which, first=0, count=256, sleep=1):
    I('v_lshlrev_b32 v2, 4, v1')
    I(f'v_add_u32 v2, {FLAGS + 2048*which + 8*first}, v2')
    if count == 64: setexec(0xffffffff)
    lab = spin_begin()
    I(f'buffer_load_dwordx4 v[4:7], v2, {S(WS)}, 0 offen sc1')
    if count == 256:
        I(f'buffer_load_dwordx4 v[8:11], v2, {S(WS)}, 0 offen offset:1024 sc1')
    I('s_waitcnt vmcnt(0)')
    n = 12 if count == 256 else 8
    for r in range(4, n):
        I(f'v_xor_b32 v{r}, s{96 + (r & 1)}, v{r}')
    I('v_or3_b32 v4, v4, v5, v6')
    if count == 256:
        I('v_or3_b32 v4, v4, v7, v8')
        I('v_or3_b32 v4, v4, v9, v10')
        I('v_or_b32 v4, v4, v11')
    else:
        I('v_or_b32 v4, v4, v7')
    I('v_cmp_ne_u32 vcc, 0, v4')
    spin_end(lab, sleep)
    if count == 64: fullexec()

def flag_store(which, t0=4):
    I('s_waitcnt vmcnt(0) lgkmcnt(0)')
    I(f's_add_u32 s96, s94, 0x{TAGC_LO:x}')
    I(f's_addc_u32 s97, s95, 0x{TAGC_HI:x}')
    I(f'v_mov_b32 v{t0}, s96')
    I(f'v_mov_b32 v{t0+1}, s97')
    I('s_lshl_b32 s4, s2, 3')
    I(f's_add_u32 s4, s4, {FLAGS + 2048*which}')
    I(f'v_mov_b32 v{t0+2}, 0')
    setexec(1)
    I(f'buffer_store_dwordx2 v[{t0}:{t0+1}], v{t0+2}, {S(WS)}, s4 offen sc1')
    fullexec()

def lds_gate():
    I(f'v_mov_b32 v4, {L_FC}')
    lab = spin_begin()
    I('ds_read_b32 v5, v4')
    I('s_waitcnt lgkmcnt(0)')
    I('v_cmp_ne_u32 vcc, 1, v5')
    spin_end(lab, 2)

def paced(loads, depth):
    for i, ld in enumerate(loads):
        if i >= depth: I(f's_waitcnt vmcnt({depth-1})')
        for x in ld: I(x)

def tag_compute():
    I('s_waitcnt lgkmcnt(0)')
    I(f's_add_u32 s96, s94, 0x{TAGC_LO:x}')
    I(f's_addc_u32 s97, s95, 0x{TAGC_HI:x}')

def prologue():
    I('s_cmp_ge_u32 s2, 256')
    I('s_cbranch_scc1 L_end')
    I('s_mov_b64 s[100:101], -1')
    if XSPLIT:
        I('s_lshr_b32 s4, s2, 3')
        I('s_lshl_b32 s4, s4, 2')
        I('s_and_b32 s5, s2, 3')
        I('s_add_u32 s4, s4, s5')
        I('s_bfe_u32 s5, s2, 0x10002')
        I('s_lshl_b32 s5, s5, 7')
        I('s_add_u32 s2, s4, s5')
    if DBGT: I('s_memrealtime s[56:57]')
    I('s_load_dwordx16 s[64:79], s[0:1], 0')
    I('s_load_dwordx8 s[80:87], s[0:1], 64')
    I('s_load_dwordx4 s[88:91], s[0:1], 96')
    I('s_load_dwordx2 s[92:93], s[0:1], 112')
    I('v_lshrrev_b32 v1, 6, v0')
    nop(1)
    I('v_readfirstlane_b32 s3, v1')
    I('v_and_b32 v1, 63, v0')
    for r in range(2, 13): I(f'v_mov_b32 v{r}, 0')
    I('s_waitcnt lgkmcnt(0)')
    I('s_load_dwordx2 s[94:95], s[92:93], 0')
    srd(WS, 'ws')
    stamp(0)
    I('v_lshrrev_b32 v14, 4, v1')
    I('v_and_b32 v15, 15, v1')
    I('v_lshlrev_b32 v13, 4, v1')
    I('s_cmp_ge_u32 s2, 128')
    I('s_cbranch_scc1 L_de')
    I('s_cmp_ge_u32 s2, 64')
    I('s_cbranch_scc1 L_p3')

def role_P12():
    X_, WQ, WUK = 12, 16, 20
    srd(X_, 'x'); srd(WQ, 'wq'); srd(WUK, 'wuk')
    I('s_lshr_b32 s40, s2, 1')
    I('s_and_b32 s41, s2, 1')
    I('s_mul_i32 s45, s41, 320')
    I('s_cmp_lg_u32 s3, 7')
    I('s_cbranch_scc1 L_a_init')
    for r in range(4, 8): I(f'v_mov_b32 v{r}, -1')
    I('s_lshl_b32 s4, s2, 10')
    I(f's_add_u32 s4, s4, {QP}')
    I(f'buffer_store_dwordx4 v[4:7], v13, {S(WS)}, s4 offen sc1')
    I('v_lshrrev_b32 v3, 5, v1')
    I('v_lshlrev_b32 v3, 15, v3')
    I('v_and_b32 v2, 31, v1')
    I('v_lshl_add_u32 v3, v2, 4, v3')
    I('s_lshl_b32 s4, s2, 9')
    I(f's_add_u32 s4, s4, {QA}')
    I(f'buffer_store_dwordx4 v[4:7], v3, {S(WS)}, s4 offen sc1')
    if DRY: enter_dry('L_a_h1b')
    L('L_a_w7')
    flag_store(0, 8)
    stamp(9, 7)
    I('s_branch L_a_main')
    L('L_a_init')
    I('s_cmp_gt_u32 s3, 4')
    I('s_cbranch_scc1 L_a_h1')
    I('v_lshlrev_b32 v2, 17, v14')
    I('v_lshl_add_u32 v2, v15, 4, v2')
    I('s_lshl_b32 s4, s3, 6')
    I('s_add_u32 s4, s4, s45')
    I('s_lshl_b32 s4, s4, 13')
    I('s_lshl_b32 s5, s40, 8')
    I('s_add_u32 s4, s4, s5')
    for t in range(16):
        I(f'buffer_load_dwordx4 {vr(20+4*t)}, v2, {S(WQ)}, s4 offen nt')
        if t < 15: I('s_add_u32 s4, s4, 8192')
    I('v_lshlrev_b32 v2, 13, v14')
    I('v_lshl_add_u32 v2, v15, 4, v2')
    I('s_lshl_b32 s4, s41, 21')
    I('s_lshl_b32 s5, s40, 8')
    I('s_add_u32 s4, s4, s5')
    I('s_mul_i32 s6, s3, 13')
    I('s_lshl_b32 s5, s6, 15')
    I('s_add_u32 s4, s4, s5')
    I('s_mul_i32 s5, s6, 1040')
    for q in range(13):
        if q == 12:
            I('s_cmp_eq_u32 s3, 4')
            I('s_cbranch_scc1 L_a_dmadone')
        I('s_mov_b32 m0, s5')
        nop(1)
        I(f'buffer_load_dwordx4 v2, {S(WUK)}, s4 offen nt lds')
        if q < 12:
            I('s_add_u32 s4, s4, 32768')
            I('s_add_u32 s5, s5, 1040')
    L('L_a_dmadone')
    make_masks(16, False)
    tag_compute()
    I('s_waitcnt vmcnt(0)')
    stamp(10, 4)
    I('s_branch L_a_main')
    L('L_a_h1')
    I('s_sub_u32 s46, s3, 5')
    I('s_mul_i32 s4, s46, 1280')
    I('v_lshlrev_b32 v3, 2, v1')
    for k in range(5):
        I(f'buffer_load_dword v{80 + k}, v3, {S(X_)}, s4 offen offset:{k*256}')
    I('s_lshl_b32 s5, s45, 1')
    I('s_add_u32 s5, s5, s4')
    I(f'buffer_load_dwordx4 v[84+4:84+7], v13, {S(X_)}, s5 offen'.replace('84+4', '88').replace('84+7', '91'))
    tag_compute()
    I('s_waitcnt vmcnt(0)')
    for k in range(5):
        I(f'v_lshlrev_b32 v{96+2*k}, 16, v{80+k}')
        I(f'v_and_b32 v{97+2*k}, 0xffff0000, v{80+k}')
    I('v_add_f32 v92, v96, v97')
    for k in range(2, 10): I(f'v_add_f32 v92, v92, v{96+k}')
    allreduce('v_add_f32', 92, 93)
    I('v_mul_f32 v92, 0x3acccccd, v92')
    for k in range(10): I(f'v_sub_f32 v{96+k}, v{96+k}, v92')
    I('v_mul_f32 v94, v96, v96')
    for k in range(1, 10): I(f'v_fmac_f32 v94, v{96+k}, v{96+k}')
    allreduce('v_add_f32', 94, 93)
    I('v_mul_f32 v94, 0x3acccccd, v94')
    bfround(92); bfround(94)
    I('v_add_f32 v94, 0x3727c5ac, v94')
    bfround(94)
    I('v_sqrt_f32 v94, v94')
    nop(1)
    bfround(94)
    I('v_rcp_f32 v94, v94')
    for k in range(4):
        I(f'v_lshlrev_b32 v{72+2*k}, 16, v{88+k}')
        I(f'v_and_b32 v{73+2*k}, 0xffff0000, v{88+k}')
    for r in range(8):
        I(f'v_sub_f32 v{72+r}, v{72+r}, v92')
        bfround(72 + r)
        I(f'v_mul_f32 v{72+r}, v{72+r}, v94')
        bfround(72 + r)
    L('L_a_h1b')
    flags_wait(0, 128, 128)
    stamp(1, 5)
    I('s_mul_i32 s4, s46, 15360')
    I('s_lshl_b32 s5, s45, 2')
    I('s_add_u32 s4, s4, s5')
    I(f's_add_u32 s48, s4, {MOD}')
    for kq in range(1, 4): I(f's_add_u32 s{48+kq}, s48, {kq*30720}')
    I('v_lshlrev_b32 v2, 5, v1')
    I('s_mul_i32 s4, s46, 1280')
    I(f's_add_u32 s4, s4, {L_HD}')
    I('v_add_u32 v3, s4, v2')
    setexec(0xffffffff, 0xff)
    lab = spin_begin()
    for kq in range(4):
        I(f'buffer_load_dwordx4 {vr(96+16*kq)}, v2, {S(WS)}, s{48+kq} offen sc1')
        I(f'buffer_load_dwordx4 {vr(100+16*kq)}, v2, {S(WS)}, s{48+kq} offen offset:16 sc1')
        I(f'buffer_load_dwordx4 {vr(104+16*kq)}, v2, {S(WS)}, s{48+kq} offen offset:2560 sc1')
        I(f'buffer_load_dwordx4 {vr(108+16*kq)}, v2, {S(WS)}, s{48+kq} offen offset:2576 sc1')
    I('s_waitcnt vmcnt(0)')
    anysent(range(96, 160), 12)
    spin_end(lab)
    for r in range(16):
        I(f'v_add_f32 v{96+r}, v{96+r}, v{112+r}')
        I(f'v_add_f32 v{128+r}, v{128+r}, v{144+r}')
        I(f'v_add_f32 v{96+r}, v{96+r}, v{128+r}')
        bfround(96 + r)
    for r in range(8):
        I(f'v_add_f32 v{104+r}, 1.0, v{104+r}')
        bfround(104 + r)
        I(f'v_mul_f32 v{104+r}, v{72+r}, v{104+r}')
        bfround(104 + r)
        I(f'v_add_f32 v{104+r}, v{104+r}, v{96+r}')
        I(f'v_cvt_pk_bf16_f32 v{104+r}, v{104+r}, v{104+r}')
    I('ds_write_b128 v3, v[104:107]')
    I('ds_write_b128 v3, v[108:111] offset:16')
    fullexec()
    I('s_waitcnt lgkmcnt(0)')
    L('L_a_main')
    barrier()
    stamp(2)
    sk = uid('nofc')
    I('s_cmp_lg_u32 s3, 6')
    skip_if(sk)
    flag_store(2, 8)
    L(sk)
    sk = uid('nop1')
    I('s_cmp_gt_u32 s3, 4')
    skip_if(sk)
    I('v_bfe_u32 v2, v1, 3, 1')
    I('v_mul_u32_u24 v2, 1280, v2')
    I('v_lshl_add_u32 v2, v14, 6, v2')
    I('s_lshl_b32 s4, s3, 8')
    I(f's_add_u32 s4, s4, {L_HD}')
    I('v_add_u32 v2, s4, v2')
    for q in range(4):
        I(f'ds_read_b128 {vr(84+4*q)}, v2 offset:{q*16}')
    I('v_lshrrev_b32 v2, 1, v14')
    I('v_lshlrev_b32 v2, 9, v2')
    I('v_lshl_add_u32 v2, v15, 5, v2')
    I('v_and_b32 v3, 1, v14')
    I('v_lshl_add_u32 v2, v3, 4, v2')
    I('s_lshl_b32 s4, s3, 10')
    I(f's_add_u32 s4, s4, {L_RED}')
    I('v_add_u32 v2, s4, v2')
    I('s_waitcnt lgkmcnt(0)')
    gemv_diag(16, lambda t: 84 + t, 16, [100, 104], lambda blk, t: 20 + 4 * t, [108])
    I('ds_write_b128 v2, v[108:111]')
    I('s_waitcnt lgkmcnt(0)')
    L(sk)
    barrier()
    sk = uid('nop1r')
    I('s_cmp_lg_u32 s3, 0')
    skip_if(sk)
    I(f'v_add_u32 v2, {L_RED}, v13')
    for w in range(5):
        I(f'ds_read_b128 {vr(164+4*w)}, v2 offset:{w*1024}')
    I('s_lshl_b32 s4, s2, 10')
    I(f's_add_u32 s4, s4, {QP}')
    I('s_waitcnt lgkmcnt(0)')
    for r in range(4):
        I(f'v_add_f32 v{164+r}, v{164+r}, v{168+r}')
        I(f'v_add_f32 v{172+r}, v{172+r}, v{176+r}')
        I(f'v_add_f32 v{164+r}, v{164+r}, v{180+r}')
        I(f'v_add_f32 v{164+r}, v{164+r}, v{172+r}')
        I(f'v_min_u32 v{164+r}, 0xfffffffe, v{164+r}')
    I(f'buffer_store_dwordx4 v[164:167], v13, {S(WS)}, s4 offen sc1')
    stamp(3)
    flags_wait(0, 0, 128)
    sk2 = uid('noep')
    I('s_cmp_lg_u32 s2, 0')
    skip_if(sk2)
    I('v_mov_b32 v10, s96')
    I('v_mov_b32 v11, s97')
    I('v_mov_b32 v12, 0')
    setexec(1)
    I(f'buffer_store_dwordx2 v[10:11], v12, {S(WS)}, 0 offen sc1')
    fullexec()
    L(sk2)
    I('s_xor_b32 s4, s2, 1')
    I('s_lshl_b32 s4, s4, 10')
    I(f's_add_u32 s4, s4, {QP}')
    lab = spin_begin()
    I(f'buffer_load_dwordx4 v[168:171], v13, {S(WS)}, s4 offen sc1')
    I('s_waitcnt vmcnt(0)')
    anysent(range(168, 172), 2)
    spin_end(lab)
    for r in range(4):
        I(f'v_add_f32 v{168+r}, v{168+r}, v{164+r}')
    I('v_cvt_pk_bf16_f32 v172, v168, v169')
    I('v_cvt_pk_bf16_f32 v173, v170, v171')
    I('v_lshlrev_b32 v2, 3, v1')
    I(f'v_add_u32 v2, {L_QT2}, v2')
    I('ds_write_b64 v2, v[172:173]')
    L(sk)
    I('s_waitcnt lgkmcnt(0)')
    barrier()
    stamp(4)
    I('v_and_b32 v2, 1, v15')
    I('v_lshlrev_b32 v2, 8, v2')
    I('v_lshl_add_u32 v2, v14, 4, v2')
    I(f'v_add_u32 v2, {L_QT2}, v2')
    for t in range(4):
        I(f'ds_read_b128 {vr(164+4*t)}, v2 offset:{t*64}')
    I('v_lshrrev_b32 v2, 2, v15')
    I('v_mul_u32_u24 v2, 1040, v2')
    I('v_and_b32 v3, 3, v15')
    I('v_lshl_add_u32 v2, v3, 8, v2')
    I('v_lshl_add_u32 v2, v14, 4, v2')
    I('s_mul_i32 s4, s3, 8320')
    I(f's_add_u32 s4, s4, {L_WU}')
    I('v_add_u32 v2, s4, v2')
    for t in range(4):
        for n in range(2):
            I(f'ds_read_b128 {vr(20+16*n+4*t)}, v2 offset:{n*4160 + t*64}')
    I('v_lshlrev_b32 v2, 15, v15')
    I('v_lshl_add_u32 v2, v14, 3, v2')
    I('s_lshl_b32 s4, s2, 9')
    I('s_lshl_b32 s5, s3, 6')
    I('s_add_u32 s4, s4, s5')
    I(f's_add_u32 s4, s4, {QA}')
    I('s_mov_b32 s5, 0x3e0293ee')
    for t in range(4):
        I(f's_waitcnt lgkmcnt({6-2*t})')
        for n in range(2):
            c = '0' if t == 0 else vr(180 + 4 * n)
            I(f'v_mfma_f32_16x16x32_bf16 {vr(180+4*n)}, {vr(20+16*n+4*t)}, {vr(164+4*t)}, {c}')
    nop(9)
    for r in range(8): I(f'v_mul_f32 v{180+r}, s5, v{180+r}')
    for q in range(4):
        I(f'v_cvt_pk_bf16_f32 v{188+q}, v{180+2*q}, v{181+2*q}')
        I(f'v_min_u32 v{188+q}, 0xfffffffe, v{188+q}')
    setexec(0x00030003, 0x00030003)
    I(f'buffer_store_dwordx2 v[188:189], v2, {S(WS)}, s4 offen sc1')
    I(f'buffer_store_dwordx2 v[190:191], v2, {S(WS)}, s4 offen offset:32 sc1')
    fullexec()
    stamp(5)
    role_end('L_a_w7')

def role_P3():
    L('L_p3')
    CKV = 12
    srd(CKV, 'ckv')
    I('s_sub_u32 s40, s2, 64')
    I('s_lshr_b32 s42, s40, 5')
    I('s_and_b32 s43, s40, 31')
    sk = uid('nofa')
    I('s_cmp_lg_u32 s3, 7')
    I(f's_cbranch_scc1 {sk}')
    flag_store(0, 8)
    L(sk)
    tag_compute()
    if P3GATE:
        flags_wait(2, 0, 64, 4)
    I('s_lshl_b32 s4, s40, 17')
    I('s_lshl_b32 s5, s3, 14')
    I('s_add_u32 s4, s4, s5')
    I(f's_mul_i32 s5, s3, {16*CKS}')
    for r in range(16):
        I('s_mov_b32 m0, s5')
        nop(1)
        I(f'buffer_load_dwordx4 v13, {S(CKV)}, s4 offen nt lds')
        if r < 15:
            I('s_add_u32 s4, s4, 1024')
            I(f's_add_u32 s5, s5, {CKS}')
    if DRY:
        I('s_cmp_lg_u32 s3, 7')
        I('s_cbranch_scc1 L_p3_real')
        enter_dry('L_p3_main')
    L('L_p3_real')
    I('s_waitcnt vmcnt(0)')
    barrier()
    L('L_p3_main')
    stamp(1)
    I(f'v_mul_u32_u24 v2, {CKS}, v15')
    I('v_lshl_add_u32 v2, v14, 4, v2')
    I(f's_mul_i32 s4, s3, {16*CKS}')
    I('v_add_u32 v2, s4, v2')
    for t in range(16):
        I(f'ds_read_b128 {vr(20+4*t)}, v2 offset:{t*64}')
    I('v_lshrrev_b32 v2, 2, v15')
    I('v_lshl_add_u32 v2, v14, 3, v2')
    I(f'v_mul_u32_u24 v2, {CKS}, v2')
    I('v_and_b32 v3, 3, v15')
    I('v_lshl_add_u32 v2, v3, 5, v2')
    I('s_lshl_b32 s4, s3, 7')
    I('v_add_u32 v2, s4, v2')
    I(f'v_add_u32 v3, {64*CKS}, v2')
    for n in range(4):
        for t in range(4):
            base = 84 + 16 * n + 4 * t
            ad = 'v2' if t < 2 else 'v3'
            off = (t % 2) * 32 * CKS + n * 8
            I(f'ds_read_b64_tr_b16 {vr(base,2)}, {ad} offset:{off}')
            I(f'ds_read_b64_tr_b16 {vr(base+2,2)}, {ad} offset:{off + 4*CKS}')
    for r in range(4): I(f'v_mov_b32 v{16+r}, 0x3f803f80')
    I('s_waitcnt lgkmcnt(0)')
    sk = uid('noh2l')
    I('s_cmp_lg_u32 s3, 0')
    skip_if(sk)
    flags_wait(0, 0, 64)
    flags_wait(1, 192, 64)
    I('v_lshlrev_b32 v2, 9, v1')
    I('s_lshl_b32 s4, s42, 15')
    I(f's_add_u32 s4, s4, {QA + 508}')
    lab = spin_begin()
    I(f'buffer_load_dword v4, v2, {S(WS)}, s4 offen sc1')
    I('s_waitcnt vmcnt(0)')
    I('v_cmp_eq_u32 vcc, -1, v4')
    spin_end(lab, 1)
    L(sk)
    barrier()
    stamp(6)
    I('s_lshl_b32 s4, s42, 15')
    I('s_lshl_b32 s5, s3, 12')
    I('s_add_u32 s4, s4, s5')
    I(f's_add_u32 s4, s4, {QA}')
    lab = spin_begin()
    for k in range(4):
        I(f'buffer_load_dwordx4 {vr(148+4*k)}, v13, {S(WS)}, s4 offen offset:{k*1024} sc1')
    I('s_waitcnt vmcnt(0)')
    anysent(range(148, 164), 2)
    spin_end(lab)
    I(f's_mul_i32 s4, s3, {4*CKS}')
    I(f's_add_u32 s4, s4, {L_QT}')
    I('v_add_u32 v2, s4, v13')
    for k in range(4):
        I(f'ds_write_b128 v2, {vr(148+4*k)} offset:{k*CKS}')
    I(f'v_mul_u32_u24 v2, {CKS}, v15')
    I('v_lshl_add_u32 v2, v14, 4, v2')
    I(f'v_add_u32 v2, {L_QT}, v2')
    I('v_lshlrev_b32 v4, 5, v15')
    I(f'v_add_u32 v4, {L_MX}, v4')
    I('s_lshl_b32 s4, s3, 2')
    I('v_add_u32 v3, s4, v4')
    I('s_waitcnt lgkmcnt(0)')
    barrier()
    stamp(7)
    for t in range(16):
        I(f'ds_read_b128 {vr(148+4*t)}, v2 offset:{t*64}')
    for t in range(16):
        I(f's_waitcnt lgkmcnt({15 if t else 15})') if False else I('s_waitcnt lgkmcnt(15)')
        c = '0' if t == 0 else 'v[212:215]'
        I(f'v_mfma_f32_16x16x32_bf16 v[212:215], {vr(20+4*t)}, {vr(148+4*t)}, {c}')
        I(f'ds_read_b128 {vr(148+4*t)}, v2 offset:{16*CKS + t*64}')
    for t in range(16):
        I(f's_waitcnt lgkmcnt({15-t})')
        c = '0' if t == 0 else 'v[216:219]'
        I(f'v_mfma_f32_16x16x32_bf16 v[216:219], {vr(20+4*t)}, {vr(148+4*t)}, {c}')
    I('v_max_f32 v220, v212, v213')
    I('v_max3_f32 v220, v220, v214, v215')
    allreduce('v_max_f32', 220, 222, skip_row=True)
    I('v_max_f32 v221, v216, v217')
    I('v_max3_f32 v221, v221, v218, v219')
    allreduce('v_max_f32', 221, 222, skip_row=True)
    I('ds_write_b32 v3, v220')
    I('ds_write_b32 v3, v221 offset:512')
    I(f'v_mul_u32_u24 v5, {PTS}, v15')
    I(f'v_add_u32 v5, {L_PT}, v5')
    I('v_lshl_add_u32 v3, v14, 3, v5')
    I('s_lshl_b32 s4, s3, 5')
    I('v_add_u32 v3, s4, v3')
    I('v_lshl_add_u32 v5, v14, 4, v5')
    I('s_waitcnt lgkmcnt(0)')
    barrier()
    for ht in range(2):
        I(f'ds_read_b128 {vr(148+8*ht)}, v4 offset:{ht*512}')
        I(f'ds_read_b128 {vr(152+8*ht)}, v4 offset:{ht*512+16}')
    I('s_waitcnt lgkmcnt(0)')
    for ht in range(2):
        q = 148 + 8 * ht
        I(f'v_max3_f32 v{220+ht}, v{q}, v{q+1}, v{q+2}')
        I(f'v_max3_f32 v{220+ht}, v{220+ht}, v{q+3}, v{q+4}')
        I(f'v_max3_f32 v{220+ht}, v{220+ht}, v{q+5}, v{q+6}')
        I(f'v_max_f32 v{220+ht}, v{220+ht}, v{q+7}')
    for ht in range(2):
        for r in range(4):
            I(f'v_sub_f32 v{212+4*ht+r}, v{212+4*ht+r}, v{220+ht}')
    for r in range(8):
        I(f'v_exp_f32 v{212+r}, v{212+r}')
    nop(1)
    for q in range(4):
        I(f'v_cvt_pk_bf16_f32 v{224+q}, v{212+2*q}, v{213+2*q}')
    I('ds_write_b64 v3, v[224:225]')
    I(f'ds_write_b64 v3, v[226:227] offset:{16*PTS}')
    I('v_lshlrev_b32 v2, 15, v15')
    I('v_lshl_add_u32 v2, v14, 5, v2')
    I('s_lshl_b32 s4, s42, 20')
    I('s_lshl_b32 s5, s43, 10')
    I('s_add_u32 s4, s4, s5')
    I('s_lshl_b32 s5, s3, 7')
    I('s_add_u32 s4, s4, s5')
    I(f's_add_u32 s4, s4, {OP}')
    I('s_add_u32 s5, s4, 0x80000')
    I('s_waitcnt lgkmcnt(0)')
    barrier()
    for ht in range(2):
        for t in range(4):
            I(f'ds_read_b128 {vr(148+16*ht+4*t)}, v5 offset:{ht*16*PTS + t*64}')
    for ht in range(2):
        for t in range(4):
            I(f's_waitcnt lgkmcnt({7-4*ht-t})')
            for n in range(4):
                acc = 180 + 16 * ht + 4 * n
                c = '0' if t == 0 else vr(acc)
                I(f'v_mfma_f32_16x16x32_bf16 {vr(acc)}, {vr(84+16*n+4*t)}, {vr(148+16*ht+4*t)}, {c}')
    nop(1)
    for ht in range(2):
        for n in range(4):
            I(f'v_cvt_pk_bf16_f32 v{20+8*ht+2*n}, v{180+16*ht+4*n}, v{181+16*ht+4*n}')
            I(f'v_cvt_pk_bf16_f32 v{21+8*ht+2*n}, v{182+16*ht+4*n}, v{183+16*ht+4*n}')
        for r in range(8): I(f'v_min_u32 v{20+8*ht+r}, 0xfffffffe, v{20+8*ht+r}')
        so = 's4' if ht == 0 else 's5'
        I(f'buffer_store_dwordx4 {vr(20+8*ht)}, v2, {S(WS)}, {so} offen sc1')
        I(f'buffer_store_dwordx4 {vr(24+8*ht)}, v2, {S(WS)}, {so} offen offset:16 sc1')
    I('s_cmp_gt_u32 s3, 1')
    skip_if('L_p3_done')
    for ht in range(2):
        for t in range(4):
            acc = 36 + 4 * ht
            c = '0' if t == 0 else vr(acc)
            I(f'v_mfma_f32_16x16x32_bf16 {vr(acc)}, v[16:19], {vr(148+16*ht+4*t)}, {c}')
    I('v_lshlrev_b32 v3, 8, v1')
    I('s_lshl_b32 s4, s42, 13')
    I('s_lshl_b32 s5, s3, 12')
    I('s_add_u32 s4, s4, s5')
    I('s_lshl_b32 s5, s43, 3')
    I('s_add_u32 s4, s4, s5')
    I(f's_add_u32 s4, s4, {ML}')
    I('s_cmp_eq_u32 s3, 0')
    I('s_cselect_b64 vcc, -1, 0')
    nop(2)
    I('v_cndmask_b32 v44, v221, v220, vcc')
    I('v_cndmask_b32 v45, v40, v36, vcc')
    I('v_min_u32 v44, 0xfffffffe, v44')
    I('v_min_u32 v45, 0xfffffffe, v45')
    setexec(0xffff)
    I(f'buffer_store_dwordx2 v[44:45], v3, {S(WS)}, s4 offen sc1')
    fullexec()
    L('L_p3_done')
    stamp(8)
    role_end('L_p3_real')

def role_DE_common():
    L('L_de')
    C_, WM = 12, 16
    srd(C_, 'c'); srd(WM, 'wmod')
    I('s_sub_u32 s40, s2, 128')
    I('v_lshrrev_b32 v14, 4, v1')
    I('v_and_b32 v15, 15, v1')
    I('v_lshlrev_b32 v13, 4, v1')
    if XSPLIT:
        I('s_and_b32 s4, s40, 63')
        I('s_and_b32 s5, s4, 3')
        I('s_lshr_b32 s6, s4, 3')
        I('s_lshl_b32 s6, s6, 2')
        I('s_add_u32 s42, s6, s5')
        I('s_bfe_u32 s43, s4, 0x10002')
        I('s_mov_b32 s47, 0')
        I('s_cmp_lt_u32 s40, 64')
        I('s_cbranch_scc1 L_dec_done')
        I('s_cmp_ge_u32 s42, 27')
        I('s_cselect_b32 s47, 1, 0')
    else:
        I('s_cmp_ge_u32 s40, 118')
        I('s_cselect_b32 s47, 1, 0')
        I('s_cmp_ge_u32 s40, 64')
        I('s_cbranch_scc1 L_dec_e')
        I('s_lshr_b32 s4, s40, 4')
        I('s_lshl_b32 s4, s4, 3')
        I('s_and_b32 s5, s40, 7')
        I('s_add_u32 s42, s4, s5')
        I('s_bfe_u32 s43, s40, 0x10003')
        I('s_branch L_dec_done')
        L('L_dec_e')
        I('s_sub_u32 s6, s40, 64')
        I('s_lshr_b32 s4, s6, 4')
        I('s_lshl_b32 s4, s4, 3')
        I('s_and_b32 s5, s6, 7')
        I('s_add_u32 s42, s4, s5')
        I('s_bfe_u32 s43, s6, 0x10003')
        I('s_cmp_lt_u32 s6, 48')
        I('s_cbranch_scc1 L_dec_done')
        I('s_sub_u32 s6, s6, 48')
        I('s_cmp_ge_u32 s6, 3')
        I('s_cselect_b32 s43, 1, 0')
        I('s_mul_i32 s4, s43, 3')
        I('s_sub_u32 s6, s6, s4')
        I('s_add_u32 s42, s6, 24')
    L('L_dec_done')
    sk = uid('noclr')
    I('s_cmp_lg_u32 s3, 7')
    I(f's_cbranch_scc1 {sk}')
    for r in range(4, 8): I(f'v_mov_b32 v{r}, -1')
    I('v_lshrrev_b32 v2, 5, v1')
    I('v_lshlrev_b32 v2, 13, v2')
    I('v_bfe_u32 v3, v1, 4, 1')
    I('v_mul_u32_u24 v3, 15360, v3')
    I('v_add_u32 v2, v2, v3')
    I('v_lshl_add_u32 v2, v15, 4, v2')
    I('s_and_b32 s4, s40, 3')
    I('s_mul_i32 s4, s4, 30720')
    I('s_lshr_b32 s5, s40, 2')
    I('s_lshl_b32 s5, s5, 8')
    I('s_add_u32 s4, s4, s5')
    I(f's_add_u32 s4, s4, {MOD}')
    I('s_cmp_lt_u32 s40, 112')
    I('s_cselect_b32 exec_hi, -1, 0')
    I(f'buffer_store_dwordx4 v[4:7], v2, {S(WS)}, s4 offen sc1')
    fullexec()
    I('s_cmp_ge_u32 s40, 64')
    I('s_cbranch_scc1 L_clr_e')
    I('s_lshl_b32 s4, s43, 5')
    I('s_add_u32 s4, s4, s42')
    I('s_mul_i32 s4, s4, 1280')
    I(f's_add_u32 s4, s4, {AP}')
    I(f'buffer_store_dwordx4 v[4:7], v13, {S(WS)}, s4 offen sc1')
    setexec(0xffff)
    I(f'buffer_store_dwordx4 v[4:7], v13, {S(WS)}, s4 offen offset:1024 sc1')
    fullexec()
    I('s_branch L_clr_done')
    L('L_clr_e')
    I('s_cmp_lg_u32 s47, 0')
    I('s_cbranch_scc1 L_clr_done')
    I('s_mul_i32 s4, s43, 27')
    I('s_add_u32 s4, s4, s42')
    I('s_mul_i32 s4, s4, 2560')
    I(f's_add_u32 s4, s4, {FP}')
    I(f'buffer_store_dwordx4 v[4:7], v13, {S(WS)}, s4 offen sc1')
    I(f'buffer_store_dwordx4 v[4:7], v13, {S(WS)}, s4 offen offset:1024 sc1')
    setexec(0xffffffff)
    I(f'buffer_store_dwordx4 v[4:7], v13, {S(WS)}, s4 offen offset:2048 sc1')
    fullexec()
    L('L_clr_done')
    flag_store(0, 8)
    stamp(9, 7)
    L(sk)
    I('s_lshl_b32 s44, s3, 7')
    I('s_add_u32 s44, s44, s40')
    I('s_and_b32 s45, s44, 3')
    I('s_lshr_b32 s46, s44, 2')
    def unit_dma(wave):
        sk = uid('nodma')
        I(f's_cmp_lg_u32 s3, {wave}')
        I(f's_cbranch_scc1 {sk}')
        I('s_cmp_ge_u32 s44, 240')
        I(f's_cbranch_scc1 {sk}')
        I('v_lshrrev_b32 v2, 3, v1')
        I('v_and_b32 v3, 7, v1')
        I('v_xor_b32 v3, v3, v2')
        I('v_mul_u32_u24 v2, 7680, v2')
        I('v_lshl_add_u32 v2, v3, 4, v2')
        I('s_mul_i32 s4, s45, 1228800')
        I('s_lshl_b32 s5, s46, 7')
        I('s_add_u32 s4, s4, s5')
        I(f's_mul_i32 s5, s3, {L_WT1}')
        for q in range(20):
            I('s_mov_b32 m0, s5')
            nop(1)
            I(f'buffer_load_dwordx4 v2, {S(WM)}, s4 offen nt lds')
            if q < 19:
                I('s_add_u32 s4, s4, 61440')
                I('s_add_u32 s5, s5, 1024')
        L(sk)
    unit_dma(0)
    sk = uid('nost')
    I('s_sub_u32 s4, s3, 2')
    I('s_cmp_gt_u32 s4, 4')
    I(f's_cbranch_scc1 {sk}')
    I('v_subrev_u32 v12, 128, v0')
    I('v_lshlrev_b32 v2, 3, v12')
    I(f'buffer_load_dwordx2 v[4:5], v2, {S(C_)}, 0 offen')
    I('v_cmp_le_u32 vcc, 160, v12')
    nop(2)
    I('v_cndmask_b32 v6, 0, 1, vcc')
    I('v_mul_u32_u24 v7, 160, v6')
    I('v_sub_u32 v7, v12, v7')
    I('v_lshrrev_b32 v8, 3, v7')
    I('v_and_b32 v9, 3, v7')
    I('v_bfe_u32 v10, v7, 2, 1')
    I('v_mul_u32_u24 v6, 1280, v6')
    I('v_lshl_add_u32 v6, v8, 6, v6')
    I('v_lshl_add_u32 v6, v9, 4, v6')
    I('v_lshl_add_u32 v6, v10, 3, v6')
    I(f'v_add_u32 v6, {L_ST}, v6')
    if DRY:
        I('s_cmp_lg_u32 s3, 6')
        I('s_cbranch_scc1 L_silu')
        enter_dry('L_p0c')
    L('L_silu')
    I('s_waitcnt vmcnt(0)')
    I('v_lshlrev_b32 v8, 16, v4')
    I('v_and_b32 v9, 0xffff0000, v4')
    I('v_lshlrev_b32 v10, 16, v5')
    I('v_and_b32 v11, 0xffff0000, v5')
    for r in range(4):
        I(f'v_mul_f32 v{16+r}, 0xbfb8aa3b, v{8+r}')
        I(f'v_exp_f32 v{16+r}, v{16+r}')
        nop(1)
        I(f'v_add_f32 v{16+r}, 1.0, v{16+r}')
        I(f'v_rcp_f32 v{16+r}, v{16+r}')
        nop(1)
        I(f'v_mul_f32 v{16+r}, v{8+r}, v{16+r}')
    I('v_cvt_pk_bf16_f32 v4, v16, v17')
    I('v_cvt_pk_bf16_f32 v5, v18, v19')
    I('ds_write_b64 v6, v[4:5]')
    I('s_waitcnt lgkmcnt(0)')
    L(sk)
    sk = uid('nogi')
    I('s_cmp_lg_u32 s3, 2')
    I(f's_cbranch_scc1 {sk}')
    I(f'v_mov_b32 v4, {L_FC}')
    I('v_mov_b32 v5, 0')
    I('ds_write_b32 v4, v5')
    I('s_waitcnt lgkmcnt(0)')
    L(sk)
    barrier()
    tag_compute()
    sk = uid('noopc')
    I('s_cmp_lt_u32 s40, 64')
    I(f's_cbranch_scc1 {sk}')
    I('s_cmp_lg_u32 s3, 3')
    I(f's_cbranch_scc1 {sk}')
    if W1GATE: lds_gate()
    for r in range(4, 8): I(f'v_mov_b32 v{r}, -1')
    I('s_sub_u32 s6, s40, 64')
    I('s_lshl_b32 s7, s6, 15')
    I(f's_add_u32 s7, s7, {OP}')
    for i in range(32):
        I(f'buffer_store_dwordx4 v[4:7], v13, {S(WS)}, s7 offen offset:{(i%4)*1024} sc1')
        if i % 4 == 3 and i < 31: I('s_add_u32 s7, s7, 4096')
    I('s_lshl_b32 s7, s6, 8')
    I(f's_add_u32 s7, s7, {ML}')
    setexec(0xffff)
    I(f'buffer_store_dwordx4 v[4:7], v13, {S(WS)}, s7 offen sc1')
    fullexec()
    flag_store(1, 8)
    stamp(10, 3)
    L(sk)
    sk = uid('now2')
    I('s_cmp_lg_u32 s3, 2')
    I(f's_cbranch_scc1 {sk}')
    flags_wait(2, 0, 64, 2)
    I(f'v_mov_b32 v4, {L_FC}')
    I('v_mov_b32 v5, 1')
    I('ds_write_b32 v4, v5')
    I('s_waitcnt lgkmcnt(0)')
    L(sk)
    if W1GATE:
        sk = uid('now1')
        I('s_cmp_lg_u32 s3, 1')
        I(f's_cbranch_scc1 {sk}')
        lds_gate()
        L(sk)
    unit_dma(1)
    sk = uid('nop0')
    I('s_cmp_gt_u32 s3, 1')
    I(f's_cbranch_scc1 {sk}')
    I('s_cmp_ge_u32 s44, 240')
    I(f's_cbranch_scc1 {sk}')
    L('L_p0c')
    I('v_and_b32 v2, 1, v15')
    I('v_mul_u32_u24 v2, 1280, v2')
    I('v_lshl_add_u32 v2, v14, 4, v2')
    I('s_mul_i32 s4, s45, 320')
    I(f's_add_u32 s4, s4, {L_ST}')
    I('v_add_u32 v2, s4, v2')
    for t in range(5):
        I(f'ds_read_b128 {vr(20+4*t)}, v2 offset:{t*64}')
    I('v_lshrrev_b32 v2, 2, v15')
    I('v_lshl_add_u32 v2, v14, 2, v2')
    I('v_and_b32 v3, 7, v2')
    I('v_bfe_u32 v4, v15, 1, 1')
    I('v_xor_b32 v3, v3, v4')
    I('v_lshlrev_b32 v2, 7, v2')
    I('v_and_b32 v4, 1, v15')
    I('v_lshl_add_u32 v2, v4, 3, v2')
    I(f's_mul_i32 s5, s3, {L_WT1}')
    I('v_add_u32 v2, s5, v2')
    for n in range(4):
        I(f'v_xor_b32 v4, {2*n}, v3')
        I(f'v_lshl_add_u32 v{8+n}, v4, 4, v2')
    I('s_waitcnt vmcnt(0)')
    for n in range(4):
        for t in range(5):
            I(f'ds_read_b64_tr_b16 {vr(40+20*n+4*t,2)}, v{8+n} offset:{t*4096}')
            I(f'ds_read_b64_tr_b16 {vr(42+20*n+4*t,2)}, v{8+n} offset:{t*4096+2048}')
    I('s_waitcnt lgkmcnt(0)')
    for t in range(5):
        for n in range(4):
            c = '0' if t == 0 else vr(120 + 4 * n)
            I(f'v_mfma_f32_16x16x32_bf16 {vr(120+4*n)}, {vr(40+20*n+4*t)}, {vr(20+4*t)}, {c}')
    nop(9)
    for r in range(16): I(f'v_min_u32 v{120+r}, 0xfffffffe, v{120+r}')
    I('v_mul_u32_u24 v2, 15360, v15')
    I('v_lshl_add_u32 v2, v14, 4, v2')
    I('s_mul_i32 s4, s45, 30720')
    I('s_lshl_b32 s5, s46, 8')
    I('s_add_u32 s4, s4, s5')
    I(f's_add_u32 s4, s4, {MOD}')
    setexec(0x00030003, 0x00030003)
    for n in range(4):
        I(f'buffer_store_dwordx4 {vr(120+4*n)}, v2, {S(WS)}, s4 offen offset:{n*64} sc1')
    fullexec()
    if DRY:
        I('s_cmp_lg_u32 s100, 0')
        I(f's_cbranch_scc1 {sk}')
        I('s_mov_b64 s[100:101], -1')
        I('s_mov_b64 exec, -1')
        I('s_branch L_silu')
    L(sk)
    stamp(1)
    I('s_cmp_ge_u32 s40, 64')
    I('s_cbranch_scc1 L_role_e')

def role_D():
    WUV, WO = 20, 24
    srd(WUV, 'wuv'); srd(WO, 'wo')
    make_masks(16, True)
    I('v_lshlrev_b32 v2, 17, v14')
    I('v_lshl_add_u32 v2, v15, 4, v2')
    I('s_lshl_b32 s4, s3, 19')
    I('s_lshl_b32 s5, s42, 8')
    I('s_add_u32 s4, s4, s5')
    I('v_mul_u32_u24 v3, 5120, v14')
    I('v_lshl_add_u32 v3, v15, 4, v3')
    I('s_mul_i32 s5, s42, 163840')
    I('s_mul_i32 s6, s3, 20480')
    I('s_add_u32 s5, s5, s6')
    lds = []
    for t in range(16):
        lds.append(([] if t == 0 else ['s_add_u32 s4, s4, 8192']) +
                   [f'buffer_load_dwordx4 {vr(20+4*t)}, v2, {S(WUV)}, s4 offen nt'])
    for t in range(4):
        for blk in range(5):
            lds.append((['s_add_u32 s5, s5, 1280'] if (blk == 0 and t > 0) else []) +
                       [f'buffer_load_dwordx4 {vr(84+16*blk+4*t)}, v3, {S(WO)}, s5 offen offset:{blk*256} nt'])
    paced(lds[:SLOWN], SLOWP)
    if SLOWN < 36: lds_gate()
    paced(lds[SLOWN:], PACE)
    if DRY:
        I('s_cmp_lg_u32 s3, 7')
        I('s_cbranch_scc1 L_d_main')
        enter_dry('L_d_main')
    L('L_d_main')
    stamp(2)
    sk = uid('nolp')
    I('s_cmp_lg_u32 s3, 0')
    skip_if(sk)
    flags_wait(1, 192, 64)
    I('v_and_b32 v2, 31, v1')
    I('v_lshlrev_b32 v2, 3, v2')
    I('s_lshl_b32 s4, s43, 5')
    I('s_add_u32 s4, s4, s42')
    I('s_lshl_b32 s5, s4, 8')
    I(f's_add_u32 s5, s5, {ML}')
    lab = spin_begin()
    I(f'buffer_load_dwordx2 v[4:5], v2, {S(WS)}, s5 offen sc1')
    I('s_waitcnt vmcnt(0)')
    anysent([4, 5], 6)
    spin_end(lab, 2)
    L(sk)
    barrier()
    stamp(6)
    sk = uid('noz')
    I('s_cmp_gt_u32 s3, 3')
    skip_if(sk)
    I('v_and_b32 v2, 31, v1')
    I('v_lshlrev_b32 v2, 3, v2')
    I('s_lshl_b32 s4, s43, 5')
    I('s_add_u32 s4, s4, s42')
    I('s_lshl_b32 s5, s4, 8')
    I(f's_add_u32 s5, s5, {ML}')
    I('v_lshlrev_b32 v3, 13, v14')
    I('v_lshl_add_u32 v3, v15, 4, v3')
    I('s_lshl_b32 s6, s4, 15')
    I('s_lshl_b32 s7, s3, 8')
    I('s_add_u32 s6, s6, s7')
    I(f's_add_u32 s48, s6, {OP}')
    I('s_add_u32 s49, s48, 4096')
    lab = spin_begin()
    I(f'buffer_load_dwordx2 v[4:5], v2, {S(WS)}, s5 offen sc1')
    for t in range(8):
        I(f'buffer_load_dwordx4 {vr(164+4*t)}, v3, {S(WS)}, s{48+t//4} offen offset:{(t%4)*1024} sc1')
    I('s_waitcnt vmcnt(0)')
    anysent([4, 5] + list(range(164, 196)), 6)
    spin_end(lab)
    stamp(3)
    I('v_mov_b32 v6, v4')
    allreduce('v_max_f32', 6, 7)
    I('v_sub_f32 v4, v4, v6')
    I('v_exp_f32 v4, v4')
    nop(1)
    I('v_cvt_pk_bf16_f32 v8, v4, v4')
    I('v_and_b32 v4, 0xffff0000, v8')
    I('v_mul_f32 v5, v4, v5')
    allreduce('v_add_f32', 5, 7)
    I('v_rcp_f32 v5, v5')
    I('v_lshlrev_b32 v2, 2, v1')
    I('s_lshl_b32 s4, s3, 8')
    I(f's_add_u32 s4, s4, {L_D_WD}')
    I('v_add_u32 v2, s4, v2')
    I('ds_write_b32 v2, v8')
    I('v_lshlrev_b32 v2, 5, v14')
    I('v_add_u32 v2, s4, v2')
    I('v_add_f32 v5, v5, v5')
    I('s_waitcnt lgkmcnt(0)')
    for q in range(2):
        I(f'ds_read_b128 {vr(228+4*q)}, v2 offset:{q*16}')
    I('s_waitcnt lgkmcnt(0)')
    gemv_diag(8, lambda t: 228 + t, 16, [244, 248], lambda blk, t: 164 + 4 * t, [8])
    for r in range(4):
        I(f'v_mul_f32 v{8+r}, v{8+r}, v5')
        I(f'v_cvt_pk_bf16_f32 v{8+r}, v{8+r}, v{8+r}')
    I('v_lshlrev_b32 v2, 5, v15')
    I('v_lshl_add_u32 v2, v14, 4, v2')
    I('s_lshl_b32 s4, s3, 9')
    I(f's_add_u32 s4, s4, {L_D_CD}')
    I('v_add_u32 v2, s4, v2')
    setexec(0xffffffff)
    I('ds_write_b128 v2, v[8:11]')
    fullexec()
    I('s_waitcnt lgkmcnt(0)')
    L(sk)
    I('s_waitcnt vmcnt(0)')
    barrier()
    stamp(4)
    I('v_lshlrev_b32 v2, 6, v14')
    I('s_lshl_b32 s4, s3, 8')
    I(f's_add_u32 s4, s4, {L_D_CD}')
    I('v_add_u32 v2, s4, v2')
    for q in range(4):
        I(f'ds_read_b128 {vr(164+4*q)}, v2 offset:{q*16}')
    I('s_waitcnt lgkmcnt(0)')
    gemv_diag(16, lambda t: 164 + t, 16, [204, 208], lambda blk, t: 20 + 4 * t, [212])
    I('v_lshlrev_b32 v2, 5, v15')
    I('v_lshl_add_u32 v2, v14, 4, v2')
    I('s_lshl_b32 s4, s3, 9')
    I(f's_add_u32 s4, s4, {L_D_RED}')
    I('v_add_u32 v3, s4, v2')
    setexec(0xffffffff)
    I('ds_write_b128 v3, v[212:215]')
    fullexec()
    I('s_waitcnt lgkmcnt(0)')
    barrier()
    I('v_lshlrev_b32 v3, 4, v14')
    I('s_lshl_b32 s4, s3, 6')
    I(f's_add_u32 s4, s4, {L_D_RED}')
    I('v_add_u32 v3, s4, v3')
    for w in range(8):
        I(f'ds_read_b128 {vr(164+4*w)}, v3 offset:{w*512}')
    I('s_waitcnt lgkmcnt(0)')
    for w in range(1, 8):
        for r in range(4):
            I(f'v_add_f32 v{164+r}, v{164+r}, v{164+4*w+r}')
    for r in range(4): I(f'v_cvt_pk_bf16_f32 v{164+r}, v{164+r}, v{164+r}')
    gemv_diag(4, lambda t: 164 + t, 16, [204, 208], lambda blk, t: 84 + 16 * blk + 4 * t,
              [212, 216, 220, 224, 228])
    I('s_mul_i32 s4, s3, 2560')
    I(f's_add_u32 s4, s4, {L_D_RED2}')
    I('v_add_u32 v3, s4, v2')
    setexec(0xffffffff)
    for blk in range(5):
        I(f'ds_write_b128 v3, {vr(212+4*blk)} offset:{blk*512}')
    fullexec()
    I('s_waitcnt lgkmcnt(0)')
    barrier()
    I('s_cmp_gt_u32 s3, 2')
    skip_if('L_end')
    I('v_cmp_gt_u32 vcc, 160, v0')
    I('s_and_saveexec_b64 s[6:7], vcc')
    I('v_lshlrev_b32 v3, 4, v0')
    I(f'v_add_u32 v3, {L_D_RED2}, v3')
    for w in range(8):
        I(f'ds_read_b128 {vr(164+4*w)}, v3 offset:{w*2560}')
    I('s_waitcnt lgkmcnt(0)')
    for w in range(1, 8):
        for r in range(4):
            I(f'v_add_f32 v{164+r}, v{164+r}, v{164+4*w+r}')
    I('v_cvt_pk_bf16_f32 v4, v164, v165')
    I('v_cvt_pk_bf16_f32 v5, v166, v167')
    I('v_min_u32 v4, 0xfffffffe, v4')
    I('v_min_u32 v5, 0xfffffffe, v5')
    I('v_lshlrev_b32 v3, 3, v0')
    I('s_lshl_b32 s4, s43, 5')
    I('s_add_u32 s4, s4, s42')
    I('s_mul_i32 s4, s4, 1280')
    I(f's_add_u32 s4, s4, {AP}')
    I(f'buffer_store_dwordx2 v[4:5], v3, {S(WS)}, s4 offen sc1')
    fullexec()
    stamp(5)
    role_end('L_d_main')

def role_E():
    L('L_role_e')
    WG, WU, WD, X_, OUT = 20, 24, 28, 32, 36
    srd(WG, 'wg'); srd(WU, 'wu'); srd(WD, 'wd'); srd(X_, 'x'); srd(OUT, 'out')
    make_masks(16, True)
    L('L_e_init')
    if EGATE: lds_gate()
    I('s_cmp_lg_u32 s47, 0')
    I('s_cbranch_scc1 L_end')
    I('v_mul_u32_u24 v2, 69120, v14')
    I('v_and_b32 v3, 7, v15')
    I('v_lshl_add_u32 v2, v3, 4, v2')
    I('s_mul_i32 s4, s3, 276480')
    I('s_lshl_b32 s5, s42, 7')
    I('s_add_u32 s4, s4, s5')
    I('s_mov_b32 s6, 0x00ff00ff')
    I('s_mov_b32 s7, 0x00ff00ff')
    I('s_mov_b32 s48, 0xff00ff00')
    I('s_mov_b32 s49, 0xff00ff00')
    lds = []
    for t in range(20):
        lds.append(([] if t == 0 else ['s_add_u32 s4, s4, 3456']) + ['s_mov_b64 exec, s[6:7]',
                   f'buffer_load_dwordx4 {vr(20+4*t)}, v2, {S(WG)}, s4 offen nt'])
        lds.append(['s_mov_b64 exec, s[48:49]', f'buffer_load_dwordx4 {vr(20+4*t)}, v2, {S(WU)}, s4 offen nt'])
    paced(lds, 2 * EPACE)
    fullexec()
    sk = uid('nodn')
    I('s_cmp_gt_u32 s3, 4')
    I(f's_cbranch_scc1 {sk}')
    I('v_mul_u32_u24 v2, 20480, v14')
    I('v_lshl_add_u32 v2, v15, 4, v2')
    I('s_mul_i32 s4, s42, 81920')
    I('s_lshl_b32 s5, s3, 8')
    I('s_add_u32 s4, s4, s5')
    lds = []
    for t in range(16):
        lds.append(([] if t == 0 else ['s_add_u32 s4, s4, 1280']) +
                   [f'buffer_load_dwordx4 {vr(100+4*t)}, v2, {S(WD)}, s4 offen nt'])
    I(f's_waitcnt vmcnt({EPACE})')
    paced(lds, EPACE)
    L(sk)
    if DRY:
        I('s_cmp_lg_u32 s3, 7')
        I('s_cbranch_scc1 L_e_main')
        enter_dry('L_e_main')
    L('L_e_main')
    sk = uid('nofw')
    I('s_cmp_lg_u32 s3, 0')
    skip_if(sk)
    flags_wait(0)
    L(sk)
    barrier()
    stamp(2)
    I('v_and_b32 v2, 1, v14')
    I('v_lshlrev_b32 v2, 2, v2')
    I('v_lshl_add_u32 v2, v15, 3, v2')
    I('s_lshl_b32 s4, s3, 7')
    I('v_add_u32 v12, s4, v2')
    sk5 = uid('w5')
    I('s_cmp_gt_u32 s3, 4')
    skip_if(sk5)
    I('v_lshlrev_b32 v2, 1, v12')
    I('s_mul_i32 s4, s43, 1280')
    I(f'buffer_load_dwordx2 v[4:5], v2, {S(X_)}, s4 offen')
    I('v_lshlrev_b32 v2, 2, v12')
    I('s_mul_i32 s4, s43, 15360')
    I(f's_add_u32 s48, s4, {MOD + 2*2560}')
    for i in range(1, 12):
        p, kq = i % 3, i // 3
        I(f's_add_u32 s{48+i}, s48, {p*2560 + kq*30720}')
    lab = spin_begin()
    for i in range(12):
        I(f'buffer_load_dwordx4 {vr(164+4*i)}, v2, {S(WS)}, s{48+i} offen sc1')
    I('s_waitcnt vmcnt(0)')
    anysent(range(164, 212), 6)
    spin_end(lab)
    for p in range(3):
        for r in range(4):
            a = 164 + 4 * p + r
            I(f'v_add_f32 v{a}, v{a}, v{a+12}')
            I(f'v_add_f32 v{a+24}, v{a+24}, v{a+36}')
            I(f'v_add_f32 v{a}, v{a}, v{a+24}')
            bfround(a)
    I('v_lshlrev_b32 v176, 16, v4')
    I('v_and_b32 v177, 0xffff0000, v4')
    I('v_lshlrev_b32 v178, 16, v5')
    I('v_and_b32 v179, 0xffff0000, v5')
    for r in range(4):
        I(f'v_add_f32 v{172+r}, 1.0, v{172+r}')
        bfround(172 + r)
    for d in range(4): I(f'v_and_b32 v{204+d}, 0x3f803f80, v{16+d}')
    I('v_mul_u32_u24 v3, 10240, v14')
    I('v_lshl_add_u32 v3, v15, 4, v3')
    I('s_mul_i32 s4, s43, 40960')
    I('s_lshl_b32 s5, s3, 8')
    I('s_add_u32 s4, s4, s5')
    I(f's_add_u32 s4, s4, {AP}')
    I('s_add_u32 s5, s4, 3840')
    I('s_add_u32 s6, s4, 7680')
    L(sk5)
    sk = uid('nolp')
    I('s_cmp_lg_u32 s3, 5')
    skip_if(sk)
    I('v_and_b32 v2, 31, v1')
    I('v_mul_u32_u24 v2, 1280, v2')
    I('s_mul_i32 s4, s43, 40960')
    I(f's_add_u32 s4, s4, {AP + 1276}')
    lab = spin_begin()
    I(f'buffer_load_dword v4, v2, {S(WS)}, s4 offen sc1')
    I('s_waitcnt vmcnt(0)')
    I('v_cmp_eq_u32 vcc, -1, v4')
    spin_end(lab, 2)
    L(sk)
    barrier()
    stamp(6)
    sk5 = uid('w5a')
    I('s_cmp_gt_u32 s3, 4')
    skip_if(sk5)
    lab = spin_begin()
    for t in range(8):
        so = ['s4', 's5', 's6'][t // 3]
        I(f'buffer_load_dwordx4 {vr(208+4*t)}, v3, {S(WS)}, {so} offen offset:{(t%3)*1280} sc1')
    I('s_waitcnt vmcnt(0)')
    anysent(range(208, 240), 6)
    spin_end(lab)
    stamp(3)
    for t in range(8):
        c = '0' if t == 0 else 'v[180:183]'
        I(f'v_mfma_f32_16x16x32_bf16 v[180:183], v[204:207], {vr(208+4*t)}, {c}')
    nop(9)
    for r in range(4):
        bfround(180 + r)
        I(f'v_mul_f32 v{180+r}, v{164+r}, v{180+r}')
        bfround(180 + r)
        I(f'v_add_f32 v{180+r}, v{176+r}, v{180+r}')
        bfround(180 + r)
    I('v_cmp_gt_u32 vcc, 32, v1')
    I('v_add_f32 v6, v180, v181')
    I('v_add_f32 v7, v182, v183')
    I('v_add_f32 v6, v6, v7')
    I('v_cndmask_b32 v6, 0, v6, vcc')
    allreduce('v_add_f32', 6, 7)
    I('v_mul_f32 v6, 0x3c000000, v6')
    for r in range(4): I(f'v_sub_f32 v{184+r}, v{180+r}, v6')
    I('v_mul_f32 v8, v184, v184')
    for r in range(1, 4): I(f'v_fmac_f32 v8, v{184+r}, v{184+r}')
    I('v_cndmask_b32 v8, 0, v8, vcc')
    allreduce('v_add_f32', 8, 7)
    I('v_mov_b32 v7, v8')
    I('s_lshl_b32 s4, s3, 3')
    I(f's_add_u32 s4, s4, {L_E_STAT}')
    I('v_mov_b32 v2, s4')
    I('v_lshlrev_b32 v3, 2, v12')
    I(f'v_add_u32 v3, {L_E_X1}, v3')
    setexec(1)
    I('ds_write_b64 v2, v[6:7]')
    setexec(0xffffffff)
    I('ds_write_b128 v3, v[180:183]')
    fullexec()
    I('s_waitcnt lgkmcnt(0)')
    L(sk5)
    barrier()
    sk5 = uid('w5b')
    I('s_cmp_gt_u32 s3, 4')
    skip_if(sk5)
    I(f'v_mov_b32 v2, {L_E_STAT}')
    I('ds_read_b128 v[184:187], v2')
    I('ds_read_b128 v[188:191], v2 offset:16')
    I('ds_read_b64 v[192:193], v2 offset:32')
    I('s_waitcnt lgkmcnt(0)')
    I('v_add_f32 v6, v184, v186')
    I('v_add_f32 v6, v6, v188')
    I('v_add_f32 v6, v6, v190')
    I('v_add_f32 v6, v6, v192')
    I('v_mul_f32 v6, 0x3e4ccccd, v6')
    I('v_add_f32 v7, v185, v187')
    I('v_add_f32 v7, v7, v189')
    I('v_add_f32 v7, v7, v191')
    I('v_add_f32 v7, v7, v193')
    for k in range(5):
        I(f'v_sub_f32 v8, v{184+2*k}, v6')
        I('v_mul_f32 v8, v8, v8')
        I('v_fmac_f32 v7, 0x43000000, v8')
    I('v_mul_f32 v7, 0x3acccccd, v7')
    bfround(6); bfround(7)
    I('v_add_f32 v7, 0x3727c5ac, v7')
    bfround(7)
    I('v_sqrt_f32 v7, v7')
    nop(1)
    bfround(7)
    I('v_rcp_f32 v7, v7')
    for r in range(4):
        I(f'v_sub_f32 v{184+r}, v{180+r}, v6')
        bfround(184 + r)
        I(f'v_mul_f32 v{184+r}, v{184+r}, v7')
        bfround(184 + r)
        I(f'v_mul_f32 v{184+r}, v{184+r}, v{172+r}')
        bfround(184 + r)
        I(f'v_add_f32 v{184+r}, v{184+r}, v{168+r}')
        I(f'v_cvt_pk_bf16_f32 v{184+r}, v{184+r}, v{184+r}')
    I('v_lshlrev_b32 v3, 2, v12')
    I(f'v_add_u32 v3, {L_E_HT}, v3')
    setexec(0xffffffff)
    I('ds_write_b128 v3, v[184:187]')
    fullexec()
    I('s_waitcnt lgkmcnt(0)')
    L(sk5)
    I('s_waitcnt vmcnt(0)')
    barrier()
    stamp(4)
    I('v_mul_u32_u24 v2, 80, v14')
    I('s_mul_i32 s4, s3, 320')
    I(f's_add_u32 s4, s4, {L_E_HT}')
    I('v_add_u32 v2, s4, v2')
    for q in range(5):
        I(f'ds_read_b128 {vr(164+4*q)}, v2 offset:{q*16}')
    I('s_waitcnt lgkmcnt(0)')
    gemv_diag(20, lambda t: 164 + t, 16, [204, 208], lambda blk, t: 20 + 4 * t, [212])
    I('v_lshlrev_b32 v2, 5, v15')
    I('v_lshl_add_u32 v2, v14, 4, v2')
    I('s_lshl_b32 s4, s3, 9')
    I(f's_add_u32 s4, s4, {L_E_RED}')
    I('v_add_u32 v3, s4, v2')
    setexec(0xffffffff)
    I('ds_write_b128 v3, v[212:215]')
    fullexec()
    I('s_waitcnt lgkmcnt(0)')
    barrier()
    sk = uid('nohh')
    I('s_cmp_lg_u32 s3, 0')
    skip_if(sk)
    I(f'v_add_u32 v3, {L_E_RED}, v13')
    setexec(0xffff)
    for w in range(8):
        I(f'ds_read_b128 {vr(164+4*w)}, v3 offset:{w*512}')
        I(f'ds_read_b128 {vr(208+4*w)}, v3 offset:{w*512+256}')
    I('s_waitcnt lgkmcnt(0)')
    for w in range(1, 8):
        for r in range(4):
            I(f'v_add_f32 v{164+r}, v{164+r}, v{164+4*w+r}')
            I(f'v_add_f32 v{208+r}, v{208+r}, v{208+4*w+r}')
    for r in range(4):
        bfround(164 + r); bfround(208 + r)
        I(f'v_mul_f32 v{164+r}, 0xbfb8aa3b, v{164+r}')
        I(f'v_exp_f32 v{164+r}, v{164+r}')
        nop(1)
        I(f'v_add_f32 v{164+r}, 1.0, v{164+r}')
        I(f'v_rcp_f32 v{164+r}, v{164+r}')
        nop(1)
        bfround(164 + r)
        I(f'v_mul_f32 v{164+r}, v{164+r}, v{208+r}')
        I(f'v_cvt_pk_bf16_f32 v{164+r}, v{164+r}, v{164+r}')
    I(f'v_add_u32 v3, {L_E_HH}, v13')
    I('ds_write_b128 v3, v[164:167]')
    fullexec()
    I('s_waitcnt lgkmcnt(0)')
    L(sk)
    barrier()
    I('s_cmp_gt_u32 s3, 4')
    skip_if('L_final')
    I('v_lshlrev_b32 v2, 6, v14')
    I(f'v_add_u32 v2, {L_E_HH}, v2')
    for q in range(4):
        I(f'ds_read_b128 {vr(164+4*q)}, v2 offset:{q*16}')
    I('s_waitcnt lgkmcnt(0)')
    gemv_diag(16, lambda t: 164 + t, 16, [204, 208], lambda blk, t: 100 + 4 * t, [212])
    for r in range(4): I(f'v_min_u32 v{212+r}, 0xfffffffe, v{212+r}')
    I('v_lshlrev_b32 v2, 2, v12')
    I('s_mul_i32 s4, s43, 27')
    I('s_add_u32 s4, s4, s42')
    I('s_mul_i32 s4, s4, 2560')
    I(f's_add_u32 s4, s4, {FP}')
    setexec(0xffffffff)
    I(f'buffer_store_dwordx4 v[212:215], v2, {S(WS)}, s4 offen sc1')
    fullexec()
    stamp(5)
    I('s_cmp_lg_u32 s100, 0')
    I('s_cbranch_scc1 L_end')
    L('L_final')
    I('s_cmp_lg_u32 s3, 5')
    skip_if('L_end')
    I('s_cmp_ge_u32 s42, 10')
    skip_if('L_end')
    I('s_lshl_b32 s4, s42, 6')
    I('v_add_u32 v12, s4, v1')
    I('v_lshlrev_b32 v2, 2, v12')
    I(f'v_add_u32 v3, {L_E_X1}, v2')
    I('ds_read_b32 v10, v3')
    I('s_mul_i32 s4, s43, 15360')
    I(f's_add_u32 s4, s4, {MOD + 5*2560}')
    I('s_mul_i32 s5, s43, 69120')
    I(f's_add_u32 s5, s5, {FP}')
    lab = spin_begin()
    I('s_mov_b32 s6, s4')
    for kq in range(4):
        I(f'buffer_load_dword v{48+kq}, v2, {S(WS)}, s6 offen sc1')
        if kq < 3: I('s_add_u32 s6, s6, 30720')
    I('s_mov_b32 s6, s5')
    for p in range(27):
        I(f'buffer_load_dword v{20+p}, v2, {S(WS)}, s6 offen sc1')
        if p < 26: I('s_add_u32 s6, s6, 2560')
    I('s_waitcnt vmcnt(0)')
    anysent(list(range(48, 52)) + list(range(20, 47)), 6)
    spin_end(lab)
    I('v_add_f32 v11, v48, v49')
    I('v_add_f32 v50, v50, v51')
    I('v_add_f32 v11, v11, v50')
    bfround(11)
    for p in range(1, 27): I(f'v_add_f32 v20, v20, v{20+p}')
    bfround(20)
    I('v_mul_f32 v20, v11, v20')
    bfround(20)
    I('s_waitcnt lgkmcnt(0)')
    I('v_add_f32 v20, v10, v20')
    I('v_cvt_pk_bf16_f32 v20, v20, v20')
    I('v_lshlrev_b32 v2, 1, v12')
    I('s_mul_i32 s4, s43, 1280')
    I(f'buffer_store_short v20, v2, {S(OUT)}, s4 offen')
    stamp(7, 5)
    if DBGT:
        I('s_memrealtime s[60:61]')
        I('s_mov_b32 s20, s90')
        I('s_and_b32 s21, s91, 0xffff')
        I('s_mov_b32 s22, 256')
        I('s_mov_b32 s23, 0x00020000')
        I('s_waitcnt lgkmcnt(0)')
        I('s_sub_u32 s60, s60, s56')
        I('v_mov_b32 v4, s60')
        I('s_mul_i32 s5, s43, 10')
        I('s_add_u32 s5, s5, s42')
        I('s_lshl_b32 s5, s5, 2')
        I('v_mov_b32 v5, 0')
        setexec(1)
        I('buffer_store_dword v4, v5, s[20:23], s5 offen')
        fullexec()
    role_end('L_e_main')

prologue()
role_P12()
role_P3()
role_DE_common()
role_D()
role_E()
L('L_end')
I('s_endpgm')

def wrap_vm(ls):
    out = []; i = 0; n = 0
    while i < len(ls):
        x = ls[i].strip()
        def isvm(k):
            y = ls[k].strip()
            return y.startswith('buffer_store') or (not INSPIN[k] and (y.startswith('s_waitcnt vmcnt') or (y.startswith('buffer_load') and ' nt' not in y)))
        if isvm(i):
            j = i
            while j < len(ls) and isvm(j):
                j += 1
            n += 1
            out.append(f'    s_cbranch_execz L_vs_{n}')
            out += ls[i:j]
            out.append(f'L_vs_{n}:')
            i = j
        else:
            out.append(ls[i]); i += 1
    return out
if DRY:
    INSPIN = []
    ins = False
    for x in lines:
        t = x.strip()
        if re.match(r'L_spin_\d+:$', t): ins = True
        if re.match(r'L_spin_\d+_x:$', t): ins = False
        INSPIN.append(ins)
    lines = wrap_vm(lines)
hdr = open('cdna_kernels/' + NAME + '.s.ref').read().split('\n')
out = []
for ln in hdr:
    if ln.startswith('; @launch'):
        out.append(f'; @launch grid=(256,1,1) block=(512,1,1) lds={LDS_BYTES}')
    elif ln.startswith(';'):
        out.append(ln)
    else:
        break
out += ['.amdgcn_target "amdgcn-amd-amdhsa--gfx950"', '.text', f'.globl {NAME}_kernel', '.p2align 8',
        f'.type {NAME}_kernel,@function', f'{NAME}_kernel:']
out += lines
out += ['.section .rodata,"a"', '.p2align 6', f'.amdhsa_kernel {NAME}_kernel',
        '  .amdhsa_next_free_vgpr 256', '  .amdhsa_next_free_sgpr 102', '  .amdhsa_accum_offset 256',
        '  .amdhsa_group_segment_fixed_size 0', '  .amdhsa_kernarg_size 120', '  .amdhsa_user_sgpr_count 2',
        '  .amdhsa_user_sgpr_kernarg_segment_ptr 1', '  .amdhsa_system_sgpr_workgroup_id_x 1',
        '.end_amdhsa_kernel', '']
open(sys.argv[1], 'w').write('\n'.join(out))
```

```python
import sys, re

NAME = 'adaLN_cond__compressed_kv_cla__glu_gated_glu__decode'
STAMP = int(sys.argv[2]) if len(sys.argv) > 2 else 0
DBGT = (STAMP == 2)
if DBGT: STAMP = 0
SPIN_LIMIT = 200000

EPOCH = 0
FLAGS = 2048
MOD = 8192
QP = 131072
QA = 262144
ML = 327680
AP = 360448
FP = 442368
STP = 589824
OP = 1048576
WS_BYTES = OP + 2 * 32 * 32 * 1024

CKS = 1040
L_WU = 0
L_HD = 66560
L_RED = L_HD + 2560
L_QT2 = L_RED + 5120
L_CK = 0
L_QT = 0
PTS = 272
L_PT = 133120
L_MX = L_PT + 32 * PTS
LDS_BYTES = L_MX + 1024
L_WT0 = 0
L_WT1 = 20480
L_ST = 40960
L_FC = 44032
L_D_WD = 45056
L_D_CD = 46080
L_D_RED = 49152
L_D_RED2 = 53248
L_E_STAT = 45056
L_E_X1 = 45312
L_E_HT = 48128
L_E_RED = 53248
L_E_HH = 57344
PACE = int(sys.argv[3]) if len(sys.argv) > 3 else 6
SLOWN = int(sys.argv[4]) if len(sys.argv) > 4 else 6
DRY = int(sys.argv[5]) if len(sys.argv) > 5 else 0
EGATE = int(sys.argv[6]) if len(sys.argv) > 6 else 1
EPACE = int(sys.argv[7]) if len(sys.argv) > 7 else 6
SLOWP = int(sys.argv[8]) if len(sys.argv) > 8 else 2
LATEC = int(sys.argv[9]) if len(sys.argv) > 9 else 0
CK0 = int(sys.argv[10]) if len(sys.argv) > 10 else 4
CK1 = int(sys.argv[11]) if len(sys.argv) > 11 else 6
W1GATE = int(sys.argv[12]) if len(sys.argv) > 12 else 0
XSPLIT = int(sys.argv[13]) if len(sys.argv) > 13 else 0
P3GATE = int(sys.argv[14]) if len(sys.argv) > 14 else 0
WU0 = int(sys.argv[15]) if len(sys.argv) > 15 else 6
THR = int(sys.argv[16]) if len(sys.argv) > 16 else 1

TAGC_LO = 0x7F4A7C15
TAGC_HI = 0x9E3779B9

lines = []
def I(s): lines.append('    ' + s)
def L(s): lines.append(s + ':')
def C(s): lines.append('    ; ' + s)
def nop(n):
    while n > 0:
        k = min(n, 16)
        I(f's_nop {k-1}')
        n -= k
_uid = [0]
def uid(p):
    _uid[0] += 1
    return f'L_{p}_{_uid[0]}'
def vr(a, n=4): return f'v[{a}:{a+n-1}]'

PTR = {k: 64 + 2 * i for i, k in enumerate(
    ['x', 'ckv', 'wq', 'wuk', 'wuv', 'wo', 'bx', 'wg', 'wu', 'wd', 'c', 'wmod', 'out', 'dbg', 'ws'])}
NBYTES = dict(x=2560, ckv=8388608, wq=5242880, wuk=4194304, wuv=4194304, wo=5242880, wg=2211840, wu=2211840,
              wd=2211840, c=2560, wmod=4915200, out=2560, ws=WS_BYTES)
def srd(d, name):
    p = PTR[name]
    I(f's_mov_b32 s{d}, s{p}')
    I(f's_and_b32 s{d+1}, s{p+1}, 0xffff')
    I(f's_mov_b32 s{d+2}, {NBYTES[name]}')
    I(f's_mov_b32 s{d+3}, 0x00020000')
def S(d): return f's[{d}:{d+3}]'
WS = 8

def setexec(lo, hi=0):
    I(f's_and_b32 exec_lo, s100, 0x{lo:x}')
    if hi: I(f's_and_b32 exec_hi, s100, 0x{hi:x}')
    else: I('s_mov_b32 exec_hi, 0')
def fullexec():
    I('s_mov_b64 exec, s[100:101]')
def skip_if(lab):
    I('s_cselect_b32 s99, s100, 0')
    I('s_cmp_lg_u32 s99, 0')
    I(f's_cbranch_scc1 {lab}')
def barrier():
    o = uid('bar')
    I('s_cmp_eq_u32 s100, 0')
    I(f's_cbranch_scc1 {o}')
    I('s_barrier')
    L(o)
def enter_dry(target):
    I('s_mov_b64 s[100:101], 0')
    I('s_mov_b64 exec, 0')
    I(f's_branch {target}')
def role_end(back):
    I('s_cmp_lg_u32 s100, 0')
    I('s_cbranch_scc1 L_end')
    I('s_mov_b64 s[100:101], -1')
    I('s_mov_b64 exec, -1')
    I(f's_branch {back}')

def stamp(idx, wave=0):
    if STAMP != 1: return
    skip = uid('st')
    I(f's_cmp_lg_u32 s3, {wave}')
    I(f's_cbranch_scc1 {skip}')
    I('s_memrealtime s[60:61]')
    I('s_waitcnt lgkmcnt(0)')
    I('v_mov_b32 v254, s60')
    I('v_mov_b32 v255, s61')
    I(f's_lshl_b32 s62, s2, 7')
    I(f's_add_u32 s62, s62, {STP + idx*8}')
    I('v_mov_b32 v253, 0')
    I('s_mov_b64 s[58:59], exec')
    setexec(1)
    I(f'buffer_store_dwordx2 v[254:255], v253, {S(WS)}, s62 offen')
    I('s_mov_b64 exec, s[58:59]')
    L(skip)

TICK = (STAMP == 3)
def tick(i):
    if TICK: I(f's_memtime s[{64+2*i}:{65+2*i}]')
def tick_dump(n):
    if not TICK: return
    skip = uid('tk')
    I('s_cmp_lg_u32 s3, 0')
    I(f's_cbranch_scc1 {skip}')
    I('s_waitcnt lgkmcnt(0)')
    I('s_mov_b64 s[58:59], exec')
    setexec(1)
    I('v_mov_b32 v253, 0')
    for i in range(n):
        I(f'v_mov_b32 v254, s{64+2*i}')
        I(f'v_mov_b32 v255, s{65+2*i}')
        I(f's_lshl_b32 s62, s2, 7')
        I(f's_add_u32 s62, s62, {STP + i*8}')
        I(f'buffer_store_dwordx2 v[254:255], v253, {S(WS)}, s62 offen')
        nop(2)
    I('s_mov_b64 exec, s[58:59]')
    L(skip)

def spin_begin():
    lab = uid('spin')
    I(f's_cbranch_execz {lab}_x')
    I('s_mov_b32 s98, 0')
    L(lab)
    return lab
def spin_end(lab, sleep=1):
    done = uid('spd')
    I(f's_cbranch_vccz {done}')
    I('s_add_u32 s98, s98, 1')
    I(f's_cmp_gt_u32 s98, {SPIN_LIMIT}')
    I('s_cbranch_scc1 L_end')
    I(f's_sleep {sleep}')
    I(f's_branch {lab}')
    L(done)
    L(f'{lab}_x')

def anysent(regs, tmp):
    regs = list(regs)
    cur = regs[0]; rest = regs[1:]
    while rest:
        if len(rest) >= 2:
            I(f'v_max3_u32 v{tmp}, v{cur}, v{rest[0]}, v{rest[1]}'); rest = rest[2:]
        else:
            I(f'v_max_u32 v{tmp}, v{cur}, v{rest[0]}'); rest = rest[1:]
        cur = tmp
    I(f'v_cmp_eq_u32 vcc, -1, v{cur}')

def allreduce(op, x, tmp, rows_only=False, skip_row=False, half=False):
    if not skip_row:
        for ctl in ['quad_perm:[1,0,3,2]', 'quad_perm:[2,3,0,1]', 'row_half_mirror', 'row_mirror']:
            nop(2)
            I(f'{op}_dpp v{x}, v{x}, v{x} {ctl} row_mask:0xf bank_mask:0xf')
    if rows_only: return
    for sw in (['v_permlane16_swap_b32'] if half else ['v_permlane16_swap_b32', 'v_permlane32_swap_b32']):
        I(f'v_mov_b32 v{tmp}, v{x}')
        nop(2)
        I(f'{sw} v{x}, v{tmp}')
        nop(1)
        I(f'{op} v{x}, v{x}, v{tmp}')

def bfround(x, tmp=None):
    I(f'v_cvt_pk_bf16_f32 v{x}, v{x}, v{x}')
    I(f'v_and_b32 v{x}, 0xffff0000, v{x}')

def make_masks(m, single):
    I('v_and_b32 v2, 1, v1')
    I('v_cmp_eq_u32 vcc, 1, v2')
    I('v_mov_b32 v3, 0xffff')
    I('v_mov_b32 v2, 0xffff0000')
    nop(1)
    I('v_cndmask_b32 v3, v3, v2, vcc')
    if single:
        I('v_and_b32 v2, 8, v1')
        I('v_cmp_eq_u32 vcc, 0, v2')
        nop(2)
        I('v_cndmask_b32 v3, 0, v3, vcc')
    I('v_bfe_u32 v2, v1, 1, 2')
    for d in range(4):
        I(f'v_cmp_eq_u32 vcc, {d}, v2')
        nop(2)
        I(f'v_cndmask_b32 v{m+d}, 0, v3, vcc')

def gemv_diag(T, aval, masks, abuf, bq, accs):
    def build(t):
        a = abuf[t % 2]
        for d in range(4):
            I(f'v_and_b32 v{a+d}, v{masks+d}, v{aval(t)}')
    build(0)
    for t in range(T):
        a = abuf[t % 2]
        if t + 1 < T:
            build(t + 1)
        else:
            nop(2)
        for blk, acc in enumerate(accs):
            c = '0' if t == 0 else vr(acc)
            I(f'v_mfma_f32_16x16x32_bf16 {vr(acc)}, {vr(a)}, {vr(bq(blk, t))}, {c}')
    nop(9)

def make_masks4(m, nb):
    I('v_bfe_u32 v2, v1, 2, 2')
    I(f'v_cmp_gt_u32 vcc, {nb}, v2')
    nop(2)
    I('v_cndmask_b32 v3, 0, -1, vcc')
    I('v_and_b32 v2, 3, v1')
    for d in range(4):
        I(f'v_cmp_eq_u32 vcc, {d}, v2')
        nop(2)
        I(f'v_cndmask_b32 v{m+d}, 0, v3, vcc')

def pairperm(quads, tmp):
    I('s_mov_b32 s4, 0x05040100')
    I('s_mov_b32 s5, 0x07060302')
    for n, (x0, x1) in enumerate(quads):
        for q in range(4):
            t = tmp + (q & 1)
            I(f'v_perm_b32 v{t}, v{x1+q}, v{x0+q}, s4')
            I(f'v_perm_b32 v{x1+q}, v{x1+q}, v{x0+q}, s5')
            I(f'v_mov_b32 v{x0+q}, v{t}')

def gemv_pair(P, aval, masks, abuf, bq, accE, accO):
    def build(p):
        a = abuf[p % 2]
        for d in range(4):
            I(f'v_and_b32 v{a+d}, v{masks+d}, v{aval(p)}')
    build(0)
    for p in range(P):
        a = abuf[p % 2]
        if p + 1 < P: build(p + 1)
        else: nop(2)
        for blk in range(len(accE)):
            for acc, t in ((accE[blk], 2 * p), (accO[blk], 2 * p + 1)):
                c = '0' if p == 0 else vr(acc)
                I(f'v_mfma_f32_16x16x32_bf16 {vr(acc)}, {vr(a)}, {vr(bq(blk, t))}, {c}')
    nop(9)

def spin_end_thr(lab, thr, sleep=1):
    done = uid('spd')
    I('s_bcnt1_i32_b64 s99, vcc')
    I(f's_cmp_le_u32 s99, {thr}')
    I(f's_cbranch_scc1 {done}')
    I('s_add_u32 s98, s98, 1')
    I(f's_cmp_gt_u32 s98, {SPIN_LIMIT}')
    I('s_cbranch_scc1 L_end')
    I(f's_sleep {sleep}')
    I(f's_branch {lab}')
    L(done)
    L(f'{lab}_x')

def light_poll(load, regs_per, base, thr, NS=3, gap=5):
    top = uid('lp'); done = uid('lpd')
    I(f's_cbranch_execz {done}')
    I('s_mov_b32 s98, 0')
    for i in range(NS - 1):
        load(base + i * regs_per)
        I(f's_sleep {gap}')
    L(top)
    for i in range(NS):
        load(base + ((i + NS - 1) % NS) * regs_per)
        I(f's_waitcnt vmcnt({NS-1})')
        r = base + i * regs_per
        if regs_per == 1: I(f'v_cmp_eq_u32 vcc, -1, v{r}')
        else:
            I(f'v_max_u32 v{base + NS*regs_per}, v{r}, v{r+1}')
            I(f'v_cmp_eq_u32 vcc, -1, v{base + NS*regs_per}')
        I('s_bcnt1_i32_b64 s99, vcc')
        I(f's_cmp_le_u32 s99, {thr}')
        I(f's_cbranch_scc1 {done}')
    I('s_add_u32 s98, s98, 1')
    I(f's_cmp_gt_u32 s98, {SPIN_LIMIT}')
    I('s_cbranch_scc1 L_end')
    I(f's_branch {top}')
    L(done)

def flags_wait(which, first=0, count=256, sleep=1):
    I('v_lshlrev_b32 v2, 4, v1')
    I(f'v_add_u32 v2, {FLAGS + 2048*which + 8*first}, v2')
    if count == 64: setexec(0xffffffff)
    lab = spin_begin()
    I(f'buffer_load_dwordx4 v[4:7], v2, {S(WS)}, 0 offen sc1')
    if count == 256:
        I(f'buffer_load_dwordx4 v[8:11], v2, {S(WS)}, 0 offen offset:1024 sc1')
    I('s_waitcnt vmcnt(0)')
    n = 12 if count == 256 else 8
    for r in range(4, n):
        I(f'v_xor_b32 v{r}, s{96 + (r & 1)}, v{r}')
    I('v_or3_b32 v4, v4, v5, v6')
    if count == 256:
        I('v_or3_b32 v4, v4, v7, v8')
        I('v_or3_b32 v4, v4, v9, v10')
        I('v_or_b32 v4, v4, v11')
    else:
        I('v_or_b32 v4, v4, v7')
    I('v_cmp_ne_u32 vcc, 0, v4')
    spin_end(lab, sleep)
    if count == 64: fullexec()

def flag_store(which, t0=4):
    I('s_waitcnt vmcnt(0) lgkmcnt(0)')
    I(f's_add_u32 s96, s94, 0x{TAGC_LO:x}')
    I(f's_addc_u32 s97, s95, 0x{TAGC_HI:x}')
    I(f'v_mov_b32 v{t0}, s96')
    I(f'v_mov_b32 v{t0+1}, s97')
    I('s_lshl_b32 s4, s2, 3')
    I(f's_add_u32 s4, s4, {FLAGS + 2048*which}')
    I(f'v_mov_b32 v{t0+2}, 0')
    setexec(1)
    I(f'buffer_store_dwordx2 v[{t0}:{t0+1}], v{t0+2}, {S(WS)}, s4 offen sc1')
    fullexec()

def lds_gate():
    I(f'v_mov_b32 v4, {L_FC}')
    lab = spin_begin()
    I('ds_read_b32 v5, v4')
    I('s_waitcnt lgkmcnt(0)')
    I('v_cmp_ne_u32 vcc, 1, v5')
    spin_end(lab, 2)

def paced(loads, depth):
    for i, ld in enumerate(loads):
        if i >= depth: I(f's_waitcnt vmcnt({depth-1})')
        for x in ld: I(x)

def tag_compute():
    I('s_waitcnt lgkmcnt(0)')
    I(f's_add_u32 s96, s94, 0x{TAGC_LO:x}')
    I(f's_addc_u32 s97, s95, 0x{TAGC_HI:x}')

def prologue():
    I('s_cmp_ge_u32 s2, 256')
    I('s_cbranch_scc1 L_end')
    I('s_mov_b64 s[100:101], -1')
    if XSPLIT:
        I('s_lshr_b32 s4, s2, 3')
        I('s_lshl_b32 s4, s4, 2')
        I('s_and_b32 s5, s2, 3')
        I('s_add_u32 s4, s4, s5')
        I('s_bfe_u32 s5, s2, 0x10002')
        I('s_lshl_b32 s5, s5, 7')
        I('s_add_u32 s2, s4, s5')
    if DBGT: I('s_memrealtime s[56:57]')
    I('s_load_dwordx16 s[64:79], s[0:1], 0')
    I('s_load_dwordx8 s[80:87], s[0:1], 64')
    I('s_load_dwordx4 s[88:91], s[0:1], 96')
    I('s_load_dwordx2 s[92:93], s[0:1], 112')
    I('v_lshrrev_b32 v1, 6, v0')
    nop(1)
    I('v_readfirstlane_b32 s3, v1')
    I('v_and_b32 v1, 63, v0')
    for r in range(2, 13): I(f'v_mov_b32 v{r}, 0')
    if STAMP: I('v_mov_b32 v253, 0')
    I('s_waitcnt lgkmcnt(0)')
    I('s_load_dwordx2 s[94:95], s[92:93], 0')
    srd(WS, 'ws')
    stamp(0)
    I('v_lshrrev_b32 v14, 4, v1')
    I('v_and_b32 v15, 15, v1')
    I('v_lshlrev_b32 v13, 4, v1')
    I('s_cmp_ge_u32 s2, 128')
    I('s_cbranch_scc1 L_de')
    I('s_cmp_ge_u32 s2, 64')
    I('s_cbranch_scc1 L_p3')

def role_P12():
    X_, WQ, WUK = 12, 16, 20
    srd(X_, 'x'); srd(WQ, 'wq'); srd(WUK, 'wuk')
    I('s_lshr_b32 s40, s2, 1')
    I('s_and_b32 s41, s2, 1')
    I('s_mul_i32 s45, s41, 320')
    I('s_cmp_lg_u32 s3, 7')
    I('s_cbranch_scc1 L_a_init')
    for r in range(4, 8): I(f'v_mov_b32 v{r}, -1')
    I('s_lshl_b32 s4, s2, 10')
    I(f's_add_u32 s4, s4, {QP}')
    I(f'buffer_store_dwordx4 v[4:7], v13, {S(WS)}, s4 offen sc1')
    I('v_lshrrev_b32 v3, 5, v1')
    I('v_lshlrev_b32 v3, 15, v3')
    I('v_and_b32 v2, 31, v1')
    I('v_lshl_add_u32 v3, v2, 4, v3')
    I('s_lshl_b32 s4, s2, 9')
    I(f's_add_u32 s4, s4, {QA}')
    I(f'buffer_store_dwordx4 v[4:7], v3, {S(WS)}, s4 offen sc1')
    if DRY: enter_dry('L_a_h1b')
    L('L_a_w7')
    flag_store(0, 8)
    stamp(9, 7)
    I('s_branch L_a_main')
    L('L_a_init')
    I('s_cmp_gt_u32 s3, 4')
    I('s_cbranch_scc1 L_a_h1')
    I('v_lshlrev_b32 v2, 17, v14')
    I('v_lshl_add_u32 v2, v15, 4, v2')
    I('s_lshl_b32 s4, s3, 6')
    I('s_add_u32 s4, s4, s45')
    I('s_lshl_b32 s4, s4, 13')
    I('s_lshl_b32 s5, s40, 8')
    I('s_add_u32 s4, s4, s5')
    for t in range(16):
        I(f'buffer_load_dwordx4 {vr(20+4*t)}, v2, {S(WQ)}, s4 offen nt')
        if t < 15: I('s_add_u32 s4, s4, 8192')
    def wuk_dma(first, per):
        I('v_lshlrev_b32 v2, 13, v14')
        I('v_lshl_add_u32 v2, v15, 4, v2')
        I('s_lshl_b32 s4, s41, 21')
        I('s_lshl_b32 s5, s40, 8')
        I('s_add_u32 s4, s4, s5')
        I(f's_mul_i32 s6, s3, {per}')
        I(f's_add_u32 s6, s6, {first}')
        I('s_lshl_b32 s5, s6, 15')
        I('s_add_u32 s4, s4, s5')
        I('s_mul_i32 s5, s6, 1040')
        done = uid('dmad')
        for q in range(per):
            if first + 5 * per > 64 and q >= 64 - first - 4 * per:
                I('s_cmp_eq_u32 s3, 4')
                I(f's_cbranch_scc1 {done}')
            I('s_mov_b32 m0, s5')
            nop(1)
            I(f'buffer_load_dwordx4 v2, {S(WUK)}, s4 offen nt lds')
            if q < per - 1:
                I('s_add_u32 s4, s4, 32768')
                I('s_add_u32 s5, s5, 1040')
        L(done)
    wuk_dma(0, WU0)
    make_masks4(16, 2)
    tag_compute()
    I(f's_waitcnt vmcnt({WU0})')
    pairperm([(20 + 8 * p, 24 + 8 * p) for p in range(8)], 4)
    stamp(10, 4)
    I('s_branch L_a_main')
    L('L_a_h1')
    I('s_sub_u32 s46, s3, 5')
    I('s_mul_i32 s4, s46, 1280')
    I('v_lshlrev_b32 v3, 2, v1')
    for k in range(5):
        I(f'buffer_load_dword v{80 + k}, v3, {S(X_)}, s4 offen offset:{k*256}')
    I('s_lshl_b32 s5, s45, 1')
    I('s_add_u32 s5, s5, s4')
    I(f'buffer_load_dwordx4 v[84+4:84+7], v13, {S(X_)}, s5 offen'.replace('84+4', '88').replace('84+7', '91'))
    tag_compute()
    I('s_waitcnt vmcnt(0)')
    for k in range(5):
        I(f'v_lshlrev_b32 v{96+2*k}, 16, v{80+k}')
        I(f'v_and_b32 v{97+2*k}, 0xffff0000, v{80+k}')
    I('v_add_f32 v92, v96, v97')
    for k in range(2, 10): I(f'v_add_f32 v92, v92, v{96+k}')
    allreduce('v_add_f32', 92, 93)
    I('v_mul_f32 v92, 0x3acccccd, v92')
    for k in range(10): I(f'v_sub_f32 v{96+k}, v{96+k}, v92')
    I('v_mul_f32 v94, v96, v96')
    for k in range(1, 10): I(f'v_fmac_f32 v94, v{96+k}, v{96+k}')
    allreduce('v_add_f32', 94, 93)
    I('v_mul_f32 v94, 0x3acccccd, v94')
    bfround(92); bfround(94)
    I('v_add_f32 v94, 0x3727c5ac, v94')
    bfround(94)
    I('v_sqrt_f32 v94, v94')
    nop(1)
    bfround(94)
    I('v_rcp_f32 v94, v94')
    for k in range(4):
        I(f'v_lshlrev_b32 v{72+2*k}, 16, v{88+k}')
        I(f'v_and_b32 v{73+2*k}, 0xffff0000, v{88+k}')
    for r in range(8):
        I(f'v_sub_f32 v{72+r}, v{72+r}, v92')
        bfround(72 + r)
        I(f'v_mul_f32 v{72+r}, v{72+r}, v94')
        bfround(72 + r)
    L('L_a_h1b')
    flags_wait(0, 128, 128)
    stamp(1, 5)
    I('s_mul_i32 s4, s46, 15360')
    I('s_lshl_b32 s5, s45, 2')
    I('s_add_u32 s4, s4, s5')
    I(f's_add_u32 s48, s4, {MOD}')
    for kq in range(1, 4): I(f's_add_u32 s{48+kq}, s48, {kq*30720}')
    I('v_lshlrev_b32 v2, 5, v1')
    I('s_mul_i32 s4, s46, 640')
    I(f's_add_u32 s4, s4, {L_HD}')
    I('v_add_u32 v3, s4, v13')
    setexec(0xffffffff, 0xff)
    lab = spin_begin()
    for kq in range(4):
        I(f'buffer_load_dwordx4 {vr(96+16*kq)}, v2, {S(WS)}, s{48+kq} offen sc1')
        I(f'buffer_load_dwordx4 {vr(100+16*kq)}, v2, {S(WS)}, s{48+kq} offen offset:16 sc1')
        I(f'buffer_load_dwordx4 {vr(104+16*kq)}, v2, {S(WS)}, s{48+kq} offen offset:2560 sc1')
        I(f'buffer_load_dwordx4 {vr(108+16*kq)}, v2, {S(WS)}, s{48+kq} offen offset:2576 sc1')
    I('s_waitcnt vmcnt(0)')
    anysent(range(96, 160), 12)
    spin_end(lab)
    for r in range(16):
        I(f'v_add_f32 v{96+r}, v{96+r}, v{112+r}')
        I(f'v_add_f32 v{128+r}, v{128+r}, v{144+r}')
        I(f'v_add_f32 v{96+r}, v{96+r}, v{128+r}')
        bfround(96 + r)
    for r in range(8):
        I(f'v_add_f32 v{104+r}, 1.0, v{104+r}')
        bfround(104 + r)
        I(f'v_mul_f32 v{104+r}, v{72+r}, v{104+r}')
        bfround(104 + r)
        I(f'v_add_f32 v{104+r}, v{104+r}, v{96+r}')
    for q in range(4):
        I(f'v_cvt_pk_bf16_f32 v{96+q}, v{104+2*q}, v{105+2*q}')
    I('ds_write_b128 v3, v[96:99]')
    fullexec()
    I('s_waitcnt lgkmcnt(0)')
    L('L_a_main')
    barrier()
    stamp(2)
    sk = uid('nofc')
    I('s_cmp_lg_u32 s3, 6')
    skip_if(sk)
    flag_store(2, 8)
    L(sk)
    sk = uid('nop1')
    I('s_cmp_gt_u32 s3, 4')
    skip_if(sk)
    I('v_bfe_u32 v2, v1, 2, 1')
    I('v_mul_u32_u24 v2, 640, v2')
    I('v_lshl_add_u32 v2, v14, 5, v2')
    I('s_lshl_b32 s4, s3, 7')
    I(f's_add_u32 s4, s4, {L_HD}')
    I('v_add_u32 v2, s4, v2')
    for q in range(2):
        I(f'ds_read_b128 {vr(84+4*q)}, v2 offset:{q*16}')
    wuk_dma(5 * WU0, (64 - 5 * WU0 + 4) // 5)
    I('v_lshlrev_b32 v2, 9, v14')
    I('v_lshl_add_u32 v2, v15, 4, v2')
    I('s_lshl_b32 s4, s3, 10')
    I(f's_add_u32 s4, s4, {L_RED}')
    I('v_add_u32 v2, s4, v2')
    I('s_waitcnt lgkmcnt(0)')
    gemv_pair(8, lambda p: 84 + p, 16, [100, 104], lambda blk, t: 20 + 4 * t, [108], [112])
    setexec(0xffffffff)
    I('ds_write_b128 v2, v[108:111]')
    I('ds_write_b128 v2, v[112:115] offset:256')
    fullexec()
    I('s_waitcnt lgkmcnt(0)')
    L(sk)
    barrier()
    sk = uid('nop1r')
    I('s_cmp_lg_u32 s3, 0')
    skip_if(sk)
    I(f'v_add_u32 v2, {L_RED}, v13')
    for w in range(5):
        I(f'ds_read_b128 {vr(164+4*w)}, v2 offset:{w*1024}')
    I('s_lshl_b32 s4, s2, 10')
    I(f's_add_u32 s4, s4, {QP}')
    I('s_waitcnt lgkmcnt(0)')
    for r in range(4):
        I(f'v_add_f32 v{164+r}, v{164+r}, v{168+r}')
        I(f'v_add_f32 v{172+r}, v{172+r}, v{176+r}')
        I(f'v_add_f32 v{164+r}, v{164+r}, v{180+r}')
        I(f'v_add_f32 v{164+r}, v{164+r}, v{172+r}')
        I(f'v_min_u32 v{164+r}, 0xfffffffe, v{164+r}')
    I(f'buffer_store_dwordx4 v[164:167], v13, {S(WS)}, s4 offen sc1')
    stamp(3)
    flags_wait(0, 0, 128)
    sk2 = uid('noep')
    I('s_cmp_lg_u32 s2, 0')
    skip_if(sk2)
    I('v_mov_b32 v10, s96')
    I('v_mov_b32 v11, s97')
    I('v_mov_b32 v12, 0')
    setexec(1)
    I(f'buffer_store_dwordx2 v[10:11], v12, {S(WS)}, 0 offen sc1')
    fullexec()
    L(sk2)
    I('s_xor_b32 s4, s2, 1')
    I('s_lshl_b32 s4, s4, 10')
    I(f's_add_u32 s4, s4, {QP}')
    lab = spin_begin()
    I(f'buffer_load_dwordx4 v[168:171], v13, {S(WS)}, s4 offen sc1')
    I('s_waitcnt vmcnt(0)')
    anysent(range(168, 172), 2)
    spin_end(lab)
    for r in range(4):
        I(f'v_add_f32 v{168+r}, v{168+r}, v{164+r}')
    I('v_lshrrev_b32 v2, 1, v14')
    I('v_lshlrev_b32 v2, 8, v2')
    I('v_lshl_add_u32 v2, v15, 4, v2')
    I('v_and_b32 v3, 1, v14')
    I('v_lshl_add_u32 v2, v3, 1, v2')
    I(f'v_add_u32 v2, {L_QT2}, v2')
    for r in range(4):
        I(f'v_cvt_pk_bf16_f32 v{168+r}, v{168+r}, v{168+r}')
        I(f'ds_write_b16 v2, v{168+r} offset:{4*r}')
    L(sk)
    sk = uid('w14')
    I('s_cmp_gt_u32 s3, 4')
    skip_if(sk)
    I('s_waitcnt vmcnt(0)')
    L(sk)
    I('s_waitcnt lgkmcnt(0)')
    barrier()
    stamp(4)
    I('v_and_b32 v2, 1, v15')
    I('v_lshlrev_b32 v2, 8, v2')
    I('v_lshl_add_u32 v2, v14, 4, v2')
    I(f'v_add_u32 v2, {L_QT2}, v2')
    for t in range(4):
        I(f'ds_read_b128 {vr(164+4*t)}, v2 offset:{t*64}')
    I('v_lshrrev_b32 v2, 2, v15')
    I('v_mul_u32_u24 v2, 1040, v2')
    I('v_and_b32 v3, 3, v15')
    I('v_lshl_add_u32 v2, v3, 8, v2')
    I('v_lshl_add_u32 v2, v14, 4, v2')
    I('s_mul_i32 s4, s3, 8320')
    I(f's_add_u32 s4, s4, {L_WU}')
    I('v_add_u32 v2, s4, v2')
    for t in range(4):
        for n in range(2):
            I(f'ds_read_b128 {vr(20+16*n+4*t)}, v2 offset:{n*4160 + t*64}')
    I('v_lshlrev_b32 v2, 15, v15')
    I('v_lshl_add_u32 v2, v14, 3, v2')
    I('s_lshl_b32 s4, s2, 9')
    I('s_lshl_b32 s5, s3, 6')
    I('s_add_u32 s4, s4, s5')
    I(f's_add_u32 s4, s4, {QA}')
    I('s_mov_b32 s5, 0x3e0293ee')
    for t in range(4):
        I(f's_waitcnt lgkmcnt({6-2*t})')
        for n in range(2):
            c = '0' if t == 0 else vr(180 + 4 * n)
            I(f'v_mfma_f32_16x16x32_bf16 {vr(180+4*n)}, {vr(20+16*n+4*t)}, {vr(164+4*t)}, {c}')
    nop(9)
    for r in range(8): I(f'v_mul_f32 v{180+r}, s5, v{180+r}')
    for q in range(4):
        I(f'v_cvt_pk_bf16_f32 v{188+q}, v{180+2*q}, v{181+2*q}')
        I(f'v_min_u32 v{188+q}, 0xfffffffe, v{188+q}')
    setexec(0x00030003, 0x00030003)
    I(f'buffer_store_dwordx2 v[188:189], v2, {S(WS)}, s4 offen sc1')
    I(f'buffer_store_dwordx2 v[190:191], v2, {S(WS)}, s4 offen offset:32 sc1')
    fullexec()
    stamp(5)
    role_end('L_a_w7')

def role_P3():
    L('L_p3')
    CKV = 12
    srd(CKV, 'ckv')
    I('s_sub_u32 s40, s2, 64')
    I('s_lshr_b32 s42, s40, 5')
    I('s_and_b32 s43, s40, 31')
    sk = uid('nofa')
    I('s_cmp_lg_u32 s3, 7')
    I(f's_cbranch_scc1 {sk}')
    flag_store(0, 8)
    L(sk)
    tag_compute()
    if P3GATE:
        flags_wait(2, 0, 64, 4)
    I('s_lshl_b32 s4, s40, 17')
    I('s_lshl_b32 s5, s3, 14')
    I('s_add_u32 s4, s4, s5')
    I(f's_mul_i32 s5, s3, {16*CKS}')
    for r in range(16):
        I('s_mov_b32 m0, s5')
        nop(1)
        I(f'buffer_load_dwordx4 v13, {S(CKV)}, s4 offen nt lds')
        if r < 15:
            I('s_add_u32 s4, s4, 1024')
            I(f's_add_u32 s5, s5, {CKS}')
    if DRY:
        I('s_cmp_lg_u32 s3, 7')
        I('s_cbranch_scc1 L_p3_real')
        enter_dry('L_p3_main')
    L('L_p3_real')
    I('s_waitcnt vmcnt(0)')
    barrier()
    L('L_p3_main')
    stamp(1)
    I(f'v_mul_u32_u24 v2, {CKS}, v15')
    I('v_lshl_add_u32 v2, v14, 4, v2')
    I(f's_mul_i32 s4, s3, {16*CKS}')
    I('v_add_u32 v2, s4, v2')
    for t in range(16):
        I(f'ds_read_b128 {vr(20+4*t)}, v2 offset:{t*64}')
    I('v_lshrrev_b32 v2, 2, v15')
    I('v_lshl_add_u32 v2, v14, 3, v2')
    I(f'v_mul_u32_u24 v2, {CKS}, v2')
    I('v_and_b32 v3, 3, v15')
    I('v_lshl_add_u32 v2, v3, 4, v2')
    I('s_lshl_b32 s4, s3, 7')
    I('v_add_u32 v2, s4, v2')
    I(f'v_add_u32 v3, {64*CKS}, v2')
    for n in range(4):
        for t in range(4):
            base = 84 + 16 * n + 4 * t
            ad = 'v2' if t < 2 else 'v3'
            off = (t % 2) * 32 * CKS + (n >> 1) * 64 + (n & 1) * 8
            I(f'ds_read_b64_tr_b16 {vr(base,2)}, {ad} offset:{off}')
            I(f'ds_read_b64_tr_b16 {vr(base+2,2)}, {ad} offset:{off + 4*CKS}')
    for r in range(4): I(f'v_mov_b32 v{16+r}, 0x3f803f80')
    I('s_waitcnt lgkmcnt(0)')
    sk = uid('noh2l')
    I('s_cmp_lg_u32 s3, 0')
    skip_if(sk)
    flags_wait(0, 0, 64)
    flags_wait(1, 192, 64)
    I('v_lshlrev_b32 v2, 9, v1')
    I('s_lshl_b32 s4, s42, 15')
    I(f's_add_u32 s4, s4, {QA + 508}')
    light_poll(lambda r: I(f'buffer_load_dword v{r}, v2, {S(WS)}, s4 offen sc1'), 1, 4, 24 * THR)
    L(sk)
    barrier()
    stamp(6)
    tick(0)
    I('s_lshl_b32 s4, s42, 15')
    I('s_lshl_b32 s5, s3, 12')
    I('s_add_u32 s4, s4, s5')
    I(f's_add_u32 s4, s4, {QA}')
    lab = spin_begin()
    for k in range(4):
        I(f'buffer_load_dwordx4 {vr(148+4*k)}, v13, {S(WS)}, s4 offen offset:{k*1024} sc1')
    I('s_waitcnt vmcnt(0)')
    anysent(range(148, 164), 2)
    spin_end(lab)
    tick(1)
    I('s_lshl_b32 s4, s3, 12')
    I('s_and_b32 s5, s3, 3')
    I('s_lshl_b32 s5, s5, 2')
    for k in range(4):
        I(f's_add_u32 s6, s5, {k}')
        I('v_xor_b32 v2, s6, v1')
        I('v_lshlrev_b32 v2, 4, v2')
        I('v_add_u32 v2, s4, v2')
        I(f'ds_write_b128 v2, {vr(148+4*k)} offset:{L_QT + k*1024}')
    I('v_and_b32 v2, 3, v15')
    I('v_xor_b32 v2, v2, v14')
    I('v_and_b32 v3, 12, v15')
    I('v_or_b32 v2, v2, v3')
    for q in range(4):
        I(f'v_xor_b32 v3, {4*q}, v2')
        I('v_lshlrev_b32 v3, 4, v3')
        I(f'v_lshl_add_u32 v{8+q}, v15, 10, v3')
    I('v_lshlrev_b32 v4, 5, v15')
    I(f'v_add_u32 v4, {L_MX}, v4')
    I('s_lshl_b32 s4, s3, 2')
    I('v_add_u32 v3, s4, v4')
    I('s_waitcnt lgkmcnt(0)')
    tick(2)
    barrier()
    tick(3)
    stamp(7)
    for t in range(16):
        I(f'ds_read_b128 {vr(148+4*t)}, v{8+t%4} offset:{L_QT + (t//4)*256}')
    for t in range(16):
        I(f's_waitcnt lgkmcnt({15 if t else 15})') if False else I('s_waitcnt lgkmcnt(15)')
        c = '0' if t == 0 else 'v[212:215]'
        I(f'v_mfma_f32_16x16x32_bf16 v[212:215], {vr(20+4*t)}, {vr(148+4*t)}, {c}')
        I(f'ds_read_b128 {vr(148+4*t)}, v{8+t%4} offset:{L_QT + 16384 + (t//4)*256}')
    for t in range(16):
        I(f's_waitcnt lgkmcnt({15-t})')
        c = '0' if t == 0 else 'v[216:219]'
        I(f'v_mfma_f32_16x16x32_bf16 v[216:219], {vr(20+4*t)}, {vr(148+4*t)}, {c}')
    tick(4)
    I('v_max_f32 v220, v212, v213')
    I('v_max3_f32 v220, v220, v214, v215')
    allreduce('v_max_f32', 220, 222, skip_row=True)
    I('v_max_f32 v221, v216, v217')
    I('v_max3_f32 v221, v221, v218, v219')
    allreduce('v_max_f32', 221, 222, skip_row=True)
    I('ds_write_b32 v3, v220')
    I('ds_write_b32 v3, v221 offset:512')
    I(f'v_mul_u32_u24 v5, {PTS}, v15')
    I(f'v_add_u32 v5, {L_PT}, v5')
    I('v_lshl_add_u32 v3, v14, 3, v5')
    I('s_lshl_b32 s4, s3, 5')
    I('v_add_u32 v3, s4, v3')
    I('v_lshl_add_u32 v5, v14, 4, v5')
    I('s_waitcnt lgkmcnt(0)')
    tick(5)
    barrier()
    tick(6)
    for ht in range(2):
        I(f'ds_read_b128 {vr(148+8*ht)}, v4 offset:{ht*512}')
        I(f'ds_read_b128 {vr(152+8*ht)}, v4 offset:{ht*512+16}')
    I('s_waitcnt lgkmcnt(0)')
    for ht in range(2):
        q = 148 + 8 * ht
        I(f'v_max3_f32 v{220+ht}, v{q}, v{q+1}, v{q+2}')
        I(f'v_max3_f32 v{220+ht}, v{220+ht}, v{q+3}, v{q+4}')
        I(f'v_max3_f32 v{220+ht}, v{220+ht}, v{q+5}, v{q+6}')
        I(f'v_max_f32 v{220+ht}, v{220+ht}, v{q+7}')
    for ht in range(2):
        for r in range(4):
            I(f'v_sub_f32 v{212+4*ht+r}, v{212+4*ht+r}, v{220+ht}')
    for r in range(8):
        I(f'v_exp_f32 v{212+r}, v{212+r}')
    nop(1)
    for q in range(4):
        I(f'v_cvt_pk_bf16_f32 v{224+q}, v{212+2*q}, v{213+2*q}')
    I('ds_write_b64 v3, v[224:225]')
    I(f'ds_write_b64 v3, v[226:227] offset:{16*PTS}')
    I('v_lshlrev_b32 v2, 15, v15')
    I('v_lshl_add_u32 v2, v14, 4, v2')
    I('s_lshl_b32 s4, s42, 20')
    I('s_lshl_b32 s5, s43, 10')
    I('s_add_u32 s4, s4, s5')
    I('s_lshl_b32 s5, s3, 7')
    I('s_add_u32 s4, s4, s5')
    I(f's_add_u32 s4, s4, {OP}')
    I('s_add_u32 s5, s4, 0x80000')
    I('s_waitcnt lgkmcnt(0)')
    tick(7)
    barrier()
    tick(8)
    for ht in range(2):
        for t in range(4):
            I(f'ds_read_b128 {vr(148+16*ht+4*t)}, v5 offset:{ht*16*PTS + t*64}')
    for ht in range(2):
        for t in range(4):
            I(f's_waitcnt lgkmcnt({7-4*ht-t})')
            for n in range(4):
                acc = 180 + 16 * ht + 4 * n
                c = '0' if t == 0 else vr(acc)
                I(f'v_mfma_f32_16x16x32_bf16 {vr(acc)}, {vr(84+16*n+4*t)}, {vr(148+16*ht+4*t)}, {c}')
    tick(9)
    nop(1)
    for ht in range(2):
        for n in range(4):
            I(f'v_cvt_pk_bf16_f32 v{20+8*ht+2*n}, v{180+16*ht+4*n}, v{181+16*ht+4*n}')
            I(f'v_cvt_pk_bf16_f32 v{21+8*ht+2*n}, v{182+16*ht+4*n}, v{183+16*ht+4*n}')
        for r in range(8): I(f'v_min_u32 v{20+8*ht+r}, 0xfffffffe, v{20+8*ht+r}')
        so = 's4' if ht == 0 else 's5'
        I(f'buffer_store_dwordx4 {vr(20+8*ht)}, v2, {S(WS)}, {so} offen sc1')
        I(f'buffer_store_dwordx4 {vr(24+8*ht)}, v2, {S(WS)}, {so} offen offset:64 sc1')
    tick(10)
    I('s_cmp_gt_u32 s3, 1')
    skip_if('L_p3_done')
    for ht in range(2):
        for t in range(4):
            acc = 36 + 4 * ht
            c = '0' if t == 0 else vr(acc)
            I(f'v_mfma_f32_16x16x32_bf16 {vr(acc)}, v[16:19], {vr(148+16*ht+4*t)}, {c}')
    I('v_lshlrev_b32 v3, 8, v1')
    I('s_lshl_b32 s4, s42, 13')
    I('s_lshl_b32 s5, s3, 12')
    I('s_add_u32 s4, s4, s5')
    I('s_lshl_b32 s5, s43, 3')
    I('s_add_u32 s4, s4, s5')
    I(f's_add_u32 s4, s4, {ML}')
    I('s_cmp_eq_u32 s3, 0')
    I('s_cselect_b64 vcc, -1, 0')
    nop(2)
    I('v_cndmask_b32 v44, v221, v220, vcc')
    I('v_cndmask_b32 v45, v40, v36, vcc')
    I('v_min_u32 v44, 0xfffffffe, v44')
    I('v_min_u32 v45, 0xfffffffe, v45')
    setexec(0xffff)
    I(f'buffer_store_dwordx2 v[44:45], v3, {S(WS)}, s4 offen sc1')
    fullexec()
    L('L_p3_done')
    tick(11)
    tick_dump(12)
    stamp(8)
    role_end('L_p3_real')

def role_DE_common():
    L('L_de')
    C_, WM = 12, 16
    srd(C_, 'c'); srd(WM, 'wmod')
    I('s_sub_u32 s40, s2, 128')
    I('v_lshrrev_b32 v14, 4, v1')
    I('v_and_b32 v15, 15, v1')
    I('v_lshlrev_b32 v13, 4, v1')
    if XSPLIT:
        I('s_and_b32 s4, s40, 63')
        I('s_and_b32 s5, s4, 3')
        I('s_lshr_b32 s6, s4, 3')
        I('s_lshl_b32 s6, s6, 2')
        I('s_add_u32 s42, s6, s5')
        I('s_bfe_u32 s43, s4, 0x10002')
        I('s_mov_b32 s47, 0')
        I('s_cmp_lt_u32 s40, 64')
        I('s_cbranch_scc1 L_dec_done')
        I('s_cmp_ge_u32 s42, 27')
        I('s_cselect_b32 s47, 1, 0')
    else:
        I('s_cmp_ge_u32 s40, 118')
        I('s_cselect_b32 s47, 1, 0')
        I('s_cmp_ge_u32 s40, 64')
        I('s_cbranch_scc1 L_dec_e')
        I('s_lshr_b32 s4, s40, 4')
        I('s_lshl_b32 s4, s4, 3')
        I('s_and_b32 s5, s40, 7')
        I('s_add_u32 s42, s4, s5')
        I('s_bfe_u32 s43, s40, 0x10003')
        I('s_branch L_dec_done')
        L('L_dec_e')
        I('s_sub_u32 s6, s40, 64')
        I('s_lshr_b32 s4, s6, 4')
        I('s_lshl_b32 s4, s4, 3')
        I('s_and_b32 s5, s6, 7')
        I('s_add_u32 s42, s4, s5')
        I('s_bfe_u32 s43, s6, 0x10003')
        I('s_cmp_lt_u32 s6, 48')
        I('s_cbranch_scc1 L_dec_done')
        I('s_sub_u32 s6, s6, 48')
        I('s_cmp_ge_u32 s6, 3')
        I('s_cselect_b32 s43, 1, 0')
        I('s_mul_i32 s4, s43, 3')
        I('s_sub_u32 s6, s6, s4')
        I('s_add_u32 s42, s6, 24')
    L('L_dec_done')
    sk = uid('noclr')
    I('s_cmp_lg_u32 s3, 7')
    I(f's_cbranch_scc1 {sk}')
    for r in range(4, 8): I(f'v_mov_b32 v{r}, -1')
    I('v_lshrrev_b32 v2, 5, v1')
    I('v_lshlrev_b32 v2, 13, v2')
    I('v_bfe_u32 v3, v1, 4, 1')
    I('v_mul_u32_u24 v3, 15360, v3')
    I('v_add_u32 v2, v2, v3')
    I('v_lshl_add_u32 v2, v15, 4, v2')
    I('s_and_b32 s4, s40, 3')
    I('s_mul_i32 s4, s4, 30720')
    I('s_lshr_b32 s5, s40, 2')
    I('s_lshl_b32 s5, s5, 8')
    I('s_add_u32 s4, s4, s5')
    I(f's_add_u32 s4, s4, {MOD}')
    I('s_cmp_lt_u32 s40, 112')
    I('s_cselect_b32 exec_hi, -1, 0')
    I(f'buffer_store_dwordx4 v[4:7], v2, {S(WS)}, s4 offen sc1')
    fullexec()
    I('s_cmp_ge_u32 s40, 64')
    I('s_cbranch_scc1 L_clr_e')
    I('s_lshl_b32 s4, s43, 5')
    I('s_add_u32 s4, s4, s42')
    I('s_mul_i32 s4, s4, 1280')
    I(f's_add_u32 s4, s4, {AP}')
    I(f'buffer_store_dwordx4 v[4:7], v13, {S(WS)}, s4 offen sc1')
    setexec(0xffff)
    I(f'buffer_store_dwordx4 v[4:7], v13, {S(WS)}, s4 offen offset:1024 sc1')
    fullexec()
    I('s_branch L_clr_done')
    L('L_clr_e')
    I('s_cmp_lg_u32 s47, 0')
    I('s_cbranch_scc1 L_clr_done')
    I('s_mul_i32 s4, s43, 27')
    I('s_add_u32 s4, s4, s42')
    I('s_mul_i32 s4, s4, 2560')
    I(f's_add_u32 s4, s4, {FP}')
    I(f'buffer_store_dwordx4 v[4:7], v13, {S(WS)}, s4 offen sc1')
    I(f'buffer_store_dwordx4 v[4:7], v13, {S(WS)}, s4 offen offset:1024 sc1')
    setexec(0xffffffff)
    I(f'buffer_store_dwordx4 v[4:7], v13, {S(WS)}, s4 offen offset:2048 sc1')
    fullexec()
    L('L_clr_done')
    flag_store(0, 8)
    stamp(9, 7)
    L(sk)
    I('s_lshl_b32 s44, s3, 7')
    I('s_add_u32 s44, s44, s40')
    I('s_and_b32 s45, s44, 3')
    I('s_lshr_b32 s46, s44, 2')
    def unit_dma(wave):
        sk = uid('nodma')
        I(f's_cmp_lg_u32 s3, {wave}')
        I(f's_cbranch_scc1 {sk}')
        I('s_cmp_ge_u32 s44, 240')
        I(f's_cbranch_scc1 {sk}')
        I('v_lshrrev_b32 v2, 3, v1')
        I('v_and_b32 v3, 7, v1')
        I('v_xor_b32 v3, v3, v2')
        I('v_mul_u32_u24 v2, 7680, v2')
        I('v_lshl_add_u32 v2, v3, 4, v2')
        I('s_mul_i32 s4, s45, 1228800')
        I('s_lshl_b32 s5, s46, 7')
        I('s_add_u32 s4, s4, s5')
        I(f's_mul_i32 s5, s3, {L_WT1}')
        for q in range(20):
            I('s_mov_b32 m0, s5')
            nop(1)
            I(f'buffer_load_dwordx4 v2, {S(WM)}, s4 offen nt lds')
            if q < 19:
                I('s_add_u32 s4, s4, 61440')
                I('s_add_u32 s5, s5, 1024')
        L(sk)
    unit_dma(0)
    sk = uid('nost')
    I('s_sub_u32 s4, s3, 2')
    I('s_cmp_gt_u32 s4, 4')
    I(f's_cbranch_scc1 {sk}')
    I('v_subrev_u32 v12, 128, v0')
    I('v_lshlrev_b32 v2, 3, v12')
    I(f'buffer_load_dwordx2 v[4:5], v2, {S(C_)}, 0 offen')
    I('v_cmp_le_u32 vcc, 160, v12')
    nop(2)
    I('v_cndmask_b32 v6, 0, 1, vcc')
    I('v_mul_u32_u24 v7, 160, v6')
    I('v_sub_u32 v7, v12, v7')
    I('v_lshrrev_b32 v8, 3, v7')
    I('v_and_b32 v9, 3, v7')
    I('v_bfe_u32 v10, v7, 2, 1')
    I('v_mul_u32_u24 v6, 1280, v6')
    I('v_lshl_add_u32 v6, v8, 6, v6')
    I('v_lshl_add_u32 v6, v9, 4, v6')
    I('v_lshl_add_u32 v6, v10, 3, v6')
    I(f'v_add_u32 v6, {L_ST}, v6')
    if DRY:
        I('s_cmp_lg_u32 s3, 6')
        I('s_cbranch_scc1 L_silu')
        enter_dry('L_p0c')
    L('L_silu')
    I('s_waitcnt vmcnt(0)')
    I('v_lshlrev_b32 v8, 16, v4')
    I('v_and_b32 v9, 0xffff0000, v4')
    I('v_lshlrev_b32 v10, 16, v5')
    I('v_and_b32 v11, 0xffff0000, v5')
    for r in range(4):
        I(f'v_mul_f32 v{16+r}, 0xbfb8aa3b, v{8+r}')
        I(f'v_exp_f32 v{16+r}, v{16+r}')
        nop(1)
        I(f'v_add_f32 v{16+r}, 1.0, v{16+r}')
        I(f'v_rcp_f32 v{16+r}, v{16+r}')
        nop(1)
        I(f'v_mul_f32 v{16+r}, v{8+r}, v{16+r}')
    I('v_cvt_pk_bf16_f32 v4, v16, v17')
    I('v_cvt_pk_bf16_f32 v5, v18, v19')
    I('ds_write_b64 v6, v[4:5]')
    I('s_waitcnt lgkmcnt(0)')
    L(sk)
    sk = uid('nogi')
    I('s_cmp_lg_u32 s3, 2')
    I(f's_cbranch_scc1 {sk}')
    I(f'v_mov_b32 v4, {L_FC}')
    I('v_mov_b32 v5, 0')
    I('ds_write_b32 v4, v5')
    I('s_waitcnt lgkmcnt(0)')
    L(sk)
    barrier()
    tag_compute()
    sk = uid('noopc')
    I('s_cmp_lt_u32 s40, 64')
    I(f's_cbranch_scc1 {sk}')
    I('s_cmp_lg_u32 s3, 3')
    I(f's_cbranch_scc1 {sk}')
    for r in range(4, 8): I(f'v_mov_b32 v{r}, -1')
    I('s_sub_u32 s6, s40, 64')
    I('s_lshl_b32 s7, s6, 15')
    I(f's_add_u32 s7, s7, {OP}')
    for i in range(32):
        I(f'buffer_store_dwordx4 v[4:7], v13, {S(WS)}, s7 offen offset:{(i%4)*1024} sc1')
        if i % 4 == 3 and i < 31: I('s_add_u32 s7, s7, 4096')
    I('s_lshl_b32 s7, s6, 8')
    I(f's_add_u32 s7, s7, {ML}')
    setexec(0xffff)
    I(f'buffer_store_dwordx4 v[4:7], v13, {S(WS)}, s7 offen sc1')
    fullexec()
    flag_store(1, 8)
    stamp(10, 3)
    L(sk)
    sk = uid('now2')
    I('s_cmp_lg_u32 s3, 2')
    I(f's_cbranch_scc1 {sk}')
    flags_wait(2, 0, 64, 2)
    I(f'v_mov_b32 v4, {L_FC}')
    I('v_mov_b32 v5, 1')
    I('ds_write_b32 v4, v5')
    I('s_waitcnt lgkmcnt(0)')
    L(sk)
    if W1GATE:
        sk = uid('now1')
        I('s_cmp_lg_u32 s3, 1')
        I(f's_cbranch_scc1 {sk}')
        lds_gate()
        L(sk)
    unit_dma(1)
    sk = uid('nop0')
    I('s_cmp_gt_u32 s3, 1')
    I(f's_cbranch_scc1 {sk}')
    I('s_cmp_ge_u32 s44, 240')
    I(f's_cbranch_scc1 {sk}')
    L('L_p0c')
    I('v_and_b32 v2, 1, v15')
    I('v_mul_u32_u24 v2, 1280, v2')
    I('v_lshl_add_u32 v2, v14, 4, v2')
    I('s_mul_i32 s4, s45, 320')
    I(f's_add_u32 s4, s4, {L_ST}')
    I('v_add_u32 v2, s4, v2')
    for t in range(5):
        I(f'ds_read_b128 {vr(20+4*t)}, v2 offset:{t*64}')
    I('v_lshrrev_b32 v2, 2, v15')
    I('v_lshl_add_u32 v2, v14, 2, v2')
    I('v_and_b32 v3, 7, v2')
    I('v_bfe_u32 v4, v15, 1, 1')
    I('v_xor_b32 v3, v3, v4')
    I('v_lshlrev_b32 v2, 7, v2')
    I('v_and_b32 v4, 1, v15')
    I('v_lshl_add_u32 v2, v4, 3, v2')
    I(f's_mul_i32 s5, s3, {L_WT1}')
    I('v_add_u32 v2, s5, v2')
    for n in range(4):
        I(f'v_xor_b32 v4, {2*n}, v3')
        I(f'v_lshl_add_u32 v{8+n}, v4, 4, v2')
    I('s_waitcnt vmcnt(0)')
    for n in range(4):
        for t in range(5):
            I(f'ds_read_b64_tr_b16 {vr(40+20*n+4*t,2)}, v{8+n} offset:{t*4096}')
            I(f'ds_read_b64_tr_b16 {vr(42+20*n+4*t,2)}, v{8+n} offset:{t*4096+2048}')
    I('s_waitcnt lgkmcnt(0)')
    for t in range(5):
        for n in range(4):
            c = '0' if t == 0 else vr(120 + 4 * n)
            I(f'v_mfma_f32_16x16x32_bf16 {vr(120+4*n)}, {vr(40+20*n+4*t)}, {vr(20+4*t)}, {c}')
    nop(9)
    for r in range(16): I(f'v_min_u32 v{120+r}, 0xfffffffe, v{120+r}')
    I('v_mul_u32_u24 v2, 15360, v15')
    I('v_lshl_add_u32 v2, v14, 4, v2')
    I('s_mul_i32 s4, s45, 30720')
    I('s_lshl_b32 s5, s46, 8')
    I('s_add_u32 s4, s4, s5')
    I(f's_add_u32 s4, s4, {MOD}')
    setexec(0x00030003, 0x00030003)
    for n in range(4):
        I(f'buffer_store_dwordx4 {vr(120+4*n)}, v2, {S(WS)}, s4 offen offset:{n*64} sc1')
    fullexec()
    if DRY:
        I('s_cmp_lg_u32 s100, 0')
        I(f's_cbranch_scc1 {sk}')
        I('s_mov_b64 s[100:101], -1')
        I('s_mov_b64 exec, -1')
        I('s_branch L_silu')
    L(sk)
    stamp(1)
    I('s_cmp_ge_u32 s40, 64')
    I('s_cbranch_scc1 L_role_e')

def role_D():
    WUV, WO = 20, 24
    srd(WUV, 'wuv'); srd(WO, 'wo')
    make_masks(16, True)
    make_masks4(244, 1)
    I('v_lshlrev_b32 v2, 17, v14')
    I('v_lshl_add_u32 v2, v15, 4, v2')
    I('s_lshl_b32 s4, s3, 19')
    I('s_lshl_b32 s5, s42, 8')
    I('s_add_u32 s4, s4, s5')
    for t in range(16):
        I(f'buffer_load_dwordx4 {vr(20+4*t)}, v2, {S(WUV)}, s4 offen nt')
        if t < 15: I('s_add_u32 s4, s4, 8192')
    I('s_mul_i32 s5, s42, 163840')
    I('s_cmp_gt_u32 s3, 3')
    I('s_cbranch_scc1 L_d_hi')
    I('v_mul_u32_u24 v3, 40960, v14')
    I('v_lshl_add_u32 v3, v15, 4, v3')
    I('s_lshl_b32 s6, s3, 8')
    I('s_add_u32 s5, s5, s6')
    for t in range(32):
        I(f'buffer_load_dwordx4 {vr(84+4*t)}, v3, {S(WO)}, s5 offen offset:{(t%3)*1280} nt')
        if t % 3 == 2: I('s_add_u32 s5, s5, 3840')
    I('s_waitcnt vmcnt(0)')
    pairperm([(20 + 8 * p, 24 + 8 * p) for p in range(24)], 6)
    I('s_branch L_d_main')
    L('L_d_hi')
    I('v_mul_u32_u24 v3, 10240, v14')
    I('v_lshl_add_u32 v3, v15, 4, v3')
    I('s_sub_u32 s6, s3, 4')
    I('s_mul_i32 s6, s6, 40960')
    I('s_add_u32 s5, s5, s6')
    I('s_add_u32 s5, s5, 1024')
    for t in range(8):
        I(f'buffer_load_dwordx4 {vr(84+4*t)}, v3, {S(WO)}, s5 offen offset:{(t%3)*1280} nt')
        if t % 3 == 2: I('s_add_u32 s5, s5, 3840')
    I('s_waitcnt vmcnt(0)')
    pairperm([(20 + 8 * p, 24 + 8 * p) for p in range(12)], 6)
    L('L_d_main')
    stamp(2)
    I('v_and_b32 v2, 31, v1')
    I('v_lshlrev_b32 v2, 3, v2')
    I('s_lshl_b32 s4, s43, 5')
    I('s_add_u32 s4, s4, s42')
    I('s_lshl_b32 s5, s4, 8')
    I(f's_add_u32 s5, s5, {ML}')
    sk = uid('nolp')
    I('s_cmp_lg_u32 s3, 4')
    I(f's_cbranch_scc1 {sk}')
    I('v_mov_b32 v12, v2')
    flags_wait(1, 192, 64)
    I('v_mov_b32 v2, v12')
    light_poll(lambda r: I(f'buffer_load_dwordx2 v[{r}:{r+1}], v2, {S(WS)}, s5 offen sc1'), 2, 120, 24 * THR)
    L(sk)
    barrier()
    stamp(6)
    sk = uid('noz')
    I('s_cmp_lt_u32 s3, 4')
    I(f's_cbranch_scc1 {sk}')
    I('v_lshlrev_b32 v3, 13, v14')
    I('v_lshl_add_u32 v3, v15, 4, v3')
    I('s_lshl_b32 s6, s4, 15')
    I('s_sub_u32 s46, s3, 4')
    I('s_lshl_b32 s7, s46, 8')
    I('s_add_u32 s6, s6, s7')
    I(f's_add_u32 s48, s6, {OP}')
    I('s_add_u32 s49, s48, 4096')
    lab = spin_begin()
    I(f'buffer_load_dwordx2 v[4:5], v2, {S(WS)}, s5 offen sc1')
    for t in range(8):
        I(f'buffer_load_dwordx4 {vr(164+4*t)}, v3, {S(WS)}, s{48+t//4} offen offset:{(t%4)*1024} sc1')
    I('s_waitcnt vmcnt(0)')
    anysent([4, 5] + list(range(164, 196)), 6)
    spin_end(lab)
    stamp(3, 4)
    I('v_mov_b32 v6, v4')
    allreduce('v_max_f32', 6, 7, half=True)
    I('v_sub_f32 v4, v4, v6')
    I('v_exp_f32 v4, v4')
    I('v_lshlrev_b32 v2, 2, v1')
    I(f's_add_u32 s7, s7, {L_D_WD}')
    I('v_add_u32 v2, s7, v2')
    I('v_cvt_pk_bf16_f32 v8, v4, v4')
    I('ds_write_b32 v2, v8')
    I('v_and_b32 v4, 0xffff0000, v8')
    I('v_mul_f32 v5, v4, v5')
    I('v_lshlrev_b32 v2, 5, v14')
    I('v_add_u32 v2, s7, v2')
    I('s_waitcnt lgkmcnt(0)')
    for q in range(2):
        I(f'ds_read_b128 {vr(196+4*q)}, v2 offset:{q*16}')
    allreduce('v_add_f32', 5, 7, half=True)
    I('v_rcp_f32 v5, v5')
    I('v_lshlrev_b32 v2, 4, v15')
    I('v_lshl_add_u32 v2, v14, 3, v2')
    I('s_lshl_b32 s4, s46, 8')
    I(f's_add_u32 s4, s4, {L_D_CD}')
    I('v_add_u32 v2, s4, v2')
    I('s_waitcnt lgkmcnt(0)')
    gemv_diag(8, lambda t: 196 + t, 16, [204, 208], lambda blk, t: 164 + 4 * t, [8])
    for r in range(4):
        I(f'v_mul_f32 v{8+r}, v{8+r}, v5')
    I('v_cvt_pk_bf16_f32 v8, v8, v9')
    I('v_cvt_pk_bf16_f32 v9, v10, v11')
    setexec(0xffffffff)
    I('ds_write_b64 v2, v[8:9]')
    fullexec()
    L(sk)
    I('v_lshlrev_b32 v2, 5, v14')
    I('s_lshl_b32 s4, s3, 7')
    I(f's_add_u32 s4, s4, {L_D_CD}')
    I('v_add_u32 v2, s4, v2')
    I('s_lshl_b32 s4, s3, 9')
    I(f's_add_u32 s4, s4, {L_D_RED}')
    I('v_add_u32 v3, s4, v13')
    I('s_waitcnt lgkmcnt(0)')
    barrier()
    stamp(4)
    for q in range(2):
        I(f'ds_read_b128 {vr(212+4*q)}, v2 offset:{q*16}')
    I('s_waitcnt lgkmcnt(0)')
    gemv_pair(8, lambda p: 212 + p, 244, [228, 232], lambda blk, t: 20 + 4 * t, [236], [240])
    setexec(0xffff)
    I('ds_write_b128 v3, v[236:239]')
    I('ds_write_b128 v3, v[240:243] offset:256')
    fullexec()
    I('s_waitcnt lgkmcnt(0)')
    barrier()
    sk = uid('nored')
    I('s_cmp_lg_u32 s3, 0')
    I(f's_cbranch_scc1 {sk}')
    I('v_lshlrev_b32 v3, 3, v1')
    I(f'v_add_u32 v3, {L_D_RED}, v3')
    I('v_add_u32 v2, 2048, v3')
    setexec(0xffffffff)
    for w in range(8):
        ad = 'v3' if w < 4 else 'v2'
        I(f'ds_read2_b64 {vr(20+4*w)}, {ad} offset0:{(w%4)*64} offset1:{(w%4)*64+32}')
    I('v_lshlrev_b32 v3, 3, v1')
    I(f'v_add_u32 v3, {L_D_CD}, v3')
    I('s_waitcnt lgkmcnt(0)')
    for st in (1, 2, 4):
        for w in range(0, 8, 2 * st):
            I(f'v_pk_add_f32 {vr(20+4*w,2)}, {vr(20+4*w,2)}, {vr(20+4*(w+st),2)}')
            I(f'v_pk_add_f32 {vr(22+4*w,2)}, {vr(22+4*w,2)}, {vr(22+4*(w+st),2)}')
    I('v_cvt_pk_bf16_f32 v20, v20, v22')
    I('v_cvt_pk_bf16_f32 v21, v21, v23')
    I('ds_write_b64 v3, v[20:21]')
    fullexec()
    I('s_waitcnt lgkmcnt(0)')
    L(sk)
    I('s_lshl_b32 s4, s43, 5')
    I('s_add_u32 s4, s4, s42')
    I('s_mul_i32 s4, s4, 1280')
    I(f's_add_u32 s4, s4, {AP}')
    barrier()
    I('s_cmp_gt_u32 s3, 3')
    I('s_cbranch_scc1 L_d_hi2')
    I('v_lshlrev_b32 v2, 6, v14')
    I(f'v_add_u32 v2, {L_D_CD}, v2')
    for q in range(4):
        I(f'ds_read_b128 {vr(212+4*q)}, v2 offset:{q*16}')
    I('s_lshl_b32 s5, s3, 8')
    I('s_add_u32 s4, s4, s5')
    I('s_waitcnt lgkmcnt(0)')
    gemv_pair(16, lambda p: 212 + p, 244, [228, 232], lambda blk, t: 84 + 4 * t, [236], [240])
    for r in range(4):
        I(f'v_cvt_pk_bf16_f32 v{236+r}, v{236+r}, v{240+r}')
        I(f'v_min_u32 v{236+r}, 0xfffffffe, v{236+r}')
    setexec(0xffff)
    I(f'buffer_store_dwordx4 v[236:239], v13, {S(WS)}, s4 offen sc1')
    fullexec()
    stamp(5)
    barrier()
    I('s_branch L_end')
    L('L_d_hi2')
    I('v_lshlrev_b32 v2, 4, v14')
    I('s_lshl_b32 s5, s46, 6')
    I(f's_add_u32 s5, s5, {L_D_CD}')
    I('v_add_u32 v2, s5, v2')
    I('ds_read_b128 v[212:215], v2')
    I('s_lshl_b32 s5, s46, 9')
    I(f's_add_u32 s5, s5, {L_D_RED}')
    I('v_add_u32 v3, s5, v13')
    I('s_waitcnt lgkmcnt(0)')
    gemv_pair(4, lambda p: 212 + p, 244, [228, 232], lambda blk, t: 84 + 4 * t, [236], [240])
    setexec(0xffff)
    I('ds_write_b128 v3, v[236:239]')
    I('ds_write_b128 v3, v[240:243] offset:256')
    fullexec()
    I('s_waitcnt lgkmcnt(0)')
    barrier()
    I('s_cmp_lg_u32 s3, 4')
    I('s_cbranch_scc1 L_end')
    I(f'v_add_u32 v3, {L_D_RED}, v13')
    setexec(0xffff)
    for w in range(4):
        I(f'ds_read_b128 {vr(20+8*w)}, v3 offset:{w*512}')
        I(f'ds_read_b128 {vr(24+8*w)}, v3 offset:{w*512+256}')
    I('s_waitcnt lgkmcnt(0)')
    for q in range(4):
        I(f'v_pk_add_f32 {vr(20+2*q,2)}, {vr(20+2*q,2)}, {vr(28+2*q,2)}')
        I(f'v_pk_add_f32 {vr(36+2*q,2)}, {vr(36+2*q,2)}, {vr(44+2*q,2)}')
        I(f'v_pk_add_f32 {vr(20+2*q,2)}, {vr(20+2*q,2)}, {vr(36+2*q,2)}')
    for r in range(4):
        I(f'v_cvt_pk_bf16_f32 v{20+r}, v{20+r}, v{24+r}')
        I(f'v_min_u32 v{20+r}, 0xfffffffe, v{20+r}')
    I(f'buffer_store_dwordx4 v[20:23], v13, {S(WS)}, s4 offen offset:1024 sc1')
    fullexec()
    stamp(7, 4)
    I('s_branch L_end')

def role_E():
    L('L_role_e')
    WG, WU, WD, X_, OUT = 20, 24, 28, 32, 36
    srd(WG, 'wg'); srd(WU, 'wu'); srd(WD, 'wd'); srd(X_, 'x'); srd(OUT, 'out')
    make_masks(16, True)
    make_masks4(240, 1)
    L('L_e_init')
    if EGATE: lds_gate()
    I('s_cmp_lg_u32 s47, 0')
    I('s_cbranch_scc1 L_end')
    I('v_mul_u32_u24 v2, 69120, v14')
    I('v_and_b32 v3, 7, v15')
    I('v_lshl_add_u32 v2, v3, 4, v2')
    I('s_mul_i32 s4, s3, 276480')
    I('s_lshl_b32 s5, s42, 7')
    I('s_add_u32 s4, s4, s5')
    I('s_mov_b32 s6, 0x00ff00ff')
    I('s_mov_b32 s7, 0x00ff00ff')
    I('s_mov_b32 s48, 0xff00ff00')
    I('s_mov_b32 s49, 0xff00ff00')
    lds = []
    for t in range(20):
        lds.append(([] if t == 0 else ['s_add_u32 s4, s4, 3456']) + ['s_mov_b64 exec, s[6:7]',
                   f'buffer_load_dwordx4 {vr(20+4*t)}, v2, {S(WG)}, s4 offen nt'])
        lds.append(['s_mov_b64 exec, s[48:49]', f'buffer_load_dwordx4 {vr(20+4*t)}, v2, {S(WU)}, s4 offen nt'])
    paced(lds, 2 * EPACE)
    fullexec()
    I('s_mul_i32 s4, s42, 81920')
    I('s_cmp_gt_u32 s3, 3')
    I('s_cbranch_scc1 L_e_hi')
    I('v_mul_u32_u24 v2, 20480, v14')
    I('v_lshl_add_u32 v2, v15, 4, v2')
    I('s_lshl_b32 s5, s3, 8')
    I('s_add_u32 s4, s4, s5')
    for t in range(16):
        I(f'buffer_load_dwordx4 {vr(100+4*t)}, v2, {S(WD)}, s4 offen nt')
        if t < 15: I('s_add_u32 s4, s4, 1280')
    I('s_waitcnt vmcnt(0)')
    pairperm([(20 + 8 * p, 24 + 8 * p) for p in range(18)], 6)
    I('s_branch L_e_main')
    L('L_e_hi')
    I('v_mul_u32_u24 v2, 5120, v14')
    I('v_lshl_add_u32 v2, v15, 4, v2')
    I('s_sub_u32 s5, s3, 4')
    I('s_mul_i32 s5, s5, 20480')
    I('s_add_u32 s4, s4, s5')
    I('s_add_u32 s4, s4, 1024')
    for t in range(4):
        I(f'buffer_load_dwordx4 {vr(100+4*t)}, v2, {S(WD)}, s4 offen nt')
        if t < 3: I('s_add_u32 s4, s4, 1280')
    I('s_waitcnt vmcnt(0)')
    pairperm([(20 + 8 * p, 24 + 8 * p) for p in range(12)], 6)
    if DRY:
        I('s_cmp_lg_u32 s3, 7')
        I('s_cbranch_scc1 L_e_main')
        enter_dry('L_e_main')
    L('L_e_main')
    sk = uid('nofw')
    I('s_cmp_lg_u32 s3, 0')
    skip_if(sk)
    flags_wait(0)
    L(sk)
    barrier()
    stamp(2)
    I('v_and_b32 v2, 1, v14')
    I('v_lshlrev_b32 v2, 2, v2')
    I('v_lshl_add_u32 v2, v15, 3, v2')
    I('s_lshl_b32 s4, s3, 7')
    I('v_add_u32 v12, s4, v2')
    sk5 = uid('w5')
    I('s_cmp_gt_u32 s3, 4')
    skip_if(sk5)
    I('v_lshlrev_b32 v2, 1, v12')
    I('s_mul_i32 s4, s43, 1280')
    I(f'buffer_load_dwordx2 v[4:5], v2, {S(X_)}, s4 offen')
    I('v_lshlrev_b32 v2, 2, v12')
    I('s_mul_i32 s4, s43, 15360')
    I(f's_add_u32 s48, s4, {MOD + 2*2560}')
    for i in range(1, 12):
        p, kq = i % 3, i // 3
        I(f's_add_u32 s{48+i}, s48, {p*2560 + kq*30720}')
    lab = spin_begin()
    for i in range(12):
        I(f'buffer_load_dwordx4 {vr(164+4*i)}, v2, {S(WS)}, s{48+i} offen sc1')
    I('s_waitcnt vmcnt(0)')
    anysent(range(164, 212), 6)
    spin_end(lab)
    for p in range(3):
        for r in range(4):
            a = 164 + 4 * p + r
            I(f'v_add_f32 v{a}, v{a}, v{a+12}')
            I(f'v_add_f32 v{a+24}, v{a+24}, v{a+36}')
            I(f'v_add_f32 v{a}, v{a}, v{a+24}')
            bfround(a)
    I('v_lshlrev_b32 v176, 16, v4')
    I('v_and_b32 v177, 0xffff0000, v4')
    I('v_lshlrev_b32 v178, 16, v5')
    I('v_and_b32 v179, 0xffff0000, v5')
    for r in range(4):
        I(f'v_add_f32 v{172+r}, 1.0, v{172+r}')
        bfround(172 + r)
    for d in range(4): I(f'v_and_b32 v{204+d}, 0x3f803f80, v{16+d}')
    I('v_mul_u32_u24 v3, 10240, v14')
    I('v_lshl_add_u32 v3, v15, 4, v3')
    I('s_mul_i32 s4, s43, 40960')
    I('s_lshl_b32 s5, s3, 8')
    I('s_add_u32 s4, s4, s5')
    I(f's_add_u32 s4, s4, {AP}')
    I('s_add_u32 s5, s4, 3840')
    I('s_add_u32 s6, s4, 7680')
    L(sk5)
    sk = uid('nolp')
    I('s_cmp_lg_u32 s3, 5')
    skip_if(sk)
    I('v_and_b32 v2, 31, v1')
    I('v_mul_u32_u24 v2, 1280, v2')
    I('s_mul_i32 s4, s43, 40960')
    I(f's_add_u32 s4, s4, {AP + 1276}')
    light_poll(lambda r: I(f'buffer_load_dword v{r}, v2, {S(WS)}, s4 offen sc1'), 1, 4, 24 * THR)
    L(sk)
    barrier()
    stamp(6)
    tick(0)
    sk5 = uid('w5a')
    I('s_cmp_gt_u32 s3, 4')
    skip_if(sk5)
    lab = spin_begin()
    for t in range(8):
        so = ['s4', 's5', 's6'][t // 3]
        I(f'buffer_load_dwordx4 {vr(208+4*t)}, v3, {S(WS)}, {so} offen offset:{(t%3)*1280} sc1')
    I('s_waitcnt vmcnt(0)')
    anysent(range(208, 240), 6)
    spin_end(lab)
    stamp(3)
    tick(1)
    for t in range(8):
        c = '0' if t == 0 else 'v[180:183]'
        I(f'v_mfma_f32_16x16x32_bf16 v[180:183], v[204:207], {vr(208+4*t)}, {c}')
    nop(9)
    for r in range(4):
        bfround(180 + r)
        I(f'v_mul_f32 v{180+r}, v{164+r}, v{180+r}')
        bfround(180 + r)
        I(f'v_add_f32 v{180+r}, v{176+r}, v{180+r}')
        bfround(180 + r)
    tick(2)
    I('v_cmp_gt_u32 vcc, 32, v1')
    I('v_add_f32 v6, v180, v181')
    I('v_add_f32 v7, v182, v183')
    I('v_add_f32 v6, v6, v7')
    I('v_cndmask_b32 v6, 0, v6, vcc')
    allreduce('v_add_f32', 6, 7)
    I('v_mul_f32 v6, 0x3c000000, v6')
    for r in range(4): I(f'v_sub_f32 v{184+r}, v{180+r}, v6')
    I('v_mul_f32 v8, v184, v184')
    for r in range(1, 4): I(f'v_fmac_f32 v8, v{184+r}, v{184+r}')
    I('v_cndmask_b32 v8, 0, v8, vcc')
    allreduce('v_add_f32', 8, 7)
    I('v_mov_b32 v7, v8')
    I('s_lshl_b32 s4, s3, 3')
    I(f's_add_u32 s4, s4, {L_E_STAT}')
    I('v_mov_b32 v2, s4')
    I('v_lshlrev_b32 v3, 2, v12')
    I(f'v_add_u32 v3, {L_E_X1}, v3')
    setexec(1)
    I('ds_write_b64 v2, v[6:7]')
    setexec(0xffffffff)
    I('ds_write_b128 v3, v[180:183]')
    fullexec()
    I('s_waitcnt lgkmcnt(0)')
    L(sk5)
    tick(3)
    barrier()
    tick(4)
    sk5 = uid('w5b')
    I('s_cmp_gt_u32 s3, 4')
    skip_if(sk5)
    I(f'v_mov_b32 v2, {L_E_STAT}')
    I('ds_read_b128 v[184:187], v2')
    I('ds_read_b128 v[188:191], v2 offset:16')
    I('ds_read_b64 v[192:193], v2 offset:32')
    I('s_waitcnt lgkmcnt(0)')
    I('v_add_f32 v6, v184, v186')
    I('v_add_f32 v6, v6, v188')
    I('v_add_f32 v6, v6, v190')
    I('v_add_f32 v6, v6, v192')
    I('v_mul_f32 v6, 0x3e4ccccd, v6')
    I('v_add_f32 v7, v185, v187')
    I('v_add_f32 v7, v7, v189')
    I('v_add_f32 v7, v7, v191')
    I('v_add_f32 v7, v7, v193')
    for k in range(5):
        I(f'v_sub_f32 v8, v{184+2*k}, v6')
        I('v_mul_f32 v8, v8, v8')
        I('v_fmac_f32 v7, 0x43000000, v8')
    I('v_mul_f32 v7, 0x3acccccd, v7')
    bfround(6); bfround(7)
    I('v_add_f32 v7, 0x3727c5ac, v7')
    bfround(7)
    I('v_sqrt_f32 v7, v7')
    nop(1)
    bfround(7)
    I('v_rcp_f32 v7, v7')
    for r in range(4):
        I(f'v_sub_f32 v{184+r}, v{180+r}, v6')
        bfround(184 + r)
        I(f'v_mul_f32 v{184+r}, v{184+r}, v7')
        bfround(184 + r)
        I(f'v_mul_f32 v{184+r}, v{184+r}, v{172+r}')
        bfround(184 + r)
        I(f'v_add_f32 v{184+r}, v{184+r}, v{168+r}')
    I('v_cvt_pk_bf16_f32 v184, v184, v185')
    I('v_cvt_pk_bf16_f32 v185, v186, v187')
    I('v_lshlrev_b32 v3, 1, v12')
    I(f'v_add_u32 v3, {L_E_HT}, v3')
    setexec(0xffffffff)
    I('ds_write_b64 v3, v[184:185]')
    fullexec()
    I('s_waitcnt lgkmcnt(0)')
    L(sk5)
    tick(5)
    barrier()
    tick(6)
    stamp(4)
    I('v_mul_u32_u24 v2, 40, v14')
    I('s_mul_i32 s4, s3, 160')
    I(f's_add_u32 s4, s4, {L_E_HT}')
    I('v_add_u32 v2, s4, v2')
    for q in range(5):
        I(f'ds_read_b64 {vr(164+2*q,2)}, v2 offset:{q*8}')
    I('s_lshl_b32 s4, s3, 9')
    I(f's_add_u32 s4, s4, {L_E_RED}')
    I('v_add_u32 v3, s4, v13')
    I('s_waitcnt lgkmcnt(0)')
    gemv_pair(10, lambda p: 164 + p, 240, [204, 208], lambda blk, t: 20 + 4 * t, [212], [216])
    setexec(0xffff)
    I('ds_write_b128 v3, v[212:215]')
    I('ds_write_b128 v3, v[216:219] offset:256')
    fullexec()
    I('s_waitcnt lgkmcnt(0)')
    tick(7)
    barrier()
    tick(8)
    sk = uid('nohh')
    I('s_cmp_lg_u32 s3, 0')
    skip_if(sk)
    I('v_lshrrev_b32 v2, 5, v1')
    I('v_and_b32 v3, 31, v1')
    I('v_lshlrev_b32 v3, 2, v3')
    I('v_lshl_add_u32 v3, v2, 8, v3')
    I(f'v_add_u32 v3, {L_E_RED}, v3')
    for w in range(8):
        I(f'ds_read2_b32 {vr(164+2*w,2)}, v3 offset0:{(w%2)*128} offset1:{(w%2)*128+32}' if w < 2 else
          f'ds_read2_b32 {vr(164+2*w,2)}, v{4+w//2} offset0:{(w%2)*128} offset1:{(w%2)*128+32}')
        if w % 2 == 1 and w < 7: I(f'v_add_u32 v{5+w//2}, {1024*(w//2+1)}, v3')
    I('v_and_b32 v3, 31, v1')
    I('v_lshlrev_b32 v3, 2, v3')
    I('v_lshl_add_u32 v3, v2, 1, v3')
    I(f'v_add_u32 v3, {L_E_HH}, v3')
    I('s_waitcnt lgkmcnt(0)')
    for st in (1, 2, 4):
        for w in range(0, 8, 2 * st):
            I(f'v_pk_add_f32 {vr(164+2*w,2)}, {vr(164+2*w,2)}, {vr(164+2*(w+st),2)}')
    I('v_cvt_pk_bf16_f32 v166, v164, v165')
    I('v_lshlrev_b32 v164, 16, v166')
    I('v_and_b32 v165, 0xffff0000, v166')
    I('v_mul_f32 v164, 0xbfb8aa3b, v164')
    I('v_exp_f32 v164, v164')
    nop(1)
    I('v_add_f32 v164, 1.0, v164')
    I('v_rcp_f32 v164, v164')
    nop(1)
    bfround(164)
    I('v_mul_f32 v164, v164, v165')
    I('v_cvt_pk_bf16_f32 v164, v164, v164')
    I('ds_write_b16 v3, v164')
    I('s_waitcnt lgkmcnt(0)')
    L(sk)
    I('s_mul_i32 s4, s43, 27')
    I('s_add_u32 s4, s4, s42')
    I('s_mul_i32 s4, s4, 2560')
    I(f's_add_u32 s4, s4, {FP}')
    tick(9)
    barrier()
    tick(10)
    I('s_cmp_gt_u32 s3, 3')
    I('s_cbranch_scc1 L_e_hi2')
    I('v_lshlrev_b32 v2, 5, v14')
    I(f'v_add_u32 v2, {L_E_HH}, v2')
    for q in range(2):
        I(f'ds_read_b128 {vr(164+4*q)}, v2 offset:{q*16}')
    I('s_lshl_b32 s5, s3, 9')
    I('s_add_u32 s4, s4, s5')
    I('s_waitcnt lgkmcnt(0)')
    gemv_pair(8, lambda p: 164 + p, 240, [204, 208], lambda blk, t: 100 + 4 * t, [212], [216])
    for r in range(8): I(f'v_min_u32 v{212+r}, 0xfffffffe, v{212+r}')
    setexec(0xffff)
    I(f'buffer_store_dwordx4 v[212:215], v13, {S(WS)}, s4 offen sc1')
    I(f'buffer_store_dwordx4 v[216:219], v13, {S(WS)}, s4 offen offset:256 sc1')
    fullexec()
    tick(11)
    tick_dump(12)
    stamp(5)
    barrier()
    I('s_branch L_end')
    L('L_e_hi2')
    I('s_sub_u32 s46, s3, 4')
    I('v_lshlrev_b32 v2, 3, v14')
    I('s_lshl_b32 s5, s46, 5')
    I(f's_add_u32 s5, s5, {L_E_HH}')
    I('v_add_u32 v2, s5, v2')
    I('ds_read_b64 v[164:165], v2')
    I('s_lshl_b32 s5, s46, 9')
    I(f's_add_u32 s5, s5, {L_E_RED}')
    I('v_add_u32 v3, s5, v13')
    I('s_waitcnt lgkmcnt(0)')
    gemv_pair(2, lambda p: 164 + p, 240, [204, 208], lambda blk, t: 100 + 4 * t, [212], [216])
    setexec(0xffff)
    I('ds_write_b128 v3, v[212:215]')
    I('ds_write_b128 v3, v[216:219] offset:256')
    fullexec()
    I('s_waitcnt lgkmcnt(0)')
    barrier()
    I('s_cmp_lg_u32 s3, 4')
    I('s_cbranch_scc1 L_final')
    I(f'v_add_u32 v3, {L_E_RED}, v13')
    setexec(0xffff)
    for w in range(4):
        I(f'ds_read_b128 {vr(20+8*w)}, v3 offset:{w*512}')
        I(f'ds_read_b128 {vr(24+8*w)}, v3 offset:{w*512+256}')
    I('s_waitcnt lgkmcnt(0)')
    for q in range(4):
        I(f'v_pk_add_f32 {vr(20+2*q,2)}, {vr(20+2*q,2)}, {vr(28+2*q,2)}')
        I(f'v_pk_add_f32 {vr(36+2*q,2)}, {vr(36+2*q,2)}, {vr(44+2*q,2)}')
        I(f'v_pk_add_f32 {vr(20+2*q,2)}, {vr(20+2*q,2)}, {vr(36+2*q,2)}')
    for r in range(8): I(f'v_min_u32 v{20+r}, 0xfffffffe, v{20+r}')
    I('s_add_u32 s4, s4, 2048')
    I(f'buffer_store_dwordx4 v[20:23], v13, {S(WS)}, s4 offen sc1')
    I(f'buffer_store_dwordx4 v[24:27], v13, {S(WS)}, s4 offen offset:256 sc1')
    fullexec()
    I('s_branch L_end')
    L('L_final')
    I('s_cmp_lg_u32 s3, 5')
    skip_if('L_end')
    I('s_cmp_ge_u32 s42, 10')
    skip_if('L_end')
    I('s_lshl_b32 s4, s42, 6')
    I('v_add_u32 v12, s4, v1')
    I('v_lshlrev_b32 v2, 2, v12')
    I(f'v_add_u32 v3, {L_E_X1}, v2')
    I('ds_read_b32 v10, v3')
    I('v_lshrrev_b32 v4, 7, v12')
    I('v_lshlrev_b32 v4, 9, v4')
    I('v_and_b32 v5, 1, v12')
    I('v_lshl_add_u32 v4, v5, 8, v4')
    I('v_bfe_u32 v5, v12, 3, 4')
    I('v_lshl_add_u32 v4, v5, 4, v4')
    I('v_bfe_u32 v5, v12, 1, 2')
    I('v_lshl_add_u32 v4, v5, 2, v4')
    I('s_mul_i32 s4, s43, 15360')
    I(f's_add_u32 s4, s4, {MOD + 5*2560}')
    I('s_mul_i32 s5, s43, 69120')
    I(f's_add_u32 s5, s5, {FP}')
    lab = spin_begin()
    I('s_mov_b32 s6, s4')
    for kq in range(4):
        I(f'buffer_load_dword v{48+kq}, v2, {S(WS)}, s6 offen sc1')
        if kq < 3: I('s_add_u32 s6, s6, 30720')
    I('s_waitcnt vmcnt(0)')
    anysent(list(range(48, 52)), 6)
    spin_end(lab)
    for p in range(9): I(f's_add_u32 s{48+p}, s5, {p*7680}')
    def fissue(base):
        for p in range(27):
            I(f'buffer_load_dword v{base+p}, v4, {S(WS)}, s{48+p//3} offen offset:{(p%3)*2560 if (p%3)*2560 < 4096 else 0} sc1'
              if p % 3 < 2 else f'buffer_load_dword v{base+p}, v5, {S(WS)}, s{48+p//3} offen sc1')
    I('v_add_u32 v5, 5120, v4')
    I('s_mov_b32 s98, 0')
    fissue(20)
    I('s_sleep 6')
    L('L_fin_top')
    fissue(60)
    I('s_waitcnt vmcnt(27)')
    anysent(list(range(20, 47)), 6)
    I('s_cbranch_vccz L_fin_done')
    fissue(20)
    I('s_waitcnt vmcnt(27)')
    anysent(list(range(60, 87)), 6)
    I('s_cbranch_vccz L_fin_b')
    I('s_add_u32 s98, s98, 1')
    I(f's_cmp_gt_u32 s98, {SPIN_LIMIT}')
    I('s_cbranch_scc1 L_end')
    I('s_branch L_fin_top')
    L('L_fin_b')
    I('s_waitcnt vmcnt(0)')
    for p in range(27): I(f'v_mov_b32 v{20+p}, v{60+p}')
    L('L_fin_done')
    I('v_add_f32 v11, v48, v49')
    I('v_add_f32 v50, v50, v51')
    I('v_add_f32 v11, v11, v50')
    bfround(11)
    for p in range(1, 27): I(f'v_add_f32 v20, v20, v{20+p}')
    bfround(20)
    I('v_mul_f32 v20, v11, v20')
    bfround(20)
    I('s_waitcnt lgkmcnt(0)')
    I('v_add_f32 v20, v10, v20')
    I('v_cvt_pk_bf16_f32 v20, v20, v20')
    I('v_lshlrev_b32 v2, 1, v12')
    I('s_mul_i32 s4, s43, 1280')
    I(f'buffer_store_short v20, v2, {S(OUT)}, s4 offen')
    stamp(7, 5)
    if DBGT:
        I('s_memrealtime s[60:61]')
        I('s_mov_b32 s20, s90')
        I('s_and_b32 s21, s91, 0xffff')
        I('s_mov_b32 s22, 256')
        I('s_mov_b32 s23, 0x00020000')
        I('s_waitcnt lgkmcnt(0)')
        I('s_sub_u32 s60, s60, s56')
        I('v_mov_b32 v4, s60')
        I('s_mul_i32 s5, s43, 10')
        I('s_add_u32 s5, s5, s42')
        I('s_lshl_b32 s5, s5, 2')
        I('v_mov_b32 v5, 0')
        setexec(1)
        I('buffer_store_dword v4, v5, s[20:23], s5 offen')
        fullexec()
    role_end('L_e_main')

prologue()
role_P12()
role_P3()
role_DE_common()
role_D()
role_E()
L('L_end')
I('s_endpgm')

def wrap_vm(ls):
    out = []; i = 0; n = 0
    while i < len(ls):
        x = ls[i].strip()
        def isvm(k):
            y = ls[k].strip()
            return y.startswith('buffer_store') or (not INSPIN[k] and (y.startswith('s_waitcnt vmcnt') or (y.startswith('buffer_load') and ' nt' not in y)))
        if isvm(i):
            j = i
            while j < len(ls) and isvm(j):
                j += 1
            n += 1
            out.append(f'    s_cbranch_execz L_vs_{n}')
            out += ls[i:j]
            out.append(f'L_vs_{n}:')
            i = j
        else:
            out.append(ls[i]); i += 1
    return out
if DRY:
    INSPIN = []
    ins = False
    for x in lines:
        t = x.strip()
        if re.match(r'L_spin_\d+:$', t): ins = True
        if re.match(r'L_spin_\d+_x:$', t): ins = False
        INSPIN.append(ins)
    lines = wrap_vm(lines)
hdr = open('cdna_kernels/' + NAME + '.s.ref').read().split('\n')
out = []
for ln in hdr:
    if ln.startswith('; @launch'):
        out.append(f'; @launch grid=(256,1,1) block=(512,1,1) lds={LDS_BYTES}')
    elif ln.startswith(';'):
        out.append(ln)
    else:
        break
out += ['.amdgcn_target "amdgcn-amd-amdhsa--gfx950"', '.text', f'.globl {NAME}_kernel', '.p2align 8',
        f'.type {NAME}_kernel,@function', f'{NAME}_kernel:']
out += lines
out += ['.section .rodata,"a"', '.p2align 6', f'.amdhsa_kernel {NAME}_kernel',
        '  .amdhsa_next_free_vgpr 256', '  .amdhsa_next_free_sgpr 102', '  .amdhsa_accum_offset 256',
        '  .amdhsa_group_segment_fixed_size 0', '  .amdhsa_kernarg_size 120', '  .amdhsa_user_sgpr_count 2',
        '  .amdhsa_user_sgpr_kernarg_segment_ptr 1', '  .amdhsa_system_sgpr_workgroup_id_x 1',
        '.end_amdhsa_kernel', '']
open(sys.argv[1], 'w').write('\n'.join(out))
```

```python
import sys, re

NAME = 'adaLN_cond__compressed_kv_cla__glu_gated_glu__decode'
STAMP = int(sys.argv[2]) if len(sys.argv) > 2 else 0
DBGT = (STAMP == 2)
if DBGT: STAMP = 0
SPIN_LIMIT = 200000

EPOCH = 0
FLAGS = 2048
MOD = 8192
QP = 131072
QA = 262144
ML = 327680
AP = 360448
FP = 442368
STP = 589824
OP = 1048576
WS_BYTES = OP + 2 * 32 * 32 * 1024

CKS = 1040
L_WU = 0
L_HD = 66560
L_RED = L_HD + 2560
L_QT2 = L_RED + 5120
L_CK = 0
L_QT = 0
PTS = 272
L_PT = 133120
L_MX = L_PT + 32 * PTS
LDS_BYTES = L_MX + 1024
L_WT0 = 0
L_WT1 = 20480
L_ST = 40960
L_FC = 44032
L_D_WD = 45056
L_D_CD = 46080
L_D_RED = 49152
L_D_RED2 = 53248
L_E_STAT = 45056
L_E_X1 = 45312
L_E_HT = 48128
L_E_RED = 53248
L_E_HH = 57344
PACE = int(sys.argv[3]) if len(sys.argv) > 3 else 6
SLOWN = int(sys.argv[4]) if len(sys.argv) > 4 else 6
DRY = int(sys.argv[5]) if len(sys.argv) > 5 else 0
EGATE = int(sys.argv[6]) if len(sys.argv) > 6 else 1
EPACE = int(sys.argv[7]) if len(sys.argv) > 7 else 6
SLOWP = int(sys.argv[8]) if len(sys.argv) > 8 else 2
LATEC = int(sys.argv[9]) if len(sys.argv) > 9 else 0
CK0 = int(sys.argv[10]) if len(sys.argv) > 10 else 4
CK1 = int(sys.argv[11]) if len(sys.argv) > 11 else 6
W1GATE = int(sys.argv[12]) if len(sys.argv) > 12 else 0
XSPLIT = int(sys.argv[13]) if len(sys.argv) > 13 else 0
P3GATE = int(sys.argv[14]) if len(sys.argv) > 14 else 0
WU0 = int(sys.argv[15]) if len(sys.argv) > 15 else 6
THR = int(sys.argv[16]) if len(sys.argv) > 16 else 1
DELAY = int(sys.argv[17]) if len(sys.argv) > 17 else 0

TAGC_LO = 0x7F4A7C15
TAGC_HI = 0x9E3779B9

lines = []
def I(s): lines.append('    ' + s)
def L(s): lines.append(s + ':')
def C(s): lines.append('    ; ' + s)
def nop(n):
    while n > 0:
        k = min(n, 16)
        I(f's_nop {k-1}')
        n -= k
_uid = [0]
def uid(p):
    _uid[0] += 1
    return f'L_{p}_{_uid[0]}'
def vr(a, n=4): return f'v[{a}:{a+n-1}]'

PTR = {k: 64 + 2 * i for i, k in enumerate(
    ['x', 'ckv', 'wq', 'wuk', 'wuv', 'wo', 'bx', 'wg', 'wu', 'wd', 'c', 'wmod', 'out', 'dbg', 'ws'])}
NBYTES = dict(x=2560, ckv=8388608, wq=5242880, wuk=4194304, wuv=4194304, wo=5242880, wg=2211840, wu=2211840,
              wd=2211840, c=2560, wmod=4915200, out=2560, ws=WS_BYTES)
def srd(d, name):
    p = PTR[name]
    I(f's_mov_b32 s{d}, s{p}')
    I(f's_and_b32 s{d+1}, s{p+1}, 0xffff')
    I(f's_mov_b32 s{d+2}, {NBYTES[name]}')
    I(f's_mov_b32 s{d+3}, 0x00020000')
def S(d): return f's[{d}:{d+3}]'
WS = 8

def setexec(lo, hi=0):
    I(f's_and_b32 exec_lo, s100, 0x{lo:x}')
    if hi: I(f's_and_b32 exec_hi, s100, 0x{hi:x}')
    else: I('s_mov_b32 exec_hi, 0')
def fullexec():
    I('s_mov_b64 exec, s[100:101]')
def skip_if(lab):
    I('s_cselect_b32 s99, s100, 0')
    I('s_cmp_lg_u32 s99, 0')
    I(f's_cbranch_scc1 {lab}')
def barrier():
    o = uid('bar')
    I('s_cmp_eq_u32 s100, 0')
    I(f's_cbranch_scc1 {o}')
    I('s_barrier')
    L(o)
def enter_dry(target):
    I('s_mov_b64 s[100:101], 0')
    I('s_mov_b64 exec, 0')
    I(f's_branch {target}')
def role_end(back):
    I('s_cmp_lg_u32 s100, 0')
    I('s_cbranch_scc1 L_end')
    I('s_mov_b64 s[100:101], -1')
    I('s_mov_b64 exec, -1')
    I(f's_branch {back}')

def stamp(idx, wave=0):
    if STAMP != 1: return
    skip = uid('st')
    I(f's_cmp_lg_u32 s3, {wave}')
    I(f's_cbranch_scc1 {skip}')
    I('s_memrealtime s[60:61]')
    I('s_waitcnt lgkmcnt(0)')
    I('v_mov_b32 v254, s60')
    I('v_mov_b32 v255, s61')
    I(f's_lshl_b32 s62, s2, 7')
    I(f's_add_u32 s62, s62, {STP + idx*8}')
    I('v_mov_b32 v253, 0')
    I('s_mov_b64 s[58:59], exec')
    setexec(1)
    I(f'buffer_store_dwordx2 v[254:255], v253, {S(WS)}, s62 offen')
    I('s_mov_b64 exec, s[58:59]')
    L(skip)

TICK = (STAMP == 3)
def tick(i):
    if TICK: I(f's_memtime s[{64+2*i}:{65+2*i}]')
def tick_dump(n):
    if not TICK: return
    skip = uid('tk')
    I('s_cmp_lg_u32 s3, 0')
    I(f's_cbranch_scc1 {skip}')
    I('s_waitcnt lgkmcnt(0)')
    I('s_mov_b64 s[58:59], exec')
    setexec(1)
    I('v_mov_b32 v253, 0')
    for i in range(n):
        I(f'v_mov_b32 v254, s{64+2*i}')
        I(f'v_mov_b32 v255, s{65+2*i}')
        I(f's_lshl_b32 s62, s2, 7')
        I(f's_add_u32 s62, s62, {STP + i*8}')
        I(f'buffer_store_dwordx2 v[254:255], v253, {S(WS)}, s62 offen')
        nop(2)
    I('s_mov_b64 exec, s[58:59]')
    L(skip)

def delay(place):
    if DELAY == place:
        for _ in range(1): I('s_sleep 110')

def spin_begin():
    lab = uid('spin')
    I(f's_cbranch_execz {lab}_x')
    I('s_mov_b32 s98, 0')
    L(lab)
    return lab
def spin_end(lab, sleep=1):
    done = uid('spd')
    I(f's_cbranch_vccz {done}')
    I('s_add_u32 s98, s98, 1')
    I(f's_cmp_gt_u32 s98, {SPIN_LIMIT}')
    I('s_cbranch_scc1 L_end')
    I(f's_sleep {sleep}')
    I(f's_branch {lab}')
    L(done)
    L(f'{lab}_x')

def anysent(regs, tmp):
    regs = list(regs)
    cur = regs[0]; rest = regs[1:]
    while rest:
        if len(rest) >= 2:
            I(f'v_max3_u32 v{tmp}, v{cur}, v{rest[0]}, v{rest[1]}'); rest = rest[2:]
        else:
            I(f'v_max_u32 v{tmp}, v{cur}, v{rest[0]}'); rest = rest[1:]
        cur = tmp
    I(f'v_cmp_eq_u32 vcc, -1, v{cur}')

def allreduce(op, x, tmp, rows_only=False, skip_row=False, half=False):
    if not skip_row:
        for ctl in ['quad_perm:[1,0,3,2]', 'quad_perm:[2,3,0,1]', 'row_half_mirror', 'row_mirror']:
            nop(2)
            I(f'{op}_dpp v{x}, v{x}, v{x} {ctl} row_mask:0xf bank_mask:0xf')
    if rows_only: return
    for sw in (['v_permlane16_swap_b32'] if half else ['v_permlane16_swap_b32', 'v_permlane32_swap_b32']):
        I(f'v_mov_b32 v{tmp}, v{x}')
        nop(2)
        I(f'{sw} v{x}, v{tmp}')
        nop(1)
        I(f'{op} v{x}, v{x}, v{tmp}')

def bfround(x, tmp=None):
    I(f'v_cvt_pk_bf16_f32 v{x}, v{x}, v{x}')
    I(f'v_and_b32 v{x}, 0xffff0000, v{x}')

def make_masks(m, single):
    I('v_and_b32 v2, 1, v1')
    I('v_cmp_eq_u32 vcc, 1, v2')
    I('v_mov_b32 v3, 0xffff')
    I('v_mov_b32 v2, 0xffff0000')
    nop(1)
    I('v_cndmask_b32 v3, v3, v2, vcc')
    if single:
        I('v_and_b32 v2, 8, v1')
        I('v_cmp_eq_u32 vcc, 0, v2')
        nop(2)
        I('v_cndmask_b32 v3, 0, v3, vcc')
    I('v_bfe_u32 v2, v1, 1, 2')
    for d in range(4):
        I(f'v_cmp_eq_u32 vcc, {d}, v2')
        nop(2)
        I(f'v_cndmask_b32 v{m+d}, 0, v3, vcc')

def gemv_diag(T, aval, masks, abuf, bq, accs):
    def build(t):
        a = abuf[t % 2]
        for d in range(4):
            I(f'v_and_b32 v{a+d}, v{masks+d}, v{aval(t)}')
    build(0)
    for t in range(T):
        a = abuf[t % 2]
        if t + 1 < T:
            build(t + 1)
        else:
            nop(2)
        for blk, acc in enumerate(accs):
            c = '0' if t == 0 else vr(acc)
            I(f'v_mfma_f32_16x16x32_bf16 {vr(acc)}, {vr(a)}, {vr(bq(blk, t))}, {c}')
    nop(9)

def make_masks4(m, nb):
    I('v_bfe_u32 v2, v1, 2, 2')
    I(f'v_cmp_gt_u32 vcc, {nb}, v2')
    nop(2)
    I('v_cndmask_b32 v3, 0, -1, vcc')
    I('v_and_b32 v2, 3, v1')
    for d in range(4):
        I(f'v_cmp_eq_u32 vcc, {d}, v2')
        nop(2)
        I(f'v_cndmask_b32 v{m+d}, 0, v3, vcc')

def pairperm(quads, tmp):
    I('s_mov_b32 s4, 0x05040100')
    I('s_mov_b32 s5, 0x07060302')
    for n, (x0, x1) in enumerate(quads):
        for q in range(4):
            t = tmp + (q & 1)
            I(f'v_perm_b32 v{t}, v{x1+q}, v{x0+q}, s4')
            I(f'v_perm_b32 v{x1+q}, v{x1+q}, v{x0+q}, s5')
            I(f'v_mov_b32 v{x0+q}, v{t}')

def gemv_pair(P, aval, masks, abuf, bq, accE, accO):
    def build(p):
        a = abuf[p % 2]
        for d in range(4):
            I(f'v_and_b32 v{a+d}, v{masks+d}, v{aval(p)}')
    build(0)
    for p in range(P):
        a = abuf[p % 2]
        if p + 1 < P: build(p + 1)
        else: nop(2)
        for blk in range(len(accE)):
            for acc, t in ((accE[blk], 2 * p), (accO[blk], 2 * p + 1)):
                c = '0' if p == 0 else vr(acc)
                I(f'v_mfma_f32_16x16x32_bf16 {vr(acc)}, {vr(a)}, {vr(bq(blk, t))}, {c}')
    nop(9)

def spin_end_thr(lab, thr, sleep=1):
    done = uid('spd')
    I('s_bcnt1_i32_b64 s99, vcc')
    I(f's_cmp_le_u32 s99, {thr}')
    I(f's_cbranch_scc1 {done}')
    I('s_add_u32 s98, s98, 1')
    I(f's_cmp_gt_u32 s98, {SPIN_LIMIT}')
    I('s_cbranch_scc1 L_end')
    I(f's_sleep {sleep}')
    I(f's_branch {lab}')
    L(done)
    L(f'{lab}_x')

def light_poll(load, regs_per, base, thr, NS=3, gap=5):
    top = uid('lp'); done = uid('lpd')
    I(f's_cbranch_execz {done}')
    I('s_mov_b32 s98, 0')
    for i in range(NS - 1):
        load(base + i * regs_per)
        I(f's_sleep {gap}')
    L(top)
    for i in range(NS):
        load(base + ((i + NS - 1) % NS) * regs_per)
        I(f's_waitcnt vmcnt({NS-1})')
        r = base + i * regs_per
        if regs_per == 1: I(f'v_cmp_eq_u32 vcc, -1, v{r}')
        else:
            I(f'v_max_u32 v{base + NS*regs_per}, v{r}, v{r+1}')
            I(f'v_cmp_eq_u32 vcc, -1, v{base + NS*regs_per}')
        I('s_bcnt1_i32_b64 s99, vcc')
        I(f's_cmp_le_u32 s99, {thr}')
        I(f's_cbranch_scc1 {done}')
    I('s_add_u32 s98, s98, 1')
    I(f's_cmp_gt_u32 s98, {SPIN_LIMIT}')
    I('s_cbranch_scc1 L_end')
    I(f's_branch {top}')
    L(done)

def flags_wait(which, first=0, count=256, sleep=1):
    I('v_lshlrev_b32 v2, 4, v1')
    I(f'v_add_u32 v2, {FLAGS + 2048*which + 8*first}, v2')
    if count == 64: setexec(0xffffffff)
    lab = spin_begin()
    I(f'buffer_load_dwordx4 v[4:7], v2, {S(WS)}, 0 offen sc1')
    if count == 256:
        I(f'buffer_load_dwordx4 v[8:11], v2, {S(WS)}, 0 offen offset:1024 sc1')
    I('s_waitcnt vmcnt(0)')
    n = 12 if count == 256 else 8
    for r in range(4, n):
        I(f'v_xor_b32 v{r}, s{96 + (r & 1)}, v{r}')
    I('v_or3_b32 v4, v4, v5, v6')
    if count == 256:
        I('v_or3_b32 v4, v4, v7, v8')
        I('v_or3_b32 v4, v4, v9, v10')
        I('v_or_b32 v4, v4, v11')
    else:
        I('v_or_b32 v4, v4, v7')
    I('v_cmp_ne_u32 vcc, 0, v4')
    spin_end(lab, sleep)
    if count == 64: fullexec()

def flag_store(which, t0=4):
    I('s_waitcnt vmcnt(0) lgkmcnt(0)')
    I(f's_add_u32 s96, s94, 0x{TAGC_LO:x}')
    I(f's_addc_u32 s97, s95, 0x{TAGC_HI:x}')
    I(f'v_mov_b32 v{t0}, s96')
    I(f'v_mov_b32 v{t0+1}, s97')
    I('s_lshl_b32 s4, s2, 3')
    I(f's_add_u32 s4, s4, {FLAGS + 2048*which}')
    I(f'v_mov_b32 v{t0+2}, 0')
    setexec(1)
    I(f'buffer_store_dwordx2 v[{t0}:{t0+1}], v{t0+2}, {S(WS)}, s4 offen sc1')
    fullexec()

def lds_gate():
    I(f'v_mov_b32 v4, {L_FC}')
    lab = spin_begin()
    I('ds_read_b32 v5, v4')
    I('s_waitcnt lgkmcnt(0)')
    I('v_cmp_ne_u32 vcc, 1, v5')
    spin_end(lab, 2)

def paced(loads, depth):
    for i, ld in enumerate(loads):
        if i >= depth: I(f's_waitcnt vmcnt({depth-1})')
        for x in ld: I(x)

def tag_compute():
    I('s_waitcnt lgkmcnt(0)')
    I(f's_add_u32 s96, s94, 0x{TAGC_LO:x}')
    I(f's_addc_u32 s97, s95, 0x{TAGC_HI:x}')

def prologue():
    I('s_cmp_ge_u32 s2, 256')
    I('s_cbranch_scc1 L_end')
    I('s_mov_b64 s[100:101], -1')
    if XSPLIT:
        I('s_lshr_b32 s4, s2, 3')
        I('s_lshl_b32 s4, s4, 2')
        I('s_and_b32 s5, s2, 3')
        I('s_add_u32 s4, s4, s5')
        I('s_bfe_u32 s5, s2, 0x10002')
        I('s_lshl_b32 s5, s5, 7')
        I('s_add_u32 s2, s4, s5')
    if DBGT: I('s_memrealtime s[56:57]')
    I('s_load_dwordx16 s[64:79], s[0:1], 0')
    I('s_load_dwordx8 s[80:87], s[0:1], 64')
    I('s_load_dwordx4 s[88:91], s[0:1], 96')
    I('s_load_dwordx2 s[92:93], s[0:1], 112')
    I('v_lshrrev_b32 v1, 6, v0')
    nop(1)
    I('v_readfirstlane_b32 s3, v1')
    I('v_and_b32 v1, 63, v0')
    for r in range(2, 13): I(f'v_mov_b32 v{r}, 0')
    if STAMP: I('v_mov_b32 v253, 0')
    I('s_waitcnt lgkmcnt(0)')
    I('s_load_dwordx2 s[94:95], s[92:93], 0')
    srd(WS, 'ws')
    stamp(0)
    I('v_lshrrev_b32 v14, 4, v1')
    I('v_and_b32 v15, 15, v1')
    I('v_lshlrev_b32 v13, 4, v1')
    I('s_cmp_ge_u32 s2, 128')
    I('s_cbranch_scc1 L_de')
    I('s_cmp_ge_u32 s2, 64')
    I('s_cbranch_scc1 L_p3')

def role_P12():
    X_, WQ, WUK = 12, 16, 20
    srd(X_, 'x'); srd(WQ, 'wq'); srd(WUK, 'wuk')
    I('s_lshr_b32 s40, s2, 1')
    I('s_and_b32 s41, s2, 1')
    I('s_mul_i32 s45, s41, 320')
    I('s_cmp_lg_u32 s3, 7')
    I('s_cbranch_scc1 L_a_init')
    for r in range(4, 8): I(f'v_mov_b32 v{r}, -1')
    I('s_lshl_b32 s4, s2, 10')
    I(f's_add_u32 s4, s4, {QP}')
    I(f'buffer_store_dwordx4 v[4:7], v13, {S(WS)}, s4 offen sc1')
    I('v_lshrrev_b32 v3, 5, v1')
    I('v_lshlrev_b32 v3, 15, v3')
    I('v_and_b32 v2, 31, v1')
    I('v_lshl_add_u32 v3, v2, 4, v3')
    I('s_lshl_b32 s4, s2, 9')
    I(f's_add_u32 s4, s4, {QA}')
    I(f'buffer_store_dwordx4 v[4:7], v3, {S(WS)}, s4 offen sc1')
    if DRY: enter_dry('L_a_h1b')
    L('L_a_w7')
    flag_store(0, 8)
    stamp(9, 7)
    I('s_branch L_a_main')
    L('L_a_init')
    I('s_cmp_gt_u32 s3, 4')
    I('s_cbranch_scc1 L_a_h1')
    I('v_lshlrev_b32 v2, 17, v14')
    I('v_lshl_add_u32 v2, v15, 4, v2')
    I('s_lshl_b32 s4, s3, 6')
    I('s_add_u32 s4, s4, s45')
    I('s_lshl_b32 s4, s4, 13')
    I('s_lshl_b32 s5, s40, 8')
    I('s_add_u32 s4, s4, s5')
    for t in range(16):
        I(f'buffer_load_dwordx4 {vr(20+4*t)}, v2, {S(WQ)}, s4 offen nt')
        if t < 15: I('s_add_u32 s4, s4, 8192')
    def wuk_dma(first, per):
        I('v_lshlrev_b32 v2, 13, v14')
        I('v_lshl_add_u32 v2, v15, 4, v2')
        I('s_lshl_b32 s4, s41, 21')
        I('s_lshl_b32 s5, s40, 8')
        I('s_add_u32 s4, s4, s5')
        I(f's_mul_i32 s6, s3, {per}')
        I(f's_add_u32 s6, s6, {first}')
        I('s_lshl_b32 s5, s6, 15')
        I('s_add_u32 s4, s4, s5')
        I('s_mul_i32 s5, s6, 1040')
        done = uid('dmad')
        for q in range(per):
            if first + 5 * per > 64 and q >= 64 - first - 4 * per:
                I('s_cmp_eq_u32 s3, 4')
                I(f's_cbranch_scc1 {done}')
            I('s_mov_b32 m0, s5')
            nop(1)
            I(f'buffer_load_dwordx4 v2, {S(WUK)}, s4 offen nt lds')
            if q < per - 1:
                I('s_add_u32 s4, s4, 32768')
                I('s_add_u32 s5, s5, 1040')
        L(done)
    wuk_dma(0, WU0)
    make_masks4(16, 2)
    tag_compute()
    I(f's_waitcnt vmcnt({WU0})')
    pairperm([(20 + 8 * p, 24 + 8 * p) for p in range(8)], 4)
    stamp(10, 4)
    I('s_branch L_a_main')
    L('L_a_h1')
    I('s_sub_u32 s46, s3, 5')
    I('s_mul_i32 s4, s46, 1280')
    I('v_lshlrev_b32 v3, 2, v1')
    for k in range(5):
        I(f'buffer_load_dword v{80 + k}, v3, {S(X_)}, s4 offen offset:{k*256}')
    I('s_lshl_b32 s5, s45, 1')
    I('s_add_u32 s5, s5, s4')
    I(f'buffer_load_dwordx4 v[84+4:84+7], v13, {S(X_)}, s5 offen'.replace('84+4', '88').replace('84+7', '91'))
    tag_compute()
    I('s_waitcnt vmcnt(0)')
    for k in range(5):
        I(f'v_lshlrev_b32 v{96+2*k}, 16, v{80+k}')
        I(f'v_and_b32 v{97+2*k}, 0xffff0000, v{80+k}')
    I('v_add_f32 v92, v96, v97')
    for k in range(2, 10): I(f'v_add_f32 v92, v92, v{96+k}')
    allreduce('v_add_f32', 92, 93)
    I('v_mul_f32 v92, 0x3acccccd, v92')
    for k in range(10): I(f'v_sub_f32 v{96+k}, v{96+k}, v92')
    I('v_mul_f32 v94, v96, v96')
    for k in range(1, 10): I(f'v_fmac_f32 v94, v{96+k}, v{96+k}')
    allreduce('v_add_f32', 94, 93)
    I('v_mul_f32 v94, 0x3acccccd, v94')
    bfround(92); bfround(94)
    I('v_add_f32 v94, 0x3727c5ac, v94')
    bfround(94)
    I('v_sqrt_f32 v94, v94')
    nop(1)
    bfround(94)
    I('v_rcp_f32 v94, v94')
    for k in range(4):
        I(f'v_lshlrev_b32 v{72+2*k}, 16, v{88+k}')
        I(f'v_and_b32 v{73+2*k}, 0xffff0000, v{88+k}')
    for r in range(8):
        I(f'v_sub_f32 v{72+r}, v{72+r}, v92')
        bfround(72 + r)
        I(f'v_mul_f32 v{72+r}, v{72+r}, v94')
        bfround(72 + r)
    L('L_a_h1b')
    flags_wait(0, 128, 128)
    stamp(1, 5)
    I('s_mul_i32 s4, s46, 15360')
    I('s_lshl_b32 s5, s45, 2')
    I('s_add_u32 s4, s4, s5')
    I(f's_add_u32 s48, s4, {MOD}')
    for kq in range(1, 4): I(f's_add_u32 s{48+kq}, s48, {kq*30720}')
    I('v_lshlrev_b32 v2, 5, v1')
    I('s_mul_i32 s4, s46, 640')
    I(f's_add_u32 s4, s4, {L_HD}')
    I('v_add_u32 v3, s4, v13')
    setexec(0xffffffff, 0xff)
    lab = spin_begin()
    for kq in range(4):
        I(f'buffer_load_dwordx4 {vr(96+16*kq)}, v2, {S(WS)}, s{48+kq} offen sc1')
        I(f'buffer_load_dwordx4 {vr(100+16*kq)}, v2, {S(WS)}, s{48+kq} offen offset:16 sc1')
        I(f'buffer_load_dwordx4 {vr(104+16*kq)}, v2, {S(WS)}, s{48+kq} offen offset:2560 sc1')
        I(f'buffer_load_dwordx4 {vr(108+16*kq)}, v2, {S(WS)}, s{48+kq} offen offset:2576 sc1')
    I('s_waitcnt vmcnt(0)')
    anysent(range(96, 160), 12)
    spin_end(lab)
    for r in range(16):
        I(f'v_add_f32 v{96+r}, v{96+r}, v{112+r}')
        I(f'v_add_f32 v{128+r}, v{128+r}, v{144+r}')
        I(f'v_add_f32 v{96+r}, v{96+r}, v{128+r}')
        bfround(96 + r)
    for r in range(8):
        I(f'v_add_f32 v{104+r}, 1.0, v{104+r}')
        bfround(104 + r)
        I(f'v_mul_f32 v{104+r}, v{72+r}, v{104+r}')
        bfround(104 + r)
        I(f'v_add_f32 v{104+r}, v{104+r}, v{96+r}')
    for q in range(4):
        I(f'v_cvt_pk_bf16_f32 v{96+q}, v{104+2*q}, v{105+2*q}')
    I('ds_write_b128 v3, v[96:99]')
    fullexec()
    I('s_waitcnt lgkmcnt(0)')
    L('L_a_main')
    barrier()
    stamp(2)
    sk = uid('nofc')
    I('s_cmp_lg_u32 s3, 6')
    skip_if(sk)
    flag_store(2, 8)
    L(sk)
    sk = uid('nop1')
    I('s_cmp_gt_u32 s3, 4')
    skip_if(sk)
    I('v_bfe_u32 v2, v1, 2, 1')
    I('v_mul_u32_u24 v2, 640, v2')
    I('v_lshl_add_u32 v2, v14, 5, v2')
    I('s_lshl_b32 s4, s3, 7')
    I(f's_add_u32 s4, s4, {L_HD}')
    I('v_add_u32 v2, s4, v2')
    for q in range(2):
        I(f'ds_read_b128 {vr(84+4*q)}, v2 offset:{q*16}')
    wuk_dma(5 * WU0, (64 - 5 * WU0 + 4) // 5)
    I('v_lshlrev_b32 v2, 9, v14')
    I('v_lshl_add_u32 v2, v15, 4, v2')
    I('s_lshl_b32 s4, s3, 10')
    I(f's_add_u32 s4, s4, {L_RED}')
    I('v_add_u32 v2, s4, v2')
    I('s_waitcnt lgkmcnt(0)')
    gemv_pair(8, lambda p: 84 + p, 16, [100, 104], lambda blk, t: 20 + 4 * t, [108], [112])
    setexec(0xffffffff)
    I('ds_write_b128 v2, v[108:111]')
    I('ds_write_b128 v2, v[112:115] offset:256')
    fullexec()
    I('s_waitcnt lgkmcnt(0)')
    L(sk)
    barrier()
    sk = uid('nop1r')
    I('s_cmp_lg_u32 s3, 0')
    skip_if(sk)
    I(f'v_add_u32 v2, {L_RED}, v13')
    for w in range(5):
        I(f'ds_read_b128 {vr(164+4*w)}, v2 offset:{w*1024}')
    I('s_lshl_b32 s4, s2, 10')
    I(f's_add_u32 s4, s4, {QP}')
    I('s_waitcnt lgkmcnt(0)')
    for r in range(4):
        I(f'v_add_f32 v{164+r}, v{164+r}, v{168+r}')
        I(f'v_add_f32 v{172+r}, v{172+r}, v{176+r}')
        I(f'v_add_f32 v{164+r}, v{164+r}, v{180+r}')
        I(f'v_add_f32 v{164+r}, v{164+r}, v{172+r}')
        I(f'v_min_u32 v{164+r}, 0xfffffffe, v{164+r}')
    I(f'buffer_store_dwordx4 v[164:167], v13, {S(WS)}, s4 offen sc1')
    stamp(3)
    flags_wait(0, 0, 128)
    sk2 = uid('noep')
    I('s_cmp_lg_u32 s2, 0')
    skip_if(sk2)
    I('v_mov_b32 v10, s96')
    I('v_mov_b32 v11, s97')
    I('v_mov_b32 v12, 0')
    setexec(1)
    I(f'buffer_store_dwordx2 v[10:11], v12, {S(WS)}, 0 offen sc1')
    fullexec()
    L(sk2)
    I('s_xor_b32 s4, s2, 1')
    I('s_lshl_b32 s4, s4, 10')
    I(f's_add_u32 s4, s4, {QP}')
    lab = spin_begin()
    I(f'buffer_load_dwordx4 v[168:171], v13, {S(WS)}, s4 offen sc1')
    I('s_waitcnt vmcnt(0)')
    anysent(range(168, 172), 2)
    spin_end(lab)
    for r in range(4):
        I(f'v_add_f32 v{168+r}, v{168+r}, v{164+r}')
    I('v_lshrrev_b32 v2, 1, v14')
    I('v_lshlrev_b32 v2, 8, v2')
    I('v_lshl_add_u32 v2, v15, 4, v2')
    I('v_and_b32 v3, 1, v14')
    I('v_lshl_add_u32 v2, v3, 1, v2')
    I(f'v_add_u32 v2, {L_QT2}, v2')
    for r in range(4):
        I(f'v_cvt_pk_bf16_f32 v{168+r}, v{168+r}, v{168+r}')
        I(f'ds_write_b16 v2, v{168+r} offset:{4*r}')
    L(sk)
    sk = uid('w14')
    I('s_cmp_gt_u32 s3, 4')
    skip_if(sk)
    I('s_waitcnt vmcnt(0)')
    L(sk)
    I('s_waitcnt lgkmcnt(0)')
    barrier()
    delay(1)
    stamp(4)
    I('v_and_b32 v2, 1, v15')
    I('v_lshlrev_b32 v2, 8, v2')
    I('v_lshl_add_u32 v2, v14, 4, v2')
    I(f'v_add_u32 v2, {L_QT2}, v2')
    for t in range(4):
        I(f'ds_read_b128 {vr(164+4*t)}, v2 offset:{t*64}')
    I('v_lshrrev_b32 v2, 2, v15')
    I('v_mul_u32_u24 v2, 1040, v2')
    I('v_and_b32 v3, 3, v15')
    I('v_lshl_add_u32 v2, v3, 8, v2')
    I('v_lshl_add_u32 v2, v14, 4, v2')
    I('s_mul_i32 s4, s3, 8320')
    I(f's_add_u32 s4, s4, {L_WU}')
    I('v_add_u32 v2, s4, v2')
    for t in range(4):
        for n in range(2):
            I(f'ds_read_b128 {vr(20+16*n+4*t)}, v2 offset:{n*4160 + t*64}')
    I('v_lshlrev_b32 v2, 15, v15')
    I('v_lshl_add_u32 v2, v14, 3, v2')
    I('s_lshl_b32 s4, s2, 9')
    I('s_lshl_b32 s5, s3, 6')
    I('s_add_u32 s4, s4, s5')
    I(f's_add_u32 s4, s4, {QA}')
    I('s_mov_b32 s5, 0x3e0293ee')
    for t in range(4):
        I(f's_waitcnt lgkmcnt({6-2*t})')
        for n in range(2):
            c = '0' if t == 0 else vr(180 + 4 * n)
            I(f'v_mfma_f32_16x16x32_bf16 {vr(180+4*n)}, {vr(20+16*n+4*t)}, {vr(164+4*t)}, {c}')
    nop(9)
    for r in range(8): I(f'v_mul_f32 v{180+r}, s5, v{180+r}')
    for q in range(4):
        I(f'v_cvt_pk_bf16_f32 v{188+q}, v{180+2*q}, v{181+2*q}')
        I(f'v_min_u32 v{188+q}, 0xfffffffe, v{188+q}')
    setexec(0x00030003, 0x00030003)
    I(f'buffer_store_dwordx2 v[188:189], v2, {S(WS)}, s4 offen sc1')
    I(f'buffer_store_dwordx2 v[190:191], v2, {S(WS)}, s4 offen offset:32 sc1')
    fullexec()
    stamp(5)
    role_end('L_a_w7')

def role_P3():
    L('L_p3')
    CKV = 12
    srd(CKV, 'ckv')
    I('s_sub_u32 s40, s2, 64')
    I('s_lshr_b32 s42, s40, 5')
    I('s_and_b32 s43, s40, 31')
    sk = uid('nofa')
    I('s_cmp_lg_u32 s3, 7')
    I(f's_cbranch_scc1 {sk}')
    flag_store(0, 8)
    L(sk)
    tag_compute()
    if P3GATE:
        flags_wait(2, 0, 64, 4)
    I('s_lshl_b32 s4, s40, 17')
    I('s_lshl_b32 s5, s3, 14')
    I('s_add_u32 s4, s4, s5')
    I(f's_mul_i32 s5, s3, {16*CKS}')
    for r in range(16):
        I('s_mov_b32 m0, s5')
        nop(1)
        I(f'buffer_load_dwordx4 v13, {S(CKV)}, s4 offen nt lds')
        if r < 15:
            I('s_add_u32 s4, s4, 1024')
            I(f's_add_u32 s5, s5, {CKS}')
    if DRY:
        I('s_cmp_lg_u32 s3, 7')
        I('s_cbranch_scc1 L_p3_real')
        enter_dry('L_p3_main')
    L('L_p3_real')
    I('s_waitcnt vmcnt(0)')
    barrier()
    L('L_p3_main')
    stamp(1)
    I(f'v_mul_u32_u24 v2, {CKS}, v15')
    I('v_lshl_add_u32 v2, v14, 4, v2')
    I(f's_mul_i32 s4, s3, {16*CKS}')
    I('v_add_u32 v2, s4, v2')
    for t in range(16):
        I(f'ds_read_b128 {vr(20+4*t)}, v2 offset:{t*64}')
    I('v_lshrrev_b32 v2, 2, v15')
    I('v_lshl_add_u32 v2, v14, 3, v2')
    I(f'v_mul_u32_u24 v2, {CKS}, v2')
    I('v_and_b32 v3, 3, v15')
    I('v_lshl_add_u32 v2, v3, 4, v2')
    I('s_lshl_b32 s4, s3, 7')
    I('v_add_u32 v2, s4, v2')
    I(f'v_add_u32 v3, {64*CKS}, v2')
    for n in range(4):
        for t in range(4):
            base = 84 + 16 * n + 4 * t
            ad = 'v2' if t < 2 else 'v3'
            off = (t % 2) * 32 * CKS + (n >> 1) * 64 + (n & 1) * 8
            I(f'ds_read_b64_tr_b16 {vr(base,2)}, {ad} offset:{off}')
            I(f'ds_read_b64_tr_b16 {vr(base+2,2)}, {ad} offset:{off + 4*CKS}')
    for r in range(4): I(f'v_mov_b32 v{16+r}, 0x3f803f80')
    I('s_waitcnt lgkmcnt(0)')
    sk = uid('noh2l')
    I('s_cmp_lg_u32 s3, 0')
    skip_if(sk)
    flags_wait(0, 0, 64)
    flags_wait(1, 192, 64)
    I('v_lshlrev_b32 v2, 9, v1')
    I('s_lshl_b32 s4, s42, 15')
    I(f's_add_u32 s4, s4, {QA + 508}')
    light_poll(lambda r: I(f'buffer_load_dword v{r}, v2, {S(WS)}, s4 offen sc1'), 1, 4, 24 * THR)
    L(sk)
    barrier()
    stamp(6)
    tick(0)
    I('s_lshl_b32 s4, s42, 15')
    I('s_lshl_b32 s5, s3, 12')
    I('s_add_u32 s4, s4, s5')
    I(f's_add_u32 s4, s4, {QA}')
    lab = spin_begin()
    for k in range(4):
        I(f'buffer_load_dwordx4 {vr(148+4*k)}, v13, {S(WS)}, s4 offen offset:{k*1024} sc1')
    I('s_waitcnt vmcnt(0)')
    anysent(range(148, 164), 2)
    spin_end(lab)
    tick(1)
    I('s_lshl_b32 s4, s3, 12')
    I('s_and_b32 s5, s3, 3')
    I('s_lshl_b32 s5, s5, 2')
    for k in range(4):
        I(f's_add_u32 s6, s5, {k}')
        I('v_xor_b32 v2, s6, v1')
        I('v_lshlrev_b32 v2, 4, v2')
        I('v_add_u32 v2, s4, v2')
        I(f'ds_write_b128 v2, {vr(148+4*k)} offset:{L_QT + k*1024}')
    I('v_and_b32 v2, 3, v15')
    I('v_xor_b32 v2, v2, v14')
    I('v_and_b32 v3, 12, v15')
    I('v_or_b32 v2, v2, v3')
    for q in range(4):
        I(f'v_xor_b32 v3, {4*q}, v2')
        I('v_lshlrev_b32 v3, 4, v3')
        I(f'v_lshl_add_u32 v{8+q}, v15, 10, v3')
    I('v_lshlrev_b32 v4, 5, v15')
    I(f'v_add_u32 v4, {L_MX}, v4')
    I('s_lshl_b32 s4, s3, 2')
    I('v_add_u32 v3, s4, v4')
    I('s_waitcnt lgkmcnt(0)')
    tick(2)
    barrier()
    tick(3)
    stamp(7)
    for t in range(16):
        I(f'ds_read_b128 {vr(148+4*t)}, v{8+t%4} offset:{L_QT + (t//4)*256}')
    for t in range(16):
        I(f's_waitcnt lgkmcnt({15 if t else 15})') if False else I('s_waitcnt lgkmcnt(15)')
        c = '0' if t == 0 else 'v[212:215]'
        I(f'v_mfma_f32_16x16x32_bf16 v[212:215], {vr(20+4*t)}, {vr(148+4*t)}, {c}')
        I(f'ds_read_b128 {vr(148+4*t)}, v{8+t%4} offset:{L_QT + 16384 + (t//4)*256}')
    for t in range(16):
        I(f's_waitcnt lgkmcnt({15-t})')
        c = '0' if t == 0 else 'v[216:219]'
        I(f'v_mfma_f32_16x16x32_bf16 v[216:219], {vr(20+4*t)}, {vr(148+4*t)}, {c}')
    tick(4)
    I('v_max_f32 v220, v212, v213')
    I('v_max3_f32 v220, v220, v214, v215')
    allreduce('v_max_f32', 220, 222, skip_row=True)
    I('v_max_f32 v221, v216, v217')
    I('v_max3_f32 v221, v221, v218, v219')
    allreduce('v_max_f32', 221, 222, skip_row=True)
    I('ds_write_b32 v3, v220')
    I('ds_write_b32 v3, v221 offset:512')
    I(f'v_mul_u32_u24 v5, {PTS}, v15')
    I(f'v_add_u32 v5, {L_PT}, v5')
    I('v_lshl_add_u32 v3, v14, 3, v5')
    I('s_lshl_b32 s4, s3, 5')
    I('v_add_u32 v3, s4, v3')
    I('v_lshl_add_u32 v5, v14, 4, v5')
    I('s_waitcnt lgkmcnt(0)')
    tick(5)
    barrier()
    tick(6)
    for ht in range(2):
        I(f'ds_read_b128 {vr(148+8*ht)}, v4 offset:{ht*512}')
        I(f'ds_read_b128 {vr(152+8*ht)}, v4 offset:{ht*512+16}')
    I('s_waitcnt lgkmcnt(0)')
    for ht in range(2):
        q = 148 + 8 * ht
        I(f'v_max3_f32 v{220+ht}, v{q}, v{q+1}, v{q+2}')
        I(f'v_max3_f32 v{220+ht}, v{220+ht}, v{q+3}, v{q+4}')
        I(f'v_max3_f32 v{220+ht}, v{220+ht}, v{q+5}, v{q+6}')
        I(f'v_max_f32 v{220+ht}, v{220+ht}, v{q+7}')
    for ht in range(2):
        for r in range(4):
            I(f'v_sub_f32 v{212+4*ht+r}, v{212+4*ht+r}, v{220+ht}')
    for r in range(8):
        I(f'v_exp_f32 v{212+r}, v{212+r}')
    nop(1)
    for q in range(4):
        I(f'v_cvt_pk_bf16_f32 v{224+q}, v{212+2*q}, v{213+2*q}')
    I('ds_write_b64 v3, v[224:225]')
    I(f'ds_write_b64 v3, v[226:227] offset:{16*PTS}')
    I('v_lshlrev_b32 v2, 15, v15')
    I('v_lshl_add_u32 v2, v14, 4, v2')
    I('s_lshl_b32 s4, s42, 20')
    I('s_lshl_b32 s5, s43, 10')
    I('s_add_u32 s4, s4, s5')
    I('s_lshl_b32 s5, s3, 7')
    I('s_add_u32 s4, s4, s5')
    I(f's_add_u32 s4, s4, {OP}')
    I('s_add_u32 s5, s4, 0x80000')
    I('s_waitcnt lgkmcnt(0)')
    tick(7)
    barrier()
    tick(8)
    for ht in range(2):
        for t in range(4):
            I(f'ds_read_b128 {vr(148+16*ht+4*t)}, v5 offset:{ht*16*PTS + t*64}')
    for ht in range(2):
        for t in range(4):
            I(f's_waitcnt lgkmcnt({7-4*ht-t})')
            for n in range(4):
                acc = 180 + 16 * ht + 4 * n
                c = '0' if t == 0 else vr(acc)
                I(f'v_mfma_f32_16x16x32_bf16 {vr(acc)}, {vr(84+16*n+4*t)}, {vr(148+16*ht+4*t)}, {c}')
    tick(9)
    nop(1)
    for ht in range(2):
        for n in range(4):
            I(f'v_cvt_pk_bf16_f32 v{20+8*ht+2*n}, v{180+16*ht+4*n}, v{181+16*ht+4*n}')
            I(f'v_cvt_pk_bf16_f32 v{21+8*ht+2*n}, v{182+16*ht+4*n}, v{183+16*ht+4*n}')
        for r in range(8): I(f'v_min_u32 v{20+8*ht+r}, 0xfffffffe, v{20+8*ht+r}')
        so = 's4' if ht == 0 else 's5'
        I(f'buffer_store_dwordx4 {vr(20+8*ht)}, v2, {S(WS)}, {so} offen sc1')
        I(f'buffer_store_dwordx4 {vr(24+8*ht)}, v2, {S(WS)}, {so} offen offset:64 sc1')
    tick(10)
    I('s_cmp_gt_u32 s3, 1')
    skip_if('L_p3_done')
    for ht in range(2):
        for t in range(4):
            acc = 36 + 4 * ht
            c = '0' if t == 0 else vr(acc)
            I(f'v_mfma_f32_16x16x32_bf16 {vr(acc)}, v[16:19], {vr(148+16*ht+4*t)}, {c}')
    I('v_lshlrev_b32 v3, 8, v1')
    I('s_lshl_b32 s4, s42, 13')
    I('s_lshl_b32 s5, s3, 12')
    I('s_add_u32 s4, s4, s5')
    I('s_lshl_b32 s5, s43, 3')
    I('s_add_u32 s4, s4, s5')
    I(f's_add_u32 s4, s4, {ML}')
    I('s_cmp_eq_u32 s3, 0')
    I('s_cselect_b64 vcc, -1, 0')
    nop(2)
    I('v_cndmask_b32 v44, v221, v220, vcc')
    I('v_cndmask_b32 v45, v40, v36, vcc')
    I('v_min_u32 v44, 0xfffffffe, v44')
    I('v_min_u32 v45, 0xfffffffe, v45')
    setexec(0xffff)
    I(f'buffer_store_dwordx2 v[44:45], v3, {S(WS)}, s4 offen sc1')
    fullexec()
    L('L_p3_done')
    tick(11)
    tick_dump(12)
    stamp(8)
    role_end('L_p3_real')

def role_DE_common():
    L('L_de')
    C_, WM = 12, 16
    srd(C_, 'c'); srd(WM, 'wmod')
    I('s_sub_u32 s40, s2, 128')
    I('v_lshrrev_b32 v14, 4, v1')
    I('v_and_b32 v15, 15, v1')
    I('v_lshlrev_b32 v13, 4, v1')
    if XSPLIT:
        I('s_and_b32 s4, s40, 63')
        I('s_and_b32 s5, s4, 3')
        I('s_lshr_b32 s6, s4, 3')
        I('s_lshl_b32 s6, s6, 2')
        I('s_add_u32 s42, s6, s5')
        I('s_bfe_u32 s43, s4, 0x10002')
        I('s_mov_b32 s47, 0')
        I('s_cmp_lt_u32 s40, 64')
        I('s_cbranch_scc1 L_dec_done')
        I('s_cmp_ge_u32 s42, 27')
        I('s_cselect_b32 s47, 1, 0')
    else:
        I('s_cmp_ge_u32 s40, 118')
        I('s_cselect_b32 s47, 1, 0')
        I('s_cmp_ge_u32 s40, 64')
        I('s_cbranch_scc1 L_dec_e')
        I('s_lshr_b32 s4, s40, 4')
        I('s_lshl_b32 s4, s4, 3')
        I('s_and_b32 s5, s40, 7')
        I('s_add_u32 s42, s4, s5')
        I('s_bfe_u32 s43, s40, 0x10003')
        I('s_branch L_dec_done')
        L('L_dec_e')
        I('s_sub_u32 s6, s40, 64')
        I('s_lshr_b32 s4, s6, 4')
        I('s_lshl_b32 s4, s4, 3')
        I('s_and_b32 s5, s6, 7')
        I('s_add_u32 s42, s4, s5')
        I('s_bfe_u32 s43, s6, 0x10003')
        I('s_cmp_lt_u32 s6, 48')
        I('s_cbranch_scc1 L_dec_done')
        I('s_sub_u32 s6, s6, 48')
        I('s_cmp_ge_u32 s6, 3')
        I('s_cselect_b32 s43, 1, 0')
        I('s_mul_i32 s4, s43, 3')
        I('s_sub_u32 s6, s6, s4')
        I('s_add_u32 s42, s6, 24')
    L('L_dec_done')
    sk = uid('noclr')
    I('s_cmp_lg_u32 s3, 7')
    I(f's_cbranch_scc1 {sk}')
    for r in range(4, 8): I(f'v_mov_b32 v{r}, -1')
    I('v_lshrrev_b32 v2, 5, v1')
    I('v_lshlrev_b32 v2, 13, v2')
    I('v_bfe_u32 v3, v1, 4, 1')
    I('v_mul_u32_u24 v3, 15360, v3')
    I('v_add_u32 v2, v2, v3')
    I('v_lshl_add_u32 v2, v15, 4, v2')
    I('s_and_b32 s4, s40, 3')
    I('s_mul_i32 s4, s4, 30720')
    I('s_lshr_b32 s5, s40, 2')
    I('s_lshl_b32 s5, s5, 8')
    I('s_add_u32 s4, s4, s5')
    I(f's_add_u32 s4, s4, {MOD}')
    I('s_cmp_lt_u32 s40, 112')
    I('s_cselect_b32 exec_hi, -1, 0')
    I(f'buffer_store_dwordx4 v[4:7], v2, {S(WS)}, s4 offen sc1')
    fullexec()
    I('s_cmp_ge_u32 s40, 64')
    I('s_cbranch_scc1 L_clr_e')
    I('s_lshl_b32 s4, s43, 5')
    I('s_add_u32 s4, s4, s42')
    I('s_mul_i32 s4, s4, 1280')
    I(f's_add_u32 s4, s4, {AP}')
    I(f'buffer_store_dwordx4 v[4:7], v13, {S(WS)}, s4 offen sc1')
    setexec(0xffff)
    I(f'buffer_store_dwordx4 v[4:7], v13, {S(WS)}, s4 offen offset:1024 sc1')
    fullexec()
    I('s_branch L_clr_done')
    L('L_clr_e')
    I('s_cmp_lg_u32 s47, 0')
    I('s_cbranch_scc1 L_clr_done')
    I('s_mul_i32 s4, s43, 27')
    I('s_add_u32 s4, s4, s42')
    I('s_mul_i32 s4, s4, 2560')
    I(f's_add_u32 s4, s4, {FP}')
    I(f'buffer_store_dwordx4 v[4:7], v13, {S(WS)}, s4 offen sc1')
    I(f'buffer_store_dwordx4 v[4:7], v13, {S(WS)}, s4 offen offset:1024 sc1')
    setexec(0xffffffff)
    I(f'buffer_store_dwordx4 v[4:7], v13, {S(WS)}, s4 offen offset:2048 sc1')
    fullexec()
    L('L_clr_done')
    flag_store(0, 8)
    stamp(9, 7)
    L(sk)
    I('s_and_b32 s45, s40, 3')
    I('s_lshr_b32 s46, s40, 2')
    def dma_addr():
        I('v_lshrrev_b32 v2, 3, v1')
        I('v_and_b32 v3, 7, v1')
        I('v_xor_b32 v3, v3, v2')
        I('v_mul_u32_u24 v2, 7680, v2')
        I('v_lshl_add_u32 v2, v3, 4, v2')
        I('s_mul_i32 s4, s45, 1228800')
        I('s_lshl_b32 s5, s46, 7')
        I('s_add_u32 s4, s4, s5')
    def dma_n(n):
        for q in range(n):
            I('s_mov_b32 m0, s5')
            nop(1)
            I(f'buffer_load_dwordx4 v2, {S(WM)}, s4 offen nt lds')
            if q < n - 1:
                I('s_add_u32 s4, s4, 61440')
                I('s_add_u32 s5, s5, 1024')
    def tr_base(wt):
        I('v_lshrrev_b32 v2, 2, v15')
        I('v_lshl_add_u32 v2, v14, 2, v2')
        I('v_and_b32 v3, 7, v2')
        I('v_bfe_u32 v4, v15, 1, 1')
        I('v_xor_b32 v3, v3, v4')
        I('v_lshlrev_b32 v2, 7, v2')
        I('v_and_b32 v4, 1, v15')
        I('v_lshl_add_u32 v2, v4, 3, v2')
        if wt: I(f'v_add_u32 v2, {wt}, v2')
    def st_reads():
        I('v_and_b32 v5, 1, v15')
        I('v_mul_u32_u24 v5, 320, v5')
        I('v_lshl_add_u32 v5, v14, 4, v5')
        for t in range(5):
            I(f'ds_read_b128 {vr(20+4*t)}, v5 offset:{L_ST + t*64}')
    I('s_cmp_gt_u32 s3, 3')
    I('s_cbranch_scc1 L_c_hi')
    dma_addr()
    I('s_mul_i32 s6, s3, 307200')
    I('s_add_u32 s4, s4, s6')
    I('s_mul_i32 s5, s3, 5120')
    dma_n(5)
    tr_base(0)
    I('s_lshl_b32 s6, s3, 1')
    I('v_xor_b32 v4, s6, v3')
    I('v_lshl_add_u32 v8, v4, 4, v2')
    I('v_mul_u32_u24 v9, 15360, v15')
    I('v_lshl_add_u32 v9, v14, 4, v9')
    I('s_mul_i32 s4, s45, 30720')
    I('s_lshl_b32 s5, s46, 8')
    I('s_add_u32 s4, s4, s5')
    I('s_lshl_b32 s5, s3, 6')
    I('s_add_u32 s4, s4, s5')
    I(f's_add_u32 s44, s4, {MOD}')
    I('s_waitcnt vmcnt(0)')
    I('s_branch L_c_bar')
    L('L_c_hi')
    I('s_cmp_gt_u32 s3, 5')
    I('s_cbranch_scc1 L_c_bar')
    I('s_sub_u32 s6, s3, 4')
    I('s_mul_i32 s4, s6, 1280')
    I('s_mul_i32 s5, s45, 320')
    I('s_add_u32 s4, s4, s5')
    I('v_lshlrev_b32 v2, 3, v1')
    I(f'buffer_load_dwordx2 v[4:5], v2, {S(C_)}, s4 offen')
    I('v_lshrrev_b32 v8, 3, v1')
    I('v_and_b32 v9, 3, v1')
    I('v_bfe_u32 v10, v1, 2, 1')
    I('v_lshlrev_b32 v6, 6, v8')
    I('v_lshl_add_u32 v6, v9, 4, v6')
    I('v_lshl_add_u32 v6, v10, 3, v6')
    I('s_mul_i32 s4, s6, 320')
    I(f's_add_u32 s4, s4, {L_ST}')
    I('v_add_u32 v6, s4, v6')
    I(f'v_mov_b32 v12, {L_FC}')
    I('v_mov_b32 v7, 0')
    I('ds_write_b32 v12, v7')
    I('s_waitcnt vmcnt(0)')
    I('v_lshlrev_b32 v8, 16, v4')
    I('v_and_b32 v9, 0xffff0000, v4')
    I('v_lshlrev_b32 v10, 16, v5')
    I('v_and_b32 v11, 0xffff0000, v5')
    for r in range(4): I(f'v_mul_f32 v{16+r}, 0xbfb8aa3b, v{8+r}')
    for r in range(4): I(f'v_exp_f32 v{16+r}, v{16+r}')
    for r in range(4): I(f'v_add_f32 v{16+r}, 1.0, v{16+r}')
    for r in range(4): I(f'v_rcp_f32 v{16+r}, v{16+r}')
    for r in range(4): I(f'v_mul_f32 v{16+r}, v{8+r}, v{16+r}')
    I('v_cvt_pk_bf16_f32 v4, v16, v17')
    I('v_cvt_pk_bf16_f32 v5, v18, v19')
    setexec(0xffffffff, 0xff)
    I('ds_write_b64 v6, v[4:5]')
    fullexec()
    I('s_waitcnt lgkmcnt(0)')
    L('L_c_bar')
    barrier()
    I('s_cmp_gt_u32 s3, 3')
    I('s_cbranch_scc1 L_c_hi2')
    delay(4)
    st_reads()
    for t in range(5):
        I(f'ds_read_b64_tr_b16 {vr(40+4*t,2)}, v8 offset:{t*4096}')
        I(f'ds_read_b64_tr_b16 {vr(42+4*t,2)}, v8 offset:{t*4096+2048}')
    for t in range(5):
        I(f's_waitcnt lgkmcnt({8-2*t})')
        c = '0' if t == 0 else 'v[60:63]'
        I(f'v_mfma_f32_16x16x32_bf16 v[60:63], {vr(40+4*t)}, {vr(20+4*t)}, {c}')
    nop(9)
    for r in range(4): I(f'v_min_u32 v{60+r}, 0xfffffffe, v{60+r}')
    setexec(0x00030003, 0x00030003)
    I(f'buffer_store_dwordx4 v[60:63], v9, {S(WS)}, s44 offen sc1')
    fullexec()
    tag_compute()
    I('s_branch L_c_done')
    L('L_c_hi2')
    tag_compute()
    I('s_cmp_lg_u32 s3, 6')
    I('s_cbranch_scc1 L_c_n6')
    I('s_cmp_lt_u32 s40, 64')
    I('s_cbranch_scc1 L_c_done')
    for r in range(4, 8): I(f'v_mov_b32 v{r}, -1')
    I('s_sub_u32 s6, s40, 64')
    I('s_lshl_b32 s7, s6, 15')
    I(f's_add_u32 s7, s7, {OP}')
    for i in range(32):
        I(f'buffer_store_dwordx4 v[4:7], v13, {S(WS)}, s7 offen offset:{(i%4)*1024} sc1')
        if i % 4 == 3 and i < 31: I('s_add_u32 s7, s7, 4096')
    I('s_lshl_b32 s7, s6, 8')
    I(f's_add_u32 s7, s7, {ML}')
    setexec(0xffff)
    I(f'buffer_store_dwordx4 v[4:7], v13, {S(WS)}, s7 offen sc1')
    fullexec()
    flag_store(1, 8)
    stamp(10, 6)
    I('s_branch L_c_done')
    L('L_c_n6')
    if EGATE or W1GATE:
        I('s_cmp_lg_u32 s3, 4')
        I('s_cbranch_scc1 L_c_n4')
        flags_wait(2, 0, 64, 2)
        I(f'v_mov_b32 v4, {L_FC}')
        I('v_mov_b32 v5, 1')
        I('ds_write_b32 v4, v5')
        I('s_waitcnt lgkmcnt(0)')
        I('s_branch L_c_done')
        L('L_c_n4')
    I('s_cmp_lg_u32 s3, 5')
    I('s_cbranch_scc1 L_c_done')
    I('s_cmp_ge_u32 s40, 112')
    I('s_cbranch_scc1 L_c_done')
    if W1GATE: lds_gate()
    I('s_add_u32 s46, s46, 32')
    dma_addr()
    I(f's_mov_b32 s5, {L_WT1}')
    dma_n(20)
    st_reads()
    tr_base(L_WT1)
    for n in range(4):
        I(f'v_xor_b32 v4, {2*n}, v3')
        I(f'v_lshl_add_u32 v{8+n}, v4, 4, v2')
    I('s_waitcnt vmcnt(0)')
    for n in range(4):
        for t in range(5):
            I(f'ds_read_b64_tr_b16 {vr(40+20*n+4*t,2)}, v{8+n} offset:{t*4096}')
            I(f'ds_read_b64_tr_b16 {vr(42+20*n+4*t,2)}, v{8+n} offset:{t*4096+2048}')
    I('s_waitcnt lgkmcnt(0)')
    for t in range(5):
        for n in range(4):
            c = '0' if t == 0 else vr(120 + 4 * n)
            I(f'v_mfma_f32_16x16x32_bf16 {vr(120+4*n)}, {vr(40+20*n+4*t)}, {vr(20+4*t)}, {c}')
    nop(9)
    for r in range(16): I(f'v_min_u32 v{120+r}, 0xfffffffe, v{120+r}')
    I('v_mul_u32_u24 v2, 15360, v15')
    I('v_lshl_add_u32 v2, v14, 4, v2')
    I('s_mul_i32 s4, s45, 30720')
    I('s_lshl_b32 s5, s46, 8')
    I('s_add_u32 s4, s4, s5')
    I(f's_add_u32 s4, s4, {MOD}')
    setexec(0x00030003, 0x00030003)
    for n in range(4):
        I(f'buffer_store_dwordx4 {vr(120+4*n)}, v2, {S(WS)}, s4 offen offset:{n*64} sc1')
    fullexec()
    L('L_c_done')
    stamp(1)
    I('s_cmp_ge_u32 s40, 64')
    I('s_cbranch_scc1 L_role_e')

def role_D():
    WUV, WO = 20, 24
    srd(WUV, 'wuv'); srd(WO, 'wo')
    make_masks(16, True)
    make_masks4(244, 1)
    I('v_lshlrev_b32 v2, 17, v14')
    I('v_lshl_add_u32 v2, v15, 4, v2')
    I('s_lshl_b32 s4, s3, 19')
    I('s_lshl_b32 s5, s42, 8')
    I('s_add_u32 s4, s4, s5')
    for t in range(16):
        I(f'buffer_load_dwordx4 {vr(20+4*t)}, v2, {S(WUV)}, s4 offen nt')
        if t < 15: I('s_add_u32 s4, s4, 8192')
    I('s_mul_i32 s5, s42, 163840')
    I('s_cmp_gt_u32 s3, 3')
    I('s_cbranch_scc1 L_d_hi')
    I('v_mul_u32_u24 v3, 40960, v14')
    I('v_lshl_add_u32 v3, v15, 4, v3')
    I('s_lshl_b32 s6, s3, 8')
    I('s_add_u32 s5, s5, s6')
    for t in range(32):
        I(f'buffer_load_dwordx4 {vr(84+4*t)}, v3, {S(WO)}, s5 offen offset:{(t%3)*1280} nt')
        if t % 3 == 2: I('s_add_u32 s5, s5, 3840')
    I('s_waitcnt vmcnt(0)')
    pairperm([(20 + 8 * p, 24 + 8 * p) for p in range(24)], 6)
    I('s_branch L_d_main')
    L('L_d_hi')
    I('v_mul_u32_u24 v3, 10240, v14')
    I('v_lshl_add_u32 v3, v15, 4, v3')
    I('s_sub_u32 s6, s3, 4')
    I('s_mul_i32 s6, s6, 40960')
    I('s_add_u32 s5, s5, s6')
    I('s_add_u32 s5, s5, 1024')
    for t in range(8):
        I(f'buffer_load_dwordx4 {vr(84+4*t)}, v3, {S(WO)}, s5 offen offset:{(t%3)*1280} nt')
        if t % 3 == 2: I('s_add_u32 s5, s5, 3840')
    I('s_waitcnt vmcnt(0)')
    pairperm([(20 + 8 * p, 24 + 8 * p) for p in range(12)], 6)
    L('L_d_main')
    stamp(2)
    I('v_and_b32 v2, 31, v1')
    I('v_lshlrev_b32 v2, 3, v2')
    I('s_lshl_b32 s4, s43, 5')
    I('s_add_u32 s4, s4, s42')
    I('s_lshl_b32 s5, s4, 8')
    I(f's_add_u32 s5, s5, {ML}')
    sk = uid('nolp')
    I('s_cmp_lg_u32 s3, 4')
    I(f's_cbranch_scc1 {sk}')
    I('v_mov_b32 v12, v2')
    flags_wait(1, 192, 64)
    I('v_mov_b32 v2, v12')
    light_poll(lambda r: I(f'buffer_load_dwordx2 v[{r}:{r+1}], v2, {S(WS)}, s5 offen sc1'), 2, 120, 24 * THR)
    L(sk)
    barrier()
    stamp(6)
    sk = uid('noz')
    I('s_cmp_lt_u32 s3, 4')
    I(f's_cbranch_scc1 {sk}')
    I('v_lshlrev_b32 v3, 13, v14')
    I('v_lshl_add_u32 v3, v15, 4, v3')
    I('s_lshl_b32 s6, s4, 15')
    I('s_sub_u32 s46, s3, 4')
    I('s_lshl_b32 s7, s46, 8')
    I('s_add_u32 s6, s6, s7')
    I(f's_add_u32 s48, s6, {OP}')
    I('s_add_u32 s49, s48, 4096')
    lab = spin_begin()
    I(f'buffer_load_dwordx2 v[4:5], v2, {S(WS)}, s5 offen sc1')
    for t in range(8):
        I(f'buffer_load_dwordx4 {vr(164+4*t)}, v3, {S(WS)}, s{48+t//4} offen offset:{(t%4)*1024} sc1')
    I('s_waitcnt vmcnt(0)')
    anysent([4, 5] + list(range(164, 196)), 6)
    spin_end(lab)
    stamp(3, 4)
    I('v_mov_b32 v6, v4')
    allreduce('v_max_f32', 6, 7, half=True)
    I('v_sub_f32 v4, v4, v6')
    I('v_exp_f32 v4, v4')
    I('v_lshlrev_b32 v2, 2, v1')
    I(f's_add_u32 s7, s7, {L_D_WD}')
    I('v_add_u32 v2, s7, v2')
    I('v_cvt_pk_bf16_f32 v8, v4, v4')
    I('ds_write_b32 v2, v8')
    I('v_and_b32 v4, 0xffff0000, v8')
    I('v_mul_f32 v5, v4, v5')
    I('v_lshlrev_b32 v2, 5, v14')
    I('v_add_u32 v2, s7, v2')
    I('s_waitcnt lgkmcnt(0)')
    for q in range(2):
        I(f'ds_read_b128 {vr(196+4*q)}, v2 offset:{q*16}')
    allreduce('v_add_f32', 5, 7, half=True)
    I('v_rcp_f32 v5, v5')
    I('v_lshlrev_b32 v2, 4, v15')
    I('v_lshl_add_u32 v2, v14, 3, v2')
    I('s_lshl_b32 s4, s46, 8')
    I(f's_add_u32 s4, s4, {L_D_CD}')
    I('v_add_u32 v2, s4, v2')
    I('s_waitcnt lgkmcnt(0)')
    gemv_diag(8, lambda t: 196 + t, 16, [204, 208], lambda blk, t: 164 + 4 * t, [8])
    for r in range(4):
        I(f'v_mul_f32 v{8+r}, v{8+r}, v5')
    I('v_cvt_pk_bf16_f32 v8, v8, v9')
    I('v_cvt_pk_bf16_f32 v9, v10, v11')
    setexec(0xffffffff)
    I('ds_write_b64 v2, v[8:9]')
    fullexec()
    L(sk)
    I('v_lshlrev_b32 v2, 5, v14')
    I('s_lshl_b32 s4, s3, 7')
    I(f's_add_u32 s4, s4, {L_D_CD}')
    I('v_add_u32 v2, s4, v2')
    I('s_lshl_b32 s4, s3, 9')
    I(f's_add_u32 s4, s4, {L_D_RED}')
    I('v_add_u32 v3, s4, v13')
    I('s_waitcnt lgkmcnt(0)')
    barrier()
    stamp(4)
    for q in range(2):
        I(f'ds_read_b128 {vr(212+4*q)}, v2 offset:{q*16}')
    I('s_waitcnt lgkmcnt(0)')
    gemv_pair(8, lambda p: 212 + p, 244, [228, 232], lambda blk, t: 20 + 4 * t, [236], [240])
    setexec(0xffff)
    I('ds_write_b128 v3, v[236:239]')
    I('ds_write_b128 v3, v[240:243] offset:256')
    fullexec()
    I('s_waitcnt lgkmcnt(0)')
    barrier()
    sk = uid('nored')
    I('s_cmp_lg_u32 s3, 0')
    I(f's_cbranch_scc1 {sk}')
    I('v_lshlrev_b32 v3, 3, v1')
    I(f'v_add_u32 v3, {L_D_RED}, v3')
    I('v_add_u32 v2, 2048, v3')
    setexec(0xffffffff)
    for w in range(8):
        ad = 'v3' if w < 4 else 'v2'
        I(f'ds_read2_b64 {vr(20+4*w)}, {ad} offset0:{(w%4)*64} offset1:{(w%4)*64+32}')
    I('v_lshlrev_b32 v3, 3, v1')
    I(f'v_add_u32 v3, {L_D_CD}, v3')
    I('s_waitcnt lgkmcnt(0)')
    for st in (1, 2, 4):
        for w in range(0, 8, 2 * st):
            I(f'v_pk_add_f32 {vr(20+4*w,2)}, {vr(20+4*w,2)}, {vr(20+4*(w+st),2)}')
            I(f'v_pk_add_f32 {vr(22+4*w,2)}, {vr(22+4*w,2)}, {vr(22+4*(w+st),2)}')
    I('v_cvt_pk_bf16_f32 v20, v20, v22')
    I('v_cvt_pk_bf16_f32 v21, v21, v23')
    I('ds_write_b64 v3, v[20:21]')
    fullexec()
    I('s_waitcnt lgkmcnt(0)')
    L(sk)
    I('s_lshl_b32 s4, s43, 5')
    I('s_add_u32 s4, s4, s42')
    I('s_mul_i32 s4, s4, 1280')
    I(f's_add_u32 s4, s4, {AP}')
    barrier()
    delay(2)
    I('s_cmp_gt_u32 s3, 3')
    I('s_cbranch_scc1 L_d_hi2')
    I('v_lshlrev_b32 v2, 6, v14')
    I(f'v_add_u32 v2, {L_D_CD}, v2')
    for q in range(4):
        I(f'ds_read_b128 {vr(212+4*q)}, v2 offset:{q*16}')
    I('s_lshl_b32 s5, s3, 8')
    I('s_add_u32 s4, s4, s5')
    I('s_waitcnt lgkmcnt(0)')
    gemv_pair(16, lambda p: 212 + p, 244, [228, 232], lambda blk, t: 84 + 4 * t, [236], [240])
    for r in range(4):
        I(f'v_cvt_pk_bf16_f32 v{236+r}, v{236+r}, v{240+r}')
        I(f'v_min_u32 v{236+r}, 0xfffffffe, v{236+r}')
    setexec(0xffff)
    I(f'buffer_store_dwordx4 v[236:239], v13, {S(WS)}, s4 offen sc1')
    fullexec()
    stamp(5)
    barrier()
    I('s_branch L_end')
    L('L_d_hi2')
    I('v_lshlrev_b32 v2, 4, v14')
    I('s_lshl_b32 s5, s46, 6')
    I(f's_add_u32 s5, s5, {L_D_CD}')
    I('v_add_u32 v2, s5, v2')
    I('ds_read_b128 v[212:215], v2')
    I('s_lshl_b32 s5, s46, 9')
    I(f's_add_u32 s5, s5, {L_D_RED}')
    I('v_add_u32 v3, s5, v13')
    I('s_waitcnt lgkmcnt(0)')
    gemv_pair(4, lambda p: 212 + p, 244, [228, 232], lambda blk, t: 84 + 4 * t, [236], [240])
    setexec(0xffff)
    I('ds_write_b128 v3, v[236:239]')
    I('ds_write_b128 v3, v[240:243] offset:256')
    fullexec()
    I('s_waitcnt lgkmcnt(0)')
    barrier()
    I('s_cmp_lg_u32 s3, 4')
    I('s_cbranch_scc1 L_end')
    I(f'v_add_u32 v3, {L_D_RED}, v13')
    setexec(0xffff)
    for w in range(4):
        I(f'ds_read_b128 {vr(20+8*w)}, v3 offset:{w*512}')
        I(f'ds_read_b128 {vr(24+8*w)}, v3 offset:{w*512+256}')
    I('s_waitcnt lgkmcnt(0)')
    for q in range(4):
        I(f'v_pk_add_f32 {vr(20+2*q,2)}, {vr(20+2*q,2)}, {vr(28+2*q,2)}')
        I(f'v_pk_add_f32 {vr(36+2*q,2)}, {vr(36+2*q,2)}, {vr(44+2*q,2)}')
        I(f'v_pk_add_f32 {vr(20+2*q,2)}, {vr(20+2*q,2)}, {vr(36+2*q,2)}')
    for r in range(4):
        I(f'v_cvt_pk_bf16_f32 v{20+r}, v{20+r}, v{24+r}')
        I(f'v_min_u32 v{20+r}, 0xfffffffe, v{20+r}')
    I(f'buffer_store_dwordx4 v[20:23], v13, {S(WS)}, s4 offen offset:1024 sc1')
    fullexec()
    stamp(7, 4)
    I('s_branch L_end')

def role_E():
    L('L_role_e')
    WG, WU, WD, X_, OUT = 20, 24, 28, 32, 36
    srd(WG, 'wg'); srd(WU, 'wu'); srd(WD, 'wd'); srd(X_, 'x'); srd(OUT, 'out')
    make_masks(16, True)
    make_masks4(240, 1)
    L('L_e_init')
    if EGATE: lds_gate()
    I('s_cmp_lg_u32 s47, 0')
    I('s_cbranch_scc1 L_end')
    I('v_mul_u32_u24 v2, 69120, v14')
    I('v_and_b32 v3, 7, v15')
    I('v_lshl_add_u32 v2, v3, 4, v2')
    I('s_mul_i32 s4, s3, 276480')
    I('s_lshl_b32 s5, s42, 7')
    I('s_add_u32 s4, s4, s5')
    I('s_mov_b32 s6, 0x00ff00ff')
    I('s_mov_b32 s7, 0x00ff00ff')
    I('s_mov_b32 s48, 0xff00ff00')
    I('s_mov_b32 s49, 0xff00ff00')
    lds = []
    for t in range(20):
        lds.append(([] if t == 0 else ['s_add_u32 s4, s4, 3456']) + ['s_mov_b64 exec, s[6:7]',
                   f'buffer_load_dwordx4 {vr(20+4*t)}, v2, {S(WG)}, s4 offen nt'])
        lds.append(['s_mov_b64 exec, s[48:49]', f'buffer_load_dwordx4 {vr(20+4*t)}, v2, {S(WU)}, s4 offen nt'])
    paced(lds, 2 * EPACE)
    fullexec()
    I('s_mul_i32 s4, s42, 81920')
    I('s_cmp_gt_u32 s3, 3')
    I('s_cbranch_scc1 L_e_hi')
    I('v_mul_u32_u24 v2, 20480, v14')
    I('v_lshl_add_u32 v2, v15, 4, v2')
    I('s_lshl_b32 s5, s3, 8')
    I('s_add_u32 s4, s4, s5')
    for t in range(16):
        I(f'buffer_load_dwordx4 {vr(100+4*t)}, v2, {S(WD)}, s4 offen nt')
        if t < 15: I('s_add_u32 s4, s4, 1280')
    I('s_waitcnt vmcnt(0)')
    pairperm([(20 + 8 * p, 24 + 8 * p) for p in range(18)], 6)
    I('s_branch L_e_main')
    L('L_e_hi')
    I('v_mul_u32_u24 v2, 5120, v14')
    I('v_lshl_add_u32 v2, v15, 4, v2')
    I('s_sub_u32 s5, s3, 4')
    I('s_mul_i32 s5, s5, 20480')
    I('s_add_u32 s4, s4, s5')
    I('s_add_u32 s4, s4, 1024')
    for t in range(4):
        I(f'buffer_load_dwordx4 {vr(100+4*t)}, v2, {S(WD)}, s4 offen nt')
        if t < 3: I('s_add_u32 s4, s4, 1280')
    I('s_waitcnt vmcnt(0)')
    pairperm([(20 + 8 * p, 24 + 8 * p) for p in range(12)], 6)
    if DRY:
        I('s_cmp_lg_u32 s3, 7')
        I('s_cbranch_scc1 L_e_main')
        enter_dry('L_e_main')
    L('L_e_main')
    sk = uid('nofw')
    I('s_cmp_lg_u32 s3, 0')
    skip_if(sk)
    flags_wait(0)
    L(sk)
    barrier()
    stamp(2)
    I('v_and_b32 v2, 1, v14')
    I('v_lshlrev_b32 v2, 2, v2')
    I('v_lshl_add_u32 v2, v15, 3, v2')
    I('s_lshl_b32 s4, s3, 7')
    I('v_add_u32 v12, s4, v2')
    sk5 = uid('w5')
    I('s_cmp_gt_u32 s3, 4')
    skip_if(sk5)
    I('v_lshlrev_b32 v2, 1, v12')
    I('s_mul_i32 s4, s43, 1280')
    I(f'buffer_load_dwordx2 v[4:5], v2, {S(X_)}, s4 offen')
    I('v_lshlrev_b32 v2, 2, v12')
    I('s_mul_i32 s4, s43, 15360')
    I(f's_add_u32 s48, s4, {MOD + 2*2560}')
    for i in range(1, 12):
        p, kq = i % 3, i // 3
        I(f's_add_u32 s{48+i}, s48, {p*2560 + kq*30720}')
    lab = spin_begin()
    for i in range(12):
        I(f'buffer_load_dwordx4 {vr(164+4*i)}, v2, {S(WS)}, s{48+i} offen sc1')
    I('s_waitcnt vmcnt(0)')
    anysent(range(164, 212), 6)
    spin_end(lab)
    for p in range(3):
        for r in range(4):
            a = 164 + 4 * p + r
            I(f'v_add_f32 v{a}, v{a}, v{a+12}')
            I(f'v_add_f32 v{a+24}, v{a+24}, v{a+36}')
            I(f'v_add_f32 v{a}, v{a}, v{a+24}')
            bfround(a)
    I('v_lshlrev_b32 v176, 16, v4')
    I('v_and_b32 v177, 0xffff0000, v4')
    I('v_lshlrev_b32 v178, 16, v5')
    I('v_and_b32 v179, 0xffff0000, v5')
    for r in range(4):
        I(f'v_add_f32 v{172+r}, 1.0, v{172+r}')
        bfround(172 + r)
    for d in range(4): I(f'v_and_b32 v{204+d}, 0x3f803f80, v{16+d}')
    I('v_mul_u32_u24 v3, 10240, v14')
    I('v_lshl_add_u32 v3, v15, 4, v3')
    I('s_mul_i32 s4, s43, 40960')
    I('s_lshl_b32 s5, s3, 8')
    I('s_add_u32 s4, s4, s5')
    I(f's_add_u32 s4, s4, {AP}')
    I('s_add_u32 s5, s4, 3840')
    I('s_add_u32 s6, s4, 7680')
    L(sk5)
    sk = uid('nolp')
    I('s_cmp_lg_u32 s3, 5')
    skip_if(sk)
    I('v_and_b32 v2, 31, v1')
    I('v_mul_u32_u24 v2, 1280, v2')
    I('s_mul_i32 s4, s43, 40960')
    I(f's_add_u32 s4, s4, {AP + 1276}')
    light_poll(lambda r: I(f'buffer_load_dword v{r}, v2, {S(WS)}, s4 offen sc1'), 1, 4, 24 * THR)
    L(sk)
    barrier()
    stamp(6)
    tick(0)
    sk5 = uid('w5a')
    I('s_cmp_gt_u32 s3, 4')
    skip_if(sk5)
    lab = spin_begin()
    for t in range(8):
        so = ['s4', 's5', 's6'][t // 3]
        I(f'buffer_load_dwordx4 {vr(208+4*t)}, v3, {S(WS)}, {so} offen offset:{(t%3)*1280} sc1')
    I('s_waitcnt vmcnt(0)')
    anysent(range(208, 240), 6)
    spin_end(lab)
    stamp(3)
    tick(1)
    for t in range(8):
        c = '0' if t == 0 else 'v[180:183]'
        I(f'v_mfma_f32_16x16x32_bf16 v[180:183], v[204:207], {vr(208+4*t)}, {c}')
    nop(9)
    for r in range(4):
        bfround(180 + r)
        I(f'v_mul_f32 v{180+r}, v{164+r}, v{180+r}')
        bfround(180 + r)
        I(f'v_add_f32 v{180+r}, v{176+r}, v{180+r}')
        bfround(180 + r)
    tick(2)
    I('v_cmp_gt_u32 vcc, 32, v1')
    I('v_add_f32 v6, v180, v181')
    I('v_add_f32 v7, v182, v183')
    I('v_add_f32 v6, v6, v7')
    I('v_cndmask_b32 v6, 0, v6, vcc')
    allreduce('v_add_f32', 6, 7)
    I('v_mul_f32 v6, 0x3c000000, v6')
    for r in range(4): I(f'v_sub_f32 v{184+r}, v{180+r}, v6')
    I('v_mul_f32 v8, v184, v184')
    for r in range(1, 4): I(f'v_fmac_f32 v8, v{184+r}, v{184+r}')
    I('v_cndmask_b32 v8, 0, v8, vcc')
    allreduce('v_add_f32', 8, 7)
    I('v_mov_b32 v7, v8')
    I('s_lshl_b32 s4, s3, 3')
    I(f's_add_u32 s4, s4, {L_E_STAT}')
    I('v_mov_b32 v2, s4')
    I('v_lshlrev_b32 v3, 2, v12')
    I(f'v_add_u32 v3, {L_E_X1}, v3')
    setexec(1)
    I('ds_write_b64 v2, v[6:7]')
    setexec(0xffffffff)
    I('ds_write_b128 v3, v[180:183]')
    fullexec()
    I('s_waitcnt lgkmcnt(0)')
    L(sk5)
    tick(3)
    barrier()
    tick(4)
    sk5 = uid('w5b')
    I('s_cmp_gt_u32 s3, 4')
    skip_if(sk5)
    I(f'v_mov_b32 v2, {L_E_STAT}')
    I('ds_read_b128 v[184:187], v2')
    I('ds_read_b128 v[188:191], v2 offset:16')
    I('ds_read_b64 v[192:193], v2 offset:32')
    I('s_waitcnt lgkmcnt(0)')
    I('v_add_f32 v6, v184, v186')
    I('v_add_f32 v6, v6, v188')
    I('v_add_f32 v6, v6, v190')
    I('v_add_f32 v6, v6, v192')
    I('v_mul_f32 v6, 0x3e4ccccd, v6')
    I('v_add_f32 v7, v185, v187')
    I('v_add_f32 v7, v7, v189')
    I('v_add_f32 v7, v7, v191')
    I('v_add_f32 v7, v7, v193')
    for k in range(5):
        I(f'v_sub_f32 v8, v{184+2*k}, v6')
        I('v_mul_f32 v8, v8, v8')
        I('v_fmac_f32 v7, 0x43000000, v8')
    I('v_mul_f32 v7, 0x3acccccd, v7')
    bfround(6); bfround(7)
    I('v_add_f32 v7, 0x3727c5ac, v7')
    bfround(7)
    I('v_sqrt_f32 v7, v7')
    nop(1)
    bfround(7)
    I('v_rcp_f32 v7, v7')
    for r in range(4):
        I(f'v_sub_f32 v{184+r}, v{180+r}, v6')
        bfround(184 + r)
        I(f'v_mul_f32 v{184+r}, v{184+r}, v7')
        bfround(184 + r)
        I(f'v_mul_f32 v{184+r}, v{184+r}, v{172+r}')
        bfround(184 + r)
        I(f'v_add_f32 v{184+r}, v{184+r}, v{168+r}')
    I('v_cvt_pk_bf16_f32 v184, v184, v185')
    I('v_cvt_pk_bf16_f32 v185, v186, v187')
    I('v_lshlrev_b32 v3, 1, v12')
    I(f'v_add_u32 v3, {L_E_HT}, v3')
    setexec(0xffffffff)
    I('ds_write_b64 v3, v[184:185]')
    fullexec()
    I('s_waitcnt lgkmcnt(0)')
    L(sk5)
    tick(5)
    barrier()
    tick(6)
    stamp(4)
    I('v_mul_u32_u24 v2, 40, v14')
    I('s_mul_i32 s4, s3, 160')
    I(f's_add_u32 s4, s4, {L_E_HT}')
    I('v_add_u32 v2, s4, v2')
    for q in range(5):
        I(f'ds_read_b64 {vr(164+2*q,2)}, v2 offset:{q*8}')
    I('s_lshl_b32 s4, s3, 9')
    I(f's_add_u32 s4, s4, {L_E_RED}')
    I('v_add_u32 v3, s4, v13')
    I('s_waitcnt lgkmcnt(0)')
    gemv_pair(10, lambda p: 164 + p, 240, [204, 208], lambda blk, t: 20 + 4 * t, [212], [216])
    setexec(0xffff)
    I('ds_write_b128 v3, v[212:215]')
    I('ds_write_b128 v3, v[216:219] offset:256')
    fullexec()
    I('s_waitcnt lgkmcnt(0)')
    tick(7)
    barrier()
    tick(8)
    sk = uid('nohh')
    I('s_cmp_lg_u32 s3, 0')
    skip_if(sk)
    I('v_lshrrev_b32 v2, 5, v1')
    I('v_and_b32 v3, 31, v1')
    I('v_lshlrev_b32 v3, 2, v3')
    I('v_lshl_add_u32 v3, v2, 8, v3')
    I(f'v_add_u32 v3, {L_E_RED}, v3')
    for w in range(8):
        I(f'ds_read2_b32 {vr(164+2*w,2)}, v3 offset0:{(w%2)*128} offset1:{(w%2)*128+32}' if w < 2 else
          f'ds_read2_b32 {vr(164+2*w,2)}, v{4+w//2} offset0:{(w%2)*128} offset1:{(w%2)*128+32}')
        if w % 2 == 1 and w < 7: I(f'v_add_u32 v{5+w//2}, {1024*(w//2+1)}, v3')
    I('v_and_b32 v3, 31, v1')
    I('v_lshlrev_b32 v3, 2, v3')
    I('v_lshl_add_u32 v3, v2, 1, v3')
    I(f'v_add_u32 v3, {L_E_HH}, v3')
    I('s_waitcnt lgkmcnt(0)')
    for st in (1, 2, 4):
        for w in range(0, 8, 2 * st):
            I(f'v_pk_add_f32 {vr(164+2*w,2)}, {vr(164+2*w,2)}, {vr(164+2*(w+st),2)}')
    I('v_cvt_pk_bf16_f32 v166, v164, v165')
    I('v_lshlrev_b32 v164, 16, v166')
    I('v_and_b32 v165, 0xffff0000, v166')
    I('v_mul_f32 v164, 0xbfb8aa3b, v164')
    I('v_exp_f32 v164, v164')
    nop(1)
    I('v_add_f32 v164, 1.0, v164')
    I('v_rcp_f32 v164, v164')
    nop(1)
    bfround(164)
    I('v_mul_f32 v164, v164, v165')
    I('v_cvt_pk_bf16_f32 v164, v164, v164')
    I('ds_write_b16 v3, v164')
    I('s_waitcnt lgkmcnt(0)')
    L(sk)
    I('s_mul_i32 s4, s43, 27')
    I('s_add_u32 s4, s4, s42')
    I('s_mul_i32 s4, s4, 2560')
    I(f's_add_u32 s4, s4, {FP}')
    tick(9)
    barrier()
    delay(3)
    tick(10)
    I('s_cmp_gt_u32 s3, 3')
    I('s_cbranch_scc1 L_e_hi2')
    I('v_lshlrev_b32 v2, 5, v14')
    I(f'v_add_u32 v2, {L_E_HH}, v2')
    for q in range(2):
        I(f'ds_read_b128 {vr(164+4*q)}, v2 offset:{q*16}')
    I('s_lshl_b32 s5, s3, 9')
    I('s_add_u32 s4, s4, s5')
    I('s_waitcnt lgkmcnt(0)')
    gemv_pair(8, lambda p: 164 + p, 240, [204, 208], lambda blk, t: 100 + 4 * t, [212], [216])
    for r in range(8): I(f'v_min_u32 v{212+r}, 0xfffffffe, v{212+r}')
    setexec(0xffff)
    I(f'buffer_store_dwordx4 v[212:215], v13, {S(WS)}, s4 offen sc1')
    I(f'buffer_store_dwordx4 v[216:219], v13, {S(WS)}, s4 offen offset:256 sc1')
    fullexec()
    tick(11)
    tick_dump(12)
    stamp(5)
    barrier()
    I('s_branch L_end')
    L('L_e_hi2')
    I('s_sub_u32 s46, s3, 4')
    I('v_lshlrev_b32 v2, 3, v14')
    I('s_lshl_b32 s5, s46, 5')
    I(f's_add_u32 s5, s5, {L_E_HH}')
    I('v_add_u32 v2, s5, v2')
    I('ds_read_b64 v[164:165], v2')
    I('s_lshl_b32 s5, s46, 9')
    I(f's_add_u32 s5, s5, {L_E_RED}')
    I('v_add_u32 v3, s5, v13')
    I('s_waitcnt lgkmcnt(0)')
    gemv_pair(2, lambda p: 164 + p, 240, [204, 208], lambda blk, t: 100 + 4 * t, [212], [216])
    setexec(0xffff)
    I('ds_write_b128 v3, v[212:215]')
    I('ds_write_b128 v3, v[216:219] offset:256')
    fullexec()
    I('s_waitcnt lgkmcnt(0)')
    barrier()
    I('s_cmp_lg_u32 s3, 4')
    I('s_cbranch_scc1 L_final')
    I(f'v_add_u32 v3, {L_E_RED}, v13')
    setexec(0xffff)
    for w in range(4):
        I(f'ds_read_b128 {vr(20+8*w)}, v3 offset:{w*512}')
        I(f'ds_read_b128 {vr(24+8*w)}, v3 offset:{w*512+256}')
    I('s_waitcnt lgkmcnt(0)')
    for q in range(4):
        I(f'v_pk_add_f32 {vr(20+2*q,2)}, {vr(20+2*q,2)}, {vr(28+2*q,2)}')
        I(f'v_pk_add_f32 {vr(36+2*q,2)}, {vr(36+2*q,2)}, {vr(44+2*q,2)}')
        I(f'v_pk_add_f32 {vr(20+2*q,2)}, {vr(20+2*q,2)}, {vr(36+2*q,2)}')
    for r in range(8): I(f'v_min_u32 v{20+r}, 0xfffffffe, v{20+r}')
    I('s_add_u32 s4, s4, 2048')
    I(f'buffer_store_dwordx4 v[20:23], v13, {S(WS)}, s4 offen sc1')
    I(f'buffer_store_dwordx4 v[24:27], v13, {S(WS)}, s4 offen offset:256 sc1')
    fullexec()
    I('s_branch L_end')
    L('L_final')
    I('s_cmp_lg_u32 s3, 5')
    skip_if('L_end')
    I('s_cmp_ge_u32 s42, 10')
    skip_if('L_end')
    I('s_lshl_b32 s4, s42, 6')
    I('v_add_u32 v12, s4, v1')
    I('v_lshlrev_b32 v2, 2, v12')
    I(f'v_add_u32 v3, {L_E_X1}, v2')
    I('ds_read_b32 v10, v3')
    I('v_lshrrev_b32 v4, 7, v12')
    I('v_lshlrev_b32 v4, 9, v4')
    I('v_and_b32 v5, 1, v12')
    I('v_lshl_add_u32 v4, v5, 8, v4')
    I('v_bfe_u32 v5, v12, 3, 4')
    I('v_lshl_add_u32 v4, v5, 4, v4')
    I('v_bfe_u32 v5, v12, 1, 2')
    I('v_lshl_add_u32 v4, v5, 2, v4')
    I('s_mul_i32 s4, s43, 15360')
    I(f's_add_u32 s4, s4, {MOD + 5*2560}')
    I('s_mul_i32 s5, s43, 69120')
    I(f's_add_u32 s5, s5, {FP}')
    lab = spin_begin()
    I('s_mov_b32 s6, s4')
    for kq in range(4):
        I(f'buffer_load_dword v{48+kq}, v2, {S(WS)}, s6 offen sc1')
        if kq < 3: I('s_add_u32 s6, s6, 30720')
    I('s_waitcnt vmcnt(0)')
    anysent(list(range(48, 52)), 6)
    spin_end(lab)
    for p in range(9): I(f's_add_u32 s{48+p}, s5, {p*7680}')
    def fissue(base):
        for p in range(27):
            I(f'buffer_load_dword v{base+p}, v4, {S(WS)}, s{48+p//3} offen offset:{(p%3)*2560 if (p%3)*2560 < 4096 else 0} sc1'
              if p % 3 < 2 else f'buffer_load_dword v{base+p}, v5, {S(WS)}, s{48+p//3} offen sc1')
    I('v_add_u32 v5, 5120, v4')
    I('s_mov_b32 s98, 0')
    fissue(20)
    I('s_sleep 6')
    L('L_fin_top')
    fissue(60)
    I('s_waitcnt vmcnt(27)')
    anysent(list(range(20, 47)), 6)
    I('s_cbranch_vccz L_fin_done')
    fissue(20)
    I('s_waitcnt vmcnt(27)')
    anysent(list(range(60, 87)), 6)
    I('s_cbranch_vccz L_fin_b')
    I('s_add_u32 s98, s98, 1')
    I(f's_cmp_gt_u32 s98, {SPIN_LIMIT}')
    I('s_cbranch_scc1 L_end')
    I('s_branch L_fin_top')
    L('L_fin_b')
    I('s_waitcnt vmcnt(0)')
    for p in range(27): I(f'v_mov_b32 v{20+p}, v{60+p}')
    L('L_fin_done')
    I('v_add_f32 v11, v48, v49')
    I('v_add_f32 v50, v50, v51')
    I('v_add_f32 v11, v11, v50')
    bfround(11)
    for p in range(1, 27): I(f'v_add_f32 v20, v20, v{20+p}')
    bfround(20)
    I('v_mul_f32 v20, v11, v20')
    bfround(20)
    I('s_waitcnt lgkmcnt(0)')
    I('v_add_f32 v20, v10, v20')
    I('v_cvt_pk_bf16_f32 v20, v20, v20')
    I('v_lshlrev_b32 v2, 1, v12')
    I('s_mul_i32 s4, s43, 1280')
    I(f'buffer_store_short v20, v2, {S(OUT)}, s4 offen')
    stamp(7, 5)
    if DBGT:
        I('s_memrealtime s[60:61]')
        I('s_mov_b32 s20, s90')
        I('s_and_b32 s21, s91, 0xffff')
        I('s_mov_b32 s22, 256')
        I('s_mov_b32 s23, 0x00020000')
        I('s_waitcnt lgkmcnt(0)')
        I('s_sub_u32 s60, s60, s56')
        I('v_mov_b32 v4, s60')
        I('s_mul_i32 s5, s43, 10')
        I('s_add_u32 s5, s5, s42')
        I('s_lshl_b32 s5, s5, 2')
        I('v_mov_b32 v5, 0')
        setexec(1)
        I('buffer_store_dword v4, v5, s[20:23], s5 offen')
        fullexec()
    role_end('L_e_main')

prologue()
role_P12()
role_P3()
role_DE_common()
role_D()
role_E()
L('L_end')
I('s_endpgm')

def wrap_vm(ls):
    out = []; i = 0; n = 0
    while i < len(ls):
        x = ls[i].strip()
        def isvm(k):
            y = ls[k].strip()
            return y.startswith('buffer_store') or (not INSPIN[k] and (y.startswith('s_waitcnt vmcnt') or (y.startswith('buffer_load') and ' nt' not in y)))
        if isvm(i):
            j = i
            while j < len(ls) and isvm(j):
                j += 1
            n += 1
            out.append(f'    s_cbranch_execz L_vs_{n}')
            out += ls[i:j]
            out.append(f'L_vs_{n}:')
            i = j
        else:
            out.append(ls[i]); i += 1
    return out
if DRY:
    INSPIN = []
    ins = False
    for x in lines:
        t = x.strip()
        if re.match(r'L_spin_\d+:$', t): ins = True
        if re.match(r'L_spin_\d+_x:$', t): ins = False
        INSPIN.append(ins)
    lines = wrap_vm(lines)
hdr = open('cdna_kernels/' + NAME + '.s.ref').read().split('\n')
out = []
for ln in hdr:
    if ln.startswith('; @launch'):
        out.append(f'; @launch grid=(256,1,1) block=(512,1,1) lds={LDS_BYTES}')
    elif ln.startswith(';'):
        out.append(ln)
    else:
        break
out += ['.amdgcn_target "amdgcn-amd-amdhsa--gfx950"', '.text', f'.globl {NAME}_kernel', '.p2align 8',
        f'.type {NAME}_kernel,@function', f'{NAME}_kernel:']
out += lines
out += ['.section .rodata,"a"', '.p2align 6', f'.amdhsa_kernel {NAME}_kernel',
        '  .amdhsa_next_free_vgpr 256', '  .amdhsa_next_free_sgpr 102', '  .amdhsa_accum_offset 256',
        '  .amdhsa_group_segment_fixed_size 0', '  .amdhsa_kernarg_size 120', '  .amdhsa_user_sgpr_count 2',
        '  .amdhsa_user_sgpr_kernarg_segment_ptr 1', '  .amdhsa_system_sgpr_workgroup_id_x 1',
        '.end_amdhsa_kernel', '']
open(sys.argv[1], 'w').write('\n'.join(out))
```

```python
import sys, re

NAME = 'adaLN_cond__compressed_kv_cla__glu_gated_glu__decode'
STAMP = int(sys.argv[2]) if len(sys.argv) > 2 else 0
DBGT = (STAMP == 2)
if DBGT: STAMP = 0
SPIN_LIMIT = 200000

EPOCH = 0
FLAGS = 2048
MOD = 8192
QP = 131072
QA = 262144
ML = 327680
AP = 360448
FP = 442368
STP = 589824
OP = 1048576
WS_BYTES = OP + 2 * 32 * 32 * 1024

CKS = 1040
L_WU = 0
L_HD = 66560
L_RED = L_HD + 2560
L_QT2 = L_RED + 5120
L_CK = 0
L_QT = 0
PTS = 272
L_PT = 133120
L_MX = L_PT + 32 * PTS
LDS_BYTES = L_MX + 1024
L_WT0 = 0
L_WT1 = 20480
L_ST = 40960
L_FC = 44032
L_D_WD = 45056
L_D_CD = 46080
L_D_RED = 49152
L_D_RED2 = 53248
L_E_STAT = 45056
L_E_X1 = 45312
L_E_HT = 48128
L_E_RED = 53248
L_E_HH = 57344
PACE = int(sys.argv[3]) if len(sys.argv) > 3 else 6
SLOWN = int(sys.argv[4]) if len(sys.argv) > 4 else 6
DRY = int(sys.argv[5]) if len(sys.argv) > 5 else 0
EGATE = int(sys.argv[6]) if len(sys.argv) > 6 else 1
EPACE = int(sys.argv[7]) if len(sys.argv) > 7 else 6
SLOWP = int(sys.argv[8]) if len(sys.argv) > 8 else 2
LATEC = int(sys.argv[9]) if len(sys.argv) > 9 else 0
CK0 = int(sys.argv[10]) if len(sys.argv) > 10 else 4
CK1 = int(sys.argv[11]) if len(sys.argv) > 11 else 6
W1GATE = int(sys.argv[12]) if len(sys.argv) > 12 else 0
XSPLIT = int(sys.argv[13]) if len(sys.argv) > 13 else 0
P3GATE = int(sys.argv[14]) if len(sys.argv) > 14 else 0
WU0 = int(sys.argv[15]) if len(sys.argv) > 15 else 6
THR = int(sys.argv[16]) if len(sys.argv) > 16 else 1
DELAY = int(sys.argv[17]) if len(sys.argv) > 17 else 0
AGATE = int(sys.argv[18]) if len(sys.argv) > 18 else 0

TAGC_LO = 0x7F4A7C15
TAGC_HI = 0x9E3779B9

lines = []
def I(s): lines.append('    ' + s)
def L(s): lines.append(s + ':')
def C(s): lines.append('    ; ' + s)
def nop(n):
    while n > 0:
        k = min(n, 16)
        I(f's_nop {k-1}')
        n -= k
_uid = [0]
def uid(p):
    _uid[0] += 1
    return f'L_{p}_{_uid[0]}'
def vr(a, n=4): return f'v[{a}:{a+n-1}]'

PTR = {k: 64 + 2 * i for i, k in enumerate(
    ['x', 'ckv', 'wq', 'wuk', 'wuv', 'wo', 'bx', 'wg', 'wu', 'wd', 'c', 'wmod', 'out', 'dbg', 'ws'])}
NBYTES = dict(x=2560, ckv=8388608, wq=5242880, wuk=4194304, wuv=4194304, wo=5242880, wg=2211840, wu=2211840,
              wd=2211840, c=2560, wmod=4915200, out=2560, ws=WS_BYTES)
def srd(d, name):
    p = PTR[name]
    I(f's_mov_b32 s{d}, s{p}')
    I(f's_and_b32 s{d+1}, s{p+1}, 0xffff')
    I(f's_mov_b32 s{d+2}, {NBYTES[name]}')
    I(f's_mov_b32 s{d+3}, 0x00020000')
def S(d): return f's[{d}:{d+3}]'
WS = 8

def setexec(lo, hi=0):
    I(f's_and_b32 exec_lo, s100, 0x{lo:x}')
    if hi: I(f's_and_b32 exec_hi, s100, 0x{hi:x}')
    else: I('s_mov_b32 exec_hi, 0')
def fullexec():
    I('s_mov_b64 exec, s[100:101]')
def skip_if(lab):
    I('s_cselect_b32 s99, s100, 0')
    I('s_cmp_lg_u32 s99, 0')
    I(f's_cbranch_scc1 {lab}')
def barrier():
    o = uid('bar')
    I('s_cmp_eq_u32 s100, 0')
    I(f's_cbranch_scc1 {o}')
    I('s_barrier')
    L(o)
def enter_dry(target):
    I('s_mov_b64 s[100:101], 0')
    I('s_mov_b64 exec, 0')
    I(f's_branch {target}')
def role_end(back):
    I('s_cmp_lg_u32 s100, 0')
    I('s_cbranch_scc1 L_end')
    I('s_mov_b64 s[100:101], -1')
    I('s_mov_b64 exec, -1')
    I(f's_branch {back}')

def stamp(idx, wave=0):
    if STAMP != 1: return
    skip = uid('st')
    I(f's_cmp_lg_u32 s3, {wave}')
    I(f's_cbranch_scc1 {skip}')
    I('s_memrealtime s[60:61]')
    I('s_waitcnt lgkmcnt(0)')
    I('v_mov_b32 v254, s60')
    I('v_mov_b32 v255, s61')
    I(f's_lshl_b32 s62, s2, 7')
    I(f's_add_u32 s62, s62, {STP + idx*8}')
    I('v_mov_b32 v253, 0')
    I('s_mov_b64 s[58:59], exec')
    setexec(1)
    I(f'buffer_store_dwordx2 v[254:255], v253, {S(WS)}, s62 offen')
    I('s_mov_b64 exec, s[58:59]')
    L(skip)

TICK = (STAMP == 3)
def tick(i):
    if TICK: I(f's_memtime s[{64+2*i}:{65+2*i}]')
def tick_dump(n):
    if not TICK: return
    skip = uid('tk')
    I('s_cmp_lg_u32 s3, 0')
    I(f's_cbranch_scc1 {skip}')
    I('s_waitcnt lgkmcnt(0)')
    I('s_mov_b64 s[58:59], exec')
    setexec(1)
    I('v_mov_b32 v253, 0')
    for i in range(n):
        I(f'v_mov_b32 v254, s{64+2*i}')
        I(f'v_mov_b32 v255, s{65+2*i}')
        I(f's_lshl_b32 s62, s2, 7')
        I(f's_add_u32 s62, s62, {STP + i*8}')
        I(f'buffer_store_dwordx2 v[254:255], v253, {S(WS)}, s62 offen')
        nop(2)
    I('s_mov_b64 exec, s[58:59]')
    L(skip)

def delay(place):
    if DELAY == place:
        for _ in range(1): I('s_sleep 110')

def spin_begin():
    lab = uid('spin')
    I(f's_cbranch_execz {lab}_x')
    I('s_mov_b32 s98, 0')
    L(lab)
    return lab
def spin_end(lab, sleep=1):
    done = uid('spd')
    I(f's_cbranch_vccz {done}')
    I('s_add_u32 s98, s98, 1')
    I(f's_cmp_gt_u32 s98, {SPIN_LIMIT}')
    I('s_cbranch_scc1 L_end')
    I(f's_sleep {sleep}')
    I(f's_branch {lab}')
    L(done)
    L(f'{lab}_x')

def anysent(regs, tmp):
    regs = list(regs)
    cur = regs[0]; rest = regs[1:]
    while rest:
        if len(rest) >= 2:
            I(f'v_max3_u32 v{tmp}, v{cur}, v{rest[0]}, v{rest[1]}'); rest = rest[2:]
        else:
            I(f'v_max_u32 v{tmp}, v{cur}, v{rest[0]}'); rest = rest[1:]
        cur = tmp
    I(f'v_cmp_eq_u32 vcc, -1, v{cur}')

def allreduce(op, x, tmp, rows_only=False, skip_row=False, half=False):
    if not skip_row:
        for ctl in ['quad_perm:[1,0,3,2]', 'quad_perm:[2,3,0,1]', 'row_half_mirror', 'row_mirror']:
            nop(2)
            I(f'{op}_dpp v{x}, v{x}, v{x} {ctl} row_mask:0xf bank_mask:0xf')
    if rows_only: return
    for sw in (['v_permlane16_swap_b32'] if half else ['v_permlane16_swap_b32', 'v_permlane32_swap_b32']):
        I(f'v_mov_b32 v{tmp}, v{x}')
        nop(2)
        I(f'{sw} v{x}, v{tmp}')
        nop(1)
        I(f'{op} v{x}, v{x}, v{tmp}')

def bfround(x, tmp=None):
    I(f'v_cvt_pk_bf16_f32 v{x}, v{x}, v{x}')
    I(f'v_and_b32 v{x}, 0xffff0000, v{x}')

def make_masks(m, single):
    I('v_and_b32 v2, 1, v1')
    I('v_cmp_eq_u32 vcc, 1, v2')
    I('v_mov_b32 v3, 0xffff')
    I('v_mov_b32 v2, 0xffff0000')
    nop(1)
    I('v_cndmask_b32 v3, v3, v2, vcc')
    if single:
        I('v_and_b32 v2, 8, v1')
        I('v_cmp_eq_u32 vcc, 0, v2')
        nop(2)
        I('v_cndmask_b32 v3, 0, v3, vcc')
    I('v_bfe_u32 v2, v1, 1, 2')
    for d in range(4):
        I(f'v_cmp_eq_u32 vcc, {d}, v2')
        nop(2)
        I(f'v_cndmask_b32 v{m+d}, 0, v3, vcc')

def gemv_diag(T, aval, masks, abuf, bq, accs):
    def build(t):
        a = abuf[t % 2]
        for d in range(4):
            I(f'v_and_b32 v{a+d}, v{masks+d}, v{aval(t)}')
    build(0)
    for t in range(T):
        a = abuf[t % 2]
        if t + 1 < T:
            build(t + 1)
        else:
            nop(2)
        for blk, acc in enumerate(accs):
            c = '0' if t == 0 else vr(acc)
            I(f'v_mfma_f32_16x16x32_bf16 {vr(acc)}, {vr(a)}, {vr(bq(blk, t))}, {c}')
    nop(9)

def make_masks4(m, nb):
    I('v_bfe_u32 v2, v1, 2, 2')
    I(f'v_cmp_gt_u32 vcc, {nb}, v2')
    nop(2)
    I('v_cndmask_b32 v3, 0, -1, vcc')
    I('v_and_b32 v2, 3, v1')
    for d in range(4):
        I(f'v_cmp_eq_u32 vcc, {d}, v2')
        nop(2)
        I(f'v_cndmask_b32 v{m+d}, 0, v3, vcc')

def pairperm(quads, tmp):
    I('s_mov_b32 s4, 0x05040100')
    I('s_mov_b32 s5, 0x07060302')
    for n, (x0, x1) in enumerate(quads):
        for q in range(4):
            t = tmp + (q & 1)
            I(f'v_perm_b32 v{t}, v{x1+q}, v{x0+q}, s4')
            I(f'v_perm_b32 v{x1+q}, v{x1+q}, v{x0+q}, s5')
            I(f'v_mov_b32 v{x0+q}, v{t}')

def gemv_pair(P, aval, masks, abuf, bq, accE, accO):
    def build(p):
        a = abuf[p % 2]
        for d in range(4):
            I(f'v_and_b32 v{a+d}, v{masks+d}, v{aval(p)}')
    build(0)
    for p in range(P):
        a = abuf[p % 2]
        if p + 1 < P: build(p + 1)
        else: nop(2)
        for blk in range(len(accE)):
            for acc, t in ((accE[blk], 2 * p), (accO[blk], 2 * p + 1)):
                c = '0' if p == 0 else vr(acc)
                I(f'v_mfma_f32_16x16x32_bf16 {vr(acc)}, {vr(a)}, {vr(bq(blk, t))}, {c}')
    nop(9)

def spin_end_thr(lab, thr, sleep=1):
    done = uid('spd')
    I('s_bcnt1_i32_b64 s99, vcc')
    I(f's_cmp_le_u32 s99, {thr}')
    I(f's_cbranch_scc1 {done}')
    I('s_add_u32 s98, s98, 1')
    I(f's_cmp_gt_u32 s98, {SPIN_LIMIT}')
    I('s_cbranch_scc1 L_end')
    I(f's_sleep {sleep}')
    I(f's_branch {lab}')
    L(done)
    L(f'{lab}_x')

def light_poll(load, regs_per, base, thr, NS=3, gap=5):
    top = uid('lp'); done = uid('lpd')
    I(f's_cbranch_execz {done}')
    I('s_mov_b32 s98, 0')
    for i in range(NS - 1):
        load(base + i * regs_per)
        I(f's_sleep {gap}')
    L(top)
    for i in range(NS):
        load(base + ((i + NS - 1) % NS) * regs_per)
        I(f's_waitcnt vmcnt({NS-1})')
        r = base + i * regs_per
        if regs_per == 1: I(f'v_cmp_eq_u32 vcc, -1, v{r}')
        else:
            I(f'v_max_u32 v{base + NS*regs_per}, v{r}, v{r+1}')
            I(f'v_cmp_eq_u32 vcc, -1, v{base + NS*regs_per}')
        I('s_bcnt1_i32_b64 s99, vcc')
        I(f's_cmp_le_u32 s99, {thr}')
        I(f's_cbranch_scc1 {done}')
    I('s_add_u32 s98, s98, 1')
    I(f's_cmp_gt_u32 s98, {SPIN_LIMIT}')
    I('s_cbranch_scc1 L_end')
    I(f's_branch {top}')
    L(done)

def flags_wait(which, first=0, count=256, sleep=1):
    I('v_lshlrev_b32 v2, 4, v1')
    I(f'v_add_u32 v2, {FLAGS + 2048*which + 8*first}, v2')
    if count == 64: setexec(0xffffffff)
    lab = spin_begin()
    I(f'buffer_load_dwordx4 v[4:7], v2, {S(WS)}, 0 offen sc1')
    if count == 256:
        I(f'buffer_load_dwordx4 v[8:11], v2, {S(WS)}, 0 offen offset:1024 sc1')
    I('s_waitcnt vmcnt(0)')
    n = 12 if count == 256 else 8
    for r in range(4, n):
        I(f'v_xor_b32 v{r}, s{96 + (r & 1)}, v{r}')
    I('v_or3_b32 v4, v4, v5, v6')
    if count == 256:
        I('v_or3_b32 v4, v4, v7, v8')
        I('v_or3_b32 v4, v4, v9, v10')
        I('v_or_b32 v4, v4, v11')
    else:
        I('v_or_b32 v4, v4, v7')
    I('v_cmp_ne_u32 vcc, 0, v4')
    spin_end(lab, sleep)
    if count == 64: fullexec()

def flag_store(which, t0=4):
    I('s_waitcnt vmcnt(0) lgkmcnt(0)')
    I(f's_add_u32 s96, s94, 0x{TAGC_LO:x}')
    I(f's_addc_u32 s97, s95, 0x{TAGC_HI:x}')
    I(f'v_mov_b32 v{t0}, s96')
    I(f'v_mov_b32 v{t0+1}, s97')
    I('s_lshl_b32 s4, s2, 3')
    I(f's_add_u32 s4, s4, {FLAGS + 2048*which}')
    I(f'v_mov_b32 v{t0+2}, 0')
    setexec(1)
    I(f'buffer_store_dwordx2 v[{t0}:{t0+1}], v{t0+2}, {S(WS)}, s4 offen sc1')
    fullexec()

def lds_gate():
    I(f'v_mov_b32 v4, {L_FC}')
    lab = spin_begin()
    I('ds_read_b32 v5, v4')
    I('s_waitcnt lgkmcnt(0)')
    I('v_cmp_ne_u32 vcc, 1, v5')
    spin_end(lab, 2)

def paced(loads, depth):
    for i, ld in enumerate(loads):
        if i >= depth: I(f's_waitcnt vmcnt({depth-1})')
        for x in ld: I(x)

def tag_compute():
    I('s_waitcnt lgkmcnt(0)')
    I(f's_add_u32 s96, s94, 0x{TAGC_LO:x}')
    I(f's_addc_u32 s97, s95, 0x{TAGC_HI:x}')

def prologue():
    I('s_cmp_ge_u32 s2, 256')
    I('s_cbranch_scc1 L_end')
    I('s_mov_b64 s[100:101], -1')
    if XSPLIT:
        I('s_lshr_b32 s4, s2, 3')
        I('s_lshl_b32 s4, s4, 2')
        I('s_and_b32 s5, s2, 3')
        I('s_add_u32 s4, s4, s5')
        I('s_bfe_u32 s5, s2, 0x10002')
        I('s_lshl_b32 s5, s5, 7')
        I('s_add_u32 s2, s4, s5')
    if DBGT: I('s_memrealtime s[56:57]')
    I('s_load_dwordx16 s[64:79], s[0:1], 0')
    I('s_load_dwordx8 s[80:87], s[0:1], 64')
    I('s_load_dwordx4 s[88:91], s[0:1], 96')
    I('s_load_dwordx2 s[92:93], s[0:1], 112')
    I('v_lshrrev_b32 v1, 6, v0')
    nop(1)
    I('v_readfirstlane_b32 s3, v1')
    I('v_and_b32 v1, 63, v0')
    for r in range(2, 13): I(f'v_mov_b32 v{r}, 0')
    if STAMP: I('v_mov_b32 v253, 0')
    I('s_waitcnt lgkmcnt(0)')
    I('s_load_dwordx2 s[94:95], s[92:93], 0')
    srd(WS, 'ws')
    stamp(0)
    I('v_lshrrev_b32 v14, 4, v1')
    I('v_and_b32 v15, 15, v1')
    I('v_lshlrev_b32 v13, 4, v1')
    I('s_cmp_ge_u32 s2, 128')
    I('s_cbranch_scc1 L_de')
    I('s_cmp_ge_u32 s2, 64')
    I('s_cbranch_scc1 L_p3')

def role_P12():
    X_, WQ, WUK = 12, 16, 20
    srd(X_, 'x'); srd(WQ, 'wq'); srd(WUK, 'wuk')
    I('s_lshr_b32 s40, s2, 1')
    I('s_and_b32 s41, s2, 1')
    I('s_mul_i32 s45, s41, 320')
    I('s_cmp_lg_u32 s3, 7')
    I('s_cbranch_scc1 L_a_init')
    for r in range(4, 8): I(f'v_mov_b32 v{r}, -1')
    I('s_lshl_b32 s4, s2, 10')
    I(f's_add_u32 s4, s4, {QP}')
    I(f'buffer_store_dwordx4 v[4:7], v13, {S(WS)}, s4 offen sc1')
    I('v_lshrrev_b32 v3, 5, v1')
    I('v_lshlrev_b32 v3, 15, v3')
    I('v_and_b32 v2, 31, v1')
    I('v_lshl_add_u32 v3, v2, 4, v3')
    I('s_lshl_b32 s4, s2, 9')
    I(f's_add_u32 s4, s4, {QA}')
    I(f'buffer_store_dwordx4 v[4:7], v3, {S(WS)}, s4 offen sc1')
    if DRY: enter_dry('L_a_h1b')
    L('L_a_w7')
    flag_store(0, 8)
    stamp(9, 7)
    I('s_branch L_a_main')
    L('L_a_init')
    I('s_cmp_gt_u32 s3, 4')
    I('s_cbranch_scc1 L_a_h1')
    if AGATE & 1:
        tag_compute()
        flags_wait(0, 128, 128, 2)
    I('v_lshlrev_b32 v2, 17, v14')
    I('v_lshl_add_u32 v2, v15, 4, v2')
    I('s_lshl_b32 s4, s3, 6')
    I('s_add_u32 s4, s4, s45')
    I('s_lshl_b32 s4, s4, 13')
    I('s_lshl_b32 s5, s40, 8')
    I('s_add_u32 s4, s4, s5')
    for t in range(16):
        I(f'buffer_load_dwordx4 {vr(20+4*t)}, v2, {S(WQ)}, s4 offen nt')
        if t < 15: I('s_add_u32 s4, s4, 8192')
    def wuk_dma(first, per):
        I('v_lshlrev_b32 v2, 13, v14')
        I('v_lshl_add_u32 v2, v15, 4, v2')
        I('s_lshl_b32 s4, s41, 21')
        I('s_lshl_b32 s5, s40, 8')
        I('s_add_u32 s4, s4, s5')
        I(f's_mul_i32 s6, s3, {per}')
        I(f's_add_u32 s6, s6, {first}')
        I('s_lshl_b32 s5, s6, 15')
        I('s_add_u32 s4, s4, s5')
        I('s_mul_i32 s5, s6, 1040')
        done = uid('dmad')
        for q in range(per):
            if first + 5 * per > 64 and q >= 64 - first - 4 * per:
                I('s_cmp_eq_u32 s3, 4')
                I(f's_cbranch_scc1 {done}')
            I('s_mov_b32 m0, s5')
            nop(1)
            I(f'buffer_load_dwordx4 v2, {S(WUK)}, s4 offen nt lds')
            if q < per - 1:
                I('s_add_u32 s4, s4, 32768')
                I('s_add_u32 s5, s5, 1040')
        L(done)
    wuk_dma(0, WU0)
    make_masks4(16, 2)
    tag_compute()
    I(f's_waitcnt vmcnt({WU0})')
    pairperm([(20 + 8 * p, 24 + 8 * p) for p in range(8)], 4)
    stamp(10, 4)
    I('s_branch L_a_main')
    L('L_a_h1')
    I('s_sub_u32 s46, s3, 5')
    I('s_mul_i32 s4, s46, 1280')
    I('v_lshlrev_b32 v3, 2, v1')
    for k in range(5):
        I(f'buffer_load_dword v{80 + k}, v3, {S(X_)}, s4 offen offset:{k*256}')
    I('s_lshl_b32 s5, s45, 1')
    I('s_add_u32 s5, s5, s4')
    I(f'buffer_load_dwordx4 v[84+4:84+7], v13, {S(X_)}, s5 offen'.replace('84+4', '88').replace('84+7', '91'))
    tag_compute()
    I('s_waitcnt vmcnt(0)')
    for k in range(5):
        I(f'v_lshlrev_b32 v{96+2*k}, 16, v{80+k}')
        I(f'v_and_b32 v{97+2*k}, 0xffff0000, v{80+k}')
    I('v_add_f32 v92, v96, v97')
    for k in range(2, 10): I(f'v_add_f32 v92, v92, v{96+k}')
    allreduce('v_add_f32', 92, 93)
    I('v_mul_f32 v92, 0x3acccccd, v92')
    for k in range(10): I(f'v_sub_f32 v{96+k}, v{96+k}, v92')
    I('v_mul_f32 v94, v96, v96')
    for k in range(1, 10): I(f'v_fmac_f32 v94, v{96+k}, v{96+k}')
    allreduce('v_add_f32', 94, 93)
    I('v_mul_f32 v94, 0x3acccccd, v94')
    bfround(92); bfround(94)
    I('v_add_f32 v94, 0x3727c5ac, v94')
    bfround(94)
    I('v_sqrt_f32 v94, v94')
    nop(1)
    bfround(94)
    I('v_rcp_f32 v94, v94')
    for k in range(4):
        I(f'v_lshlrev_b32 v{72+2*k}, 16, v{88+k}')
        I(f'v_and_b32 v{73+2*k}, 0xffff0000, v{88+k}')
    for r in range(8):
        I(f'v_sub_f32 v{72+r}, v{72+r}, v92')
        bfround(72 + r)
        I(f'v_mul_f32 v{72+r}, v{72+r}, v94')
        bfround(72 + r)
    L('L_a_h1b')
    flags_wait(0, 128, 128)
    stamp(1, 5)
    I('s_mul_i32 s4, s46, 15360')
    I('s_lshl_b32 s5, s45, 2')
    I('s_add_u32 s4, s4, s5')
    I(f's_add_u32 s48, s4, {MOD}')
    for kq in range(1, 4): I(f's_add_u32 s{48+kq}, s48, {kq*30720}')
    I('v_lshlrev_b32 v2, 5, v1')
    I('s_mul_i32 s4, s46, 640')
    I(f's_add_u32 s4, s4, {L_HD}')
    I('v_add_u32 v3, s4, v13')
    setexec(0xffffffff, 0xff)
    lab = spin_begin()
    for kq in range(4):
        I(f'buffer_load_dwordx4 {vr(96+16*kq)}, v2, {S(WS)}, s{48+kq} offen sc1')
        I(f'buffer_load_dwordx4 {vr(100+16*kq)}, v2, {S(WS)}, s{48+kq} offen offset:16 sc1')
        I(f'buffer_load_dwordx4 {vr(104+16*kq)}, v2, {S(WS)}, s{48+kq} offen offset:2560 sc1')
        I(f'buffer_load_dwordx4 {vr(108+16*kq)}, v2, {S(WS)}, s{48+kq} offen offset:2576 sc1')
    I('s_waitcnt vmcnt(0)')
    anysent(range(96, 160), 12)
    spin_end(lab)
    for r in range(16):
        I(f'v_add_f32 v{96+r}, v{96+r}, v{112+r}')
        I(f'v_add_f32 v{128+r}, v{128+r}, v{144+r}')
        I(f'v_add_f32 v{96+r}, v{96+r}, v{128+r}')
        bfround(96 + r)
    for r in range(8):
        I(f'v_add_f32 v{104+r}, 1.0, v{104+r}')
        bfround(104 + r)
        I(f'v_mul_f32 v{104+r}, v{72+r}, v{104+r}')
        bfround(104 + r)
        I(f'v_add_f32 v{104+r}, v{104+r}, v{96+r}')
    for q in range(4):
        I(f'v_cvt_pk_bf16_f32 v{96+q}, v{104+2*q}, v{105+2*q}')
    I('ds_write_b128 v3, v[96:99]')
    fullexec()
    I('s_waitcnt lgkmcnt(0)')
    L('L_a_main')
    barrier()
    stamp(2)
    sk = uid('nofc')
    I('s_cmp_lg_u32 s3, 6')
    skip_if(sk)
    flag_store(2, 8)
    L(sk)
    sk = uid('nop1')
    I('s_cmp_gt_u32 s3, 4')
    skip_if(sk)
    I('v_bfe_u32 v2, v1, 2, 1')
    I('v_mul_u32_u24 v2, 640, v2')
    I('v_lshl_add_u32 v2, v14, 5, v2')
    I('s_lshl_b32 s4, s3, 7')
    I(f's_add_u32 s4, s4, {L_HD}')
    I('v_add_u32 v2, s4, v2')
    for q in range(2):
        I(f'ds_read_b128 {vr(84+4*q)}, v2 offset:{q*16}')
    wuk_dma(5 * WU0, (64 - 5 * WU0 + 4) // 5)
    I('v_lshlrev_b32 v2, 9, v14')
    I('v_lshl_add_u32 v2, v15, 4, v2')
    I('s_lshl_b32 s4, s3, 10')
    I(f's_add_u32 s4, s4, {L_RED}')
    I('v_add_u32 v2, s4, v2')
    I('s_waitcnt lgkmcnt(0)')
    gemv_pair(8, lambda p: 84 + p, 16, [100, 104], lambda blk, t: 20 + 4 * t, [108], [112])
    setexec(0xffffffff)
    I('ds_write_b128 v2, v[108:111]')
    I('ds_write_b128 v2, v[112:115] offset:256')
    fullexec()
    I('s_waitcnt lgkmcnt(0)')
    L(sk)
    barrier()
    sk = uid('nop1r')
    I('s_cmp_lg_u32 s3, 0')
    skip_if(sk)
    I(f'v_add_u32 v2, {L_RED}, v13')
    for w in range(5):
        I(f'ds_read_b128 {vr(164+4*w)}, v2 offset:{w*1024}')
    I('s_lshl_b32 s4, s2, 10')
    I(f's_add_u32 s4, s4, {QP}')
    I('s_waitcnt lgkmcnt(0)')
    for r in range(4):
        I(f'v_add_f32 v{164+r}, v{164+r}, v{168+r}')
        I(f'v_add_f32 v{172+r}, v{172+r}, v{176+r}')
        I(f'v_add_f32 v{164+r}, v{164+r}, v{180+r}')
        I(f'v_add_f32 v{164+r}, v{164+r}, v{172+r}')
        I(f'v_min_u32 v{164+r}, 0xfffffffe, v{164+r}')
    I(f'buffer_store_dwordx4 v[164:167], v13, {S(WS)}, s4 offen sc1')
    stamp(3)
    flags_wait(0, 0, 128)
    sk2 = uid('noep')
    I('s_cmp_lg_u32 s2, 0')
    skip_if(sk2)
    I('v_mov_b32 v10, s96')
    I('v_mov_b32 v11, s97')
    I('v_mov_b32 v12, 0')
    setexec(1)
    I(f'buffer_store_dwordx2 v[10:11], v12, {S(WS)}, 0 offen sc1')
    fullexec()
    L(sk2)
    I('s_xor_b32 s4, s2, 1')
    I('s_lshl_b32 s4, s4, 10')
    I(f's_add_u32 s4, s4, {QP}')
    lab = spin_begin()
    I(f'buffer_load_dwordx4 v[168:171], v13, {S(WS)}, s4 offen sc1')
    I('s_waitcnt vmcnt(0)')
    anysent(range(168, 172), 2)
    spin_end(lab)
    for r in range(4):
        I(f'v_add_f32 v{168+r}, v{168+r}, v{164+r}')
    I('v_lshrrev_b32 v2, 1, v14')
    I('v_lshlrev_b32 v2, 8, v2')
    I('v_lshl_add_u32 v2, v15, 4, v2')
    I('v_and_b32 v3, 1, v14')
    I('v_lshl_add_u32 v2, v3, 1, v2')
    I(f'v_add_u32 v2, {L_QT2}, v2')
    for r in range(4):
        I(f'v_cvt_pk_bf16_f32 v{168+r}, v{168+r}, v{168+r}')
        I(f'ds_write_b16 v2, v{168+r} offset:{4*r}')
    L(sk)
    sk = uid('w14')
    I('s_cmp_gt_u32 s3, 4')
    skip_if(sk)
    I('s_waitcnt vmcnt(0)')
    L(sk)
    I('s_waitcnt lgkmcnt(0)')
    barrier()
    delay(1)
    stamp(4)
    I('v_and_b32 v2, 1, v15')
    I('v_lshlrev_b32 v2, 8, v2')
    I('v_lshl_add_u32 v2, v14, 4, v2')
    I(f'v_add_u32 v2, {L_QT2}, v2')
    for t in range(4):
        I(f'ds_read_b128 {vr(164+4*t)}, v2 offset:{t*64}')
    I('v_lshrrev_b32 v2, 2, v15')
    I('v_mul_u32_u24 v2, 1040, v2')
    I('v_and_b32 v3, 3, v15')
    I('v_lshl_add_u32 v2, v3, 8, v2')
    I('v_lshl_add_u32 v2, v14, 4, v2')
    I('s_mul_i32 s4, s3, 8320')
    I(f's_add_u32 s4, s4, {L_WU}')
    I('v_add_u32 v2, s4, v2')
    for t in range(4):
        for n in range(2):
            I(f'ds_read_b128 {vr(20+16*n+4*t)}, v2 offset:{n*4160 + t*64}')
    I('v_lshlrev_b32 v2, 15, v15')
    I('v_lshl_add_u32 v2, v14, 3, v2')
    I('s_lshl_b32 s4, s2, 9')
    I('s_lshl_b32 s5, s3, 6')
    I('s_add_u32 s4, s4, s5')
    I(f's_add_u32 s4, s4, {QA}')
    I('s_mov_b32 s5, 0x3e0293ee')
    for t in range(4):
        I(f's_waitcnt lgkmcnt({6-2*t})')
        for n in range(2):
            c = '0' if t == 0 else vr(180 + 4 * n)
            I(f'v_mfma_f32_16x16x32_bf16 {vr(180+4*n)}, {vr(20+16*n+4*t)}, {vr(164+4*t)}, {c}')
    nop(9)
    for r in range(8): I(f'v_mul_f32 v{180+r}, s5, v{180+r}')
    for q in range(4):
        I(f'v_cvt_pk_bf16_f32 v{188+q}, v{180+2*q}, v{181+2*q}')
        I(f'v_min_u32 v{188+q}, 0xfffffffe, v{188+q}')
    setexec(0x00030003, 0x00030003)
    I(f'buffer_store_dwordx2 v[188:189], v2, {S(WS)}, s4 offen sc1')
    I(f'buffer_store_dwordx2 v[190:191], v2, {S(WS)}, s4 offen offset:32 sc1')
    fullexec()
    stamp(5)
    role_end('L_a_w7')

def role_P3():
    L('L_p3')
    CKV = 12
    srd(CKV, 'ckv')
    I('s_sub_u32 s40, s2, 64')
    I('s_lshr_b32 s42, s40, 5')
    I('s_and_b32 s43, s40, 31')
    sk = uid('nofa')
    I('s_cmp_lg_u32 s3, 7')
    I(f's_cbranch_scc1 {sk}')
    flag_store(0, 8)
    L(sk)
    tag_compute()
    if P3GATE:
        flags_wait(2, 0, 64, 4)
    if AGATE & 2:
        flags_wait(0, 128, 128, 2)
    I('s_lshl_b32 s4, s40, 17')
    I('s_lshl_b32 s5, s3, 14')
    I('s_add_u32 s4, s4, s5')
    I(f's_mul_i32 s5, s3, {16*CKS}')
    for r in range(16):
        I('s_mov_b32 m0, s5')
        nop(1)
        I(f'buffer_load_dwordx4 v13, {S(CKV)}, s4 offen nt lds')
        if r < 15:
            I('s_add_u32 s4, s4, 1024')
            I(f's_add_u32 s5, s5, {CKS}')
    if DRY:
        I('s_cmp_lg_u32 s3, 7')
        I('s_cbranch_scc1 L_p3_real')
        enter_dry('L_p3_main')
    L('L_p3_real')
    I('s_waitcnt vmcnt(0)')
    barrier()
    L('L_p3_main')
    stamp(1)
    I(f'v_mul_u32_u24 v2, {CKS}, v15')
    I('v_lshl_add_u32 v2, v14, 4, v2')
    I(f's_mul_i32 s4, s3, {16*CKS}')
    I('v_add_u32 v2, s4, v2')
    for t in range(16):
        I(f'ds_read_b128 {vr(20+4*t)}, v2 offset:{t*64}')
    I('v_lshrrev_b32 v2, 2, v15')
    I('v_lshl_add_u32 v2, v14, 3, v2')
    I(f'v_mul_u32_u24 v2, {CKS}, v2')
    I('v_and_b32 v3, 3, v15')
    I('v_lshl_add_u32 v2, v3, 4, v2')
    I('s_lshl_b32 s4, s3, 7')
    I('v_add_u32 v2, s4, v2')
    I(f'v_add_u32 v3, {64*CKS}, v2')
    for n in range(4):
        for t in range(4):
            base = 84 + 16 * n + 4 * t
            ad = 'v2' if t < 2 else 'v3'
            off = (t % 2) * 32 * CKS + (n >> 1) * 64 + (n & 1) * 8
            I(f'ds_read_b64_tr_b16 {vr(base,2)}, {ad} offset:{off}')
            I(f'ds_read_b64_tr_b16 {vr(base+2,2)}, {ad} offset:{off + 4*CKS}')
    for r in range(4): I(f'v_mov_b32 v{16+r}, 0x3f803f80')
    I('s_waitcnt lgkmcnt(0)')
    sk = uid('noh2l')
    I('s_cmp_lg_u32 s3, 0')
    skip_if(sk)
    flags_wait(0, 0, 64)
    flags_wait(1, 192, 64)
    I('v_lshlrev_b32 v2, 9, v1')
    I('s_lshl_b32 s4, s42, 15')
    I(f's_add_u32 s4, s4, {QA + 508}')
    light_poll(lambda r: I(f'buffer_load_dword v{r}, v2, {S(WS)}, s4 offen sc1'), 1, 4, 24 * THR)
    L(sk)
    barrier()
    stamp(6)
    tick(0)
    I('s_lshl_b32 s4, s42, 15')
    I('s_lshl_b32 s5, s3, 12')
    I('s_add_u32 s4, s4, s5')
    I(f's_add_u32 s4, s4, {QA}')
    lab = spin_begin()
    for k in range(4):
        I(f'buffer_load_dwordx4 {vr(148+4*k)}, v13, {S(WS)}, s4 offen offset:{k*1024} sc1')
    I('s_waitcnt vmcnt(0)')
    anysent(range(148, 164), 2)
    spin_end(lab)
    tick(1)
    I('s_lshl_b32 s4, s3, 12')
    I('s_and_b32 s5, s3, 3')
    I('s_lshl_b32 s5, s5, 2')
    for k in range(4):
        I(f's_add_u32 s6, s5, {k}')
        I('v_xor_b32 v2, s6, v1')
        I('v_lshlrev_b32 v2, 4, v2')
        I('v_add_u32 v2, s4, v2')
        I(f'ds_write_b128 v2, {vr(148+4*k)} offset:{L_QT + k*1024}')
    I('v_and_b32 v2, 3, v15')
    I('v_xor_b32 v2, v2, v14')
    I('v_and_b32 v3, 12, v15')
    I('v_or_b32 v2, v2, v3')
    for q in range(4):
        I(f'v_xor_b32 v3, {4*q}, v2')
        I('v_lshlrev_b32 v3, 4, v3')
        I(f'v_lshl_add_u32 v{8+q}, v15, 10, v3')
    I('v_lshlrev_b32 v4, 5, v15')
    I(f'v_add_u32 v4, {L_MX}, v4')
    I('s_lshl_b32 s4, s3, 2')
    I('v_add_u32 v3, s4, v4')
    I('s_waitcnt lgkmcnt(0)')
    tick(2)
    barrier()
    tick(3)
    stamp(7)
    for t in range(16):
        I(f'ds_read_b128 {vr(148+4*t)}, v{8+t%4} offset:{L_QT + (t//4)*256}')
    for t in range(16):
        I(f's_waitcnt lgkmcnt({15 if t else 15})') if False else I('s_waitcnt lgkmcnt(15)')
        c = '0' if t == 0 else 'v[212:215]'
        I(f'v_mfma_f32_16x16x32_bf16 v[212:215], {vr(20+4*t)}, {vr(148+4*t)}, {c}')
        I(f'ds_read_b128 {vr(148+4*t)}, v{8+t%4} offset:{L_QT + 16384 + (t//4)*256}')
    for t in range(16):
        I(f's_waitcnt lgkmcnt({15-t})')
        c = '0' if t == 0 else 'v[216:219]'
        I(f'v_mfma_f32_16x16x32_bf16 v[216:219], {vr(20+4*t)}, {vr(148+4*t)}, {c}')
    tick(4)
    I('v_max_f32 v220, v212, v213')
    I('v_max3_f32 v220, v220, v214, v215')
    allreduce('v_max_f32', 220, 222, skip_row=True)
    I('v_max_f32 v221, v216, v217')
    I('v_max3_f32 v221, v221, v218, v219')
    allreduce('v_max_f32', 221, 222, skip_row=True)
    I('ds_write_b32 v3, v220')
    I('ds_write_b32 v3, v221 offset:512')
    I(f'v_mul_u32_u24 v5, {PTS}, v15')
    I(f'v_add_u32 v5, {L_PT}, v5')
    I('v_lshl_add_u32 v3, v14, 3, v5')
    I('s_lshl_b32 s4, s3, 5')
    I('v_add_u32 v3, s4, v3')
    I('v_lshl_add_u32 v5, v14, 4, v5')
    I('s_waitcnt lgkmcnt(0)')
    tick(5)
    barrier()
    tick(6)
    for ht in range(2):
        I(f'ds_read_b128 {vr(148+8*ht)}, v4 offset:{ht*512}')
        I(f'ds_read_b128 {vr(152+8*ht)}, v4 offset:{ht*512+16}')
    I('s_waitcnt lgkmcnt(0)')
    for ht in range(2):
        q = 148 + 8 * ht
        I(f'v_max3_f32 v{220+ht}, v{q}, v{q+1}, v{q+2}')
        I(f'v_max3_f32 v{220+ht}, v{220+ht}, v{q+3}, v{q+4}')
        I(f'v_max3_f32 v{220+ht}, v{220+ht}, v{q+5}, v{q+6}')
        I(f'v_max_f32 v{220+ht}, v{220+ht}, v{q+7}')
    for ht in range(2):
        for r in range(4):
            I(f'v_sub_f32 v{212+4*ht+r}, v{212+4*ht+r}, v{220+ht}')
    for r in range(8):
        I(f'v_exp_f32 v{212+r}, v{212+r}')
    nop(1)
    for q in range(4):
        I(f'v_cvt_pk_bf16_f32 v{224+q}, v{212+2*q}, v{213+2*q}')
    I('ds_write_b64 v3, v[224:225]')
    I(f'ds_write_b64 v3, v[226:227] offset:{16*PTS}')
    I('v_lshlrev_b32 v2, 15, v15')
    I('v_lshl_add_u32 v2, v14, 4, v2')
    I('s_lshl_b32 s4, s42, 20')
    I('s_lshl_b32 s5, s43, 10')
    I('s_add_u32 s4, s4, s5')
    I('s_lshl_b32 s5, s3, 7')
    I('s_add_u32 s4, s4, s5')
    I(f's_add_u32 s4, s4, {OP}')
    I('s_add_u32 s5, s4, 0x80000')
    I('s_waitcnt lgkmcnt(0)')
    tick(7)
    barrier()
    tick(8)
    for ht in range(2):
        for t in range(4):
            I(f'ds_read_b128 {vr(148+16*ht+4*t)}, v5 offset:{ht*16*PTS + t*64}')
    for ht in range(2):
        for t in range(4):
            I(f's_waitcnt lgkmcnt({7-4*ht-t})')
            for n in range(4):
                acc = 180 + 16 * ht + 4 * n
                c = '0' if t == 0 else vr(acc)
                I(f'v_mfma_f32_16x16x32_bf16 {vr(acc)}, {vr(84+16*n+4*t)}, {vr(148+16*ht+4*t)}, {c}')
    tick(9)
    nop(1)
    for ht in range(2):
        for n in range(4):
            I(f'v_cvt_pk_bf16_f32 v{20+8*ht+2*n}, v{180+16*ht+4*n}, v{181+16*ht+4*n}')
            I(f'v_cvt_pk_bf16_f32 v{21+8*ht+2*n}, v{182+16*ht+4*n}, v{183+16*ht+4*n}')
        for r in range(8): I(f'v_min_u32 v{20+8*ht+r}, 0xfffffffe, v{20+8*ht+r}')
        so = 's4' if ht == 0 else 's5'
        I(f'buffer_store_dwordx4 {vr(20+8*ht)}, v2, {S(WS)}, {so} offen sc1')
        I(f'buffer_store_dwordx4 {vr(24+8*ht)}, v2, {S(WS)}, {so} offen offset:64 sc1')
    tick(10)
    I('s_cmp_gt_u32 s3, 1')
    skip_if('L_p3_done')
    for ht in range(2):
        for t in range(4):
            acc = 36 + 4 * ht
            c = '0' if t == 0 else vr(acc)
            I(f'v_mfma_f32_16x16x32_bf16 {vr(acc)}, v[16:19], {vr(148+16*ht+4*t)}, {c}')
    I('v_lshlrev_b32 v3, 8, v1')
    I('s_lshl_b32 s4, s42, 13')
    I('s_lshl_b32 s5, s3, 12')
    I('s_add_u32 s4, s4, s5')
    I('s_lshl_b32 s5, s43, 3')
    I('s_add_u32 s4, s4, s5')
    I(f's_add_u32 s4, s4, {ML}')
    I('s_cmp_eq_u32 s3, 0')
    I('s_cselect_b64 vcc, -1, 0')
    nop(2)
    I('v_cndmask_b32 v44, v221, v220, vcc')
    I('v_cndmask_b32 v45, v40, v36, vcc')
    I('v_min_u32 v44, 0xfffffffe, v44')
    I('v_min_u32 v45, 0xfffffffe, v45')
    setexec(0xffff)
    I(f'buffer_store_dwordx2 v[44:45], v3, {S(WS)}, s4 offen sc1')
    fullexec()
    L('L_p3_done')
    tick(11)
    tick_dump(12)
    stamp(8)
    role_end('L_p3_real')

def role_DE_common():
    L('L_de')
    C_, WM = 12, 16
    srd(C_, 'c'); srd(WM, 'wmod')
    I('s_sub_u32 s40, s2, 128')
    I('v_lshrrev_b32 v14, 4, v1')
    I('v_and_b32 v15, 15, v1')
    I('v_lshlrev_b32 v13, 4, v1')
    if XSPLIT:
        I('s_and_b32 s4, s40, 63')
        I('s_and_b32 s5, s4, 3')
        I('s_lshr_b32 s6, s4, 3')
        I('s_lshl_b32 s6, s6, 2')
        I('s_add_u32 s42, s6, s5')
        I('s_bfe_u32 s43, s4, 0x10002')
        I('s_mov_b32 s47, 0')
        I('s_cmp_lt_u32 s40, 64')
        I('s_cbranch_scc1 L_dec_done')
        I('s_cmp_ge_u32 s42, 27')
        I('s_cselect_b32 s47, 1, 0')
    else:
        I('s_cmp_ge_u32 s40, 118')
        I('s_cselect_b32 s47, 1, 0')
        I('s_cmp_ge_u32 s40, 64')
        I('s_cbranch_scc1 L_dec_e')
        I('s_lshr_b32 s4, s40, 4')
        I('s_lshl_b32 s4, s4, 3')
        I('s_and_b32 s5, s40, 7')
        I('s_add_u32 s42, s4, s5')
        I('s_bfe_u32 s43, s40, 0x10003')
        I('s_branch L_dec_done')
        L('L_dec_e')
        I('s_sub_u32 s6, s40, 64')
        I('s_lshr_b32 s4, s6, 4')
        I('s_lshl_b32 s4, s4, 3')
        I('s_and_b32 s5, s6, 7')
        I('s_add_u32 s42, s4, s5')
        I('s_bfe_u32 s43, s6, 0x10003')
        I('s_cmp_lt_u32 s6, 48')
        I('s_cbranch_scc1 L_dec_done')
        I('s_sub_u32 s6, s6, 48')
        I('s_cmp_ge_u32 s6, 3')
        I('s_cselect_b32 s43, 1, 0')
        I('s_mul_i32 s4, s43, 3')
        I('s_sub_u32 s6, s6, s4')
        I('s_add_u32 s42, s6, 24')
    L('L_dec_done')
    sk = uid('noclr')
    I('s_cmp_lg_u32 s3, 7')
    I(f's_cbranch_scc1 {sk}')
    for r in range(4, 8): I(f'v_mov_b32 v{r}, -1')
    I('v_lshrrev_b32 v2, 5, v1')
    I('v_lshlrev_b32 v2, 13, v2')
    I('v_bfe_u32 v3, v1, 4, 1')
    I('v_mul_u32_u24 v3, 15360, v3')
    I('v_add_u32 v2, v2, v3')
    I('v_lshl_add_u32 v2, v15, 4, v2')
    I('s_and_b32 s4, s40, 3')
    I('s_mul_i32 s4, s4, 30720')
    I('s_lshr_b32 s5, s40, 2')
    I('s_lshl_b32 s5, s5, 8')
    I('s_add_u32 s4, s4, s5')
    I(f's_add_u32 s4, s4, {MOD}')
    I('s_cmp_lt_u32 s40, 112')
    I('s_cselect_b32 exec_hi, -1, 0')
    I(f'buffer_store_dwordx4 v[4:7], v2, {S(WS)}, s4 offen sc1')
    fullexec()
    I('s_cmp_ge_u32 s40, 64')
    I('s_cbranch_scc1 L_clr_e')
    I('s_lshl_b32 s4, s43, 5')
    I('s_add_u32 s4, s4, s42')
    I('s_mul_i32 s4, s4, 1280')
    I(f's_add_u32 s4, s4, {AP}')
    I(f'buffer_store_dwordx4 v[4:7], v13, {S(WS)}, s4 offen sc1')
    setexec(0xffff)
    I(f'buffer_store_dwordx4 v[4:7], v13, {S(WS)}, s4 offen offset:1024 sc1')
    fullexec()
    I('s_branch L_clr_done')
    L('L_clr_e')
    I('s_cmp_lg_u32 s47, 0')
    I('s_cbranch_scc1 L_clr_done')
    I('s_mul_i32 s4, s43, 27')
    I('s_add_u32 s4, s4, s42')
    I('s_mul_i32 s4, s4, 2560')
    I(f's_add_u32 s4, s4, {FP}')
    I(f'buffer_store_dwordx4 v[4:7], v13, {S(WS)}, s4 offen sc1')
    I(f'buffer_store_dwordx4 v[4:7], v13, {S(WS)}, s4 offen offset:1024 sc1')
    setexec(0xffffffff)
    I(f'buffer_store_dwordx4 v[4:7], v13, {S(WS)}, s4 offen offset:2048 sc1')
    fullexec()
    L('L_clr_done')
    flag_store(0, 8)
    stamp(9, 7)
    L(sk)
    I('s_and_b32 s45, s40, 3')
    I('s_lshr_b32 s46, s40, 2')
    def dma_addr():
        I('v_lshrrev_b32 v2, 3, v1')
        I('v_and_b32 v3, 7, v1')
        I('v_xor_b32 v3, v3, v2')
        I('v_mul_u32_u24 v2, 7680, v2')
        I('v_lshl_add_u32 v2, v3, 4, v2')
        I('s_mul_i32 s4, s45, 1228800')
        I('s_lshl_b32 s5, s46, 7')
        I('s_add_u32 s4, s4, s5')
    def dma_n(n):
        for q in range(n):
            I('s_mov_b32 m0, s5')
            nop(1)
            I(f'buffer_load_dwordx4 v2, {S(WM)}, s4 offen nt lds')
            if q < n - 1:
                I('s_add_u32 s4, s4, 61440')
                I('s_add_u32 s5, s5, 1024')
    def tr_base(wt):
        I('v_lshrrev_b32 v2, 2, v15')
        I('v_lshl_add_u32 v2, v14, 2, v2')
        I('v_and_b32 v3, 7, v2')
        I('v_bfe_u32 v4, v15, 1, 1')
        I('v_xor_b32 v3, v3, v4')
        I('v_lshlrev_b32 v2, 7, v2')
        I('v_and_b32 v4, 1, v15')
        I('v_lshl_add_u32 v2, v4, 3, v2')
        if wt: I(f'v_add_u32 v2, {wt}, v2')
    def st_reads():
        I('v_and_b32 v5, 1, v15')
        I('v_mul_u32_u24 v5, 320, v5')
        I('v_lshl_add_u32 v5, v14, 4, v5')
        for t in range(5):
            I(f'ds_read_b128 {vr(20+4*t)}, v5 offset:{L_ST + t*64}')
    I('s_cmp_gt_u32 s3, 3')
    I('s_cbranch_scc1 L_c_hi')
    dma_addr()
    I('s_mul_i32 s6, s3, 307200')
    I('s_add_u32 s4, s4, s6')
    I('s_mul_i32 s5, s3, 5120')
    dma_n(5)
    tr_base(0)
    I('s_lshl_b32 s6, s3, 1')
    I('v_xor_b32 v4, s6, v3')
    I('v_lshl_add_u32 v8, v4, 4, v2')
    I('v_mul_u32_u24 v9, 15360, v15')
    I('v_lshl_add_u32 v9, v14, 4, v9')
    I('s_mul_i32 s4, s45, 30720')
    I('s_lshl_b32 s5, s46, 8')
    I('s_add_u32 s4, s4, s5')
    I('s_lshl_b32 s5, s3, 6')
    I('s_add_u32 s4, s4, s5')
    I(f's_add_u32 s44, s4, {MOD}')
    I('s_waitcnt vmcnt(0)')
    I('s_branch L_c_bar')
    L('L_c_hi')
    I('s_cmp_gt_u32 s3, 5')
    I('s_cbranch_scc1 L_c_bar')
    I('s_sub_u32 s6, s3, 4')
    I('s_mul_i32 s4, s6, 1280')
    I('s_mul_i32 s5, s45, 320')
    I('s_add_u32 s4, s4, s5')
    I('v_lshlrev_b32 v2, 3, v1')
    I(f'buffer_load_dwordx2 v[4:5], v2, {S(C_)}, s4 offen')
    I('v_lshrrev_b32 v8, 3, v1')
    I('v_and_b32 v9, 3, v1')
    I('v_bfe_u32 v10, v1, 2, 1')
    I('v_lshlrev_b32 v6, 6, v8')
    I('v_lshl_add_u32 v6, v9, 4, v6')
    I('v_lshl_add_u32 v6, v10, 3, v6')
    I('s_mul_i32 s4, s6, 320')
    I(f's_add_u32 s4, s4, {L_ST}')
    I('v_add_u32 v6, s4, v6')
    I(f'v_mov_b32 v12, {L_FC}')
    I('v_mov_b32 v7, 0')
    I('ds_write_b32 v12, v7')
    I('s_waitcnt vmcnt(0)')
    I('v_lshlrev_b32 v8, 16, v4')
    I('v_and_b32 v9, 0xffff0000, v4')
    I('v_lshlrev_b32 v10, 16, v5')
    I('v_and_b32 v11, 0xffff0000, v5')
    for r in range(4): I(f'v_mul_f32 v{16+r}, 0xbfb8aa3b, v{8+r}')
    for r in range(4): I(f'v_exp_f32 v{16+r}, v{16+r}')
    for r in range(4): I(f'v_add_f32 v{16+r}, 1.0, v{16+r}')
    for r in range(4): I(f'v_rcp_f32 v{16+r}, v{16+r}')
    for r in range(4): I(f'v_mul_f32 v{16+r}, v{8+r}, v{16+r}')
    I('v_cvt_pk_bf16_f32 v4, v16, v17')
    I('v_cvt_pk_bf16_f32 v5, v18, v19')
    setexec(0xffffffff, 0xff)
    I('ds_write_b64 v6, v[4:5]')
    fullexec()
    I('s_waitcnt lgkmcnt(0)')
    L('L_c_bar')
    barrier()
    I('s_cmp_gt_u32 s3, 3')
    I('s_cbranch_scc1 L_c_hi2')
    delay(4)
    st_reads()
    for t in range(5):
        I(f'ds_read_b64_tr_b16 {vr(40+4*t,2)}, v8 offset:{t*4096}')
        I(f'ds_read_b64_tr_b16 {vr(42+4*t,2)}, v8 offset:{t*4096+2048}')
    for t in range(5):
        I(f's_waitcnt lgkmcnt({8-2*t})')
        c = '0' if t == 0 else 'v[60:63]'
        I(f'v_mfma_f32_16x16x32_bf16 v[60:63], {vr(40+4*t)}, {vr(20+4*t)}, {c}')
    nop(9)
    for r in range(4): I(f'v_min_u32 v{60+r}, 0xfffffffe, v{60+r}')
    setexec(0x00030003, 0x00030003)
    I(f'buffer_store_dwordx4 v[60:63], v9, {S(WS)}, s44 offen sc1')
    fullexec()
    tag_compute()
    I('s_branch L_c_done')
    L('L_c_hi2')
    tag_compute()
    I('s_cmp_lg_u32 s3, 6')
    I('s_cbranch_scc1 L_c_n6')
    I('s_cmp_lt_u32 s40, 64')
    I('s_cbranch_scc1 L_c_done')
    for r in range(4, 8): I(f'v_mov_b32 v{r}, -1')
    I('s_sub_u32 s6, s40, 64')
    I('s_lshl_b32 s7, s6, 15')
    I(f's_add_u32 s7, s7, {OP}')
    for i in range(32):
        I(f'buffer_store_dwordx4 v[4:7], v13, {S(WS)}, s7 offen offset:{(i%4)*1024} sc1')
        if i % 4 == 3 and i < 31: I('s_add_u32 s7, s7, 4096')
    I('s_lshl_b32 s7, s6, 8')
    I(f's_add_u32 s7, s7, {ML}')
    setexec(0xffff)
    I(f'buffer_store_dwordx4 v[4:7], v13, {S(WS)}, s7 offen sc1')
    fullexec()
    flag_store(1, 8)
    stamp(10, 6)
    I('s_branch L_c_done')
    L('L_c_n6')
    if EGATE or W1GATE:
        I('s_cmp_lg_u32 s3, 4')
        I('s_cbranch_scc1 L_c_n4')
        flags_wait(2, 0, 64, 2)
        I(f'v_mov_b32 v4, {L_FC}')
        I('v_mov_b32 v5, 1')
        I('ds_write_b32 v4, v5')
        I('s_waitcnt lgkmcnt(0)')
        I('s_branch L_c_done')
        L('L_c_n4')
    I('s_cmp_lg_u32 s3, 5')
    I('s_cbranch_scc1 L_c_done')
    I('s_cmp_ge_u32 s40, 112')
    I('s_cbranch_scc1 L_c_done')
    if W1GATE: lds_gate()
    I('s_add_u32 s46, s46, 32')
    dma_addr()
    I(f's_mov_b32 s5, {L_WT1}')
    dma_n(20)
    st_reads()
    tr_base(L_WT1)
    for n in range(4):
        I(f'v_xor_b32 v4, {2*n}, v3')
        I(f'v_lshl_add_u32 v{8+n}, v4, 4, v2')
    I('s_waitcnt vmcnt(0)')
    for n in range(4):
        for t in range(5):
            I(f'ds_read_b64_tr_b16 {vr(40+20*n+4*t,2)}, v{8+n} offset:{t*4096}')
            I(f'ds_read_b64_tr_b16 {vr(42+20*n+4*t,2)}, v{8+n} offset:{t*4096+2048}')
    I('s_waitcnt lgkmcnt(0)')
    for t in range(5):
        for n in range(4):
            c = '0' if t == 0 else vr(120 + 4 * n)
            I(f'v_mfma_f32_16x16x32_bf16 {vr(120+4*n)}, {vr(40+20*n+4*t)}, {vr(20+4*t)}, {c}')
    nop(9)
    for r in range(16): I(f'v_min_u32 v{120+r}, 0xfffffffe, v{120+r}')
    I('v_mul_u32_u24 v2, 15360, v15')
    I('v_lshl_add_u32 v2, v14, 4, v2')
    I('s_mul_i32 s4, s45, 30720')
    I('s_lshl_b32 s5, s46, 8')
    I('s_add_u32 s4, s4, s5')
    I(f's_add_u32 s4, s4, {MOD}')
    setexec(0x00030003, 0x00030003)
    for n in range(4):
        I(f'buffer_store_dwordx4 {vr(120+4*n)}, v2, {S(WS)}, s4 offen offset:{n*64} sc1')
    fullexec()
    L('L_c_done')
    stamp(1)
    I('s_cmp_ge_u32 s40, 64')
    I('s_cbranch_scc1 L_role_e')

def role_D():
    WUV, WO = 20, 24
    srd(WUV, 'wuv'); srd(WO, 'wo')
    make_masks(16, True)
    make_masks4(244, 1)
    I('v_lshlrev_b32 v2, 17, v14')
    I('v_lshl_add_u32 v2, v15, 4, v2')
    I('s_lshl_b32 s4, s3, 19')
    I('s_lshl_b32 s5, s42, 8')
    I('s_add_u32 s4, s4, s5')
    for t in range(16):
        I(f'buffer_load_dwordx4 {vr(20+4*t)}, v2, {S(WUV)}, s4 offen nt')
        if t < 15: I('s_add_u32 s4, s4, 8192')
    I('s_mul_i32 s5, s42, 163840')
    I('s_cmp_gt_u32 s3, 3')
    I('s_cbranch_scc1 L_d_hi')
    I('v_mul_u32_u24 v3, 40960, v14')
    I('v_lshl_add_u32 v3, v15, 4, v3')
    I('s_lshl_b32 s6, s3, 8')
    I('s_add_u32 s5, s5, s6')
    for t in range(32):
        I(f'buffer_load_dwordx4 {vr(84+4*t)}, v3, {S(WO)}, s5 offen offset:{(t%3)*1280} nt')
        if t % 3 == 2: I('s_add_u32 s5, s5, 3840')
    I('s_waitcnt vmcnt(0)')
    pairperm([(20 + 8 * p, 24 + 8 * p) for p in range(24)], 6)
    I('s_branch L_d_main')
    L('L_d_hi')
    I('v_mul_u32_u24 v3, 10240, v14')
    I('v_lshl_add_u32 v3, v15, 4, v3')
    I('s_sub_u32 s6, s3, 4')
    I('s_mul_i32 s6, s6, 40960')
    I('s_add_u32 s5, s5, s6')
    I('s_add_u32 s5, s5, 1024')
    for t in range(8):
        I(f'buffer_load_dwordx4 {vr(84+4*t)}, v3, {S(WO)}, s5 offen offset:{(t%3)*1280} nt')
        if t % 3 == 2: I('s_add_u32 s5, s5, 3840')
    I('s_waitcnt vmcnt(0)')
    pairperm([(20 + 8 * p, 24 + 8 * p) for p in range(12)], 6)
    L('L_d_main')
    stamp(2)
    I('v_and_b32 v2, 31, v1')
    I('v_lshlrev_b32 v2, 3, v2')
    I('s_lshl_b32 s4, s43, 5')
    I('s_add_u32 s4, s4, s42')
    I('s_lshl_b32 s5, s4, 8')
    I(f's_add_u32 s5, s5, {ML}')
    sk = uid('nolp')
    I('s_cmp_lg_u32 s3, 4')
    I(f's_cbranch_scc1 {sk}')
    I('v_mov_b32 v12, v2')
    flags_wait(1, 192, 64)
    I('v_mov_b32 v2, v12')
    light_poll(lambda r: I(f'buffer_load_dwordx2 v[{r}:{r+1}], v2, {S(WS)}, s5 offen sc1'), 2, 120, 24 * THR)
    L(sk)
    barrier()
    stamp(6)
    sk = uid('noz')
    I('s_cmp_lt_u32 s3, 4')
    I(f's_cbranch_scc1 {sk}')
    I('v_lshlrev_b32 v3, 13, v14')
    I('v_lshl_add_u32 v3, v15, 4, v3')
    I('s_lshl_b32 s6, s4, 15')
    I('s_sub_u32 s46, s3, 4')
    I('s_lshl_b32 s7, s46, 8')
    I('s_add_u32 s6, s6, s7')
    I(f's_add_u32 s48, s6, {OP}')
    I('s_add_u32 s49, s48, 4096')
    lab = spin_begin()
    I(f'buffer_load_dwordx2 v[4:5], v2, {S(WS)}, s5 offen sc1')
    for t in range(8):
        I(f'buffer_load_dwordx4 {vr(164+4*t)}, v3, {S(WS)}, s{48+t//4} offen offset:{(t%4)*1024} sc1')
    I('s_waitcnt vmcnt(0)')
    anysent([4, 5] + list(range(164, 196)), 6)
    spin_end(lab)
    stamp(3, 4)
    I('v_mov_b32 v6, v4')
    allreduce('v_max_f32', 6, 7, half=True)
    I('v_sub_f32 v4, v4, v6')
    I('v_exp_f32 v4, v4')
    I('v_lshlrev_b32 v2, 2, v1')
    I(f's_add_u32 s7, s7, {L_D_WD}')
    I('v_add_u32 v2, s7, v2')
    I('v_cvt_pk_bf16_f32 v8, v4, v4')
    I('ds_write_b32 v2, v8')
    I('v_and_b32 v4, 0xffff0000, v8')
    I('v_mul_f32 v5, v4, v5')
    I('v_lshlrev_b32 v2, 5, v14')
    I('v_add_u32 v2, s7, v2')
    I('s_waitcnt lgkmcnt(0)')
    for q in range(2):
        I(f'ds_read_b128 {vr(196+4*q)}, v2 offset:{q*16}')
    allreduce('v_add_f32', 5, 7, half=True)
    I('v_rcp_f32 v5, v5')
    I('v_lshlrev_b32 v2, 4, v15')
    I('v_lshl_add_u32 v2, v14, 3, v2')
    I('s_lshl_b32 s4, s46, 8')
    I(f's_add_u32 s4, s4, {L_D_CD}')
    I('v_add_u32 v2, s4, v2')
    I('s_waitcnt lgkmcnt(0)')
    gemv_diag(8, lambda t: 196 + t, 16, [204, 208], lambda blk, t: 164 + 4 * t, [8])
    for r in range(4):
        I(f'v_mul_f32 v{8+r}, v{8+r}, v5')
    I('v_cvt_pk_bf16_f32 v8, v8, v9')
    I('v_cvt_pk_bf16_f32 v9, v10, v11')
    setexec(0xffffffff)
    I('ds_write_b64 v2, v[8:9]')
    fullexec()
    L(sk)
    I('v_lshlrev_b32 v2, 5, v14')
    I('s_lshl_b32 s4, s3, 7')
    I(f's_add_u32 s4, s4, {L_D_CD}')
    I('v_add_u32 v2, s4, v2')
    I('s_lshl_b32 s4, s3, 9')
    I(f's_add_u32 s4, s4, {L_D_RED}')
    I('v_add_u32 v3, s4, v13')
    I('s_waitcnt lgkmcnt(0)')
    barrier()
    stamp(4)
    for q in range(2):
        I(f'ds_read_b128 {vr(212+4*q)}, v2 offset:{q*16}')
    I('s_waitcnt lgkmcnt(0)')
    gemv_pair(8, lambda p: 212 + p, 244, [228, 232], lambda blk, t: 20 + 4 * t, [236], [240])
    setexec(0xffff)
    I('ds_write_b128 v3, v[236:239]')
    I('ds_write_b128 v3, v[240:243] offset:256')
    fullexec()
    I('s_waitcnt lgkmcnt(0)')
    barrier()
    sk = uid('nored')
    I('s_cmp_lg_u32 s3, 0')
    I(f's_cbranch_scc1 {sk}')
    I('v_lshlrev_b32 v3, 3, v1')
    I(f'v_add_u32 v3, {L_D_RED}, v3')
    I('v_add_u32 v2, 2048, v3')
    setexec(0xffffffff)
    for w in range(8):
        ad = 'v3' if w < 4 else 'v2'
        I(f'ds_read2_b64 {vr(20+4*w)}, {ad} offset0:{(w%4)*64} offset1:{(w%4)*64+32}')
    I('v_lshlrev_b32 v3, 3, v1')
    I(f'v_add_u32 v3, {L_D_CD}, v3')
    I('s_waitcnt lgkmcnt(0)')
    for st in (1, 2, 4):
        for w in range(0, 8, 2 * st):
            I(f'v_pk_add_f32 {vr(20+4*w,2)}, {vr(20+4*w,2)}, {vr(20+4*(w+st),2)}')
            I(f'v_pk_add_f32 {vr(22+4*w,2)}, {vr(22+4*w,2)}, {vr(22+4*(w+st),2)}')
    I('v_cvt_pk_bf16_f32 v20, v20, v22')
    I('v_cvt_pk_bf16_f32 v21, v21, v23')
    I('ds_write_b64 v3, v[20:21]')
    fullexec()
    I('s_waitcnt lgkmcnt(0)')
    L(sk)
    I('s_lshl_b32 s4, s43, 5')
    I('s_add_u32 s4, s4, s42')
    I('s_mul_i32 s4, s4, 1280')
    I(f's_add_u32 s4, s4, {AP}')
    barrier()
    delay(2)
    I('s_cmp_gt_u32 s3, 3')
    I('s_cbranch_scc1 L_d_hi2')
    I('v_lshlrev_b32 v2, 6, v14')
    I(f'v_add_u32 v2, {L_D_CD}, v2')
    for q in range(4):
        I(f'ds_read_b128 {vr(212+4*q)}, v2 offset:{q*16}')
    I('s_lshl_b32 s5, s3, 8')
    I('s_add_u32 s4, s4, s5')
    I('s_waitcnt lgkmcnt(0)')
    gemv_pair(16, lambda p: 212 + p, 244, [228, 232], lambda blk, t: 84 + 4 * t, [236], [240])
    for r in range(4):
        I(f'v_cvt_pk_bf16_f32 v{236+r}, v{236+r}, v{240+r}')
        I(f'v_min_u32 v{236+r}, 0xfffffffe, v{236+r}')
    setexec(0xffff)
    I(f'buffer_store_dwordx4 v[236:239], v13, {S(WS)}, s4 offen sc1')
    fullexec()
    stamp(5)
    barrier()
    I('s_branch L_end')
    L('L_d_hi2')
    I('v_lshlrev_b32 v2, 4, v14')
    I('s_lshl_b32 s5, s46, 6')
    I(f's_add_u32 s5, s5, {L_D_CD}')
    I('v_add_u32 v2, s5, v2')
    I('ds_read_b128 v[212:215], v2')
    I('s_lshl_b32 s5, s46, 9')
    I(f's_add_u32 s5, s5, {L_D_RED}')
    I('v_add_u32 v3, s5, v13')
    I('s_waitcnt lgkmcnt(0)')
    gemv_pair(4, lambda p: 212 + p, 244, [228, 232], lambda blk, t: 84 + 4 * t, [236], [240])
    setexec(0xffff)
    I('ds_write_b128 v3, v[236:239]')
    I('ds_write_b128 v3, v[240:243] offset:256')
    fullexec()
    I('s_waitcnt lgkmcnt(0)')
    barrier()
    I('s_cmp_lg_u32 s3, 4')
    I('s_cbranch_scc1 L_end')
    I(f'v_add_u32 v3, {L_D_RED}, v13')
    setexec(0xffff)
    for w in range(4):
        I(f'ds_read_b128 {vr(20+8*w)}, v3 offset:{w*512}')
        I(f'ds_read_b128 {vr(24+8*w)}, v3 offset:{w*512+256}')
    I('s_waitcnt lgkmcnt(0)')
    for q in range(4):
        I(f'v_pk_add_f32 {vr(20+2*q,2)}, {vr(20+2*q,2)}, {vr(28+2*q,2)}')
        I(f'v_pk_add_f32 {vr(36+2*q,2)}, {vr(36+2*q,2)}, {vr(44+2*q,2)}')
        I(f'v_pk_add_f32 {vr(20+2*q,2)}, {vr(20+2*q,2)}, {vr(36+2*q,2)}')
    for r in range(4):
        I(f'v_cvt_pk_bf16_f32 v{20+r}, v{20+r}, v{24+r}')
        I(f'v_min_u32 v{20+r}, 0xfffffffe, v{20+r}')
    I(f'buffer_store_dwordx4 v[20:23], v13, {S(WS)}, s4 offen offset:1024 sc1')
    fullexec()
    stamp(7, 4)
    I('s_branch L_end')

def role_E():
    L('L_role_e')
    WG, WU, WD, X_, OUT = 20, 24, 28, 32, 36
    srd(WG, 'wg'); srd(WU, 'wu'); srd(WD, 'wd'); srd(X_, 'x'); srd(OUT, 'out')
    make_masks(16, True)
    make_masks4(240, 1)
    L('L_e_init')
    if EGATE: lds_gate()
    I('s_cmp_lg_u32 s47, 0')
    I('s_cbranch_scc1 L_end')
    I('v_mul_u32_u24 v2, 69120, v14')
    I('v_and_b32 v3, 7, v15')
    I('v_lshl_add_u32 v2, v3, 4, v2')
    I('s_mul_i32 s4, s3, 276480')
    I('s_lshl_b32 s5, s42, 7')
    I('s_add_u32 s4, s4, s5')
    I('s_mov_b32 s6, 0x00ff00ff')
    I('s_mov_b32 s7, 0x00ff00ff')
    I('s_mov_b32 s48, 0xff00ff00')
    I('s_mov_b32 s49, 0xff00ff00')
    lds = []
    for t in range(20):
        lds.append(([] if t == 0 else ['s_add_u32 s4, s4, 3456']) + ['s_mov_b64 exec, s[6:7]',
                   f'buffer_load_dwordx4 {vr(20+4*t)}, v2, {S(WG)}, s4 offen nt'])
        lds.append(['s_mov_b64 exec, s[48:49]', f'buffer_load_dwordx4 {vr(20+4*t)}, v2, {S(WU)}, s4 offen nt'])
    paced(lds, 2 * EPACE)
    fullexec()
    I('s_mul_i32 s4, s42, 81920')
    I('s_cmp_gt_u32 s3, 3')
    I('s_cbranch_scc1 L_e_hi')
    I('v_mul_u32_u24 v2, 20480, v14')
    I('v_lshl_add_u32 v2, v15, 4, v2')
    I('s_lshl_b32 s5, s3, 8')
    I('s_add_u32 s4, s4, s5')
    for t in range(16):
        I(f'buffer_load_dwordx4 {vr(100+4*t)}, v2, {S(WD)}, s4 offen nt')
        if t < 15: I('s_add_u32 s4, s4, 1280')
    I('s_waitcnt vmcnt(0)')
    pairperm([(20 + 8 * p, 24 + 8 * p) for p in range(18)], 6)
    I('s_branch L_e_main')
    L('L_e_hi')
    I('v_mul_u32_u24 v2, 5120, v14')
    I('v_lshl_add_u32 v2, v15, 4, v2')
    I('s_sub_u32 s5, s3, 4')
    I('s_mul_i32 s5, s5, 20480')
    I('s_add_u32 s4, s4, s5')
    I('s_add_u32 s4, s4, 1024')
    for t in range(4):
        I(f'buffer_load_dwordx4 {vr(100+4*t)}, v2, {S(WD)}, s4 offen nt')
        if t < 3: I('s_add_u32 s4, s4, 1280')
    I('s_waitcnt vmcnt(0)')
    pairperm([(20 + 8 * p, 24 + 8 * p) for p in range(12)], 6)
    if DRY:
        I('s_cmp_lg_u32 s3, 7')
        I('s_cbranch_scc1 L_e_main')
        enter_dry('L_e_main')
    L('L_e_main')
    sk = uid('nofw')
    I('s_cmp_lg_u32 s3, 0')
    skip_if(sk)
    flags_wait(0)
    L(sk)
    barrier()
    stamp(2)
    I('v_and_b32 v2, 1, v14')
    I('v_lshlrev_b32 v2, 2, v2')
    I('v_lshl_add_u32 v2, v15, 3, v2')
    I('s_lshl_b32 s4, s3, 7')
    I('v_add_u32 v12, s4, v2')
    sk5 = uid('w5')
    I('s_cmp_gt_u32 s3, 4')
    skip_if(sk5)
    I('v_lshlrev_b32 v2, 1, v12')
    I('s_mul_i32 s4, s43, 1280')
    I(f'buffer_load_dwordx2 v[4:5], v2, {S(X_)}, s4 offen')
    I('v_lshlrev_b32 v2, 2, v12')
    I('s_mul_i32 s4, s43, 15360')
    I(f's_add_u32 s48, s4, {MOD + 2*2560}')
    for i in range(1, 12):
        p, kq = i % 3, i // 3
        I(f's_add_u32 s{48+i}, s48, {p*2560 + kq*30720}')
    lab = spin_begin()
    for i in range(12):
        I(f'buffer_load_dwordx4 {vr(164+4*i)}, v2, {S(WS)}, s{48+i} offen sc1')
    I('s_waitcnt vmcnt(0)')
    anysent(range(164, 212), 6)
    spin_end(lab)
    for p in range(3):
        for r in range(4):
            a = 164 + 4 * p + r
            I(f'v_add_f32 v{a}, v{a}, v{a+12}')
            I(f'v_add_f32 v{a+24}, v{a+24}, v{a+36}')
            I(f'v_add_f32 v{a}, v{a}, v{a+24}')
            bfround(a)
    I('v_lshlrev_b32 v176, 16, v4')
    I('v_and_b32 v177, 0xffff0000, v4')
    I('v_lshlrev_b32 v178, 16, v5')
    I('v_and_b32 v179, 0xffff0000, v5')
    for r in range(4):
        I(f'v_add_f32 v{172+r}, 1.0, v{172+r}')
        bfround(172 + r)
    for d in range(4): I(f'v_and_b32 v{204+d}, 0x3f803f80, v{16+d}')
    I('v_mul_u32_u24 v3, 10240, v14')
    I('v_lshl_add_u32 v3, v15, 4, v3')
    I('s_mul_i32 s4, s43, 40960')
    I('s_lshl_b32 s5, s3, 8')
    I('s_add_u32 s4, s4, s5')
    I(f's_add_u32 s4, s4, {AP}')
    I('s_add_u32 s5, s4, 3840')
    I('s_add_u32 s6, s4, 7680')
    L(sk5)
    sk = uid('nolp')
    I('s_cmp_lg_u32 s3, 5')
    skip_if(sk)
    I('v_and_b32 v2, 31, v1')
    I('v_mul_u32_u24 v2, 1280, v2')
    I('s_mul_i32 s4, s43, 40960')
    I(f's_add_u32 s4, s4, {AP + 1276}')
    light_poll(lambda r: I(f'buffer_load_dword v{r}, v2, {S(WS)}, s4 offen sc1'), 1, 4, 24 * THR)
    L(sk)
    barrier()
    stamp(6)
    tick(0)
    sk5 = uid('w5a')
    I('s_cmp_gt_u32 s3, 4')
    skip_if(sk5)
    lab = spin_begin()
    for t in range(8):
        so = ['s4', 's5', 's6'][t // 3]
        I(f'buffer_load_dwordx4 {vr(208+4*t)}, v3, {S(WS)}, {so} offen offset:{(t%3)*1280} sc1')
    I('s_waitcnt vmcnt(0)')
    anysent(range(208, 240), 6)
    spin_end(lab)
    stamp(3)
    tick(1)
    for t in range(8):
        c = '0' if t == 0 else 'v[180:183]'
        I(f'v_mfma_f32_16x16x32_bf16 v[180:183], v[204:207], {vr(208+4*t)}, {c}')
    nop(9)
    for r in range(4):
        bfround(180 + r)
        I(f'v_mul_f32 v{180+r}, v{164+r}, v{180+r}')
        bfround(180 + r)
        I(f'v_add_f32 v{180+r}, v{176+r}, v{180+r}')
        bfround(180 + r)
    tick(2)
    I('v_cmp_gt_u32 vcc, 32, v1')
    I('v_add_f32 v6, v180, v181')
    I('v_add_f32 v7, v182, v183')
    I('v_add_f32 v6, v6, v7')
    I('v_cndmask_b32 v6, 0, v6, vcc')
    allreduce('v_add_f32', 6, 7)
    I('v_mul_f32 v6, 0x3c000000, v6')
    for r in range(4): I(f'v_sub_f32 v{184+r}, v{180+r}, v6')
    I('v_mul_f32 v8, v184, v184')
    for r in range(1, 4): I(f'v_fmac_f32 v8, v{184+r}, v{184+r}')
    I('v_cndmask_b32 v8, 0, v8, vcc')
    allreduce('v_add_f32', 8, 7)
    I('v_mov_b32 v7, v8')
    I('s_lshl_b32 s4, s3, 3')
    I(f's_add_u32 s4, s4, {L_E_STAT}')
    I('v_mov_b32 v2, s4')
    I('v_lshlrev_b32 v3, 2, v12')
    I(f'v_add_u32 v3, {L_E_X1}, v3')
    setexec(1)
    I('ds_write_b64 v2, v[6:7]')
    setexec(0xffffffff)
    I('ds_write_b128 v3, v[180:183]')
    fullexec()
    I('s_waitcnt lgkmcnt(0)')
    L(sk5)
    tick(3)
    barrier()
    tick(4)
    sk5 = uid('w5b')
    I('s_cmp_gt_u32 s3, 4')
    skip_if(sk5)
    I(f'v_mov_b32 v2, {L_E_STAT}')
    I('ds_read_b128 v[184:187], v2')
    I('ds_read_b128 v[188:191], v2 offset:16')
    I('ds_read_b64 v[192:193], v2 offset:32')
    I('s_waitcnt lgkmcnt(0)')
    I('v_add_f32 v6, v184, v186')
    I('v_add_f32 v6, v6, v188')
    I('v_add_f32 v6, v6, v190')
    I('v_add_f32 v6, v6, v192')
    I('v_mul_f32 v6, 0x3e4ccccd, v6')
    I('v_add_f32 v7, v185, v187')
    I('v_add_f32 v7, v7, v189')
    I('v_add_f32 v7, v7, v191')
    I('v_add_f32 v7, v7, v193')
    for k in range(5):
        I(f'v_sub_f32 v8, v{184+2*k}, v6')
        I('v_mul_f32 v8, v8, v8')
        I('v_fmac_f32 v7, 0x43000000, v8')
    I('v_mul_f32 v7, 0x3acccccd, v7')
    bfround(6); bfround(7)
    I('v_add_f32 v7, 0x3727c5ac, v7')
    bfround(7)
    I('v_sqrt_f32 v7, v7')
    nop(1)
    bfround(7)
    I('v_rcp_f32 v7, v7')
    for r in range(4):
        I(f'v_sub_f32 v{184+r}, v{180+r}, v6')
        bfround(184 + r)
        I(f'v_mul_f32 v{184+r}, v{184+r}, v7')
        bfround(184 + r)
        I(f'v_mul_f32 v{184+r}, v{184+r}, v{172+r}')
        bfround(184 + r)
        I(f'v_add_f32 v{184+r}, v{184+r}, v{168+r}')
    I('v_cvt_pk_bf16_f32 v184, v184, v185')
    I('v_cvt_pk_bf16_f32 v185, v186, v187')
    I('v_lshlrev_b32 v3, 1, v12')
    I(f'v_add_u32 v3, {L_E_HT}, v3')
    setexec(0xffffffff)
    I('ds_write_b64 v3, v[184:185]')
    fullexec()
    I('s_waitcnt lgkmcnt(0)')
    L(sk5)
    tick(5)
    barrier()
    tick(6)
    stamp(4)
    I('v_mul_u32_u24 v2, 40, v14')
    I('s_mul_i32 s4, s3, 160')
    I(f's_add_u32 s4, s4, {L_E_HT}')
    I('v_add_u32 v2, s4, v2')
    for q in range(5):
        I(f'ds_read_b64 {vr(164+2*q,2)}, v2 offset:{q*8}')
    I('s_lshl_b32 s4, s3, 9')
    I(f's_add_u32 s4, s4, {L_E_RED}')
    I('v_add_u32 v3, s4, v13')
    I('s_waitcnt lgkmcnt(0)')
    gemv_pair(10, lambda p: 164 + p, 240, [204, 208], lambda blk, t: 20 + 4 * t, [212], [216])
    setexec(0xffff)
    I('ds_write_b128 v3, v[212:215]')
    I('ds_write_b128 v3, v[216:219] offset:256')
    fullexec()
    I('s_waitcnt lgkmcnt(0)')
    tick(7)
    barrier()
    tick(8)
    sk = uid('nohh')
    I('s_cmp_lg_u32 s3, 0')
    skip_if(sk)
    I('v_lshrrev_b32 v2, 5, v1')
    I('v_and_b32 v3, 31, v1')
    I('v_lshlrev_b32 v3, 2, v3')
    I('v_lshl_add_u32 v3, v2, 8, v3')
    I(f'v_add_u32 v3, {L_E_RED}, v3')
    for w in range(8):
        I(f'ds_read2_b32 {vr(164+2*w,2)}, v3 offset0:{(w%2)*128} offset1:{(w%2)*128+32}' if w < 2 else
          f'ds_read2_b32 {vr(164+2*w,2)}, v{4+w//2} offset0:{(w%2)*128} offset1:{(w%2)*128+32}')
        if w % 2 == 1 and w < 7: I(f'v_add_u32 v{5+w//2}, {1024*(w//2+1)}, v3')
    I('v_and_b32 v3, 31, v1')
    I('v_lshlrev_b32 v3, 2, v3')
    I('v_lshl_add_u32 v3, v2, 1, v3')
    I(f'v_add_u32 v3, {L_E_HH}, v3')
    I('s_waitcnt lgkmcnt(0)')
    for st in (1, 2, 4):
        for w in range(0, 8, 2 * st):
            I(f'v_pk_add_f32 {vr(164+2*w,2)}, {vr(164+2*w,2)}, {vr(164+2*(w+st),2)}')
    I('v_cvt_pk_bf16_f32 v166, v164, v165')
    I('v_lshlrev_b32 v164, 16, v166')
    I('v_and_b32 v165, 0xffff0000, v166')
    I('v_mul_f32 v164, 0xbfb8aa3b, v164')
    I('v_exp_f32 v164, v164')
    nop(1)
    I('v_add_f32 v164, 1.0, v164')
    I('v_rcp_f32 v164, v164')
    nop(1)
    bfround(164)
    I('v_mul_f32 v164, v164, v165')
    I('v_cvt_pk_bf16_f32 v164, v164, v164')
    I('ds_write_b16 v3, v164')
    I('s_waitcnt lgkmcnt(0)')
    L(sk)
    I('s_mul_i32 s4, s43, 27')
    I('s_add_u32 s4, s4, s42')
    I('s_mul_i32 s4, s4, 2560')
    I(f's_add_u32 s4, s4, {FP}')
    tick(9)
    barrier()
    delay(3)
    tick(10)
    I('s_cmp_gt_u32 s3, 3')
    I('s_cbranch_scc1 L_e_hi2')
    I('v_lshlrev_b32 v2, 5, v14')
    I(f'v_add_u32 v2, {L_E_HH}, v2')
    for q in range(2):
        I(f'ds_read_b128 {vr(164+4*q)}, v2 offset:{q*16}')
    I('s_lshl_b32 s5, s3, 9')
    I('s_add_u32 s4, s4, s5')
    I('s_waitcnt lgkmcnt(0)')
    gemv_pair(8, lambda p: 164 + p, 240, [204, 208], lambda blk, t: 100 + 4 * t, [212], [216])
    for r in range(8): I(f'v_min_u32 v{212+r}, 0xfffffffe, v{212+r}')
    setexec(0xffff)
    I(f'buffer_store_dwordx4 v[212:215], v13, {S(WS)}, s4 offen sc1')
    I(f'buffer_store_dwordx4 v[216:219], v13, {S(WS)}, s4 offen offset:256 sc1')
    fullexec()
    tick(11)
    tick_dump(12)
    stamp(5)
    barrier()
    I('s_branch L_end')
    L('L_e_hi2')
    I('s_sub_u32 s46, s3, 4')
    I('v_lshlrev_b32 v2, 3, v14')
    I('s_lshl_b32 s5, s46, 5')
    I(f's_add_u32 s5, s5, {L_E_HH}')
    I('v_add_u32 v2, s5, v2')
    I('ds_read_b64 v[164:165], v2')
    I('s_lshl_b32 s5, s46, 9')
    I(f's_add_u32 s5, s5, {L_E_RED}')
    I('v_add_u32 v3, s5, v13')
    I('s_waitcnt lgkmcnt(0)')
    gemv_pair(2, lambda p: 164 + p, 240, [204, 208], lambda blk, t: 100 + 4 * t, [212], [216])
    setexec(0xffff)
    I('ds_write_b128 v3, v[212:215]')
    I('ds_write_b128 v3, v[216:219] offset:256')
    fullexec()
    I('s_waitcnt lgkmcnt(0)')
    barrier()
    I('s_cmp_lg_u32 s3, 4')
    I('s_cbranch_scc1 L_final')
    I(f'v_add_u32 v3, {L_E_RED}, v13')
    setexec(0xffff)
    for w in range(4):
        I(f'ds_read_b128 {vr(20+8*w)}, v3 offset:{w*512}')
        I(f'ds_read_b128 {vr(24+8*w)}, v3 offset:{w*512+256}')
    I('s_waitcnt lgkmcnt(0)')
    for q in range(4):
        I(f'v_pk_add_f32 {vr(20+2*q,2)}, {vr(20+2*q,2)}, {vr(28+2*q,2)}')
        I(f'v_pk_add_f32 {vr(36+2*q,2)}, {vr(36+2*q,2)}, {vr(44+2*q,2)}')
        I(f'v_pk_add_f32 {vr(20+2*q,2)}, {vr(20+2*q,2)}, {vr(36+2*q,2)}')
    for r in range(8): I(f'v_min_u32 v{20+r}, 0xfffffffe, v{20+r}')
    I('s_add_u32 s4, s4, 2048')
    I(f'buffer_store_dwordx4 v[20:23], v13, {S(WS)}, s4 offen sc1')
    I(f'buffer_store_dwordx4 v[24:27], v13, {S(WS)}, s4 offen offset:256 sc1')
    fullexec()
    I('s_branch L_end')
    L('L_final')
    I('s_cmp_lg_u32 s3, 5')
    skip_if('L_end')
    I('s_cmp_ge_u32 s42, 10')
    skip_if('L_end')
    I('s_lshl_b32 s4, s42, 6')
    I('v_add_u32 v12, s4, v1')
    I('v_lshlrev_b32 v2, 2, v12')
    I(f'v_add_u32 v3, {L_E_X1}, v2')
    I('ds_read_b32 v10, v3')
    I('v_lshrrev_b32 v4, 7, v12')
    I('v_lshlrev_b32 v4, 9, v4')
    I('v_and_b32 v5, 1, v12')
    I('v_lshl_add_u32 v4, v5, 8, v4')
    I('v_bfe_u32 v5, v12, 3, 4')
    I('v_lshl_add_u32 v4, v5, 4, v4')
    I('v_bfe_u32 v5, v12, 1, 2')
    I('v_lshl_add_u32 v4, v5, 2, v4')
    I('s_mul_i32 s4, s43, 15360')
    I(f's_add_u32 s4, s4, {MOD + 5*2560}')
    I('s_mul_i32 s5, s43, 69120')
    I(f's_add_u32 s5, s5, {FP}')
    lab = spin_begin()
    I('s_mov_b32 s6, s4')
    for kq in range(4):
        I(f'buffer_load_dword v{48+kq}, v2, {S(WS)}, s6 offen sc1')
        if kq < 3: I('s_add_u32 s6, s6, 30720')
    I('s_waitcnt vmcnt(0)')
    anysent(list(range(48, 52)), 6)
    spin_end(lab)
    for p in range(9): I(f's_add_u32 s{48+p}, s5, {p*7680}')
    def fissue(base):
        for p in range(27):
            I(f'buffer_load_dword v{base+p}, v4, {S(WS)}, s{48+p//3} offen offset:{(p%3)*2560 if (p%3)*2560 < 4096 else 0} sc1'
              if p % 3 < 2 else f'buffer_load_dword v{base+p}, v5, {S(WS)}, s{48+p//3} offen sc1')
    I('v_add_u32 v5, 5120, v4')
    I('s_mov_b32 s98, 0')
    fissue(20)
    I('s_sleep 6')
    L('L_fin_top')
    fissue(60)
    I('s_waitcnt vmcnt(27)')
    anysent(list(range(20, 47)), 6)
    I('s_cbranch_vccz L_fin_done')
    fissue(20)
    I('s_waitcnt vmcnt(27)')
    anysent(list(range(60, 87)), 6)
    I('s_cbranch_vccz L_fin_b')
    I('s_add_u32 s98, s98, 1')
    I(f's_cmp_gt_u32 s98, {SPIN_LIMIT}')
    I('s_cbranch_scc1 L_end')
    I('s_branch L_fin_top')
    L('L_fin_b')
    I('s_waitcnt vmcnt(0)')
    for p in range(27): I(f'v_mov_b32 v{20+p}, v{60+p}')
    L('L_fin_done')
    I('v_add_f32 v11, v48, v49')
    I('v_add_f32 v50, v50, v51')
    I('v_add_f32 v11, v11, v50')
    bfround(11)
    for p in range(1, 27): I(f'v_add_f32 v20, v20, v{20+p}')
    bfround(20)
    I('v_mul_f32 v20, v11, v20')
    bfround(20)
    I('s_waitcnt lgkmcnt(0)')
    I('v_add_f32 v20, v10, v20')
    I('v_cvt_pk_bf16_f32 v20, v20, v20')
    I('v_lshlrev_b32 v2, 1, v12')
    I('s_mul_i32 s4, s43, 1280')
    I(f'buffer_store_short v20, v2, {S(OUT)}, s4 offen')
    stamp(7, 5)
    if DBGT:
        I('s_memrealtime s[60:61]')
        I('s_mov_b32 s20, s90')
        I('s_and_b32 s21, s91, 0xffff')
        I('s_mov_b32 s22, 256')
        I('s_mov_b32 s23, 0x00020000')
        I('s_waitcnt lgkmcnt(0)')
        I('s_sub_u32 s60, s60, s56')
        I('v_mov_b32 v4, s60')
        I('s_mul_i32 s5, s43, 10')
        I('s_add_u32 s5, s5, s42')
        I('s_lshl_b32 s5, s5, 2')
        I('v_mov_b32 v5, 0')
        setexec(1)
        I('buffer_store_dword v4, v5, s[20:23], s5 offen')
        fullexec()
    role_end('L_e_main')

prologue()
role_P12()
role_P3()
role_DE_common()
role_D()
role_E()
L('L_end')
I('s_endpgm')

def wrap_vm(ls):
    out = []; i = 0; n = 0
    while i < len(ls):
        x = ls[i].strip()
        def isvm(k):
            y = ls[k].strip()
            return y.startswith('buffer_store') or (not INSPIN[k] and (y.startswith('s_waitcnt vmcnt') or (y.startswith('buffer_load') and ' nt' not in y)))
        if isvm(i):
            j = i
            while j < len(ls) and isvm(j):
                j += 1
            n += 1
            out.append(f'    s_cbranch_execz L_vs_{n}')
            out += ls[i:j]
            out.append(f'L_vs_{n}:')
            i = j
        else:
            out.append(ls[i]); i += 1
    return out
if DRY:
    INSPIN = []
    ins = False
    for x in lines:
        t = x.strip()
        if re.match(r'L_spin_\d+:$', t): ins = True
        if re.match(r'L_spin_\d+_x:$', t): ins = False
        INSPIN.append(ins)
    lines = wrap_vm(lines)
hdr = open('cdna_kernels/' + NAME + '.s.ref').read().split('\n')
out = []
for ln in hdr:
    if ln.startswith('; @launch'):
        out.append(f'; @launch grid=(256,1,1) block=(512,1,1) lds={LDS_BYTES}')
    elif ln.startswith(';'):
        out.append(ln)
    else:
        break
out += ['.amdgcn_target "amdgcn-amd-amdhsa--gfx950"', '.text', f'.globl {NAME}_kernel', '.p2align 8',
        f'.type {NAME}_kernel,@function', f'{NAME}_kernel:']
out += lines
out += ['.section .rodata,"a"', '.p2align 6', f'.amdhsa_kernel {NAME}_kernel',
        '  .amdhsa_next_free_vgpr 256', '  .amdhsa_next_free_sgpr 102', '  .amdhsa_accum_offset 256',
        '  .amdhsa_group_segment_fixed_size 0', '  .amdhsa_kernarg_size 120', '  .amdhsa_user_sgpr_count 2',
        '  .amdhsa_user_sgpr_kernarg_segment_ptr 1', '  .amdhsa_system_sgpr_workgroup_id_x 1',
        '.end_amdhsa_kernel', '']
open(sys.argv[1], 'w').write('\n'.join(out))
```

```python
import sys, re

NAME = 'adaLN_cond__compressed_kv_cla__glu_gated_glu__decode'
STAMP = int(sys.argv[2]) if len(sys.argv) > 2 else 0
DBGT = (STAMP == 2)
if DBGT: STAMP = 0
SPIN_LIMIT = 200000

EPOCH = 0
FLAGS = 2048
MOD = 8192
QP = 131072
QA = 262144
ML = 327680
AP = 360448
FP = 442368
MODT = 655360
STP = 589824
OP = 1048576
WS_BYTES = OP + 2 * 32 * 32 * 1024

CKS = 1040
L_WU = 0
L_HD = 66560
L_RED = L_HD + 2560
L_QT2 = L_RED + 5120
L_CK = 0
L_QT = 0
PTS = 272
L_PT = 133120
L_MX = L_PT + 32 * PTS
LDS_BYTES = L_MX + 1024
L_WT0 = 0
L_WT1 = 20480
L_WT2 = 40960
L_ST = 61440
L_FC = 64512
L_D_WD = 65536
L_D_CD = 66560
L_D_RED = 69632
L_D_RED2 = 73728
L_E_STAT = 65536
L_E_X1 = 65792
L_E_HT = 68608
L_E_RED = 73728
L_E_HH = 77824
PACE = int(sys.argv[3]) if len(sys.argv) > 3 else 6
SLOWN = int(sys.argv[4]) if len(sys.argv) > 4 else 6
DRY = int(sys.argv[5]) if len(sys.argv) > 5 else 0
EGATE = int(sys.argv[6]) if len(sys.argv) > 6 else 1
EPACE = int(sys.argv[7]) if len(sys.argv) > 7 else 6
SLOWP = int(sys.argv[8]) if len(sys.argv) > 8 else 2
LATEC = int(sys.argv[9]) if len(sys.argv) > 9 else 0
CK0 = int(sys.argv[10]) if len(sys.argv) > 10 else 4
CK1 = int(sys.argv[11]) if len(sys.argv) > 11 else 6
W1GATE = int(sys.argv[12]) if len(sys.argv) > 12 else 0
XSPLIT = int(sys.argv[13]) if len(sys.argv) > 13 else 0
P3GATE = int(sys.argv[14]) if len(sys.argv) > 14 else 0
WU0 = int(sys.argv[15]) if len(sys.argv) > 15 else 6
THR = int(sys.argv[16]) if len(sys.argv) > 16 else 1
DELAY = int(sys.argv[17]) if len(sys.argv) > 17 else 0
AGATE = int(sys.argv[18]) if len(sys.argv) > 18 else 0

TAGC_LO = 0x7F4A7C15
TAGC_HI = 0x9E3779B9

lines = []
def I(s): lines.append('    ' + s)
def L(s): lines.append(s + ':')
def C(s): lines.append('    ; ' + s)
def nop(n):
    while n > 0:
        k = min(n, 16)
        I(f's_nop {k-1}')
        n -= k
_uid = [0]
def uid(p):
    _uid[0] += 1
    return f'L_{p}_{_uid[0]}'
def vr(a, n=4): return f'v[{a}:{a+n-1}]'

PTR = {k: 64 + 2 * i for i, k in enumerate(
    ['x', 'ckv', 'wq', 'wuk', 'wuv', 'wo', 'bx', 'wg', 'wu', 'wd', 'c', 'wmod', 'out', 'dbg', 'ws'])}
NBYTES = dict(x=2560, ckv=8388608, wq=5242880, wuk=4194304, wuv=4194304, wo=5242880, wg=2211840, wu=2211840,
              wd=2211840, c=2560, wmod=4915200, out=2560, ws=WS_BYTES)
def srd(d, name):
    p = PTR[name]
    I(f's_mov_b32 s{d}, s{p}')
    I(f's_and_b32 s{d+1}, s{p+1}, 0xffff')
    I(f's_mov_b32 s{d+2}, {NBYTES[name]}')
    I(f's_mov_b32 s{d+3}, 0x00020000')
def S(d): return f's[{d}:{d+3}]'
WS = 8

def setexec(lo, hi=0):
    I(f's_and_b32 exec_lo, s100, 0x{lo:x}')
    if hi: I(f's_and_b32 exec_hi, s100, 0x{hi:x}')
    else: I('s_mov_b32 exec_hi, 0')
def fullexec():
    I('s_mov_b64 exec, s[100:101]')
def skip_if(lab):
    I('s_cselect_b32 s99, s100, 0')
    I('s_cmp_lg_u32 s99, 0')
    I(f's_cbranch_scc1 {lab}')
def barrier():
    o = uid('bar')
    I('s_cmp_eq_u32 s100, 0')
    I(f's_cbranch_scc1 {o}')
    I('s_barrier')
    L(o)
def enter_dry(target):
    I('s_mov_b64 s[100:101], 0')
    I('s_mov_b64 exec, 0')
    I(f's_branch {target}')
def role_end(back):
    I('s_cmp_lg_u32 s100, 0')
    I('s_cbranch_scc1 L_end')
    I('s_mov_b64 s[100:101], -1')
    I('s_mov_b64 exec, -1')
    I(f's_branch {back}')

def stamp(idx, wave=0):
    if STAMP != 1: return
    skip = uid('st')
    I(f's_cmp_lg_u32 s3, {wave}')
    I(f's_cbranch_scc1 {skip}')
    I('s_memrealtime s[60:61]')
    I('s_waitcnt lgkmcnt(0)')
    I('v_mov_b32 v254, s60')
    I('v_mov_b32 v255, s61')
    I(f's_lshl_b32 s62, s2, 7')
    I(f's_add_u32 s62, s62, {STP + idx*8}')
    I('v_mov_b32 v253, 0')
    I('s_mov_b64 s[58:59], exec')
    setexec(1)
    I(f'buffer_store_dwordx2 v[254:255], v253, {S(WS)}, s62 offen')
    I('s_mov_b64 exec, s[58:59]')
    L(skip)

TICK = (STAMP == 3)
def tick(i):
    if TICK: I(f's_memtime s[{64+2*i}:{65+2*i}]')
def tick_dump(n):
    if not TICK: return
    skip = uid('tk')
    I('s_cmp_lg_u32 s3, 0')
    I(f's_cbranch_scc1 {skip}')
    I('s_waitcnt lgkmcnt(0)')
    I('s_mov_b64 s[58:59], exec')
    setexec(1)
    I('v_mov_b32 v253, 0')
    for i in range(n):
        I(f'v_mov_b32 v254, s{64+2*i}')
        I(f'v_mov_b32 v255, s{65+2*i}')
        I(f's_lshl_b32 s62, s2, 7')
        I(f's_add_u32 s62, s62, {STP + i*8}')
        I(f'buffer_store_dwordx2 v[254:255], v253, {S(WS)}, s62 offen')
        nop(2)
    I('s_mov_b64 exec, s[58:59]')
    L(skip)

def delay(place):
    if DELAY == place:
        for _ in range(1): I('s_sleep 110')

def spin_begin():
    lab = uid('spin')
    I(f's_cbranch_execz {lab}_x')
    I('s_mov_b32 s98, 0')
    L(lab)
    return lab
def spin_end(lab, sleep=1):
    done = uid('spd')
    I(f's_cbranch_vccz {done}')
    I('s_add_u32 s98, s98, 1')
    I(f's_cmp_gt_u32 s98, {SPIN_LIMIT}')
    I('s_cbranch_scc1 L_end')
    I(f's_sleep {sleep}')
    I(f's_branch {lab}')
    L(done)
    L(f'{lab}_x')

def anysent(regs, tmp):
    regs = list(regs)
    cur = regs[0]; rest = regs[1:]
    while rest:
        if len(rest) >= 2:
            I(f'v_max3_u32 v{tmp}, v{cur}, v{rest[0]}, v{rest[1]}'); rest = rest[2:]
        else:
            I(f'v_max_u32 v{tmp}, v{cur}, v{rest[0]}'); rest = rest[1:]
        cur = tmp
    I(f'v_cmp_eq_u32 vcc, -1, v{cur}')

def allreduce(op, x, tmp, rows_only=False, skip_row=False, half=False):
    if not skip_row:
        for ctl in ['quad_perm:[1,0,3,2]', 'quad_perm:[2,3,0,1]', 'row_half_mirror', 'row_mirror']:
            nop(2)
            I(f'{op}_dpp v{x}, v{x}, v{x} {ctl} row_mask:0xf bank_mask:0xf')
    if rows_only: return
    for sw in (['v_permlane16_swap_b32'] if half else ['v_permlane16_swap_b32', 'v_permlane32_swap_b32']):
        I(f'v_mov_b32 v{tmp}, v{x}')
        nop(2)
        I(f'{sw} v{x}, v{tmp}')
        nop(1)
        I(f'{op} v{x}, v{x}, v{tmp}')

def bfround(x, tmp=None):
    I(f'v_cvt_pk_bf16_f32 v{x}, v{x}, v{x}')
    I(f'v_and_b32 v{x}, 0xffff0000, v{x}')

def make_masks(m, single):
    I('v_and_b32 v2, 1, v1')
    I('v_cmp_eq_u32 vcc, 1, v2')
    I('v_mov_b32 v3, 0xffff')
    I('v_mov_b32 v2, 0xffff0000')
    nop(1)
    I('v_cndmask_b32 v3, v3, v2, vcc')
    if single:
        I('v_and_b32 v2, 8, v1')
        I('v_cmp_eq_u32 vcc, 0, v2')
        nop(2)
        I('v_cndmask_b32 v3, 0, v3, vcc')
    I('v_bfe_u32 v2, v1, 1, 2')
    for d in range(4):
        I(f'v_cmp_eq_u32 vcc, {d}, v2')
        nop(2)
        I(f'v_cndmask_b32 v{m+d}, 0, v3, vcc')

def gemv_diag(T, aval, masks, abuf, bq, accs):
    def build(t):
        a = abuf[t % 2]
        for d in range(4):
            I(f'v_and_b32 v{a+d}, v{masks+d}, v{aval(t)}')
    build(0)
    for t in range(T):
        a = abuf[t % 2]
        if t + 1 < T:
            build(t + 1)
        else:
            nop(2)
        for blk, acc in enumerate(accs):
            c = '0' if t == 0 else vr(acc)
            I(f'v_mfma_f32_16x16x32_bf16 {vr(acc)}, {vr(a)}, {vr(bq(blk, t))}, {c}')
    nop(9)

def make_masks4(m, nb):
    I('v_bfe_u32 v2, v1, 2, 2')
    I(f'v_cmp_gt_u32 vcc, {nb}, v2')
    nop(2)
    I('v_cndmask_b32 v3, 0, -1, vcc')
    I('v_and_b32 v2, 3, v1')
    for d in range(4):
        I(f'v_cmp_eq_u32 vcc, {d}, v2')
        nop(2)
        I(f'v_cndmask_b32 v{m+d}, 0, v3, vcc')

def pairperm(quads, tmp):
    I('s_mov_b32 s4, 0x05040100')
    I('s_mov_b32 s5, 0x07060302')
    for n, (x0, x1) in enumerate(quads):
        for q in range(4):
            t = tmp + (q & 1)
            I(f'v_perm_b32 v{t}, v{x1+q}, v{x0+q}, s4')
            I(f'v_perm_b32 v{x1+q}, v{x1+q}, v{x0+q}, s5')
            I(f'v_mov_b32 v{x0+q}, v{t}')

def gemv_pair(P, aval, masks, abuf, bq, accE, accO):
    def build(p):
        a = abuf[p % 2]
        for d in range(4):
            I(f'v_and_b32 v{a+d}, v{masks+d}, v{aval(p)}')
    build(0)
    for p in range(P):
        a = abuf[p % 2]
        if p + 1 < P: build(p + 1)
        else: nop(2)
        for blk in range(len(accE)):
            for acc, t in ((accE[blk], 2 * p), (accO[blk], 2 * p + 1)):
                c = '0' if p == 0 else vr(acc)
                I(f'v_mfma_f32_16x16x32_bf16 {vr(acc)}, {vr(a)}, {vr(bq(blk, t))}, {c}')
    nop(9)

def spin_end_thr(lab, thr, sleep=1):
    done = uid('spd')
    I('s_bcnt1_i32_b64 s99, vcc')
    I(f's_cmp_le_u32 s99, {thr}')
    I(f's_cbranch_scc1 {done}')
    I('s_add_u32 s98, s98, 1')
    I(f's_cmp_gt_u32 s98, {SPIN_LIMIT}')
    I('s_cbranch_scc1 L_end')
    I(f's_sleep {sleep}')
    I(f's_branch {lab}')
    L(done)
    L(f'{lab}_x')

def light_poll(load, regs_per, base, thr, NS=3, gap=5):
    top = uid('lp'); done = uid('lpd')
    I(f's_cbranch_execz {done}')
    I('s_mov_b32 s98, 0')
    for i in range(NS - 1):
        load(base + i * regs_per)
        I(f's_sleep {gap}')
    L(top)
    for i in range(NS):
        load(base + ((i + NS - 1) % NS) * regs_per)
        I(f's_waitcnt vmcnt({NS-1})')
        r = base + i * regs_per
        if regs_per == 1: I(f'v_cmp_eq_u32 vcc, -1, v{r}')
        else:
            I(f'v_max_u32 v{base + NS*regs_per}, v{r}, v{r+1}')
            I(f'v_cmp_eq_u32 vcc, -1, v{base + NS*regs_per}')
        I('s_bcnt1_i32_b64 s99, vcc')
        I(f's_cmp_le_u32 s99, {thr}')
        I(f's_cbranch_scc1 {done}')
    I('s_add_u32 s98, s98, 1')
    I(f's_cmp_gt_u32 s98, {SPIN_LIMIT}')
    I('s_cbranch_scc1 L_end')
    I(f's_branch {top}')
    L(done)

def flags_wait(which, first=0, count=256, sleep=1):
    I('v_lshlrev_b32 v2, 4, v1')
    I(f'v_add_u32 v2, {FLAGS + 2048*which + 8*first}, v2')
    if count == 64: setexec(0xffffffff)
    lab = spin_begin()
    I(f'buffer_load_dwordx4 v[4:7], v2, {S(WS)}, 0 offen sc1')
    if count == 256:
        I(f'buffer_load_dwordx4 v[8:11], v2, {S(WS)}, 0 offen offset:1024 sc1')
    I('s_waitcnt vmcnt(0)')
    n = 12 if count == 256 else 8
    for r in range(4, n):
        I(f'v_xor_b32 v{r}, s{96 + (r & 1)}, v{r}')
    I('v_or3_b32 v4, v4, v5, v6')
    if count == 256:
        I('v_or3_b32 v4, v4, v7, v8')
        I('v_or3_b32 v4, v4, v9, v10')
        I('v_or_b32 v4, v4, v11')
    else:
        I('v_or_b32 v4, v4, v7')
    I('v_cmp_ne_u32 vcc, 0, v4')
    spin_end(lab, sleep)
    if count == 64: fullexec()

def flag_store(which, t0=4):
    I('s_waitcnt vmcnt(0) lgkmcnt(0)')
    I(f's_add_u32 s96, s94, 0x{TAGC_LO:x}')
    I(f's_addc_u32 s97, s95, 0x{TAGC_HI:x}')
    I(f'v_mov_b32 v{t0}, s96')
    I(f'v_mov_b32 v{t0+1}, s97')
    I('s_lshl_b32 s4, s2, 3')
    I(f's_add_u32 s4, s4, {FLAGS + 2048*which}')
    I(f'v_mov_b32 v{t0+2}, 0')
    setexec(1)
    I(f'buffer_store_dwordx2 v[{t0}:{t0+1}], v{t0+2}, {S(WS)}, s4 offen sc1')
    fullexec()

def lds_gate():
    I(f'v_mov_b32 v4, {L_FC}')
    lab = spin_begin()
    I('ds_read_b32 v5, v4')
    I('s_waitcnt lgkmcnt(0)')
    I('v_cmp_ne_u32 vcc, 1, v5')
    spin_end(lab, 2)

def paced(loads, depth):
    for i, ld in enumerate(loads):
        if i >= depth: I(f's_waitcnt vmcnt({depth-1})')
        for x in ld: I(x)

def tag_compute():
    I('s_waitcnt lgkmcnt(0)')
    I(f's_add_u32 s96, s94, 0x{TAGC_LO:x}')
    I(f's_addc_u32 s97, s95, 0x{TAGC_HI:x}')

def prologue():
    I('s_cmp_ge_u32 s2, 256')
    I('s_cbranch_scc1 L_end')
    I('s_mov_b64 s[100:101], -1')
    if XSPLIT:
        I('s_lshr_b32 s4, s2, 3')
        I('s_lshl_b32 s4, s4, 2')
        I('s_and_b32 s5, s2, 3')
        I('s_add_u32 s4, s4, s5')
        I('s_bfe_u32 s5, s2, 0x10002')
        I('s_lshl_b32 s5, s5, 7')
        I('s_add_u32 s2, s4, s5')
    if DBGT: I('s_memrealtime s[56:57]')
    I('s_load_dwordx16 s[64:79], s[0:1], 0')
    I('s_load_dwordx8 s[80:87], s[0:1], 64')
    I('s_load_dwordx4 s[88:91], s[0:1], 96')
    I('s_load_dwordx2 s[92:93], s[0:1], 112')
    I('v_lshrrev_b32 v1, 6, v0')
    nop(1)
    I('v_readfirstlane_b32 s3, v1')
    I('v_and_b32 v1, 63, v0')
    for r in range(2, 13): I(f'v_mov_b32 v{r}, 0')
    if STAMP: I('v_mov_b32 v253, 0')
    I('s_waitcnt lgkmcnt(0)')
    I('s_load_dwordx2 s[94:95], s[92:93], 0')
    srd(WS, 'ws')
    stamp(0)
    I('v_lshrrev_b32 v14, 4, v1')
    I('v_and_b32 v15, 15, v1')
    I('v_lshlrev_b32 v13, 4, v1')
    I('s_cmp_ge_u32 s2, 128')
    I('s_cbranch_scc1 L_de')
    I('s_cmp_ge_u32 s2, 64')
    I('s_cbranch_scc1 L_p3')

def role_P12():
    X_, WQ, WUK = 12, 16, 20
    srd(X_, 'x'); srd(WQ, 'wq'); srd(WUK, 'wuk')
    I('s_lshr_b32 s40, s2, 1')
    I('s_and_b32 s41, s2, 1')
    I('s_mul_i32 s45, s41, 320')
    I('s_cmp_lg_u32 s3, 7')
    I('s_cbranch_scc1 L_a_init')
    for r in range(4, 8): I(f'v_mov_b32 v{r}, -1')
    I('s_lshl_b32 s4, s2, 10')
    I(f's_add_u32 s4, s4, {QP}')
    I(f'buffer_store_dwordx4 v[4:7], v13, {S(WS)}, s4 offen sc1')
    I('v_lshrrev_b32 v3, 5, v1')
    I('v_lshlrev_b32 v3, 15, v3')
    I('v_and_b32 v2, 31, v1')
    I('v_lshl_add_u32 v3, v2, 4, v3')
    I('s_lshl_b32 s4, s2, 9')
    I(f's_add_u32 s4, s4, {QA}')
    I(f'buffer_store_dwordx4 v[4:7], v3, {S(WS)}, s4 offen sc1')
    if DRY: enter_dry('L_a_h1b')
    L('L_a_w7')
    flag_store(0, 8)
    stamp(9, 7)
    I('s_branch L_a_main')
    L('L_a_init')
    I('s_cmp_gt_u32 s3, 4')
    I('s_cbranch_scc1 L_a_h1')
    if AGATE & 1:
        tag_compute()
        flags_wait(0, 128, 128, 2)
    I('v_lshlrev_b32 v2, 17, v14')
    I('v_lshl_add_u32 v2, v15, 4, v2')
    I('s_lshl_b32 s4, s3, 6')
    I('s_add_u32 s4, s4, s45')
    I('s_lshl_b32 s4, s4, 13')
    I('s_lshl_b32 s5, s40, 8')
    I('s_add_u32 s4, s4, s5')
    for t in range(16):
        I(f'buffer_load_dwordx4 {vr(20+4*t)}, v2, {S(WQ)}, s4 offen nt')
        if t < 15: I('s_add_u32 s4, s4, 8192')
    def wuk_dma(first, per):
        I('v_lshlrev_b32 v2, 13, v14')
        I('v_lshl_add_u32 v2, v15, 4, v2')
        I('s_lshl_b32 s4, s41, 21')
        I('s_lshl_b32 s5, s40, 8')
        I('s_add_u32 s4, s4, s5')
        I(f's_mul_i32 s6, s3, {per}')
        I(f's_add_u32 s6, s6, {first}')
        I('s_lshl_b32 s5, s6, 15')
        I('s_add_u32 s4, s4, s5')
        I('s_mul_i32 s5, s6, 1040')
        done = uid('dmad')
        for q in range(per):
            if first + 5 * per > 64 and q >= 64 - first - 4 * per:
                I('s_cmp_eq_u32 s3, 4')
                I(f's_cbranch_scc1 {done}')
            I('s_mov_b32 m0, s5')
            nop(1)
            I(f'buffer_load_dwordx4 v2, {S(WUK)}, s4 offen nt lds')
            if q < per - 1:
                I('s_add_u32 s4, s4, 32768')
                I('s_add_u32 s5, s5, 1040')
        L(done)
    wuk_dma(0, WU0)
    make_masks4(16, 2)
    tag_compute()
    I(f's_waitcnt vmcnt({WU0})')
    pairperm([(20 + 8 * p, 24 + 8 * p) for p in range(8)], 4)
    stamp(10, 4)
    I('s_branch L_a_main')
    L('L_a_h1')
    I('s_sub_u32 s46, s3, 5')
    I('s_mul_i32 s4, s46, 1280')
    I('v_lshlrev_b32 v3, 2, v1')
    for k in range(5):
        I(f'buffer_load_dword v{80 + k}, v3, {S(X_)}, s4 offen offset:{k*256}')
    I('s_lshl_b32 s5, s45, 1')
    I('s_add_u32 s5, s5, s4')
    I(f'buffer_load_dwordx4 v[84+4:84+7], v13, {S(X_)}, s5 offen'.replace('84+4', '88').replace('84+7', '91'))
    tag_compute()
    I('s_waitcnt vmcnt(0)')
    for k in range(5):
        I(f'v_lshlrev_b32 v{96+2*k}, 16, v{80+k}')
        I(f'v_and_b32 v{97+2*k}, 0xffff0000, v{80+k}')
    I('v_add_f32 v92, v96, v97')
    for k in range(2, 10): I(f'v_add_f32 v92, v92, v{96+k}')
    allreduce('v_add_f32', 92, 93)
    I('v_mul_f32 v92, 0x3acccccd, v92')
    for k in range(10): I(f'v_sub_f32 v{96+k}, v{96+k}, v92')
    I('v_mul_f32 v94, v96, v96')
    for k in range(1, 10): I(f'v_fmac_f32 v94, v{96+k}, v{96+k}')
    allreduce('v_add_f32', 94, 93)
    I('v_mul_f32 v94, 0x3acccccd, v94')
    bfround(92); bfround(94)
    I('v_add_f32 v94, 0x3727c5ac, v94')
    bfround(94)
    I('v_sqrt_f32 v94, v94')
    nop(1)
    bfround(94)
    I('v_rcp_f32 v94, v94')
    for k in range(4):
        I(f'v_lshlrev_b32 v{72+2*k}, 16, v{88+k}')
        I(f'v_and_b32 v{73+2*k}, 0xffff0000, v{88+k}')
    for r in range(8):
        I(f'v_sub_f32 v{72+r}, v{72+r}, v92')
        bfround(72 + r)
        I(f'v_mul_f32 v{72+r}, v{72+r}, v94')
        bfround(72 + r)
    L('L_a_h1b')
    stamp(1, 5)
    I('s_mul_i32 s4, s46, 10240')
    I('s_lshl_b32 s5, s45, 3')
    I('s_add_u32 s4, s4, s5')
    I(f's_add_u32 s48, s4, {MODT}')
    for i in range(1, 8): I(f's_add_u32 s{48+i}, s48, {(i//2)*20480 + (i%2)*5120}')
    I('v_lshlrev_b32 v2, 6, v1')
    I('s_mul_i32 s4, s46, 640')
    I(f's_add_u32 s4, s4, {L_HD}')
    I('v_add_u32 v3, s4, v13')
    setexec(0xffffffff, 0xff)
    lab = spin_begin()
    for i in range(8):
        for q in range(4):
            I(f'buffer_load_dwordx4 {vr(112+16*i+4*q)}, v2, {S(WS)}, s{48+i} offen offset:{q*16} sc1')
    I('s_waitcnt vmcnt(0)')
    I('v_mov_b32 v12, 0')
    for i in range(32):
        I(f'v_xor_b32 v{113+4*i}, s96, v{113+4*i}')
        I(f'v_xor_b32 v{115+4*i}, s97, v{115+4*i}')
        I(f'v_or3_b32 v12, v12, v{113+4*i}, v{115+4*i}')
    I('v_cmp_ne_u32 vcc, 0, v12')
    spin_end(lab)
    for part in range(2):
        for r in range(8):
            x = 112 + 16 * part + 2 * r
            I(f'v_add_f32 v{x}, v{x}, v{x+32}')
            I(f'v_add_f32 v{x+64}, v{x+64}, v{x+96}')
            I(f'v_add_f32 v{96+8*part+r}, v{x}, v{x+64}')
            bfround(96 + 8 * part + r)
    for r in range(8):
        I(f'v_add_f32 v{104+r}, 1.0, v{104+r}')
        bfround(104 + r)
        I(f'v_mul_f32 v{104+r}, v{72+r}, v{104+r}')
        bfround(104 + r)
        I(f'v_add_f32 v{104+r}, v{104+r}, v{96+r}')
    for q in range(4):
        I(f'v_cvt_pk_bf16_f32 v{96+q}, v{104+2*q}, v{105+2*q}')
    I('ds_write_b128 v3, v[96:99]')
    fullexec()
    I('s_waitcnt lgkmcnt(0)')
    L('L_a_main')
    barrier()
    stamp(2)
    sk = uid('nofc')
    I('s_cmp_lg_u32 s3, 6')
    skip_if(sk)
    flag_store(2, 8)
    L(sk)
    sk = uid('nop1')
    I('s_cmp_gt_u32 s3, 4')
    skip_if(sk)
    I('v_bfe_u32 v2, v1, 2, 1')
    I('v_mul_u32_u24 v2, 640, v2')
    I('v_lshl_add_u32 v2, v14, 5, v2')
    I('s_lshl_b32 s4, s3, 7')
    I(f's_add_u32 s4, s4, {L_HD}')
    I('v_add_u32 v2, s4, v2')
    for q in range(2):
        I(f'ds_read_b128 {vr(84+4*q)}, v2 offset:{q*16}')
    wuk_dma(5 * WU0, (64 - 5 * WU0 + 4) // 5)
    I('v_lshlrev_b32 v2, 9, v14')
    I('v_lshl_add_u32 v2, v15, 4, v2')
    I('s_lshl_b32 s4, s3, 10')
    I(f's_add_u32 s4, s4, {L_RED}')
    I('v_add_u32 v2, s4, v2')
    I('s_waitcnt lgkmcnt(0)')
    gemv_pair(8, lambda p: 84 + p, 16, [100, 104], lambda blk, t: 20 + 4 * t, [108], [112])
    setexec(0xffffffff)
    I('ds_write_b128 v2, v[108:111]')
    I('ds_write_b128 v2, v[112:115] offset:256')
    fullexec()
    I('s_waitcnt lgkmcnt(0)')
    L(sk)
    barrier()
    sk = uid('nop1r')
    I('s_cmp_lg_u32 s3, 0')
    skip_if(sk)
    I(f'v_add_u32 v2, {L_RED}, v13')
    for w in range(5):
        I(f'ds_read_b128 {vr(164+4*w)}, v2 offset:{w*1024}')
    I('s_lshl_b32 s4, s2, 10')
    I(f's_add_u32 s4, s4, {QP}')
    I('s_waitcnt lgkmcnt(0)')
    for r in range(4):
        I(f'v_add_f32 v{164+r}, v{164+r}, v{168+r}')
        I(f'v_add_f32 v{172+r}, v{172+r}, v{176+r}')
        I(f'v_add_f32 v{164+r}, v{164+r}, v{180+r}')
        I(f'v_add_f32 v{164+r}, v{164+r}, v{172+r}')
        I(f'v_min_u32 v{164+r}, 0xfffffffe, v{164+r}')
    I(f'buffer_store_dwordx4 v[164:167], v13, {S(WS)}, s4 offen sc1')
    stamp(3)
    flags_wait(0, 0, 64)
    I('s_xor_b32 s4, s2, 1')
    I('s_lshl_b32 s4, s4, 10')
    I(f's_add_u32 s4, s4, {QP}')
    lab = spin_begin()
    I(f'buffer_load_dwordx4 v[168:171], v13, {S(WS)}, s4 offen sc1')
    I('s_waitcnt vmcnt(0)')
    anysent(range(168, 172), 2)
    spin_end(lab)
    for r in range(4):
        I(f'v_add_f32 v{168+r}, v{168+r}, v{164+r}')
    I('v_lshrrev_b32 v2, 1, v14')
    I('v_lshlrev_b32 v2, 8, v2')
    I('v_lshl_add_u32 v2, v15, 4, v2')
    I('v_and_b32 v3, 1, v14')
    I('v_lshl_add_u32 v2, v3, 1, v2')
    I(f'v_add_u32 v2, {L_QT2}, v2')
    for r in range(4):
        I(f'v_cvt_pk_bf16_f32 v{168+r}, v{168+r}, v{168+r}')
        I(f'ds_write_b16 v2, v{168+r} offset:{4*r}')
    L(sk)
    sk = uid('w14')
    I('s_cmp_gt_u32 s3, 4')
    skip_if(sk)
    I('s_waitcnt vmcnt(0)')
    L(sk)
    I('s_waitcnt lgkmcnt(0)')
    barrier()
    delay(1)
    stamp(4)
    I('v_and_b32 v2, 1, v15')
    I('v_lshlrev_b32 v2, 8, v2')
    I('v_lshl_add_u32 v2, v14, 4, v2')
    I(f'v_add_u32 v2, {L_QT2}, v2')
    for t in range(4):
        I(f'ds_read_b128 {vr(164+4*t)}, v2 offset:{t*64}')
    I('v_lshrrev_b32 v2, 2, v15')
    I('v_mul_u32_u24 v2, 1040, v2')
    I('v_and_b32 v3, 3, v15')
    I('v_lshl_add_u32 v2, v3, 8, v2')
    I('v_lshl_add_u32 v2, v14, 4, v2')
    I('s_mul_i32 s4, s3, 8320')
    I(f's_add_u32 s4, s4, {L_WU}')
    I('v_add_u32 v2, s4, v2')
    for t in range(4):
        for n in range(2):
            I(f'ds_read_b128 {vr(20+16*n+4*t)}, v2 offset:{n*4160 + t*64}')
    I('v_lshlrev_b32 v2, 15, v15')
    I('v_lshl_add_u32 v2, v14, 3, v2')
    I('s_lshl_b32 s4, s2, 9')
    I('s_lshl_b32 s5, s3, 6')
    I('s_add_u32 s4, s4, s5')
    I(f's_add_u32 s4, s4, {QA}')
    I('s_mov_b32 s5, 0x3e0293ee')
    for t in range(4):
        I(f's_waitcnt lgkmcnt({6-2*t})')
        for n in range(2):
            c = '0' if t == 0 else vr(180 + 4 * n)
            I(f'v_mfma_f32_16x16x32_bf16 {vr(180+4*n)}, {vr(20+16*n+4*t)}, {vr(164+4*t)}, {c}')
    nop(9)
    for r in range(8): I(f'v_mul_f32 v{180+r}, s5, v{180+r}')
    for q in range(4):
        I(f'v_cvt_pk_bf16_f32 v{188+q}, v{180+2*q}, v{181+2*q}')
        I(f'v_min_u32 v{188+q}, 0xfffffffe, v{188+q}')
    setexec(0x00030003, 0x00030003)
    I(f'buffer_store_dwordx2 v[188:189], v2, {S(WS)}, s4 offen sc1')
    I(f'buffer_store_dwordx2 v[190:191], v2, {S(WS)}, s4 offen offset:32 sc1')
    fullexec()
    stamp(5)
    I('s_cmp_lg_u32 s2, 0')
    I('s_cbranch_scc1 L_end')
    I('s_cmp_lg_u32 s3, 0')
    I('s_cbranch_scc1 L_end')
    flags_wait(0, 0, 256)
    I('v_mov_b32 v10, s96')
    I('v_mov_b32 v11, s97')
    I('v_mov_b32 v12, 0')
    setexec(1)
    I(f'buffer_store_dwordx2 v[10:11], v12, {S(WS)}, 0 offen sc1')
    fullexec()
    I('s_branch L_end')

def role_P3():
    L('L_p3')
    CKV = 12
    srd(CKV, 'ckv')
    I('s_sub_u32 s40, s2, 64')
    I('s_lshr_b32 s42, s40, 5')
    I('s_and_b32 s43, s40, 31')
    sk = uid('nofa')
    I('s_cmp_lg_u32 s3, 7')
    I(f's_cbranch_scc1 {sk}')
    flag_store(0, 8)
    L(sk)
    tag_compute()
    if P3GATE:
        flags_wait(2, 0, 64, 4)
    if AGATE & 2:
        flags_wait(0, 128, 128, 2)
    I('s_lshl_b32 s4, s40, 17')
    I('s_lshl_b32 s5, s3, 14')
    I('s_add_u32 s4, s4, s5')
    I(f's_mul_i32 s5, s3, {16*CKS}')
    for r in range(16):
        I('s_mov_b32 m0, s5')
        nop(1)
        I(f'buffer_load_dwordx4 v13, {S(CKV)}, s4 offen nt lds')
        if r < 15:
            I('s_add_u32 s4, s4, 1024')
            I(f's_add_u32 s5, s5, {CKS}')
    if DRY:
        I('s_cmp_lg_u32 s3, 7')
        I('s_cbranch_scc1 L_p3_real')
        enter_dry('L_p3_main')
    L('L_p3_real')
    I('s_waitcnt vmcnt(0)')
    barrier()
    L('L_p3_main')
    stamp(1)
    I(f'v_mul_u32_u24 v2, {CKS}, v15')
    I('v_lshl_add_u32 v2, v14, 4, v2')
    I(f's_mul_i32 s4, s3, {16*CKS}')
    I('v_add_u32 v2, s4, v2')
    for t in range(16):
        I(f'ds_read_b128 {vr(20+4*t)}, v2 offset:{t*64}')
    I('v_lshrrev_b32 v2, 2, v15')
    I('v_lshl_add_u32 v2, v14, 3, v2')
    I(f'v_mul_u32_u24 v2, {CKS}, v2')
    I('v_and_b32 v3, 3, v15')
    I('v_lshl_add_u32 v2, v3, 4, v2')
    I('s_lshl_b32 s4, s3, 7')
    I('v_add_u32 v2, s4, v2')
    I(f'v_add_u32 v3, {64*CKS}, v2')
    for n in range(4):
        for t in range(4):
            base = 84 + 16 * n + 4 * t
            ad = 'v2' if t < 2 else 'v3'
            off = (t % 2) * 32 * CKS + (n >> 1) * 64 + (n & 1) * 8
            I(f'ds_read_b64_tr_b16 {vr(base,2)}, {ad} offset:{off}')
            I(f'ds_read_b64_tr_b16 {vr(base+2,2)}, {ad} offset:{off + 4*CKS}')
    for r in range(4): I(f'v_mov_b32 v{16+r}, 0x3f803f80')
    I('s_waitcnt lgkmcnt(0)')
    sk = uid('noh2l')
    I('s_cmp_lg_u32 s3, 0')
    skip_if(sk)
    flags_wait(0, 0, 64)
    flags_wait(1, 192, 64)
    I('v_lshlrev_b32 v2, 9, v1')
    I('s_lshl_b32 s4, s42, 15')
    I(f's_add_u32 s4, s4, {QA + 508}')
    light_poll(lambda r: I(f'buffer_load_dword v{r}, v2, {S(WS)}, s4 offen sc1'), 1, 4, 24 * THR)
    L(sk)
    barrier()
    stamp(6)
    tick(0)
    I('s_lshl_b32 s4, s42, 15')
    I('s_lshl_b32 s5, s3, 12')
    I('s_add_u32 s4, s4, s5')
    I(f's_add_u32 s4, s4, {QA}')
    lab = spin_begin()
    for k in range(4):
        I(f'buffer_load_dwordx4 {vr(148+4*k)}, v13, {S(WS)}, s4 offen offset:{k*1024} sc1')
    I('s_waitcnt vmcnt(0)')
    anysent(range(148, 164), 2)
    spin_end(lab)
    tick(1)
    I('s_lshl_b32 s4, s3, 12')
    I('s_and_b32 s5, s3, 3')
    I('s_lshl_b32 s5, s5, 2')
    for k in range(4):
        I(f's_add_u32 s6, s5, {k}')
        I('v_xor_b32 v2, s6, v1')
        I('v_lshlrev_b32 v2, 4, v2')
        I('v_add_u32 v2, s4, v2')
        I(f'ds_write_b128 v2, {vr(148+4*k)} offset:{L_QT + k*1024}')
    I('v_and_b32 v2, 3, v15')
    I('v_xor_b32 v2, v2, v14')
    I('v_and_b32 v3, 12, v15')
    I('v_or_b32 v2, v2, v3')
    for q in range(4):
        I(f'v_xor_b32 v3, {4*q}, v2')
        I('v_lshlrev_b32 v3, 4, v3')
        I(f'v_lshl_add_u32 v{8+q}, v15, 10, v3')
    I('v_lshlrev_b32 v4, 5, v15')
    I(f'v_add_u32 v4, {L_MX}, v4')
    I('s_lshl_b32 s4, s3, 2')
    I('v_add_u32 v3, s4, v4')
    I('s_waitcnt lgkmcnt(0)')
    tick(2)
    barrier()
    tick(3)
    stamp(7)
    for t in range(16):
        I(f'ds_read_b128 {vr(148+4*t)}, v{8+t%4} offset:{L_QT + (t//4)*256}')
    for t in range(16):
        I(f's_waitcnt lgkmcnt({15 if t else 15})') if False else I('s_waitcnt lgkmcnt(15)')
        c = '0' if t == 0 else 'v[212:215]'
        I(f'v_mfma_f32_16x16x32_bf16 v[212:215], {vr(20+4*t)}, {vr(148+4*t)}, {c}')
        I(f'ds_read_b128 {vr(148+4*t)}, v{8+t%4} offset:{L_QT + 16384 + (t//4)*256}')
    for t in range(16):
        I(f's_waitcnt lgkmcnt({15-t})')
        c = '0' if t == 0 else 'v[216:219]'
        I(f'v_mfma_f32_16x16x32_bf16 v[216:219], {vr(20+4*t)}, {vr(148+4*t)}, {c}')
    tick(4)
    I('v_max_f32 v220, v212, v213')
    I('v_max3_f32 v220, v220, v214, v215')
    allreduce('v_max_f32', 220, 222, skip_row=True)
    I('v_max_f32 v221, v216, v217')
    I('v_max3_f32 v221, v221, v218, v219')
    allreduce('v_max_f32', 221, 222, skip_row=True)
    I('ds_write_b32 v3, v220')
    I('ds_write_b32 v3, v221 offset:512')
    I(f'v_mul_u32_u24 v5, {PTS}, v15')
    I(f'v_add_u32 v5, {L_PT}, v5')
    I('v_lshl_add_u32 v3, v14, 3, v5')
    I('s_lshl_b32 s4, s3, 5')
    I('v_add_u32 v3, s4, v3')
    I('v_lshl_add_u32 v5, v14, 4, v5')
    I('s_waitcnt lgkmcnt(0)')
    tick(5)
    barrier()
    tick(6)
    for ht in range(2):
        I(f'ds_read_b128 {vr(148+8*ht)}, v4 offset:{ht*512}')
        I(f'ds_read_b128 {vr(152+8*ht)}, v4 offset:{ht*512+16}')
    I('s_waitcnt lgkmcnt(0)')
    for ht in range(2):
        q = 148 + 8 * ht
        I(f'v_max3_f32 v{220+ht}, v{q}, v{q+1}, v{q+2}')
        I(f'v_max3_f32 v{220+ht}, v{220+ht}, v{q+3}, v{q+4}')
        I(f'v_max3_f32 v{220+ht}, v{220+ht}, v{q+5}, v{q+6}')
        I(f'v_max_f32 v{220+ht}, v{220+ht}, v{q+7}')
    for ht in range(2):
        for r in range(4):
            I(f'v_sub_f32 v{212+4*ht+r}, v{212+4*ht+r}, v{220+ht}')
    for r in range(8):
        I(f'v_exp_f32 v{212+r}, v{212+r}')
    nop(1)
    for q in range(4):
        I(f'v_cvt_pk_bf16_f32 v{224+q}, v{212+2*q}, v{213+2*q}')
    I('ds_write_b64 v3, v[224:225]')
    I(f'ds_write_b64 v3, v[226:227] offset:{16*PTS}')
    I('v_lshlrev_b32 v2, 15, v15')
    I('v_lshl_add_u32 v2, v14, 4, v2')
    I('s_lshl_b32 s4, s42, 20')
    I('s_lshl_b32 s5, s43, 10')
    I('s_add_u32 s4, s4, s5')
    I('s_lshl_b32 s5, s3, 7')
    I('s_add_u32 s4, s4, s5')
    I(f's_add_u32 s4, s4, {OP}')
    I('s_add_u32 s5, s4, 0x80000')
    I('s_waitcnt lgkmcnt(0)')
    tick(7)
    barrier()
    tick(8)
    for ht in range(2):
        for t in range(4):
            I(f'ds_read_b128 {vr(148+16*ht+4*t)}, v5 offset:{ht*16*PTS + t*64}')
    for ht in range(2):
        for t in range(4):
            I(f's_waitcnt lgkmcnt({7-4*ht-t})')
            for n in range(4):
                acc = 180 + 16 * ht + 4 * n
                c = '0' if t == 0 else vr(acc)
                I(f'v_mfma_f32_16x16x32_bf16 {vr(acc)}, {vr(84+16*n+4*t)}, {vr(148+16*ht+4*t)}, {c}')
    tick(9)
    nop(1)
    for ht in range(2):
        for n in range(4):
            I(f'v_cvt_pk_bf16_f32 v{20+8*ht+2*n}, v{180+16*ht+4*n}, v{181+16*ht+4*n}')
            I(f'v_cvt_pk_bf16_f32 v{21+8*ht+2*n}, v{182+16*ht+4*n}, v{183+16*ht+4*n}')
        for r in range(8): I(f'v_min_u32 v{20+8*ht+r}, 0xfffffffe, v{20+8*ht+r}')
        so = 's4' if ht == 0 else 's5'
        I(f'buffer_store_dwordx4 {vr(20+8*ht)}, v2, {S(WS)}, {so} offen sc1')
        I(f'buffer_store_dwordx4 {vr(24+8*ht)}, v2, {S(WS)}, {so} offen offset:64 sc1')
    tick(10)
    I('s_cmp_gt_u32 s3, 1')
    skip_if('L_p3_done')
    for ht in range(2):
        for t in range(4):
            acc = 36 + 4 * ht
            c = '0' if t == 0 else vr(acc)
            I(f'v_mfma_f32_16x16x32_bf16 {vr(acc)}, v[16:19], {vr(148+16*ht+4*t)}, {c}')
    I('v_lshlrev_b32 v3, 8, v1')
    I('s_lshl_b32 s4, s42, 13')
    I('s_lshl_b32 s5, s3, 12')
    I('s_add_u32 s4, s4, s5')
    I('s_lshl_b32 s5, s43, 3')
    I('s_add_u32 s4, s4, s5')
    I(f's_add_u32 s4, s4, {ML}')
    I('s_cmp_eq_u32 s3, 0')
    I('s_cselect_b64 vcc, -1, 0')
    nop(2)
    I('v_cndmask_b32 v44, v221, v220, vcc')
    I('v_cndmask_b32 v45, v40, v36, vcc')
    I('v_min_u32 v44, 0xfffffffe, v44')
    I('v_min_u32 v45, 0xfffffffe, v45')
    setexec(0xffff)
    I(f'buffer_store_dwordx2 v[44:45], v3, {S(WS)}, s4 offen sc1')
    fullexec()
    L('L_p3_done')
    tick(11)
    tick_dump(12)
    stamp(8)
    role_end('L_p3_real')

def role_DE_common():
    L('L_de')
    C_, WM = 12, 16
    srd(C_, 'c'); srd(WM, 'wmod')
    I('s_sub_u32 s40, s2, 128')
    I('v_lshrrev_b32 v14, 4, v1')
    I('v_and_b32 v15, 15, v1')
    I('v_lshlrev_b32 v13, 4, v1')
    if XSPLIT:
        I('s_and_b32 s4, s40, 63')
        I('s_and_b32 s5, s4, 3')
        I('s_lshr_b32 s6, s4, 3')
        I('s_lshl_b32 s6, s6, 2')
        I('s_add_u32 s42, s6, s5')
        I('s_bfe_u32 s43, s4, 0x10002')
        I('s_mov_b32 s47, 0')
        I('s_cmp_lt_u32 s40, 64')
        I('s_cbranch_scc1 L_dec_done')
        I('s_cmp_ge_u32 s42, 27')
        I('s_cselect_b32 s47, 1, 0')
    else:
        I('s_cmp_ge_u32 s40, 118')
        I('s_cselect_b32 s47, 1, 0')
        I('s_cmp_ge_u32 s40, 64')
        I('s_cbranch_scc1 L_dec_e')
        I('s_lshr_b32 s4, s40, 4')
        I('s_lshl_b32 s4, s4, 3')
        I('s_and_b32 s5, s40, 7')
        I('s_add_u32 s42, s4, s5')
        I('s_bfe_u32 s43, s40, 0x10003')
        I('s_branch L_dec_done')
        L('L_dec_e')
        I('s_sub_u32 s6, s40, 64')
        I('s_lshr_b32 s4, s6, 4')
        I('s_lshl_b32 s4, s4, 3')
        I('s_and_b32 s5, s6, 7')
        I('s_add_u32 s42, s4, s5')
        I('s_bfe_u32 s43, s6, 0x10003')
        I('s_cmp_lt_u32 s6, 48')
        I('s_cbranch_scc1 L_dec_done')
        I('s_sub_u32 s6, s6, 48')
        I('s_cmp_ge_u32 s6, 3')
        I('s_cselect_b32 s43, 1, 0')
        I('s_mul_i32 s4, s43, 3')
        I('s_sub_u32 s6, s6, s4')
        I('s_add_u32 s42, s6, 24')
    L('L_dec_done')
    sk = uid('noclr')
    I('s_cmp_lg_u32 s3, 7')
    I(f's_cbranch_scc1 {sk}')
    for r in range(4, 8): I(f'v_mov_b32 v{r}, -1')
    I('v_lshrrev_b32 v2, 5, v1')
    I('v_lshlrev_b32 v2, 13, v2')
    I('v_bfe_u32 v3, v1, 4, 1')
    I('v_mul_u32_u24 v3, 15360, v3')
    I('v_add_u32 v2, v2, v3')
    I('v_lshl_add_u32 v2, v15, 4, v2')
    I('s_and_b32 s4, s40, 3')
    I('s_mul_i32 s4, s4, 30720')
    I('s_lshr_b32 s5, s40, 2')
    I('s_lshl_b32 s5, s5, 8')
    I('s_add_u32 s4, s4, s5')
    I(f's_add_u32 s4, s4, {MOD + 20*256}')
    I('s_cmp_lt_u32 s40, 32')
    I('s_cselect_b32 exec_hi, -1, 0')
    I(f'buffer_store_dwordx4 v[4:7], v2, {S(WS)}, s4 offen sc1')
    fullexec()
    I('s_cmp_ge_u32 s40, 64')
    I('s_cbranch_scc1 L_clr_e')
    I('s_lshl_b32 s4, s43, 5')
    I('s_add_u32 s4, s4, s42')
    I('s_mul_i32 s4, s4, 1280')
    I(f's_add_u32 s4, s4, {AP}')
    I(f'buffer_store_dwordx4 v[4:7], v13, {S(WS)}, s4 offen sc1')
    setexec(0xffff)
    I(f'buffer_store_dwordx4 v[4:7], v13, {S(WS)}, s4 offen offset:1024 sc1')
    fullexec()
    I('s_branch L_clr_done')
    L('L_clr_e')
    I('s_cmp_lg_u32 s47, 0')
    I('s_cbranch_scc1 L_clr_done')
    I('s_mul_i32 s4, s43, 27')
    I('s_add_u32 s4, s4, s42')
    I('s_mul_i32 s4, s4, 2560')
    I(f's_add_u32 s4, s4, {FP}')
    I(f'buffer_store_dwordx4 v[4:7], v13, {S(WS)}, s4 offen sc1')
    I(f'buffer_store_dwordx4 v[4:7], v13, {S(WS)}, s4 offen offset:1024 sc1')
    setexec(0xffffffff)
    I(f'buffer_store_dwordx4 v[4:7], v13, {S(WS)}, s4 offen offset:2048 sc1')
    fullexec()
    L('L_clr_done')
    L(sk)
    I('s_and_b32 s45, s40, 3')
    I('s_lshr_b32 s46, s40, 2')
    def dma_addr():
        I('v_lshrrev_b32 v2, 3, v1')
        I('v_and_b32 v3, 7, v1')
        I('v_xor_b32 v3, v3, v2')
        I('v_mul_u32_u24 v2, 7680, v2')
        I('v_lshl_add_u32 v2, v3, 4, v2')
        I('s_mul_i32 s4, s45, 1228800')
        I('s_lshl_b32 s5, s46, 7')
        I('s_add_u32 s4, s4, s5')
    def dma_n(n):
        for q in range(n):
            I('s_mov_b32 m0, s5')
            nop(1)
            I(f'buffer_load_dwordx4 v2, {S(WM)}, s4 offen nt lds')
            if q < n - 1:
                I('s_add_u32 s4, s4, 61440')
                I('s_add_u32 s5, s5, 1024')
    def tr_base(wt):
        I('v_lshrrev_b32 v2, 2, v15')
        I('v_lshl_add_u32 v2, v14, 2, v2')
        I('v_and_b32 v3, 7, v2')
        I('v_bfe_u32 v4, v15, 1, 1')
        I('v_xor_b32 v3, v3, v4')
        I('v_lshlrev_b32 v2, 7, v2')
        I('v_and_b32 v4, 1, v15')
        I('v_lshl_add_u32 v2, v4, 3, v2')
        if wt: I(f'v_add_u32 v2, {wt}, v2')
    def st_reads():
        I('v_and_b32 v5, 1, v15')
        I('v_mul_u32_u24 v5, 320, v5')
        I('v_lshl_add_u32 v5, v14, 4, v5')
        for t in range(5):
            I(f'ds_read_b128 {vr(20+4*t)}, v5 offset:{L_ST + t*64}')
    I('s_cmp_gt_u32 s3, 3')
    I('s_cbranch_scc1 L_c_hi')
    I('s_cmp_ge_u32 s40, 80')
    I('s_cbranch_scc1 L_c_bar')
    dma_addr()
    I('s_mul_i32 s6, s3, 307200')
    I('s_add_u32 s4, s4, s6')
    I('s_mul_i32 s5, s3, 5120')
    dma_n(5)
    tr_base(0)
    I('s_lshl_b32 s6, s3, 1')
    I('v_xor_b32 v4, s6, v3')
    I('v_lshl_add_u32 v8, v4, 4, v2')
    I('v_mul_u32_u24 v9, 10240, v15')
    I('v_lshl_add_u32 v9, v14, 5, v9')
    I('s_mul_i32 s4, s45, 20480')
    I('s_lshl_b32 s5, s46, 9')
    I('s_add_u32 s4, s4, s5')
    I('s_lshl_b32 s5, s3, 7')
    I('s_add_u32 s4, s4, s5')
    I(f's_add_u32 s44, s4, {MODT}')
    I('s_waitcnt vmcnt(0)')
    I('s_branch L_c_bar')
    L('L_c_hi')
    I('s_cmp_gt_u32 s3, 5')
    I('s_cbranch_scc1 L_c_bar')
    I('s_sub_u32 s6, s3, 4')
    I('s_mul_i32 s4, s6, 1280')
    I('s_mul_i32 s5, s45, 320')
    I('s_add_u32 s4, s4, s5')
    I('v_lshlrev_b32 v2, 3, v1')
    I(f'buffer_load_dwordx2 v[4:5], v2, {S(C_)}, s4 offen')
    I('v_lshrrev_b32 v8, 3, v1')
    I('v_and_b32 v9, 3, v1')
    I('v_bfe_u32 v10, v1, 2, 1')
    I('v_lshlrev_b32 v6, 6, v8')
    I('v_lshl_add_u32 v6, v9, 4, v6')
    I('v_lshl_add_u32 v6, v10, 3, v6')
    I('s_mul_i32 s4, s6, 320')
    I(f's_add_u32 s4, s4, {L_ST}')
    I('v_add_u32 v6, s4, v6')
    I(f'v_mov_b32 v12, {L_FC}')
    I('v_mov_b32 v7, 0')
    I('ds_write_b32 v12, v7')
    I('s_waitcnt vmcnt(0)')
    I('v_lshlrev_b32 v8, 16, v4')
    I('v_and_b32 v9, 0xffff0000, v4')
    I('v_lshlrev_b32 v10, 16, v5')
    I('v_and_b32 v11, 0xffff0000, v5')
    for r in range(4): I(f'v_mul_f32 v{16+r}, 0xbfb8aa3b, v{8+r}')
    for r in range(4): I(f'v_exp_f32 v{16+r}, v{16+r}')
    for r in range(4): I(f'v_add_f32 v{16+r}, 1.0, v{16+r}')
    for r in range(4): I(f'v_rcp_f32 v{16+r}, v{16+r}')
    for r in range(4): I(f'v_mul_f32 v{16+r}, v{8+r}, v{16+r}')
    I('v_cvt_pk_bf16_f32 v4, v16, v17')
    I('v_cvt_pk_bf16_f32 v5, v18, v19')
    setexec(0xffffffff, 0xff)
    I('ds_write_b64 v6, v[4:5]')
    fullexec()
    I('s_waitcnt lgkmcnt(0)')
    L('L_c_bar')
    barrier()
    I('s_cmp_gt_u32 s3, 3')
    I('s_cbranch_scc1 L_c_hi2')
    tag_compute()
    I('s_cmp_ge_u32 s40, 80')
    I('s_cbranch_scc1 L_c_done')
    delay(4)
    st_reads()
    for t in range(5):
        I(f'ds_read_b64_tr_b16 {vr(40+4*t,2)}, v8 offset:{t*4096}')
        I(f'ds_read_b64_tr_b16 {vr(42+4*t,2)}, v8 offset:{t*4096+2048}')
    for r in (65, 69): I(f'v_mov_b32 v{r}, s96')
    for r in (67, 71): I(f'v_mov_b32 v{r}, s97')
    for t in range(5):
        I(f's_waitcnt lgkmcnt({8-2*t})')
        c = '0' if t == 0 else 'v[60:63]'
        I(f'v_mfma_f32_16x16x32_bf16 v[60:63], {vr(40+4*t)}, {vr(20+4*t)}, {c}')
    nop(9)
    for r in range(4): I(f'v_mov_b32 v{64+2*r}, v{60+r}')
    setexec(0x00030003, 0x00030003)
    I(f'buffer_store_dwordx4 v[64:67], v9, {S(WS)}, s44 offen sc1')
    I(f'buffer_store_dwordx4 v[68:71], v9, {S(WS)}, s44 offen offset:16 sc1')
    fullexec()
    I('s_branch L_c_done')
    L('L_c_hi2')
    tag_compute()
    I('s_cmp_lg_u32 s3, 6')
    I('s_cbranch_scc1 L_c_n6')
    I('s_cmp_lt_u32 s40, 64')
    I('s_cbranch_scc1 L_c_done')
    for r in range(4, 8): I(f'v_mov_b32 v{r}, -1')
    I('s_sub_u32 s6, s40, 64')
    I('s_lshl_b32 s7, s6, 15')
    I(f's_add_u32 s7, s7, {OP}')
    for i in range(32):
        I(f'buffer_store_dwordx4 v[4:7], v13, {S(WS)}, s7 offen offset:{(i%4)*1024} sc1')
        if i % 4 == 3 and i < 31: I('s_add_u32 s7, s7, 4096')
    I('s_lshl_b32 s7, s6, 8')
    I(f's_add_u32 s7, s7, {ML}')
    setexec(0xffff)
    I(f'buffer_store_dwordx4 v[4:7], v13, {S(WS)}, s7 offen sc1')
    fullexec()
    flag_store(1, 8)
    stamp(10, 6)
    I('s_branch L_c_done')
    L('L_c_n6')
    I('s_cmp_lg_u32 s3, 7')
    I('s_cbranch_scc1 L_c_n7')
    flag_store(0, 8)
    stamp(9, 7)
    I(f'v_mov_b32 v4, {L_FC}')
    I('v_mov_b32 v5, 1')
    I('ds_write_b32 v4, v5')
    I('s_waitcnt lgkmcnt(0)')
    I('s_branch L_c_done')
    L('L_c_n7')
    I('s_add_u32 s46, s46, 20')
    I(f's_mov_b32 s44, {L_WT1}')
    I('s_cmp_eq_u32 s3, 5')
    I('s_cbranch_scc1 L_c_unit')
    I('s_cmp_ge_u32 s40, 32')
    I('s_cbranch_scc1 L_c_done')
    I('s_add_u32 s46, s46, 32')
    I(f's_mov_b32 s44, {L_WT2}')
    L('L_c_unit')
    dma_addr()
    I('s_mov_b32 s5, s44')
    dma_n(20)
    st_reads()
    tr_base(0)
    I('v_add_u32 v2, s44, v2')
    for n in range(4):
        I(f'v_xor_b32 v4, {2*n}, v3')
        I(f'v_lshl_add_u32 v{8+n}, v4, 4, v2')
    I('s_waitcnt vmcnt(0)')
    for n in range(4):
        for t in range(5):
            I(f'ds_read_b64_tr_b16 {vr(40+20*n+4*t,2)}, v{8+n} offset:{t*4096}')
            I(f'ds_read_b64_tr_b16 {vr(42+20*n+4*t,2)}, v{8+n} offset:{t*4096+2048}')
    I('s_waitcnt lgkmcnt(0)')
    for t in range(5):
        for n in range(4):
            c = '0' if t == 0 else vr(120 + 4 * n)
            I(f'v_mfma_f32_16x16x32_bf16 {vr(120+4*n)}, {vr(40+20*n+4*t)}, {vr(20+4*t)}, {c}')
    nop(9)
    for r in range(16): I(f'v_min_u32 v{120+r}, 0xfffffffe, v{120+r}')
    lds_gate()
    I('v_mul_u32_u24 v2, 15360, v15')
    I('v_lshl_add_u32 v2, v14, 4, v2')
    I('s_mul_i32 s4, s45, 30720')
    I('s_lshl_b32 s5, s46, 8')
    I('s_add_u32 s4, s4, s5')
    I(f's_add_u32 s4, s4, {MOD}')
    setexec(0x00030003, 0x00030003)
    for n in range(4):
        I(f'buffer_store_dwordx4 {vr(120+4*n)}, v2, {S(WS)}, s4 offen offset:{n*64} sc1')
    fullexec()
    L('L_c_done')
    stamp(1)
    I('s_cmp_ge_u32 s40, 64')
    I('s_cbranch_scc1 L_role_e')

def role_D():
    WUV, WO = 20, 24
    srd(WUV, 'wuv'); srd(WO, 'wo')
    make_masks(16, True)
    make_masks4(244, 1)
    I('v_lshlrev_b32 v2, 17, v14')
    I('v_lshl_add_u32 v2, v15, 4, v2')
    I('s_lshl_b32 s4, s3, 19')
    I('s_lshl_b32 s5, s42, 8')
    I('s_add_u32 s4, s4, s5')
    for t in range(16):
        I(f'buffer_load_dwordx4 {vr(20+4*t)}, v2, {S(WUV)}, s4 offen nt')
        if t < 15: I('s_add_u32 s4, s4, 8192')
    I('s_mul_i32 s5, s42, 163840')
    I('s_cmp_gt_u32 s3, 3')
    I('s_cbranch_scc1 L_d_hi')
    I('v_mul_u32_u24 v3, 40960, v14')
    I('v_lshl_add_u32 v3, v15, 4, v3')
    I('s_lshl_b32 s6, s3, 8')
    I('s_add_u32 s5, s5, s6')
    for t in range(32):
        I(f'buffer_load_dwordx4 {vr(84+4*t)}, v3, {S(WO)}, s5 offen offset:{(t%3)*1280} nt')
        if t % 3 == 2: I('s_add_u32 s5, s5, 3840')
    I('s_waitcnt vmcnt(0)')
    pairperm([(20 + 8 * p, 24 + 8 * p) for p in range(24)], 6)
    I('s_branch L_d_main')
    L('L_d_hi')
    I('v_mul_u32_u24 v3, 10240, v14')
    I('v_lshl_add_u32 v3, v15, 4, v3')
    I('s_sub_u32 s6, s3, 4')
    I('s_mul_i32 s6, s6, 40960')
    I('s_add_u32 s5, s5, s6')
    I('s_add_u32 s5, s5, 1024')
    for t in range(8):
        I(f'buffer_load_dwordx4 {vr(84+4*t)}, v3, {S(WO)}, s5 offen offset:{(t%3)*1280} nt')
        if t % 3 == 2: I('s_add_u32 s5, s5, 3840')
    I('s_waitcnt vmcnt(0)')
    pairperm([(20 + 8 * p, 24 + 8 * p) for p in range(12)], 6)
    L('L_d_main')
    stamp(2)
    I('v_and_b32 v2, 31, v1')
    I('v_lshlrev_b32 v2, 3, v2')
    I('s_lshl_b32 s4, s43, 5')
    I('s_add_u32 s4, s4, s42')
    I('s_lshl_b32 s5, s4, 8')
    I(f's_add_u32 s5, s5, {ML}')
    sk = uid('nolp')
    I('s_cmp_lg_u32 s3, 4')
    I(f's_cbranch_scc1 {sk}')
    I('v_mov_b32 v12, v2')
    flags_wait(1, 192, 64)
    I('v_mov_b32 v2, v12')
    light_poll(lambda r: I(f'buffer_load_dwordx2 v[{r}:{r+1}], v2, {S(WS)}, s5 offen sc1'), 2, 120, 24 * THR)
    L(sk)
    barrier()
    stamp(6)
    sk = uid('noz')
    I('s_cmp_lt_u32 s3, 4')
    I(f's_cbranch_scc1 {sk}')
    I('v_lshlrev_b32 v3, 13, v14')
    I('v_lshl_add_u32 v3, v15, 4, v3')
    I('s_lshl_b32 s6, s4, 15')
    I('s_sub_u32 s46, s3, 4')
    I('s_lshl_b32 s7, s46, 8')
    I('s_add_u32 s6, s6, s7')
    I(f's_add_u32 s48, s6, {OP}')
    I('s_add_u32 s49, s48, 4096')
    lab = spin_begin()
    I(f'buffer_load_dwordx2 v[4:5], v2, {S(WS)}, s5 offen sc1')
    for t in range(8):
        I(f'buffer_load_dwordx4 {vr(164+4*t)}, v3, {S(WS)}, s{48+t//4} offen offset:{(t%4)*1024} sc1')
    I('s_waitcnt vmcnt(0)')
    anysent([4, 5] + list(range(164, 196)), 6)
    spin_end(lab)
    stamp(3, 4)
    I('v_mov_b32 v6, v4')
    allreduce('v_max_f32', 6, 7, half=True)
    I('v_sub_f32 v4, v4, v6')
    I('v_exp_f32 v4, v4')
    I('v_lshlrev_b32 v2, 2, v1')
    I(f's_add_u32 s7, s7, {L_D_WD}')
    I('v_add_u32 v2, s7, v2')
    I('v_cvt_pk_bf16_f32 v8, v4, v4')
    I('ds_write_b32 v2, v8')
    I('v_and_b32 v4, 0xffff0000, v8')
    I('v_mul_f32 v5, v4, v5')
    I('v_lshlrev_b32 v2, 5, v14')
    I('v_add_u32 v2, s7, v2')
    I('s_waitcnt lgkmcnt(0)')
    for q in range(2):
        I(f'ds_read_b128 {vr(196+4*q)}, v2 offset:{q*16}')
    allreduce('v_add_f32', 5, 7, half=True)
    I('v_rcp_f32 v5, v5')
    I('v_lshlrev_b32 v2, 4, v15')
    I('v_lshl_add_u32 v2, v14, 3, v2')
    I('s_lshl_b32 s4, s46, 8')
    I(f's_add_u32 s4, s4, {L_D_CD}')
    I('v_add_u32 v2, s4, v2')
    I('s_waitcnt lgkmcnt(0)')
    gemv_diag(8, lambda t: 196 + t, 16, [204, 208], lambda blk, t: 164 + 4 * t, [8])
    for r in range(4):
        I(f'v_mul_f32 v{8+r}, v{8+r}, v5')
    I('v_cvt_pk_bf16_f32 v8, v8, v9')
    I('v_cvt_pk_bf16_f32 v9, v10, v11')
    setexec(0xffffffff)
    I('ds_write_b64 v2, v[8:9]')
    fullexec()
    L(sk)
    I('v_lshlrev_b32 v2, 5, v14')
    I('s_lshl_b32 s4, s3, 7')
    I(f's_add_u32 s4, s4, {L_D_CD}')
    I('v_add_u32 v2, s4, v2')
    I('s_lshl_b32 s4, s3, 9')
    I(f's_add_u32 s4, s4, {L_D_RED}')
    I('v_add_u32 v3, s4, v13')
    I('s_waitcnt lgkmcnt(0)')
    barrier()
    stamp(4)
    for q in range(2):
        I(f'ds_read_b128 {vr(212+4*q)}, v2 offset:{q*16}')
    I('s_waitcnt lgkmcnt(0)')
    gemv_pair(8, lambda p: 212 + p, 244, [228, 232], lambda blk, t: 20 + 4 * t, [236], [240])
    setexec(0xffff)
    I('ds_write_b128 v3, v[236:239]')
    I('ds_write_b128 v3, v[240:243] offset:256')
    fullexec()
    I('s_waitcnt lgkmcnt(0)')
    barrier()
    sk = uid('nored')
    I('s_cmp_lg_u32 s3, 0')
    I(f's_cbranch_scc1 {sk}')
    I('v_lshlrev_b32 v3, 3, v1')
    I(f'v_add_u32 v3, {L_D_RED}, v3')
    I('v_add_u32 v2, 2048, v3')
    setexec(0xffffffff)
    for w in range(8):
        ad = 'v3' if w < 4 else 'v2'
        I(f'ds_read2_b64 {vr(20+4*w)}, {ad} offset0:{(w%4)*64} offset1:{(w%4)*64+32}')
    I('v_lshlrev_b32 v3, 3, v1')
    I(f'v_add_u32 v3, {L_D_CD}, v3')
    I('s_waitcnt lgkmcnt(0)')
    for st in (1, 2, 4):
        for w in range(0, 8, 2 * st):
            I(f'v_pk_add_f32 {vr(20+4*w,2)}, {vr(20+4*w,2)}, {vr(20+4*(w+st),2)}')
            I(f'v_pk_add_f32 {vr(22+4*w,2)}, {vr(22+4*w,2)}, {vr(22+4*(w+st),2)}')
    I('v_cvt_pk_bf16_f32 v20, v20, v22')
    I('v_cvt_pk_bf16_f32 v21, v21, v23')
    I('ds_write_b64 v3, v[20:21]')
    fullexec()
    I('s_waitcnt lgkmcnt(0)')
    L(sk)
    I('s_lshl_b32 s4, s43, 5')
    I('s_add_u32 s4, s4, s42')
    I('s_mul_i32 s4, s4, 1280')
    I(f's_add_u32 s4, s4, {AP}')
    barrier()
    delay(2)
    I('s_cmp_gt_u32 s3, 3')
    I('s_cbranch_scc1 L_d_hi2')
    I('v_lshlrev_b32 v2, 6, v14')
    I(f'v_add_u32 v2, {L_D_CD}, v2')
    for q in range(4):
        I(f'ds_read_b128 {vr(212+4*q)}, v2 offset:{q*16}')
    I('s_lshl_b32 s5, s3, 8')
    I('s_add_u32 s4, s4, s5')
    I('s_waitcnt lgkmcnt(0)')
    gemv_pair(16, lambda p: 212 + p, 244, [228, 232], lambda blk, t: 84 + 4 * t, [236], [240])
    for r in range(4):
        I(f'v_cvt_pk_bf16_f32 v{236+r}, v{236+r}, v{240+r}')
        I(f'v_min_u32 v{236+r}, 0xfffffffe, v{236+r}')
    setexec(0xffff)
    I(f'buffer_store_dwordx4 v[236:239], v13, {S(WS)}, s4 offen sc1')
    fullexec()
    stamp(5)
    barrier()
    I('s_branch L_end')
    L('L_d_hi2')
    I('v_lshlrev_b32 v2, 4, v14')
    I('s_lshl_b32 s5, s46, 6')
    I(f's_add_u32 s5, s5, {L_D_CD}')
    I('v_add_u32 v2, s5, v2')
    I('ds_read_b128 v[212:215], v2')
    I('s_lshl_b32 s5, s46, 9')
    I(f's_add_u32 s5, s5, {L_D_RED}')
    I('v_add_u32 v3, s5, v13')
    I('s_waitcnt lgkmcnt(0)')
    gemv_pair(4, lambda p: 212 + p, 244, [228, 232], lambda blk, t: 84 + 4 * t, [236], [240])
    setexec(0xffff)
    I('ds_write_b128 v3, v[236:239]')
    I('ds_write_b128 v3, v[240:243] offset:256')
    fullexec()
    I('s_waitcnt lgkmcnt(0)')
    barrier()
    I('s_cmp_lg_u32 s3, 4')
    I('s_cbranch_scc1 L_end')
    I(f'v_add_u32 v3, {L_D_RED}, v13')
    setexec(0xffff)
    for w in range(4):
        I(f'ds_read_b128 {vr(20+8*w)}, v3 offset:{w*512}')
        I(f'ds_read_b128 {vr(24+8*w)}, v3 offset:{w*512+256}')
    I('s_waitcnt lgkmcnt(0)')
    for q in range(4):
        I(f'v_pk_add_f32 {vr(20+2*q,2)}, {vr(20+2*q,2)}, {vr(28+2*q,2)}')
        I(f'v_pk_add_f32 {vr(36+2*q,2)}, {vr(36+2*q,2)}, {vr(44+2*q,2)}')
        I(f'v_pk_add_f32 {vr(20+2*q,2)}, {vr(20+2*q,2)}, {vr(36+2*q,2)}')
    for r in range(4):
        I(f'v_cvt_pk_bf16_f32 v{20+r}, v{20+r}, v{24+r}')
        I(f'v_min_u32 v{20+r}, 0xfffffffe, v{20+r}')
    I(f'buffer_store_dwordx4 v[20:23], v13, {S(WS)}, s4 offen offset:1024 sc1')
    fullexec()
    stamp(7, 4)
    I('s_branch L_end')

def role_E():
    L('L_role_e')
    WG, WU, WD, X_, OUT = 20, 24, 28, 32, 36
    srd(WG, 'wg'); srd(WU, 'wu'); srd(WD, 'wd'); srd(X_, 'x'); srd(OUT, 'out')
    make_masks(16, True)
    make_masks4(240, 1)
    L('L_e_init')
    I('s_cmp_lg_u32 s47, 0')
    I('s_cbranch_scc1 L_end')
    I('v_mul_u32_u24 v2, 69120, v14')
    I('v_and_b32 v3, 7, v15')
    I('v_lshl_add_u32 v2, v3, 4, v2')
    I('s_mul_i32 s4, s3, 276480')
    I('s_lshl_b32 s5, s42, 7')
    I('s_add_u32 s4, s4, s5')
    I('s_mov_b32 s6, 0x00ff00ff')
    I('s_mov_b32 s7, 0x00ff00ff')
    I('s_mov_b32 s48, 0xff00ff00')
    I('s_mov_b32 s49, 0xff00ff00')
    lds = []
    for t in range(20):
        lds.append(([] if t == 0 else ['s_add_u32 s4, s4, 3456']) + ['s_mov_b64 exec, s[6:7]',
                   f'buffer_load_dwordx4 {vr(20+4*t)}, v2, {S(WG)}, s4 offen nt'])
        lds.append(['s_mov_b64 exec, s[48:49]', f'buffer_load_dwordx4 {vr(20+4*t)}, v2, {S(WU)}, s4 offen nt'])
    paced(lds, 2 * EPACE)
    fullexec()
    I('s_mul_i32 s4, s42, 81920')
    I('s_cmp_gt_u32 s3, 3')
    I('s_cbranch_scc1 L_e_hi')
    I('v_mul_u32_u24 v2, 20480, v14')
    I('v_lshl_add_u32 v2, v15, 4, v2')
    I('s_lshl_b32 s5, s3, 8')
    I('s_add_u32 s4, s4, s5')
    for t in range(16):
        I(f'buffer_load_dwordx4 {vr(100+4*t)}, v2, {S(WD)}, s4 offen nt')
        if t < 15: I('s_add_u32 s4, s4, 1280')
    I('s_waitcnt vmcnt(0)')
    pairperm([(20 + 8 * p, 24 + 8 * p) for p in range(18)], 6)
    I('s_branch L_e_main')
    L('L_e_hi')
    I('v_mul_u32_u24 v2, 5120, v14')
    I('v_lshl_add_u32 v2, v15, 4, v2')
    I('s_sub_u32 s5, s3, 4')
    I('s_mul_i32 s5, s5, 20480')
    I('s_add_u32 s4, s4, s5')
    I('s_add_u32 s4, s4, 1024')
    for t in range(4):
        I(f'buffer_load_dwordx4 {vr(100+4*t)}, v2, {S(WD)}, s4 offen nt')
        if t < 3: I('s_add_u32 s4, s4, 1280')
    I('s_waitcnt vmcnt(0)')
    pairperm([(20 + 8 * p, 24 + 8 * p) for p in range(12)], 6)
    if DRY:
        I('s_cmp_lg_u32 s3, 7')
        I('s_cbranch_scc1 L_e_main')
        enter_dry('L_e_main')
    L('L_e_main')
    sk = uid('nofw')
    I('s_cmp_lg_u32 s3, 0')
    skip_if(sk)
    flags_wait(0)
    L(sk)
    barrier()
    stamp(2)
    I('v_and_b32 v2, 1, v14')
    I('v_lshlrev_b32 v2, 2, v2')
    I('v_lshl_add_u32 v2, v15, 3, v2')
    I('s_lshl_b32 s4, s3, 7')
    I('v_add_u32 v12, s4, v2')
    sk5 = uid('w5')
    I('s_cmp_gt_u32 s3, 4')
    skip_if(sk5)
    I('v_lshlrev_b32 v2, 1, v12')
    I('s_mul_i32 s4, s43, 1280')
    I(f'buffer_load_dwordx2 v[4:5], v2, {S(X_)}, s4 offen')
    I('v_lshlrev_b32 v2, 2, v12')
    I('s_mul_i32 s4, s43, 15360')
    I(f's_add_u32 s48, s4, {MOD + 2*2560}')
    for i in range(1, 12):
        p, kq = i % 3, i // 3
        I(f's_add_u32 s{48+i}, s48, {p*2560 + kq*30720}')
    lab = spin_begin()
    for i in range(12):
        I(f'buffer_load_dwordx4 {vr(164+4*i)}, v2, {S(WS)}, s{48+i} offen sc1')
    I('s_waitcnt vmcnt(0)')
    anysent(range(164, 212), 6)
    spin_end(lab)
    for p in range(3):
        for r in range(4):
            a = 164 + 4 * p + r
            I(f'v_add_f32 v{a}, v{a}, v{a+12}')
            I(f'v_add_f32 v{a+24}, v{a+24}, v{a+36}')
            I(f'v_add_f32 v{a}, v{a}, v{a+24}')
            bfround(a)
    I('v_lshlrev_b32 v176, 16, v4')
    I('v_and_b32 v177, 0xffff0000, v4')
    I('v_lshlrev_b32 v178, 16, v5')
    I('v_and_b32 v179, 0xffff0000, v5')
    for r in range(4):
        I(f'v_add_f32 v{172+r}, 1.0, v{172+r}')
        bfround(172 + r)
    for d in range(4): I(f'v_and_b32 v{204+d}, 0x3f803f80, v{16+d}')
    I('v_mul_u32_u24 v3, 10240, v14')
    I('v_lshl_add_u32 v3, v15, 4, v3')
    I('s_mul_i32 s4, s43, 40960')
    I('s_lshl_b32 s5, s3, 8')
    I('s_add_u32 s4, s4, s5')
    I(f's_add_u32 s4, s4, {AP}')
    I('s_add_u32 s5, s4, 3840')
    I('s_add_u32 s6, s4, 7680')
    L(sk5)
    sk = uid('nolp')
    I('s_cmp_lg_u32 s3, 5')
    skip_if(sk)
    I('v_and_b32 v2, 31, v1')
    I('v_mul_u32_u24 v2, 1280, v2')
    I('s_mul_i32 s4, s43, 40960')
    I(f's_add_u32 s4, s4, {AP + 1276}')
    light_poll(lambda r: I(f'buffer_load_dword v{r}, v2, {S(WS)}, s4 offen sc1'), 1, 4, 24 * THR)
    L(sk)
    barrier()
    stamp(6)
    tick(0)
    sk5 = uid('w5a')
    I('s_cmp_gt_u32 s3, 4')
    skip_if(sk5)
    lab = spin_begin()
    for t in range(8):
        so = ['s4', 's5', 's6'][t // 3]
        I(f'buffer_load_dwordx4 {vr(208+4*t)}, v3, {S(WS)}, {so} offen offset:{(t%3)*1280} sc1')
    I('s_waitcnt vmcnt(0)')
    anysent(range(208, 240), 6)
    spin_end(lab)
    stamp(3)
    tick(1)
    for t in range(8):
        c = '0' if t == 0 else 'v[180:183]'
        I(f'v_mfma_f32_16x16x32_bf16 v[180:183], v[204:207], {vr(208+4*t)}, {c}')
    nop(9)
    for r in range(4):
        bfround(180 + r)
        I(f'v_mul_f32 v{180+r}, v{164+r}, v{180+r}')
        bfround(180 + r)
        I(f'v_add_f32 v{180+r}, v{176+r}, v{180+r}')
        bfround(180 + r)
    tick(2)
    I('v_cmp_gt_u32 vcc, 32, v1')
    I('v_add_f32 v6, v180, v181')
    I('v_add_f32 v7, v182, v183')
    I('v_add_f32 v6, v6, v7')
    I('v_cndmask_b32 v6, 0, v6, vcc')
    allreduce('v_add_f32', 6, 7)
    I('v_mul_f32 v6, 0x3c000000, v6')
    for r in range(4): I(f'v_sub_f32 v{184+r}, v{180+r}, v6')
    I('v_mul_f32 v8, v184, v184')
    for r in range(1, 4): I(f'v_fmac_f32 v8, v{184+r}, v{184+r}')
    I('v_cndmask_b32 v8, 0, v8, vcc')
    allreduce('v_add_f32', 8, 7)
    I('v_mov_b32 v7, v8')
    I('s_lshl_b32 s4, s3, 3')
    I(f's_add_u32 s4, s4, {L_E_STAT}')
    I('v_mov_b32 v2, s4')
    I('v_lshlrev_b32 v3, 2, v12')
    I(f'v_add_u32 v3, {L_E_X1}, v3')
    setexec(1)
    I('ds_write_b64 v2, v[6:7]')
    setexec(0xffffffff)
    I('ds_write_b128 v3, v[180:183]')
    fullexec()
    I('s_waitcnt lgkmcnt(0)')
    L(sk5)
    tick(3)
    barrier()
    tick(4)
    sk5 = uid('w5b')
    I('s_cmp_gt_u32 s3, 4')
    skip_if(sk5)
    I(f'v_mov_b32 v2, {L_E_STAT}')
    I('ds_read_b128 v[184:187], v2')
    I('ds_read_b128 v[188:191], v2 offset:16')
    I('ds_read_b64 v[192:193], v2 offset:32')
    I('s_waitcnt lgkmcnt(0)')
    I('v_add_f32 v6, v184, v186')
    I('v_add_f32 v6, v6, v188')
    I('v_add_f32 v6, v6, v190')
    I('v_add_f32 v6, v6, v192')
    I('v_mul_f32 v6, 0x3e4ccccd, v6')
    I('v_add_f32 v7, v185, v187')
    I('v_add_f32 v7, v7, v189')
    I('v_add_f32 v7, v7, v191')
    I('v_add_f32 v7, v7, v193')
    for k in range(5):
        I(f'v_sub_f32 v8, v{184+2*k}, v6')
        I('v_mul_f32 v8, v8, v8')
        I('v_fmac_f32 v7, 0x43000000, v8')
    I('v_mul_f32 v7, 0x3acccccd, v7')
    bfround(6); bfround(7)
    I('v_add_f32 v7, 0x3727c5ac, v7')
    bfround(7)
    I('v_sqrt_f32 v7, v7')
    nop(1)
    bfround(7)
    I('v_rcp_f32 v7, v7')
    for r in range(4):
        I(f'v_sub_f32 v{184+r}, v{180+r}, v6')
        bfround(184 + r)
        I(f'v_mul_f32 v{184+r}, v{184+r}, v7')
        bfround(184 + r)
        I(f'v_mul_f32 v{184+r}, v{184+r}, v{172+r}')
        bfround(184 + r)
        I(f'v_add_f32 v{184+r}, v{184+r}, v{168+r}')
    I('v_cvt_pk_bf16_f32 v184, v184, v185')
    I('v_cvt_pk_bf16_f32 v185, v186, v187')
    I('v_lshlrev_b32 v3, 1, v12')
    I(f'v_add_u32 v3, {L_E_HT}, v3')
    setexec(0xffffffff)
    I('ds_write_b64 v3, v[184:185]')
    fullexec()
    I('s_waitcnt lgkmcnt(0)')
    L(sk5)
    tick(5)
    barrier()
    tick(6)
    stamp(4)
    I('v_mul_u32_u24 v2, 40, v14')
    I('s_mul_i32 s4, s3, 160')
    I(f's_add_u32 s4, s4, {L_E_HT}')
    I('v_add_u32 v2, s4, v2')
    for q in range(5):
        I(f'ds_read_b64 {vr(164+2*q,2)}, v2 offset:{q*8}')
    I('s_lshl_b32 s4, s3, 9')
    I(f's_add_u32 s4, s4, {L_E_RED}')
    I('v_add_u32 v3, s4, v13')
    I('s_waitcnt lgkmcnt(0)')
    gemv_pair(10, lambda p: 164 + p, 240, [204, 208], lambda blk, t: 20 + 4 * t, [212], [216])
    setexec(0xffff)
    I('ds_write_b128 v3, v[212:215]')
    I('ds_write_b128 v3, v[216:219] offset:256')
    fullexec()
    I('s_waitcnt lgkmcnt(0)')
    tick(7)
    barrier()
    tick(8)
    sk = uid('nohh')
    I('s_cmp_lg_u32 s3, 0')
    skip_if(sk)
    I('v_lshrrev_b32 v2, 5, v1')
    I('v_and_b32 v3, 31, v1')
    I('v_lshlrev_b32 v3, 2, v3')
    I('v_lshl_add_u32 v3, v2, 8, v3')
    I(f'v_add_u32 v3, {L_E_RED}, v3')
    for w in range(8):
        I(f'ds_read2_b32 {vr(164+2*w,2)}, v3 offset0:{(w%2)*128} offset1:{(w%2)*128+32}' if w < 2 else
          f'ds_read2_b32 {vr(164+2*w,2)}, v{4+w//2} offset0:{(w%2)*128} offset1:{(w%2)*128+32}')
        if w % 2 == 1 and w < 7: I(f'v_add_u32 v{5+w//2}, {1024*(w//2+1)}, v3')
    I('v_and_b32 v3, 31, v1')
    I('v_lshlrev_b32 v3, 2, v3')
    I('v_lshl_add_u32 v3, v2, 1, v3')
    I(f'v_add_u32 v3, {L_E_HH}, v3')
    I('s_waitcnt lgkmcnt(0)')
    for st in (1, 2, 4):
        for w in range(0, 8, 2 * st):
            I(f'v_pk_add_f32 {vr(164+2*w,2)}, {vr(164+2*w,2)}, {vr(164+2*(w+st),2)}')
    I('v_cvt_pk_bf16_f32 v166, v164, v165')
    I('v_lshlrev_b32 v164, 16, v166')
    I('v_and_b32 v165, 0xffff0000, v166')
    I('v_mul_f32 v164, 0xbfb8aa3b, v164')
    I('v_exp_f32 v164, v164')
    nop(1)
    I('v_add_f32 v164, 1.0, v164')
    I('v_rcp_f32 v164, v164')
    nop(1)
    bfround(164)
    I('v_mul_f32 v164, v164, v165')
    I('v_cvt_pk_bf16_f32 v164, v164, v164')
    I('ds_write_b16 v3, v164')
    I('s_waitcnt lgkmcnt(0)')
    L(sk)
    I('s_mul_i32 s4, s43, 27')
    I('s_add_u32 s4, s4, s42')
    I('s_mul_i32 s4, s4, 2560')
    I(f's_add_u32 s4, s4, {FP}')
    tick(9)
    barrier()
    delay(3)
    tick(10)
    I('s_cmp_gt_u32 s3, 3')
    I('s_cbranch_scc1 L_e_hi2')
    I('v_lshlrev_b32 v2, 5, v14')
    I(f'v_add_u32 v2, {L_E_HH}, v2')
    for q in range(2):
        I(f'ds_read_b128 {vr(164+4*q)}, v2 offset:{q*16}')
    I('s_lshl_b32 s5, s3, 9')
    I('s_add_u32 s4, s4, s5')
    I('s_waitcnt lgkmcnt(0)')
    gemv_pair(8, lambda p: 164 + p, 240, [204, 208], lambda blk, t: 100 + 4 * t, [212], [216])
    for r in range(8): I(f'v_min_u32 v{212+r}, 0xfffffffe, v{212+r}')
    setexec(0xffff)
    I(f'buffer_store_dwordx4 v[212:215], v13, {S(WS)}, s4 offen sc1')
    I(f'buffer_store_dwordx4 v[216:219], v13, {S(WS)}, s4 offen offset:256 sc1')
    fullexec()
    tick(11)
    tick_dump(12)
    stamp(5)
    barrier()
    I('s_branch L_end')
    L('L_e_hi2')
    I('s_sub_u32 s46, s3, 4')
    I('v_lshlrev_b32 v2, 3, v14')
    I('s_lshl_b32 s5, s46, 5')
    I(f's_add_u32 s5, s5, {L_E_HH}')
    I('v_add_u32 v2, s5, v2')
    I('ds_read_b64 v[164:165], v2')
    I('s_lshl_b32 s5, s46, 9')
    I(f's_add_u32 s5, s5, {L_E_RED}')
    I('v_add_u32 v3, s5, v13')
    I('s_waitcnt lgkmcnt(0)')
    gemv_pair(2, lambda p: 164 + p, 240, [204, 208], lambda blk, t: 100 + 4 * t, [212], [216])
    setexec(0xffff)
    I('ds_write_b128 v3, v[212:215]')
    I('ds_write_b128 v3, v[216:219] offset:256')
    fullexec()
    I('s_waitcnt lgkmcnt(0)')
    barrier()
    I('s_cmp_lg_u32 s3, 4')
    I('s_cbranch_scc1 L_final')
    I(f'v_add_u32 v3, {L_E_RED}, v13')
    setexec(0xffff)
    for w in range(4):
        I(f'ds_read_b128 {vr(20+8*w)}, v3 offset:{w*512}')
        I(f'ds_read_b128 {vr(24+8*w)}, v3 offset:{w*512+256}')
    I('s_waitcnt lgkmcnt(0)')
    for q in range(4):
        I(f'v_pk_add_f32 {vr(20+2*q,2)}, {vr(20+2*q,2)}, {vr(28+2*q,2)}')
        I(f'v_pk_add_f32 {vr(36+2*q,2)}, {vr(36+2*q,2)}, {vr(44+2*q,2)}')
        I(f'v_pk_add_f32 {vr(20+2*q,2)}, {vr(20+2*q,2)}, {vr(36+2*q,2)}')
    for r in range(8): I(f'v_min_u32 v{20+r}, 0xfffffffe, v{20+r}')
    I('s_add_u32 s4, s4, 2048')
    I(f'buffer_store_dwordx4 v[20:23], v13, {S(WS)}, s4 offen sc1')
    I(f'buffer_store_dwordx4 v[24:27], v13, {S(WS)}, s4 offen offset:256 sc1')
    fullexec()
    I('s_branch L_end')
    L('L_final')
    I('s_cmp_lg_u32 s3, 5')
    skip_if('L_end')
    I('s_cmp_ge_u32 s42, 10')
    skip_if('L_end')
    I('s_lshl_b32 s4, s42, 6')
    I('v_add_u32 v12, s4, v1')
    I('v_lshlrev_b32 v2, 2, v12')
    I(f'v_add_u32 v3, {L_E_X1}, v2')
    I('ds_read_b32 v10, v3')
    I('v_lshrrev_b32 v4, 7, v12')
    I('v_lshlrev_b32 v4, 9, v4')
    I('v_and_b32 v5, 1, v12')
    I('v_lshl_add_u32 v4, v5, 8, v4')
    I('v_bfe_u32 v5, v12, 3, 4')
    I('v_lshl_add_u32 v4, v5, 4, v4')
    I('v_bfe_u32 v5, v12, 1, 2')
    I('v_lshl_add_u32 v4, v5, 2, v4')
    I('s_mul_i32 s4, s43, 15360')
    I(f's_add_u32 s4, s4, {MOD + 5*2560}')
    I('s_mul_i32 s5, s43, 69120')
    I(f's_add_u32 s5, s5, {FP}')
    lab = spin_begin()
    I('s_mov_b32 s6, s4')
    for kq in range(4):
        I(f'buffer_load_dword v{48+kq}, v2, {S(WS)}, s6 offen sc1')
        if kq < 3: I('s_add_u32 s6, s6, 30720')
    I('s_waitcnt vmcnt(0)')
    anysent(list(range(48, 52)), 6)
    spin_end(lab)
    for p in range(9): I(f's_add_u32 s{48+p}, s5, {p*7680}')
    def fissue(base):
        for p in range(27):
            I(f'buffer_load_dword v{base+p}, v4, {S(WS)}, s{48+p//3} offen offset:{(p%3)*2560 if (p%3)*2560 < 4096 else 0} sc1'
              if p % 3 < 2 else f'buffer_load_dword v{base+p}, v5, {S(WS)}, s{48+p//3} offen sc1')
    I('v_add_u32 v5, 5120, v4')
    I('s_mov_b32 s98, 0')
    fissue(20)
    I('s_sleep 6')
    L('L_fin_top')
    fissue(60)
    I('s_waitcnt vmcnt(27)')
    anysent(list(range(20, 47)), 6)
    I('s_cbranch_vccz L_fin_done')
    fissue(20)
    I('s_waitcnt vmcnt(27)')
    anysent(list(range(60, 87)), 6)
    I('s_cbranch_vccz L_fin_b')
    I('s_add_u32 s98, s98, 1')
    I(f's_cmp_gt_u32 s98, {SPIN_LIMIT}')
    I('s_cbranch_scc1 L_end')
    I('s_branch L_fin_top')
    L('L_fin_b')
    I('s_waitcnt vmcnt(0)')
    for p in range(27): I(f'v_mov_b32 v{20+p}, v{60+p}')
    L('L_fin_done')
    I('v_add_f32 v11, v48, v49')
    I('v_add_f32 v50, v50, v51')
    I('v_add_f32 v11, v11, v50')
    bfround(11)
    for p in range(1, 27): I(f'v_add_f32 v20, v20, v{20+p}')
    bfround(20)
    I('v_mul_f32 v20, v11, v20')
    bfround(20)
    I('s_waitcnt lgkmcnt(0)')
    I('v_add_f32 v20, v10, v20')
    I('v_cvt_pk_bf16_f32 v20, v20, v20')
    I('v_lshlrev_b32 v2, 1, v12')
    I('s_mul_i32 s4, s43, 1280')
    I(f'buffer_store_short v20, v2, {S(OUT)}, s4 offen')
    stamp(7, 5)
    if DBGT:
        I('s_memrealtime s[60:61]')
        I('s_mov_b32 s20, s90')
        I('s_and_b32 s21, s91, 0xffff')
        I('s_mov_b32 s22, 256')
        I('s_mov_b32 s23, 0x00020000')
        I('s_waitcnt lgkmcnt(0)')
        I('s_sub_u32 s60, s60, s56')
        I('v_mov_b32 v4, s60')
        I('s_mul_i32 s5, s43, 10')
        I('s_add_u32 s5, s5, s42')
        I('s_lshl_b32 s5, s5, 2')
        I('v_mov_b32 v5, 0')
        setexec(1)
        I('buffer_store_dword v4, v5, s[20:23], s5 offen')
        fullexec()
    role_end('L_e_main')

prologue()
role_P12()
role_P3()
role_DE_common()
role_D()
role_E()
L('L_end')
I('s_endpgm')

def wrap_vm(ls):
    out = []; i = 0; n = 0
    while i < len(ls):
        x = ls[i].strip()
        def isvm(k):
            y = ls[k].strip()
            return y.startswith('buffer_store') or (not INSPIN[k] and (y.startswith('s_waitcnt vmcnt') or (y.startswith('buffer_load') and ' nt' not in y)))
        if isvm(i):
            j = i
            while j < len(ls) and isvm(j):
                j += 1
            n += 1
            out.append(f'    s_cbranch_execz L_vs_{n}')
            out += ls[i:j]
            out.append(f'L_vs_{n}:')
            i = j
        else:
            out.append(ls[i]); i += 1
    return out
if DRY:
    INSPIN = []
    ins = False
    for x in lines:
        t = x.strip()
        if re.match(r'L_spin_\d+:$', t): ins = True
        if re.match(r'L_spin_\d+_x:$', t): ins = False
        INSPIN.append(ins)
    lines = wrap_vm(lines)
hdr = open('cdna_kernels/' + NAME + '.s.ref').read().split('\n')
out = []
for ln in hdr:
    if ln.startswith('; @launch'):
        out.append(f'; @launch grid=(256,1,1) block=(512,1,1) lds={LDS_BYTES}')
    elif ln.startswith(';'):
        out.append(ln)
    else:
        break
out += ['.amdgcn_target "amdgcn-amd-amdhsa--gfx950"', '.text', f'.globl {NAME}_kernel', '.p2align 8',
        f'.type {NAME}_kernel,@function', f'{NAME}_kernel:']
out += lines
out += ['.section .rodata,"a"', '.p2align 6', f'.amdhsa_kernel {NAME}_kernel',
        '  .amdhsa_next_free_vgpr 256', '  .amdhsa_next_free_sgpr 102', '  .amdhsa_accum_offset 256',
        '  .amdhsa_group_segment_fixed_size 0', '  .amdhsa_kernarg_size 120', '  .amdhsa_user_sgpr_count 2',
        '  .amdhsa_user_sgpr_kernarg_segment_ptr 1', '  .amdhsa_system_sgpr_workgroup_id_x 1',
        '.end_amdhsa_kernel', '']
open(sys.argv[1], 'w').write('\n'.join(out))
```

```python
import sys, re

NAME = 'adaLN_cond__compressed_kv_cla__glu_gated_glu__decode'
STAMP = int(sys.argv[2]) if len(sys.argv) > 2 else 0
DBGT = (STAMP == 2)
if DBGT: STAMP = 0
SPIN_LIMIT = 200000

EPOCH = 0
FLAGS = 2048
MOD = 8192
QP = 131072
QA = 262144
ML = 327680
AP = 360448
FP = 442368
STP = 589824
OP = 1048576
WS_BYTES = OP + 2 * 32 * 32 * 1024

CKS = 1040
L_WU = 0
L_HD = 66560
L_RED = L_HD + 2560
L_QT2 = L_RED + 5120
L_CK = 0
L_QT = 0
PTS = 272
L_PT = 133120
L_MX = L_PT + 32 * PTS
LDS_BYTES = L_MX + 1024
L_WT0 = 0
L_WT1 = 20480
L_ST = 40960
L_FC = 44032
L_D_WD = 45056
L_D_CD = 46080
L_D_RED = 49152
L_D_RED2 = 53248
L_E_STAT = 45056
L_E_X1 = 45312
L_E_HT = 48128
L_E_RED = 53248
L_E_HH = 57344
PACE = int(sys.argv[3]) if len(sys.argv) > 3 else 6
SLOWN = int(sys.argv[4]) if len(sys.argv) > 4 else 6
DRY = int(sys.argv[5]) if len(sys.argv) > 5 else 0
EGATE = int(sys.argv[6]) if len(sys.argv) > 6 else 1
EPACE = int(sys.argv[7]) if len(sys.argv) > 7 else 6
SLOWP = int(sys.argv[8]) if len(sys.argv) > 8 else 2
LATEC = int(sys.argv[9]) if len(sys.argv) > 9 else 0
CK0 = int(sys.argv[10]) if len(sys.argv) > 10 else 4
CK1 = int(sys.argv[11]) if len(sys.argv) > 11 else 6
W1GATE = int(sys.argv[12]) if len(sys.argv) > 12 else 0
XSPLIT = int(sys.argv[13]) if len(sys.argv) > 13 else 0
P3GATE = int(sys.argv[14]) if len(sys.argv) > 14 else 0
WU0 = int(sys.argv[15]) if len(sys.argv) > 15 else 6
THR = int(sys.argv[16]) if len(sys.argv) > 16 else 1
DELAY = int(sys.argv[17]) if len(sys.argv) > 17 else 0
AGATE = int(sys.argv[18]) if len(sys.argv) > 18 else 0

TAGC_LO = 0x7F4A7C15
TAGC_HI = 0x9E3779B9

lines = []
def I(s): lines.append('    ' + s)
def L(s): lines.append(s + ':')
def C(s): lines.append('    ; ' + s)
def nop(n):
    while n > 0:
        k = min(n, 16)
        I(f's_nop {k-1}')
        n -= k
_uid = [0]
def uid(p):
    _uid[0] += 1
    return f'L_{p}_{_uid[0]}'
def vr(a, n=4): return f'v[{a}:{a+n-1}]'

PTR = {k: 64 + 2 * i for i, k in enumerate(
    ['x', 'ckv', 'wq', 'wuk', 'wuv', 'wo', 'bx', 'wg', 'wu', 'wd', 'c', 'wmod', 'out', 'dbg', 'ws'])}
NBYTES = dict(x=2560, ckv=8388608, wq=5242880, wuk=4194304, wuv=4194304, wo=5242880, wg=2211840, wu=2211840,
              wd=2211840, c=2560, wmod=4915200, out=2560, ws=WS_BYTES)
def srd(d, name):
    p = PTR[name]
    I(f's_mov_b32 s{d}, s{p}')
    I(f's_and_b32 s{d+1}, s{p+1}, 0xffff')
    I(f's_mov_b32 s{d+2}, {NBYTES[name]}')
    I(f's_mov_b32 s{d+3}, 0x00020000')
def S(d): return f's[{d}:{d+3}]'
WS = 8

def setexec(lo, hi=0):
    I(f's_and_b32 exec_lo, s100, 0x{lo:x}')
    if hi: I(f's_and_b32 exec_hi, s100, 0x{hi:x}')
    else: I('s_mov_b32 exec_hi, 0')
def fullexec():
    I('s_mov_b64 exec, s[100:101]')
def skip_if(lab):
    I('s_cselect_b32 s99, s100, 0')
    I('s_cmp_lg_u32 s99, 0')
    I(f's_cbranch_scc1 {lab}')
def barrier():
    o = uid('bar')
    I('s_cmp_eq_u32 s100, 0')
    I(f's_cbranch_scc1 {o}')
    I('s_barrier')
    L(o)
def enter_dry(target):
    I('s_mov_b64 s[100:101], 0')
    I('s_mov_b64 exec, 0')
    I(f's_branch {target}')
def role_end(back):
    I('s_cmp_lg_u32 s100, 0')
    I('s_cbranch_scc1 L_end')
    I('s_mov_b64 s[100:101], -1')
    I('s_mov_b64 exec, -1')
    I(f's_branch {back}')

def stamp(idx, wave=0):
    if STAMP != 1: return
    skip = uid('st')
    I(f's_cmp_lg_u32 s3, {wave}')
    I(f's_cbranch_scc1 {skip}')
    I('s_memrealtime s[60:61]')
    I('s_waitcnt lgkmcnt(0)')
    I('v_mov_b32 v254, s60')
    I('v_mov_b32 v255, s61')
    I(f's_lshl_b32 s62, s2, 7')
    I(f's_add_u32 s62, s62, {STP + idx*8}')
    I('v_mov_b32 v253, 0')
    I('s_mov_b64 s[58:59], exec')
    setexec(1)
    I(f'buffer_store_dwordx2 v[254:255], v253, {S(WS)}, s62 offen')
    I('s_mov_b64 exec, s[58:59]')
    L(skip)

TICK = (STAMP == 3)
def tick(i):
    if TICK: I(f's_memtime s[{64+2*i}:{65+2*i}]')
def tick_dump(n):
    if not TICK: return
    skip = uid('tk')
    I('s_cmp_lg_u32 s3, 0')
    I(f's_cbranch_scc1 {skip}')
    I('s_waitcnt lgkmcnt(0)')
    I('s_mov_b64 s[58:59], exec')
    setexec(1)
    I('v_mov_b32 v253, 0')
    for i in range(n):
        I(f'v_mov_b32 v254, s{64+2*i}')
        I(f'v_mov_b32 v255, s{65+2*i}')
        I(f's_lshl_b32 s62, s2, 7')
        I(f's_add_u32 s62, s62, {STP + i*8}')
        I(f'buffer_store_dwordx2 v[254:255], v253, {S(WS)}, s62 offen')
        nop(2)
    I('s_mov_b64 exec, s[58:59]')
    L(skip)

def delay(place):
    if DELAY == place:
        for _ in range(1): I('s_sleep 110')

def spin_begin():
    lab = uid('spin')
    I(f's_cbranch_execz {lab}_x')
    I('s_mov_b32 s98, 0')
    L(lab)
    return lab
def spin_end(lab, sleep=1):
    done = uid('spd')
    I(f's_cbranch_vccz {done}')
    I('s_add_u32 s98, s98, 1')
    I(f's_cmp_gt_u32 s98, {SPIN_LIMIT}')
    I('s_cbranch_scc1 L_end')
    I(f's_sleep {sleep}')
    I(f's_branch {lab}')
    L(done)
    L(f'{lab}_x')

def anysent(regs, tmp):
    regs = list(regs)
    cur = regs[0]; rest = regs[1:]
    while rest:
        if len(rest) >= 2:
            I(f'v_max3_u32 v{tmp}, v{cur}, v{rest[0]}, v{rest[1]}'); rest = rest[2:]
        else:
            I(f'v_max_u32 v{tmp}, v{cur}, v{rest[0]}'); rest = rest[1:]
        cur = tmp
    I(f'v_cmp_eq_u32 vcc, -1, v{cur}')

def allreduce(op, x, tmp, rows_only=False, skip_row=False, half=False):
    if not skip_row:
        for ctl in ['quad_perm:[1,0,3,2]', 'quad_perm:[2,3,0,1]', 'row_half_mirror', 'row_mirror']:
            nop(2)
            I(f'{op}_dpp v{x}, v{x}, v{x} {ctl} row_mask:0xf bank_mask:0xf')
    if rows_only: return
    for sw in (['v_permlane16_swap_b32'] if half else ['v_permlane16_swap_b32', 'v_permlane32_swap_b32']):
        I(f'v_mov_b32 v{tmp}, v{x}')
        nop(2)
        I(f'{sw} v{x}, v{tmp}')
        nop(1)
        I(f'{op} v{x}, v{x}, v{tmp}')

def bfround(x, tmp=None):
    I(f'v_cvt_pk_bf16_f32 v{x}, v{x}, v{x}')
    I(f'v_and_b32 v{x}, 0xffff0000, v{x}')

def make_masks(m, single):
    I('v_and_b32 v2, 1, v1')
    I('v_cmp_eq_u32 vcc, 1, v2')
    I('v_mov_b32 v3, 0xffff')
    I('v_mov_b32 v2, 0xffff0000')
    nop(1)
    I('v_cndmask_b32 v3, v3, v2, vcc')
    if single:
        I('v_and_b32 v2, 8, v1')
        I('v_cmp_eq_u32 vcc, 0, v2')
        nop(2)
        I('v_cndmask_b32 v3, 0, v3, vcc')
    I('v_bfe_u32 v2, v1, 1, 2')
    for d in range(4):
        I(f'v_cmp_eq_u32 vcc, {d}, v2')
        nop(2)
        I(f'v_cndmask_b32 v{m+d}, 0, v3, vcc')

def gemv_diag(T, aval, masks, abuf, bq, accs):
    def build(t):
        a = abuf[t % 2]
        for d in range(4):
            I(f'v_and_b32 v{a+d}, v{masks+d}, v{aval(t)}')
    build(0)
    for t in range(T):
        a = abuf[t % 2]
        if t + 1 < T:
            build(t + 1)
        else:
            nop(2)
        for blk, acc in enumerate(accs):
            c = '0' if t == 0 else vr(acc)
            I(f'v_mfma_f32_16x16x32_bf16 {vr(acc)}, {vr(a)}, {vr(bq(blk, t))}, {c}')
    nop(9)

def make_masks4(m, nb):
    I('v_bfe_u32 v2, v1, 2, 2')
    I(f'v_cmp_gt_u32 vcc, {nb}, v2')
    nop(2)
    I('v_cndmask_b32 v3, 0, -1, vcc')
    I('v_and_b32 v2, 3, v1')
    for d in range(4):
        I(f'v_cmp_eq_u32 vcc, {d}, v2')
        nop(2)
        I(f'v_cndmask_b32 v{m+d}, 0, v3, vcc')

def pairperm(quads, tmp):
    I('s_mov_b32 s4, 0x05040100')
    I('s_mov_b32 s5, 0x07060302')
    for n, (x0, x1) in enumerate(quads):
        for q in range(4):
            t = tmp + (q & 1)
            I(f'v_perm_b32 v{t}, v{x1+q}, v{x0+q}, s4')
            I(f'v_perm_b32 v{x1+q}, v{x1+q}, v{x0+q}, s5')
            I(f'v_mov_b32 v{x0+q}, v{t}')

def gemv_pair(P, aval, masks, abuf, bq, accE, accO):
    def build(p):
        a = abuf[p % 2]
        for d in range(4):
            I(f'v_and_b32 v{a+d}, v{masks+d}, v{aval(p)}')
    build(0)
    for p in range(P):
        a = abuf[p % 2]
        if p + 1 < P: build(p + 1)
        else: nop(2)
        for blk in range(len(accE)):
            for acc, t in ((accE[blk], 2 * p), (accO[blk], 2 * p + 1)):
                c = '0' if p == 0 else vr(acc)
                I(f'v_mfma_f32_16x16x32_bf16 {vr(acc)}, {vr(a)}, {vr(bq(blk, t))}, {c}')
    nop(9)

def spin_end_thr(lab, thr, sleep=1):
    done = uid('spd')
    I('s_bcnt1_i32_b64 s99, vcc')
    I(f's_cmp_le_u32 s99, {thr}')
    I(f's_cbranch_scc1 {done}')
    I('s_add_u32 s98, s98, 1')
    I(f's_cmp_gt_u32 s98, {SPIN_LIMIT}')
    I('s_cbranch_scc1 L_end')
    I(f's_sleep {sleep}')
    I(f's_branch {lab}')
    L(done)
    L(f'{lab}_x')

def light_poll(load, regs_per, base, thr, NS=3, gap=5):
    top = uid('lp'); done = uid('lpd')
    I(f's_cbranch_execz {done}')
    I('s_mov_b32 s98, 0')
    for i in range(NS - 1):
        load(base + i * regs_per)
        I(f's_sleep {gap}')
    L(top)
    for i in range(NS):
        load(base + ((i + NS - 1) % NS) * regs_per)
        I(f's_waitcnt vmcnt({NS-1})')
        r = base + i * regs_per
        if regs_per == 1: I(f'v_cmp_eq_u32 vcc, -1, v{r}')
        else:
            I(f'v_max_u32 v{base + NS*regs_per}, v{r}, v{r+1}')
            I(f'v_cmp_eq_u32 vcc, -1, v{base + NS*regs_per}')
        I('s_bcnt1_i32_b64 s99, vcc')
        I(f's_cmp_le_u32 s99, {thr}')
        I(f's_cbranch_scc1 {done}')
    I('s_add_u32 s98, s98, 1')
    I(f's_cmp_gt_u32 s98, {SPIN_LIMIT}')
    I('s_cbranch_scc1 L_end')
    I(f's_branch {top}')
    L(done)

def flags_wait(which, first=0, count=256, sleep=1):
    I('v_lshlrev_b32 v2, 4, v1')
    I(f'v_add_u32 v2, {FLAGS + 2048*which + 8*first}, v2')
    if count == 64: setexec(0xffffffff)
    lab = spin_begin()
    I(f'buffer_load_dwordx4 v[4:7], v2, {S(WS)}, 0 offen sc1')
    if count == 256:
        I(f'buffer_load_dwordx4 v[8:11], v2, {S(WS)}, 0 offen offset:1024 sc1')
    I('s_waitcnt vmcnt(0)')
    n = 12 if count == 256 else 8
    for r in range(4, n):
        I(f'v_xor_b32 v{r}, s{96 + (r & 1)}, v{r}')
    I('v_or3_b32 v4, v4, v5, v6')
    if count == 256:
        I('v_or3_b32 v4, v4, v7, v8')
        I('v_or3_b32 v4, v4, v9, v10')
        I('v_or_b32 v4, v4, v11')
    else:
        I('v_or_b32 v4, v4, v7')
    I('v_cmp_ne_u32 vcc, 0, v4')
    spin_end(lab, sleep)
    if count == 64: fullexec()

def flag_store(which, t0=4):
    I('s_waitcnt vmcnt(0) lgkmcnt(0)')
    I(f's_add_u32 s96, s94, 0x{TAGC_LO:x}')
    I(f's_addc_u32 s97, s95, 0x{TAGC_HI:x}')
    I(f'v_mov_b32 v{t0}, s96')
    I(f'v_mov_b32 v{t0+1}, s97')
    I('s_lshl_b32 s4, s2, 3')
    I(f's_add_u32 s4, s4, {FLAGS + 2048*which}')
    I(f'v_mov_b32 v{t0+2}, 0')
    setexec(1)
    I(f'buffer_store_dwordx2 v[{t0}:{t0+1}], v{t0+2}, {S(WS)}, s4 offen sc1')
    fullexec()

def lds_gate():
    I(f'v_mov_b32 v4, {L_FC}')
    lab = spin_begin()
    I('ds_read_b32 v5, v4')
    I('s_waitcnt lgkmcnt(0)')
    I('v_cmp_ne_u32 vcc, 1, v5')
    spin_end(lab, 2)

def paced(loads, depth):
    for i, ld in enumerate(loads):
        if i >= depth: I(f's_waitcnt vmcnt({depth-1})')
        for x in ld: I(x)

def tag_compute():
    I('s_waitcnt lgkmcnt(0)')
    I(f's_add_u32 s96, s94, 0x{TAGC_LO:x}')
    I(f's_addc_u32 s97, s95, 0x{TAGC_HI:x}')

def prologue():
    I('s_cmp_ge_u32 s2, 256')
    I('s_cbranch_scc1 L_end')
    I('s_mov_b64 s[100:101], -1')
    if XSPLIT:
        I('s_lshr_b32 s4, s2, 3')
        I('s_lshl_b32 s4, s4, 2')
        I('s_and_b32 s5, s2, 3')
        I('s_add_u32 s4, s4, s5')
        I('s_bfe_u32 s5, s2, 0x10002')
        I('s_lshl_b32 s5, s5, 7')
        I('s_add_u32 s2, s4, s5')
    if DBGT: I('s_memrealtime s[56:57]')
    I('s_load_dwordx16 s[64:79], s[0:1], 0')
    I('s_load_dwordx8 s[80:87], s[0:1], 64')
    I('s_load_dwordx4 s[88:91], s[0:1], 96')
    I('s_load_dwordx2 s[92:93], s[0:1], 112')
    I('v_lshrrev_b32 v1, 6, v0')
    nop(1)
    I('v_readfirstlane_b32 s3, v1')
    I('v_and_b32 v1, 63, v0')
    for r in range(2, 13): I(f'v_mov_b32 v{r}, 0')
    if STAMP: I('v_mov_b32 v253, 0')
    I('s_waitcnt lgkmcnt(0)')
    I('s_load_dwordx2 s[94:95], s[92:93], 0')
    srd(WS, 'ws')
    stamp(0)
    I('v_lshrrev_b32 v14, 4, v1')
    I('v_and_b32 v15, 15, v1')
    I('v_lshlrev_b32 v13, 4, v1')
    I('s_cmp_ge_u32 s2, 128')
    I('s_cbranch_scc1 L_de')
    I('s_cmp_ge_u32 s2, 64')
    I('s_cbranch_scc1 L_p3')

def role_P12():
    X_, WQ, WUK = 12, 16, 20
    srd(X_, 'x'); srd(WQ, 'wq'); srd(WUK, 'wuk')
    I('s_lshr_b32 s40, s2, 1')
    I('s_and_b32 s41, s2, 1')
    I('s_mul_i32 s45, s41, 320')
    I('s_cmp_lg_u32 s3, 7')
    I('s_cbranch_scc1 L_a_init')
    for r in range(4, 8): I(f'v_mov_b32 v{r}, -1')
    I('s_lshl_b32 s4, s2, 10')
    I(f's_add_u32 s4, s4, {QP}')
    I(f'buffer_store_dwordx4 v[4:7], v13, {S(WS)}, s4 offen sc1')
    I('v_lshrrev_b32 v3, 5, v1')
    I('v_lshlrev_b32 v3, 15, v3')
    I('v_and_b32 v2, 31, v1')
    I('v_lshl_add_u32 v3, v2, 4, v3')
    I('s_lshl_b32 s4, s2, 9')
    I(f's_add_u32 s4, s4, {QA}')
    I(f'buffer_store_dwordx4 v[4:7], v3, {S(WS)}, s4 offen sc1')
    if DRY: enter_dry('L_a_h1b')
    L('L_a_w7')
    flag_store(0, 8)
    stamp(9, 7)
    I('s_branch L_a_main')
    L('L_a_init')
    I('s_cmp_gt_u32 s3, 4')
    I('s_cbranch_scc1 L_a_h1')
    if AGATE & 1:
        tag_compute()
        flags_wait(0, 128, 128, 2)
    I('v_lshlrev_b32 v2, 17, v14')
    I('v_lshl_add_u32 v2, v15, 4, v2')
    I('s_lshl_b32 s4, s3, 6')
    I('s_add_u32 s4, s4, s45')
    I('s_lshl_b32 s4, s4, 13')
    I('s_lshl_b32 s5, s40, 8')
    I('s_add_u32 s4, s4, s5')
    for t in range(16):
        I(f'buffer_load_dwordx4 {vr(20+4*t)}, v2, {S(WQ)}, s4 offen nt')
        if t < 15: I('s_add_u32 s4, s4, 8192')
    def wuk_dma(first, per):
        I('v_lshlrev_b32 v2, 13, v14')
        I('v_lshl_add_u32 v2, v15, 4, v2')
        I('s_lshl_b32 s4, s41, 21')
        I('s_lshl_b32 s5, s40, 8')
        I('s_add_u32 s4, s4, s5')
        I(f's_mul_i32 s6, s3, {per}')
        I(f's_add_u32 s6, s6, {first}')
        I('s_lshl_b32 s5, s6, 15')
        I('s_add_u32 s4, s4, s5')
        I('s_mul_i32 s5, s6, 1040')
        done = uid('dmad')
        for q in range(per):
            if first + 5 * per > 64 and q >= 64 - first - 4 * per:
                I('s_cmp_eq_u32 s3, 4')
                I(f's_cbranch_scc1 {done}')
            I('s_mov_b32 m0, s5')
            nop(1)
            I(f'buffer_load_dwordx4 v2, {S(WUK)}, s4 offen nt lds')
            if q < per - 1:
                I('s_add_u32 s4, s4, 32768')
                I('s_add_u32 s5, s5, 1040')
        L(done)
    wuk_dma(0, WU0)
    make_masks4(16, 2)
    tag_compute()
    I(f's_waitcnt vmcnt({WU0})')
    pairperm([(20 + 8 * p, 24 + 8 * p) for p in range(8)], 4)
    stamp(10, 4)
    I('s_branch L_a_main')
    L('L_a_h1')
    I('s_sub_u32 s46, s3, 5')
    I('s_mul_i32 s4, s46, 1280')
    I('v_lshlrev_b32 v3, 2, v1')
    for k in range(5):
        I(f'buffer_load_dword v{80 + k}, v3, {S(X_)}, s4 offen offset:{k*256}')
    I('s_lshl_b32 s5, s45, 1')
    I('s_add_u32 s5, s5, s4')
    I(f'buffer_load_dwordx4 v[84+4:84+7], v13, {S(X_)}, s5 offen'.replace('84+4', '88').replace('84+7', '91'))
    tag_compute()
    I('s_waitcnt vmcnt(0)')
    for k in range(5):
        I(f'v_lshlrev_b32 v{96+2*k}, 16, v{80+k}')
        I(f'v_and_b32 v{97+2*k}, 0xffff0000, v{80+k}')
    I('v_add_f32 v92, v96, v97')
    for k in range(2, 10): I(f'v_add_f32 v92, v92, v{96+k}')
    allreduce('v_add_f32', 92, 93)
    I('v_mul_f32 v92, 0x3acccccd, v92')
    for k in range(10): I(f'v_sub_f32 v{96+k}, v{96+k}, v92')
    I('v_mul_f32 v94, v96, v96')
    for k in range(1, 10): I(f'v_fmac_f32 v94, v{96+k}, v{96+k}')
    allreduce('v_add_f32', 94, 93)
    I('v_mul_f32 v94, 0x3acccccd, v94')
    bfround(92); bfround(94)
    I('v_add_f32 v94, 0x3727c5ac, v94')
    bfround(94)
    I('v_sqrt_f32 v94, v94')
    nop(1)
    bfround(94)
    I('v_rcp_f32 v94, v94')
    for k in range(4):
        I(f'v_lshlrev_b32 v{72+2*k}, 16, v{88+k}')
        I(f'v_and_b32 v{73+2*k}, 0xffff0000, v{88+k}')
    for r in range(8):
        I(f'v_sub_f32 v{72+r}, v{72+r}, v92')
        bfround(72 + r)
        I(f'v_mul_f32 v{72+r}, v{72+r}, v94')
        bfround(72 + r)
    L('L_a_h1b')
    flags_wait(0, 128, 128)
    stamp(1, 5)
    I('s_mul_i32 s4, s46, 15360')
    I('s_lshl_b32 s5, s45, 2')
    I('s_add_u32 s4, s4, s5')
    I(f's_add_u32 s48, s4, {MOD}')
    for kq in range(1, 4): I(f's_add_u32 s{48+kq}, s48, {kq*30720}')
    I('v_lshlrev_b32 v2, 5, v1')
    I('s_mul_i32 s4, s46, 640')
    I(f's_add_u32 s4, s4, {L_HD}')
    I('v_add_u32 v3, s4, v13')
    setexec(0xffffffff, 0xff)
    lab = spin_begin()
    for kq in range(4):
        I(f'buffer_load_dwordx4 {vr(96+16*kq)}, v2, {S(WS)}, s{48+kq} offen sc1')
        I(f'buffer_load_dwordx4 {vr(100+16*kq)}, v2, {S(WS)}, s{48+kq} offen offset:16 sc1')
        I(f'buffer_load_dwordx4 {vr(104+16*kq)}, v2, {S(WS)}, s{48+kq} offen offset:2560 sc1')
        I(f'buffer_load_dwordx4 {vr(108+16*kq)}, v2, {S(WS)}, s{48+kq} offen offset:2576 sc1')
    I('s_waitcnt vmcnt(0)')
    anysent(range(96, 160), 12)
    spin_end(lab)
    for r in range(16):
        I(f'v_add_f32 v{96+r}, v{96+r}, v{112+r}')
        I(f'v_add_f32 v{128+r}, v{128+r}, v{144+r}')
        I(f'v_add_f32 v{96+r}, v{96+r}, v{128+r}')
        bfround(96 + r)
    for r in range(8):
        I(f'v_add_f32 v{104+r}, 1.0, v{104+r}')
        bfround(104 + r)
        I(f'v_mul_f32 v{104+r}, v{72+r}, v{104+r}')
        bfround(104 + r)
        I(f'v_add_f32 v{104+r}, v{104+r}, v{96+r}')
    for q in range(4):
        I(f'v_cvt_pk_bf16_f32 v{96+q}, v{104+2*q}, v{105+2*q}')
    I('ds_write_b128 v3, v[96:99]')
    fullexec()
    I('s_waitcnt lgkmcnt(0)')
    L('L_a_main')
    barrier()
    stamp(2)
    sk = uid('nofc')
    I('s_cmp_lg_u32 s3, 6')
    skip_if(sk)
    flag_store(2, 8)
    L(sk)
    sk = uid('nop1')
    I('s_cmp_gt_u32 s3, 4')
    skip_if(sk)
    I('v_bfe_u32 v2, v1, 2, 1')
    I('v_mul_u32_u24 v2, 640, v2')
    I('v_lshl_add_u32 v2, v14, 5, v2')
    I('s_lshl_b32 s4, s3, 7')
    I(f's_add_u32 s4, s4, {L_HD}')
    I('v_add_u32 v2, s4, v2')
    for q in range(2):
        I(f'ds_read_b128 {vr(84+4*q)}, v2 offset:{q*16}')
    wuk_dma(5 * WU0, (64 - 5 * WU0 + 4) // 5)
    I('v_lshlrev_b32 v2, 9, v14')
    I('v_lshl_add_u32 v2, v15, 4, v2')
    I('s_lshl_b32 s4, s3, 10')
    I(f's_add_u32 s4, s4, {L_RED}')
    I('v_add_u32 v2, s4, v2')
    I('s_waitcnt lgkmcnt(0)')
    gemv_pair(8, lambda p: 84 + p, 16, [100, 104], lambda blk, t: 20 + 4 * t, [108], [112])
    setexec(0xffffffff)
    I('ds_write_b128 v2, v[108:111]')
    I('ds_write_b128 v2, v[112:115] offset:256')
    fullexec()
    I('s_waitcnt lgkmcnt(0)')
    L(sk)
    barrier()
    sk = uid('nop1r')
    I('s_cmp_lg_u32 s3, 0')
    skip_if(sk)
    I(f'v_add_u32 v2, {L_RED}, v13')
    for w in range(5):
        I(f'ds_read_b128 {vr(164+4*w)}, v2 offset:{w*1024}')
    I('s_lshl_b32 s4, s2, 10')
    I(f's_add_u32 s4, s4, {QP}')
    I('s_waitcnt lgkmcnt(0)')
    for r in range(4):
        I(f'v_add_f32 v{164+r}, v{164+r}, v{168+r}')
        I(f'v_add_f32 v{172+r}, v{172+r}, v{176+r}')
        I(f'v_add_f32 v{164+r}, v{164+r}, v{180+r}')
        I(f'v_add_f32 v{164+r}, v{164+r}, v{172+r}')
        I(f'v_min_u32 v{164+r}, 0xfffffffe, v{164+r}')
    I(f'buffer_store_dwordx4 v[164:167], v13, {S(WS)}, s4 offen sc1')
    stamp(3)
    flags_wait(0, 0, 128)
    sk2 = uid('noep')
    I('s_cmp_lg_u32 s2, 0')
    skip_if(sk2)
    I('v_mov_b32 v10, s96')
    I('v_mov_b32 v11, s97')
    I('v_mov_b32 v12, 0')
    setexec(1)
    I(f'buffer_store_dwordx2 v[10:11], v12, {S(WS)}, 0 offen sc1')
    fullexec()
    L(sk2)
    I('s_xor_b32 s4, s2, 1')
    I('s_lshl_b32 s4, s4, 10')
    I(f's_add_u32 s4, s4, {QP}')
    lab = spin_begin()
    I(f'buffer_load_dwordx4 v[168:171], v13, {S(WS)}, s4 offen sc1')
    I('s_waitcnt vmcnt(0)')
    anysent(range(168, 172), 2)
    spin_end(lab)
    for r in range(4):
        I(f'v_add_f32 v{168+r}, v{168+r}, v{164+r}')
    I('v_lshrrev_b32 v2, 1, v14')
    I('v_lshlrev_b32 v2, 8, v2')
    I('v_lshl_add_u32 v2, v15, 4, v2')
    I('v_and_b32 v3, 1, v14')
    I('v_lshl_add_u32 v2, v3, 1, v2')
    I(f'v_add_u32 v2, {L_QT2}, v2')
    for r in range(4):
        I(f'v_cvt_pk_bf16_f32 v{168+r}, v{168+r}, v{168+r}')
        I(f'ds_write_b16 v2, v{168+r} offset:{4*r}')
    L(sk)
    sk = uid('w14')
    I('s_cmp_gt_u32 s3, 4')
    skip_if(sk)
    I('s_waitcnt vmcnt(0)')
    L(sk)
    I('s_waitcnt lgkmcnt(0)')
    barrier()
    delay(1)
    stamp(4)
    I('v_and_b32 v2, 1, v15')
    I('v_lshlrev_b32 v2, 8, v2')
    I('v_lshl_add_u32 v2, v14, 4, v2')
    I(f'v_add_u32 v2, {L_QT2}, v2')
    for t in range(4):
        I(f'ds_read_b128 {vr(164+4*t)}, v2 offset:{t*64}')
    I('v_lshrrev_b32 v2, 2, v15')
    I('v_mul_u32_u24 v2, 1040, v2')
    I('v_and_b32 v3, 3, v15')
    I('v_lshl_add_u32 v2, v3, 8, v2')
    I('v_lshl_add_u32 v2, v14, 4, v2')
    I('s_mul_i32 s4, s3, 8320')
    I(f's_add_u32 s4, s4, {L_WU}')
    I('v_add_u32 v2, s4, v2')
    for t in range(4):
        for n in range(2):
            I(f'ds_read_b128 {vr(20+16*n+4*t)}, v2 offset:{n*4160 + t*64}')
    I('v_lshlrev_b32 v2, 15, v15')
    I('v_lshl_add_u32 v2, v14, 3, v2')
    I('s_lshl_b32 s4, s2, 9')
    I('s_lshl_b32 s5, s3, 6')
    I('s_add_u32 s4, s4, s5')
    I(f's_add_u32 s4, s4, {QA}')
    I('s_mov_b32 s5, 0x3e0293ee')
    for t in range(4):
        I(f's_waitcnt lgkmcnt({6-2*t})')
        for n in range(2):
            c = '0' if t == 0 else vr(180 + 4 * n)
            I(f'v_mfma_f32_16x16x32_bf16 {vr(180+4*n)}, {vr(20+16*n+4*t)}, {vr(164+4*t)}, {c}')
    nop(9)
    for r in range(8): I(f'v_mul_f32 v{180+r}, s5, v{180+r}')
    for q in range(4):
        I(f'v_cvt_pk_bf16_f32 v{188+q}, v{180+2*q}, v{181+2*q}')
        I(f'v_min_u32 v{188+q}, 0xfffffffe, v{188+q}')
    setexec(0x00030003, 0x00030003)
    I(f'buffer_store_dwordx2 v[188:189], v2, {S(WS)}, s4 offen sc1')
    I(f'buffer_store_dwordx2 v[190:191], v2, {S(WS)}, s4 offen offset:32 sc1')
    fullexec()
    stamp(5)
    role_end('L_a_w7')

def role_P3():
    L('L_p3')
    CKV = 12
    srd(CKV, 'ckv')
    I('s_sub_u32 s40, s2, 64')
    I('s_lshr_b32 s42, s40, 5')
    I('s_and_b32 s43, s40, 31')
    sk = uid('nofa')
    I('s_cmp_lg_u32 s3, 7')
    I(f's_cbranch_scc1 {sk}')
    flag_store(0, 8)
    L(sk)
    tag_compute()
    if P3GATE:
        flags_wait(2, 0, 64, 4)
    if AGATE & 2:
        flags_wait(0, 128, 128, 2)
    I('s_lshl_b32 s4, s40, 17')
    I('s_lshl_b32 s5, s3, 14')
    I('s_add_u32 s4, s4, s5')
    I(f's_mul_i32 s5, s3, {16*CKS}')
    for r in range(16):
        I('s_mov_b32 m0, s5')
        nop(1)
        I(f'buffer_load_dwordx4 v13, {S(CKV)}, s4 offen nt lds')
        if r < 15:
            I('s_add_u32 s4, s4, 1024')
            I(f's_add_u32 s5, s5, {CKS}')
    if DRY:
        I('s_cmp_lg_u32 s3, 7')
        I('s_cbranch_scc1 L_p3_real')
        enter_dry('L_p3_main')
    L('L_p3_real')
    I('s_waitcnt vmcnt(0)')
    barrier()
    L('L_p3_main')
    stamp(1)
    I(f'v_mul_u32_u24 v2, {CKS}, v15')
    I('v_lshl_add_u32 v2, v14, 4, v2')
    I(f's_mul_i32 s4, s3, {16*CKS}')
    I('v_add_u32 v2, s4, v2')
    for t in range(16):
        I(f'ds_read_b128 {vr(20+4*t)}, v2 offset:{t*64}')
    I('v_lshrrev_b32 v2, 2, v15')
    I('v_lshl_add_u32 v2, v14, 3, v2')
    I(f'v_mul_u32_u24 v2, {CKS}, v2')
    I('v_and_b32 v3, 3, v15')
    I('v_lshl_add_u32 v2, v3, 4, v2')
    I('s_lshl_b32 s4, s3, 7')
    I('v_add_u32 v2, s4, v2')
    I(f'v_add_u32 v3, {64*CKS}, v2')
    for n in range(4):
        for t in range(4):
            base = 84 + 16 * n + 4 * t
            ad = 'v2' if t < 2 else 'v3'
            off = (t % 2) * 32 * CKS + (n >> 1) * 64 + (n & 1) * 8
            I(f'ds_read_b64_tr_b16 {vr(base,2)}, {ad} offset:{off}')
            I(f'ds_read_b64_tr_b16 {vr(base+2,2)}, {ad} offset:{off + 4*CKS}')
    for r in range(4): I(f'v_mov_b32 v{16+r}, 0x3f803f80')
    I('s_waitcnt lgkmcnt(0)')
    sk = uid('noh2l')
    I('s_cmp_lg_u32 s3, 0')
    skip_if(sk)
    flags_wait(0, 0, 64)
    flags_wait(1, 192, 64)
    I('v_lshlrev_b32 v2, 9, v1')
    I('s_lshl_b32 s4, s42, 15')
    I(f's_add_u32 s4, s4, {QA + 508}')
    light_poll(lambda r: I(f'buffer_load_dword v{r}, v2, {S(WS)}, s4 offen sc1'), 1, 4, 24 * THR)
    L(sk)
    barrier()
    stamp(6)
    tick(0)
    I('s_lshl_b32 s4, s42, 15')
    I('s_lshl_b32 s5, s3, 12')
    I('s_add_u32 s4, s4, s5')
    I(f's_add_u32 s4, s4, {QA}')
    lab = spin_begin()
    for k in range(4):
        I(f'buffer_load_dwordx4 {vr(148+4*k)}, v13, {S(WS)}, s4 offen offset:{k*1024} sc1')
    I('s_waitcnt vmcnt(0)')
    anysent(range(148, 164), 2)
    spin_end(lab)
    tick(1)
    I('s_lshl_b32 s4, s3, 12')
    I('s_and_b32 s5, s3, 3')
    I('s_lshl_b32 s5, s5, 2')
    for k in range(4):
        I(f's_add_u32 s6, s5, {k}')
        I('v_xor_b32 v2, s6, v1')
        I('v_lshlrev_b32 v2, 4, v2')
        I('v_add_u32 v2, s4, v2')
        I(f'ds_write_b128 v2, {vr(148+4*k)} offset:{L_QT + k*1024}')
    I('v_and_b32 v2, 3, v15')
    I('v_xor_b32 v2, v2, v14')
    I('v_and_b32 v3, 12, v15')
    I('v_or_b32 v2, v2, v3')
    for q in range(4):
        I(f'v_xor_b32 v3, {4*q}, v2')
        I('v_lshlrev_b32 v3, 4, v3')
        I(f'v_lshl_add_u32 v{8+q}, v15, 10, v3')
    I('v_lshlrev_b32 v4, 5, v15')
    I(f'v_add_u32 v4, {L_MX}, v4')
    I('s_lshl_b32 s4, s3, 2')
    I('v_add_u32 v3, s4, v4')
    I('s_waitcnt lgkmcnt(0)')
    tick(2)
    barrier()
    tick(3)
    stamp(7)
    for t in range(16):
        I(f'ds_read_b128 {vr(148+4*t)}, v{8+t%4} offset:{L_QT + (t//4)*256}')
    for t in range(16):
        I(f's_waitcnt lgkmcnt({15 if t else 15})') if False else I('s_waitcnt lgkmcnt(15)')
        c = '0' if t == 0 else 'v[212:215]'
        I(f'v_mfma_f32_16x16x32_bf16 v[212:215], {vr(20+4*t)}, {vr(148+4*t)}, {c}')
        I(f'ds_read_b128 {vr(148+4*t)}, v{8+t%4} offset:{L_QT + 16384 + (t//4)*256}')
    for t in range(16):
        I(f's_waitcnt lgkmcnt({15-t})')
        c = '0' if t == 0 else 'v[216:219]'
        I(f'v_mfma_f32_16x16x32_bf16 v[216:219], {vr(20+4*t)}, {vr(148+4*t)}, {c}')
    tick(4)
    I('v_max_f32 v220, v212, v213')
    I('v_max3_f32 v220, v220, v214, v215')
    allreduce('v_max_f32', 220, 222, skip_row=True)
    I('v_max_f32 v221, v216, v217')
    I('v_max3_f32 v221, v221, v218, v219')
    allreduce('v_max_f32', 221, 222, skip_row=True)
    I('ds_write_b32 v3, v220')
    I('ds_write_b32 v3, v221 offset:512')
    I(f'v_mul_u32_u24 v5, {PTS}, v15')
    I(f'v_add_u32 v5, {L_PT}, v5')
    I('v_lshl_add_u32 v3, v14, 3, v5')
    I('s_lshl_b32 s4, s3, 5')
    I('v_add_u32 v3, s4, v3')
    I('v_lshl_add_u32 v5, v14, 4, v5')
    I('s_waitcnt lgkmcnt(0)')
    tick(5)
    barrier()
    tick(6)
    for ht in range(2):
        I(f'ds_read_b128 {vr(148+8*ht)}, v4 offset:{ht*512}')
        I(f'ds_read_b128 {vr(152+8*ht)}, v4 offset:{ht*512+16}')
    I('s_waitcnt lgkmcnt(0)')
    for ht in range(2):
        q = 148 + 8 * ht
        I(f'v_max3_f32 v{220+ht}, v{q}, v{q+1}, v{q+2}')
        I(f'v_max3_f32 v{220+ht}, v{220+ht}, v{q+3}, v{q+4}')
        I(f'v_max3_f32 v{220+ht}, v{220+ht}, v{q+5}, v{q+6}')
        I(f'v_max_f32 v{220+ht}, v{220+ht}, v{q+7}')
    for ht in range(2):
        for r in range(4):
            I(f'v_sub_f32 v{212+4*ht+r}, v{212+4*ht+r}, v{220+ht}')
    for r in range(8):
        I(f'v_exp_f32 v{212+r}, v{212+r}')
    nop(1)
    for q in range(4):
        I(f'v_cvt_pk_bf16_f32 v{224+q}, v{212+2*q}, v{213+2*q}')
    I('ds_write_b64 v3, v[224:225]')
    I(f'ds_write_b64 v3, v[226:227] offset:{16*PTS}')
    I('v_lshlrev_b32 v2, 15, v15')
    I('v_lshl_add_u32 v2, v14, 4, v2')
    I('s_lshl_b32 s4, s42, 20')
    I('s_lshl_b32 s5, s43, 10')
    I('s_add_u32 s4, s4, s5')
    I('s_lshl_b32 s5, s3, 7')
    I('s_add_u32 s4, s4, s5')
    I(f's_add_u32 s4, s4, {OP}')
    I('s_add_u32 s5, s4, 0x80000')
    I('s_waitcnt lgkmcnt(0)')
    tick(7)
    barrier()
    tick(8)
    for ht in range(2):
        for t in range(4):
            I(f'ds_read_b128 {vr(148+16*ht+4*t)}, v5 offset:{ht*16*PTS + t*64}')
    for ht in range(2):
        for t in range(4):
            I(f's_waitcnt lgkmcnt({7-4*ht-t})')
            for n in range(4):
                acc = 180 + 16 * ht + 4 * n
                c = '0' if t == 0 else vr(acc)
                I(f'v_mfma_f32_16x16x32_bf16 {vr(acc)}, {vr(84+16*n+4*t)}, {vr(148+16*ht+4*t)}, {c}')
    tick(9)
    nop(1)
    for ht in range(2):
        for n in range(4):
            I(f'v_cvt_pk_bf16_f32 v{20+8*ht+2*n}, v{180+16*ht+4*n}, v{181+16*ht+4*n}')
            I(f'v_cvt_pk_bf16_f32 v{21+8*ht+2*n}, v{182+16*ht+4*n}, v{183+16*ht+4*n}')
        for r in range(8): I(f'v_min_u32 v{20+8*ht+r}, 0xfffffffe, v{20+8*ht+r}')
        so = 's4' if ht == 0 else 's5'
        I(f'buffer_store_dwordx4 {vr(20+8*ht)}, v2, {S(WS)}, {so} offen sc1')
        I(f'buffer_store_dwordx4 {vr(24+8*ht)}, v2, {S(WS)}, {so} offen offset:64 sc1')
    tick(10)
    I('s_cmp_gt_u32 s3, 1')
    skip_if('L_p3_done')
    for ht in range(2):
        for t in range(4):
            acc = 36 + 4 * ht
            c = '0' if t == 0 else vr(acc)
            I(f'v_mfma_f32_16x16x32_bf16 {vr(acc)}, v[16:19], {vr(148+16*ht+4*t)}, {c}')
    I('v_lshlrev_b32 v3, 8, v1')
    I('s_lshl_b32 s4, s42, 13')
    I('s_lshl_b32 s5, s3, 12')
    I('s_add_u32 s4, s4, s5')
    I('s_lshl_b32 s5, s43, 3')
    I('s_add_u32 s4, s4, s5')
    I(f's_add_u32 s4, s4, {ML}')
    I('s_cmp_eq_u32 s3, 0')
    I('s_cselect_b64 vcc, -1, 0')
    nop(2)
    I('v_cndmask_b32 v44, v221, v220, vcc')
    I('v_cndmask_b32 v45, v40, v36, vcc')
    I('v_min_u32 v44, 0xfffffffe, v44')
    I('v_min_u32 v45, 0xfffffffe, v45')
    setexec(0xffff)
    I(f'buffer_store_dwordx2 v[44:45], v3, {S(WS)}, s4 offen sc1')
    fullexec()
    L('L_p3_done')
    tick(11)
    tick_dump(12)
    stamp(8)
    role_end('L_p3_real')

def role_DE_common():
    L('L_de')
    C_, WM = 12, 16
    srd(C_, 'c'); srd(WM, 'wmod'); srd(20, 'wuv'); srd(28, 'wg'); srd(32, 'wu')
    I('s_sub_u32 s40, s2, 128')
    I('v_lshrrev_b32 v14, 4, v1')
    I('v_and_b32 v15, 15, v1')
    I('v_lshlrev_b32 v13, 4, v1')
    if XSPLIT:
        I('s_and_b32 s4, s40, 63')
        I('s_and_b32 s5, s4, 3')
        I('s_lshr_b32 s6, s4, 3')
        I('s_lshl_b32 s6, s6, 2')
        I('s_add_u32 s42, s6, s5')
        I('s_bfe_u32 s43, s4, 0x10002')
        I('s_mov_b32 s47, 0')
        I('s_cmp_lt_u32 s40, 64')
        I('s_cbranch_scc1 L_dec_done')
        I('s_cmp_ge_u32 s42, 27')
        I('s_cselect_b32 s47, 1, 0')
    else:
        I('s_cmp_ge_u32 s40, 118')
        I('s_cselect_b32 s47, 1, 0')
        I('s_cmp_ge_u32 s40, 64')
        I('s_cbranch_scc1 L_dec_e')
        I('s_lshr_b32 s4, s40, 4')
        I('s_lshl_b32 s4, s4, 3')
        I('s_and_b32 s5, s40, 7')
        I('s_add_u32 s42, s4, s5')
        I('s_bfe_u32 s43, s40, 0x10003')
        I('s_branch L_dec_done')
        L('L_dec_e')
        I('s_sub_u32 s6, s40, 64')
        I('s_lshr_b32 s4, s6, 4')
        I('s_lshl_b32 s4, s4, 3')
        I('s_and_b32 s5, s6, 7')
        I('s_add_u32 s42, s4, s5')
        I('s_bfe_u32 s43, s6, 0x10003')
        I('s_cmp_lt_u32 s6, 48')
        I('s_cbranch_scc1 L_dec_done')
        I('s_sub_u32 s6, s6, 48')
        I('s_cmp_ge_u32 s6, 3')
        I('s_cselect_b32 s43, 1, 0')
        I('s_mul_i32 s4, s43, 3')
        I('s_sub_u32 s6, s6, s4')
        I('s_add_u32 s42, s6, 24')
    L('L_dec_done')
    sk = uid('noclr')
    I('s_cmp_lg_u32 s3, 7')
    I(f's_cbranch_scc1 {sk}')
    for r in range(4, 8): I(f'v_mov_b32 v{r}, -1')
    I('v_lshrrev_b32 v2, 5, v1')
    I('v_lshlrev_b32 v2, 13, v2')
    I('v_bfe_u32 v3, v1, 4, 1')
    I('v_mul_u32_u24 v3, 15360, v3')
    I('v_add_u32 v2, v2, v3')
    I('v_lshl_add_u32 v2, v15, 4, v2')
    I('s_and_b32 s4, s40, 3')
    I('s_mul_i32 s4, s4, 30720')
    I('s_lshr_b32 s5, s40, 2')
    I('s_lshl_b32 s5, s5, 8')
    I('s_add_u32 s4, s4, s5')
    I(f's_add_u32 s4, s4, {MOD}')
    I('s_cmp_lt_u32 s40, 112')
    I('s_cselect_b32 exec_hi, -1, 0')
    I(f'buffer_store_dwordx4 v[4:7], v2, {S(WS)}, s4 offen sc1')
    fullexec()
    I('s_cmp_ge_u32 s40, 64')
    I('s_cbranch_scc1 L_clr_e')
    I('s_lshl_b32 s4, s43, 5')
    I('s_add_u32 s4, s4, s42')
    I('s_mul_i32 s4, s4, 1280')
    I(f's_add_u32 s4, s4, {AP}')
    I(f'buffer_store_dwordx4 v[4:7], v13, {S(WS)}, s4 offen sc1')
    setexec(0xffff)
    I(f'buffer_store_dwordx4 v[4:7], v13, {S(WS)}, s4 offen offset:1024 sc1')
    fullexec()
    I('s_branch L_clr_done')
    L('L_clr_e')
    I('s_cmp_lg_u32 s47, 0')
    I('s_cbranch_scc1 L_clr_done')
    I('s_mul_i32 s4, s43, 27')
    I('s_add_u32 s4, s4, s42')
    I('s_mul_i32 s4, s4, 2560')
    I(f's_add_u32 s4, s4, {FP}')
    I(f'buffer_store_dwordx4 v[4:7], v13, {S(WS)}, s4 offen sc1')
    I(f'buffer_store_dwordx4 v[4:7], v13, {S(WS)}, s4 offen offset:1024 sc1')
    setexec(0xffffffff)
    I(f'buffer_store_dwordx4 v[4:7], v13, {S(WS)}, s4 offen offset:2048 sc1')
    fullexec()
    L('L_clr_done')
    flag_store(0, 8)
    stamp(9, 7)
    L(sk)
    I('s_and_b32 s45, s40, 3')
    I('s_lshr_b32 s46, s40, 2')
    def dma_addr():
        I('v_lshrrev_b32 v2, 3, v1')
        I('v_and_b32 v3, 7, v1')
        I('v_xor_b32 v3, v3, v2')
        I('v_mul_u32_u24 v2, 7680, v2')
        I('v_lshl_add_u32 v2, v3, 4, v2')
        I('s_mul_i32 s4, s45, 1228800')
        I('s_lshl_b32 s5, s46, 7')
        I('s_add_u32 s4, s4, s5')
    def dma_n(n):
        for q in range(n):
            I('s_mov_b32 m0, s5')
            nop(1)
            I(f'buffer_load_dwordx4 v2, {S(WM)}, s4 offen nt lds')
            if q < n - 1:
                I('s_add_u32 s4, s4, 61440')
                I('s_add_u32 s5, s5, 1024')
    def tr_base(wt):
        I('v_lshrrev_b32 v2, 2, v15')
        I('v_lshl_add_u32 v2, v14, 2, v2')
        I('v_and_b32 v3, 7, v2')
        I('v_bfe_u32 v4, v15, 1, 1')
        I('v_xor_b32 v3, v3, v4')
        I('v_lshlrev_b32 v2, 7, v2')
        I('v_and_b32 v4, 1, v15')
        I('v_lshl_add_u32 v2, v4, 3, v2')
        if wt: I(f'v_add_u32 v2, {wt}, v2')
    def st_reads(base):
        I('v_and_b32 v5, 1, v15')
        I('v_mul_u32_u24 v5, 320, v5')
        I('v_lshl_add_u32 v5, v14, 4, v5')
        for t in range(5):
            I(f'ds_read_b128 {vr(base+4*t)}, v5 offset:{L_ST + t*64}')
    def early():
        e_ = uid('ee'); d_ = uid('ed')
        I('s_mov_b32 s63, 0')
        I('s_cmp_ge_u32 s40, 64')
        I(f's_cbranch_scc1 {e_}')
        I('v_lshlrev_b32 v10, 17, v14')
        I('v_lshl_add_u32 v10, v15, 4, v10')
        I('s_lshl_b32 s6, s3, 19')
        I('s_lshl_b32 s7, s42, 8')
        I('s_add_u32 s6, s6, s7')
        for t in range(16):
            I(f'buffer_load_dwordx4 {vr(20+4*t)}, v10, {S(20)}, s6 offen nt')
            if t < 15: I('s_add_u32 s6, s6, 8192')
        I('s_mov_b32 s63, 1')
        I(f's_branch {d_}')
        L(e_)
        I('s_cmp_lg_u32 s47, 0')
        I(f's_cbranch_scc1 {d_}')
        I('v_mul_u32_u24 v10, 69120, v14')
        I('v_and_b32 v11, 7, v15')
        I('v_lshl_add_u32 v10, v11, 4, v10')
        I('s_mul_i32 s6, s3, 276480')
        I('s_lshl_b32 s7, s42, 7')
        I('s_add_u32 s6, s6, s7')
        for t in range(20):
            setexec(0x00ff00ff, 0x00ff00ff)
            I(f'buffer_load_dwordx4 {vr(20+4*t)}, v10, {S(28)}, s6 offen nt')
            setexec(0xff00ff00, 0xff00ff00)
            I(f'buffer_load_dwordx4 {vr(20+4*t)}, v10, {S(32)}, s6 offen nt')
            if t < 19: I('s_add_u32 s6, s6, 3456')
        fullexec()
        I('s_mov_b32 s63, 2')
        L(d_)
    def wait_older():
        a_ = uid('wo'); b_ = uid('wo'); z_ = uid('wo')
        I('s_cmp_eq_u32 s63, 1')
        I(f's_cbranch_scc1 {a_}')
        I('s_cmp_eq_u32 s63, 2')
        I(f's_cbranch_scc1 {b_}')
        I('s_waitcnt vmcnt(0)')
        I(f's_branch {z_}')
        L(a_)
        I('s_waitcnt vmcnt(16)')
        I(f's_branch {z_}')
        L(b_)
        I('s_waitcnt vmcnt(40)')
        L(z_)
    I('s_cmp_gt_u32 s3, 3')
    I('s_cbranch_scc1 L_c_hi')
    dma_addr()
    I('s_mul_i32 s6, s3, 307200')
    I('s_add_u32 s4, s4, s6')
    I('s_mul_i32 s5, s3, 5120')
    dma_n(5)
    tr_base(0)
    I('s_lshl_b32 s6, s3, 1')
    I('v_xor_b32 v4, s6, v3')
    I('v_lshl_add_u32 v8, v4, 4, v2')
    I('v_mul_u32_u24 v9, 15360, v15')
    I('v_lshl_add_u32 v9, v14, 4, v9')
    I('s_mul_i32 s4, s45, 30720')
    I('s_lshl_b32 s5, s46, 8')
    I('s_add_u32 s4, s4, s5')
    I('s_lshl_b32 s5, s3, 6')
    I('s_add_u32 s4, s4, s5')
    I(f's_add_u32 s44, s4, {MOD}')
    early()
    wait_older()
    I('s_branch L_c_bar')
    L('L_c_hi')
    I('s_cmp_gt_u32 s3, 5')
    I('s_cbranch_scc1 L_c_67')
    I('s_sub_u32 s6, s3, 4')
    I('s_mul_i32 s4, s6, 1280')
    I('s_mul_i32 s5, s45, 320')
    I('s_add_u32 s4, s4, s5')
    I('v_lshlrev_b32 v2, 3, v1')
    I(f'buffer_load_dwordx2 v[4:5], v2, {S(C_)}, s4 offen')
    I('v_lshrrev_b32 v8, 3, v1')
    I('v_and_b32 v9, 3, v1')
    I('v_bfe_u32 v10, v1, 2, 1')
    I('v_lshlrev_b32 v6, 6, v8')
    I('v_lshl_add_u32 v6, v9, 4, v6')
    I('v_lshl_add_u32 v6, v10, 3, v6')
    I('s_mul_i32 s4, s6, 320')
    I(f's_add_u32 s4, s4, {L_ST}')
    I('v_add_u32 v6, s4, v6')
    I(f'v_mov_b32 v12, {L_FC}')
    I('v_mov_b32 v7, 0')
    I('ds_write_b32 v12, v7')
    early()
    wait_older()
    I('v_lshlrev_b32 v8, 16, v4')
    I('v_and_b32 v9, 0xffff0000, v4')
    I('v_lshlrev_b32 v10, 16, v5')
    I('v_and_b32 v11, 0xffff0000, v5')
    for r in range(4): I(f'v_mul_f32 v{16+r}, 0xbfb8aa3b, v{8+r}')
    for r in range(4): I(f'v_exp_f32 v{16+r}, v{16+r}')
    for r in range(4): I(f'v_add_f32 v{16+r}, 1.0, v{16+r}')
    for r in range(4): I(f'v_rcp_f32 v{16+r}, v{16+r}')
    for r in range(4): I(f'v_mul_f32 v{16+r}, v{8+r}, v{16+r}')
    I('v_cvt_pk_bf16_f32 v4, v16, v17')
    I('v_cvt_pk_bf16_f32 v5, v18, v19')
    setexec(0xffffffff, 0xff)
    I('ds_write_b64 v6, v[4:5]')
    fullexec()
    I('s_waitcnt lgkmcnt(0)')
    I('s_branch L_c_bar')
    L('L_c_67')
    I('s_cmp_eq_u32 s3, 6')
    I('s_cselect_b32 s4, s40, 0')
    I('s_cmp_ge_u32 s4, 64')
    I('s_cbranch_scc1 L_c_bar')
    early()
    L('L_c_bar')
    barrier()
    I('s_cmp_gt_u32 s3, 3')
    I('s_cbranch_scc1 L_c_hi2')
    delay(4)
    st_reads(164)
    for t in range(5):
        I(f'ds_read_b64_tr_b16 {vr(184+4*t,2)}, v8 offset:{t*4096}')
        I(f'ds_read_b64_tr_b16 {vr(186+4*t,2)}, v8 offset:{t*4096+2048}')
    for t in range(5):
        I(f's_waitcnt lgkmcnt({8-2*t})')
        c = '0' if t == 0 else 'v[204:207]'
        I(f'v_mfma_f32_16x16x32_bf16 v[204:207], {vr(184+4*t)}, {vr(164+4*t)}, {c}')
    nop(9)
    for r in range(4): I(f'v_min_u32 v{204+r}, 0xfffffffe, v{204+r}')
    setexec(0x00030003, 0x00030003)
    I(f'buffer_store_dwordx4 v[204:207], v9, {S(WS)}, s44 offen sc1')
    fullexec()
    tag_compute()
    I('s_branch L_c_done')
    L('L_c_hi2')
    tag_compute()
    I('s_cmp_lg_u32 s3, 6')
    I('s_cbranch_scc1 L_c_n6')
    I('s_cmp_lt_u32 s40, 64')
    I('s_cbranch_scc1 L_c_done')
    for r in range(4, 8): I(f'v_mov_b32 v{r}, -1')
    I('s_sub_u32 s6, s40, 64')
    I('s_lshl_b32 s7, s6, 15')
    I(f's_add_u32 s7, s7, {OP}')
    for i in range(32):
        I(f'buffer_store_dwordx4 v[4:7], v13, {S(WS)}, s7 offen offset:{(i%4)*1024} sc1')
        if i % 4 == 3 and i < 31: I('s_add_u32 s7, s7, 4096')
    I('s_lshl_b32 s7, s6, 8')
    I(f's_add_u32 s7, s7, {ML}')
    setexec(0xffff)
    I(f'buffer_store_dwordx4 v[4:7], v13, {S(WS)}, s7 offen sc1')
    fullexec()
    flag_store(1, 8)
    stamp(10, 6)
    early()
    I('s_branch L_c_done')
    L('L_c_n6')
    if EGATE or W1GATE:
        I('s_cmp_lg_u32 s3, 4')
        I('s_cbranch_scc1 L_c_n4')
        flags_wait(2, 0, 64, 2)
        I(f'v_mov_b32 v4, {L_FC}')
        I('v_mov_b32 v5, 1')
        I('ds_write_b32 v4, v5')
        I('s_waitcnt lgkmcnt(0)')
        I('s_branch L_c_done')
        L('L_c_n4')
    I('s_cmp_lg_u32 s3, 5')
    I('s_cbranch_scc1 L_c_done')
    I('s_cmp_ge_u32 s40, 112')
    I('s_cbranch_scc1 L_c_done')
    if W1GATE: lds_gate()
    I('s_add_u32 s46, s46, 32')
    dma_addr()
    I(f's_mov_b32 s5, {L_WT1}')
    dma_n(20)
    st_reads(120)
    tr_base(L_WT1)
    for n in range(4):
        I(f'v_xor_b32 v4, {2*n}, v3')
        I(f'v_lshl_add_u32 v{8+n}, v4, 4, v2')
    I('s_waitcnt vmcnt(0)')
    for n in range(4):
        for t in range(5):
            I(f'ds_read_b64_tr_b16 {vr(140+20*n+4*t,2)}, v{8+n} offset:{t*4096}')
            I(f'ds_read_b64_tr_b16 {vr(142+20*n+4*t,2)}, v{8+n} offset:{t*4096+2048}')
    I('s_waitcnt lgkmcnt(0)')
    for t in range(5):
        for n in range(4):
            c = '0' if t == 0 else vr(220 + 4 * n)
            I(f'v_mfma_f32_16x16x32_bf16 {vr(220+4*n)}, {vr(140+20*n+4*t)}, {vr(120+4*t)}, {c}')
    nop(9)
    for r in range(16): I(f'v_min_u32 v{220+r}, 0xfffffffe, v{220+r}')
    I('v_mul_u32_u24 v2, 15360, v15')
    I('v_lshl_add_u32 v2, v14, 4, v2')
    I('s_mul_i32 s4, s45, 30720')
    I('s_lshl_b32 s5, s46, 8')
    I('s_add_u32 s4, s4, s5')
    I(f's_add_u32 s4, s4, {MOD}')
    setexec(0x00030003, 0x00030003)
    for n in range(4):
        I(f'buffer_store_dwordx4 {vr(220+4*n)}, v2, {S(WS)}, s4 offen offset:{n*64} sc1')
    fullexec()
    L('L_c_done')
    stamp(1)
    I('s_cmp_ge_u32 s40, 64')
    I('s_cbranch_scc1 L_role_e')

def role_D():
    WUV, WO = 20, 24
    srd(WO, 'wo')
    make_masks(16, True)
    make_masks4(244, 1)
    I('s_mul_i32 s5, s42, 163840')
    I('s_cmp_gt_u32 s3, 3')
    I('s_cbranch_scc1 L_d_hi')
    I('v_mul_u32_u24 v3, 40960, v14')
    I('v_lshl_add_u32 v3, v15, 4, v3')
    I('s_lshl_b32 s6, s3, 8')
    I('s_add_u32 s5, s5, s6')
    for t in range(32):
        I(f'buffer_load_dwordx4 {vr(84+4*t)}, v3, {S(WO)}, s5 offen offset:{(t%3)*1280} nt')
        if t % 3 == 2: I('s_add_u32 s5, s5, 3840')
    I('s_waitcnt vmcnt(0)')
    pairperm([(20 + 8 * p, 24 + 8 * p) for p in range(24)], 6)
    I('s_branch L_d_main')
    L('L_d_hi')
    I('v_mul_u32_u24 v3, 10240, v14')
    I('v_lshl_add_u32 v3, v15, 4, v3')
    I('s_sub_u32 s6, s3, 4')
    I('s_mul_i32 s6, s6, 40960')
    I('s_add_u32 s5, s5, s6')
    I('s_add_u32 s5, s5, 1024')
    for t in range(8):
        I(f'buffer_load_dwordx4 {vr(84+4*t)}, v3, {S(WO)}, s5 offen offset:{(t%3)*1280} nt')
        if t % 3 == 2: I('s_add_u32 s5, s5, 3840')
    I('s_waitcnt vmcnt(0)')
    pairperm([(20 + 8 * p, 24 + 8 * p) for p in range(12)], 6)
    L('L_d_main')
    stamp(2)
    I('v_and_b32 v2, 31, v1')
    I('v_lshlrev_b32 v2, 3, v2')
    I('s_lshl_b32 s4, s43, 5')
    I('s_add_u32 s4, s4, s42')
    I('s_lshl_b32 s5, s4, 8')
    I(f's_add_u32 s5, s5, {ML}')
    sk = uid('nolp')
    I('s_cmp_lg_u32 s3, 4')
    I(f's_cbranch_scc1 {sk}')
    I('v_mov_b32 v12, v2')
    flags_wait(1, 192, 64)
    I('v_mov_b32 v2, v12')
    light_poll(lambda r: I(f'buffer_load_dwordx2 v[{r}:{r+1}], v2, {S(WS)}, s5 offen sc1'), 2, 120, 24 * THR)
    L(sk)
    barrier()
    stamp(6)
    sk = uid('noz')
    I('s_cmp_lt_u32 s3, 4')
    I(f's_cbranch_scc1 {sk}')
    I('v_lshlrev_b32 v3, 13, v14')
    I('v_lshl_add_u32 v3, v15, 4, v3')
    I('s_lshl_b32 s6, s4, 15')
    I('s_sub_u32 s46, s3, 4')
    I('s_lshl_b32 s7, s46, 8')
    I('s_add_u32 s6, s6, s7')
    I(f's_add_u32 s48, s6, {OP}')
    I('s_add_u32 s49, s48, 4096')
    lab = spin_begin()
    I(f'buffer_load_dwordx2 v[4:5], v2, {S(WS)}, s5 offen sc1')
    for t in range(8):
        I(f'buffer_load_dwordx4 {vr(164+4*t)}, v3, {S(WS)}, s{48+t//4} offen offset:{(t%4)*1024} sc1')
    I('s_waitcnt vmcnt(0)')
    anysent([4, 5] + list(range(164, 196)), 6)
    spin_end(lab)
    stamp(3, 4)
    I('v_mov_b32 v6, v4')
    allreduce('v_max_f32', 6, 7, half=True)
    I('v_sub_f32 v4, v4, v6')
    I('v_exp_f32 v4, v4')
    I('v_lshlrev_b32 v2, 2, v1')
    I(f's_add_u32 s7, s7, {L_D_WD}')
    I('v_add_u32 v2, s7, v2')
    I('v_cvt_pk_bf16_f32 v8, v4, v4')
    I('ds_write_b32 v2, v8')
    I('v_and_b32 v4, 0xffff0000, v8')
    I('v_mul_f32 v5, v4, v5')
    I('v_lshlrev_b32 v2, 5, v14')
    I('v_add_u32 v2, s7, v2')
    I('s_waitcnt lgkmcnt(0)')
    for q in range(2):
        I(f'ds_read_b128 {vr(196+4*q)}, v2 offset:{q*16}')
    allreduce('v_add_f32', 5, 7, half=True)
    I('v_rcp_f32 v5, v5')
    I('v_lshlrev_b32 v2, 4, v15')
    I('v_lshl_add_u32 v2, v14, 3, v2')
    I('s_lshl_b32 s4, s46, 8')
    I(f's_add_u32 s4, s4, {L_D_CD}')
    I('v_add_u32 v2, s4, v2')
    I('s_waitcnt lgkmcnt(0)')
    gemv_diag(8, lambda t: 196 + t, 16, [204, 208], lambda blk, t: 164 + 4 * t, [8])
    for r in range(4):
        I(f'v_mul_f32 v{8+r}, v{8+r}, v5')
    I('v_cvt_pk_bf16_f32 v8, v8, v9')
    I('v_cvt_pk_bf16_f32 v9, v10, v11')
    setexec(0xffffffff)
    I('ds_write_b64 v2, v[8:9]')
    fullexec()
    L(sk)
    I('v_lshlrev_b32 v2, 5, v14')
    I('s_lshl_b32 s4, s3, 7')
    I(f's_add_u32 s4, s4, {L_D_CD}')
    I('v_add_u32 v2, s4, v2')
    I('s_lshl_b32 s4, s3, 9')
    I(f's_add_u32 s4, s4, {L_D_RED}')
    I('v_add_u32 v3, s4, v13')
    I('s_waitcnt lgkmcnt(0)')
    barrier()
    stamp(4)
    for q in range(2):
        I(f'ds_read_b128 {vr(212+4*q)}, v2 offset:{q*16}')
    I('s_waitcnt lgkmcnt(0)')
    gemv_pair(8, lambda p: 212 + p, 244, [228, 232], lambda blk, t: 20 + 4 * t, [236], [240])
    setexec(0xffff)
    I('ds_write_b128 v3, v[236:239]')
    I('ds_write_b128 v3, v[240:243] offset:256')
    fullexec()
    I('s_waitcnt lgkmcnt(0)')
    barrier()
    sk = uid('nored')
    I('s_cmp_lg_u32 s3, 0')
    I(f's_cbranch_scc1 {sk}')
    I('v_lshlrev_b32 v3, 3, v1')
    I(f'v_add_u32 v3, {L_D_RED}, v3')
    I('v_add_u32 v2, 2048, v3')
    setexec(0xffffffff)
    for w in range(8):
        ad = 'v3' if w < 4 else 'v2'
        I(f'ds_read2_b64 {vr(20+4*w)}, {ad} offset0:{(w%4)*64} offset1:{(w%4)*64+32}')
    I('v_lshlrev_b32 v3, 3, v1')
    I(f'v_add_u32 v3, {L_D_CD}, v3')
    I('s_waitcnt lgkmcnt(0)')
    for st in (1, 2, 4):
        for w in range(0, 8, 2 * st):
            I(f'v_pk_add_f32 {vr(20+4*w,2)}, {vr(20+4*w,2)}, {vr(20+4*(w+st),2)}')
            I(f'v_pk_add_f32 {vr(22+4*w,2)}, {vr(22+4*w,2)}, {vr(22+4*(w+st),2)}')
    I('v_cvt_pk_bf16_f32 v20, v20, v22')
    I('v_cvt_pk_bf16_f32 v21, v21, v23')
    I('ds_write_b64 v3, v[20:21]')
    fullexec()
    I('s_waitcnt lgkmcnt(0)')
    L(sk)
    I('s_lshl_b32 s4, s43, 5')
    I('s_add_u32 s4, s4, s42')
    I('s_mul_i32 s4, s4, 1280')
    I(f's_add_u32 s4, s4, {AP}')
    barrier()
    delay(2)
    I('s_cmp_gt_u32 s3, 3')
    I('s_cbranch_scc1 L_d_hi2')
    I('v_lshlrev_b32 v2, 6, v14')
    I(f'v_add_u32 v2, {L_D_CD}, v2')
    for q in range(4):
        I(f'ds_read_b128 {vr(212+4*q)}, v2 offset:{q*16}')
    I('s_lshl_b32 s5, s3, 8')
    I('s_add_u32 s4, s4, s5')
    I('s_waitcnt lgkmcnt(0)')
    gemv_pair(16, lambda p: 212 + p, 244, [228, 232], lambda blk, t: 84 + 4 * t, [236], [240])
    for r in range(4):
        I(f'v_cvt_pk_bf16_f32 v{236+r}, v{236+r}, v{240+r}')
        I(f'v_min_u32 v{236+r}, 0xfffffffe, v{236+r}')
    setexec(0xffff)
    I(f'buffer_store_dwordx4 v[236:239], v13, {S(WS)}, s4 offen sc1')
    fullexec()
    stamp(5)
    barrier()
    I('s_branch L_end')
    L('L_d_hi2')
    I('v_lshlrev_b32 v2, 4, v14')
    I('s_lshl_b32 s5, s46, 6')
    I(f's_add_u32 s5, s5, {L_D_CD}')
    I('v_add_u32 v2, s5, v2')
    I('ds_read_b128 v[212:215], v2')
    I('s_lshl_b32 s5, s46, 9')
    I(f's_add_u32 s5, s5, {L_D_RED}')
    I('v_add_u32 v3, s5, v13')
    I('s_waitcnt lgkmcnt(0)')
    gemv_pair(4, lambda p: 212 + p, 244, [228, 232], lambda blk, t: 84 + 4 * t, [236], [240])
    setexec(0xffff)
    I('ds_write_b128 v3, v[236:239]')
    I('ds_write_b128 v3, v[240:243] offset:256')
    fullexec()
    I('s_waitcnt lgkmcnt(0)')
    barrier()
    I('s_cmp_lg_u32 s3, 4')
    I('s_cbranch_scc1 L_end')
    I(f'v_add_u32 v3, {L_D_RED}, v13')
    setexec(0xffff)
    for w in range(4):
        I(f'ds_read_b128 {vr(20+8*w)}, v3 offset:{w*512}')
        I(f'ds_read_b128 {vr(24+8*w)}, v3 offset:{w*512+256}')
    I('s_waitcnt lgkmcnt(0)')
    for q in range(4):
        I(f'v_pk_add_f32 {vr(20+2*q,2)}, {vr(20+2*q,2)}, {vr(28+2*q,2)}')
        I(f'v_pk_add_f32 {vr(36+2*q,2)}, {vr(36+2*q,2)}, {vr(44+2*q,2)}')
        I(f'v_pk_add_f32 {vr(20+2*q,2)}, {vr(20+2*q,2)}, {vr(36+2*q,2)}')
    for r in range(4):
        I(f'v_cvt_pk_bf16_f32 v{20+r}, v{20+r}, v{24+r}')
        I(f'v_min_u32 v{20+r}, 0xfffffffe, v{20+r}')
    I(f'buffer_store_dwordx4 v[20:23], v13, {S(WS)}, s4 offen offset:1024 sc1')
    fullexec()
    stamp(7, 4)
    I('s_branch L_end')

def role_E():
    L('L_role_e')
    WD, X_, OUT = 20, 24, 36
    srd(WD, 'wd'); srd(X_, 'x'); srd(OUT, 'out')
    make_masks(16, True)
    make_masks4(240, 1)
    L('L_e_init')
    if EGATE: lds_gate()
    I('s_cmp_lg_u32 s47, 0')
    I('s_cbranch_scc1 L_end')
    I('s_mul_i32 s4, s42, 81920')
    I('s_cmp_gt_u32 s3, 3')
    I('s_cbranch_scc1 L_e_hi')
    I('v_mul_u32_u24 v2, 20480, v14')
    I('v_lshl_add_u32 v2, v15, 4, v2')
    I('s_lshl_b32 s5, s3, 8')
    I('s_add_u32 s4, s4, s5')
    for t in range(16):
        I(f'buffer_load_dwordx4 {vr(100+4*t)}, v2, {S(WD)}, s4 offen nt')
        if t < 15: I('s_add_u32 s4, s4, 1280')
    I('s_waitcnt vmcnt(0)')
    pairperm([(20 + 8 * p, 24 + 8 * p) for p in range(18)], 6)
    I('s_branch L_e_main')
    L('L_e_hi')
    I('v_mul_u32_u24 v2, 5120, v14')
    I('v_lshl_add_u32 v2, v15, 4, v2')
    I('s_sub_u32 s5, s3, 4')
    I('s_mul_i32 s5, s5, 20480')
    I('s_add_u32 s4, s4, s5')
    I('s_add_u32 s4, s4, 1024')
    for t in range(4):
        I(f'buffer_load_dwordx4 {vr(100+4*t)}, v2, {S(WD)}, s4 offen nt')
        if t < 3: I('s_add_u32 s4, s4, 1280')
    I('s_waitcnt vmcnt(0)')
    pairperm([(20 + 8 * p, 24 + 8 * p) for p in range(12)], 6)
    if DRY:
        I('s_cmp_lg_u32 s3, 7')
        I('s_cbranch_scc1 L_e_main')
        enter_dry('L_e_main')
    L('L_e_main')
    sk = uid('nofw')
    I('s_cmp_lg_u32 s3, 0')
    skip_if(sk)
    flags_wait(0)
    L(sk)
    barrier()
    stamp(2)
    I('v_and_b32 v2, 1, v14')
    I('v_lshlrev_b32 v2, 2, v2')
    I('v_lshl_add_u32 v2, v15, 3, v2')
    I('s_lshl_b32 s4, s3, 7')
    I('v_add_u32 v12, s4, v2')
    sk5 = uid('w5')
    I('s_cmp_gt_u32 s3, 4')
    skip_if(sk5)
    I('v_lshlrev_b32 v2, 1, v12')
    I('s_mul_i32 s4, s43, 1280')
    I(f'buffer_load_dwordx2 v[4:5], v2, {S(X_)}, s4 offen')
    I('v_lshlrev_b32 v2, 2, v12')
    I('s_mul_i32 s4, s43, 15360')
    I(f's_add_u32 s48, s4, {MOD + 2*2560}')
    for i in range(1, 12):
        p, kq = i % 3, i // 3
        I(f's_add_u32 s{48+i}, s48, {p*2560 + kq*30720}')
    lab = spin_begin()
    for i in range(12):
        I(f'buffer_load_dwordx4 {vr(164+4*i)}, v2, {S(WS)}, s{48+i} offen sc1')
    I('s_waitcnt vmcnt(0)')
    anysent(range(164, 212), 6)
    spin_end(lab)
    for p in range(3):
        for r in range(4):
            a = 164 + 4 * p + r
            I(f'v_add_f32 v{a}, v{a}, v{a+12}')
            I(f'v_add_f32 v{a+24}, v{a+24}, v{a+36}')
            I(f'v_add_f32 v{a}, v{a}, v{a+24}')
            bfround(a)
    I('v_lshlrev_b32 v176, 16, v4')
    I('v_and_b32 v177, 0xffff0000, v4')
    I('v_lshlrev_b32 v178, 16, v5')
    I('v_and_b32 v179, 0xffff0000, v5')
    for r in range(4):
        I(f'v_add_f32 v{172+r}, 1.0, v{172+r}')
        bfround(172 + r)
    for d in range(4): I(f'v_and_b32 v{204+d}, 0x3f803f80, v{16+d}')
    I('v_mul_u32_u24 v3, 10240, v14')
    I('v_lshl_add_u32 v3, v15, 4, v3')
    I('s_mul_i32 s4, s43, 40960')
    I('s_lshl_b32 s5, s3, 8')
    I('s_add_u32 s4, s4, s5')
    I(f's_add_u32 s4, s4, {AP}')
    I('s_add_u32 s5, s4, 3840')
    I('s_add_u32 s6, s4, 7680')
    L(sk5)
    sk = uid('nolp')
    I('s_cmp_lg_u32 s3, 5')
    skip_if(sk)
    I('v_and_b32 v2, 31, v1')
    I('v_mul_u32_u24 v2, 1280, v2')
    I('s_mul_i32 s4, s43, 40960')
    I(f's_add_u32 s4, s4, {AP + 1276}')
    light_poll(lambda r: I(f'buffer_load_dword v{r}, v2, {S(WS)}, s4 offen sc1'), 1, 4, 24 * THR)
    L(sk)
    barrier()
    stamp(6)
    tick(0)
    sk5 = uid('w5a')
    I('s_cmp_gt_u32 s3, 4')
    skip_if(sk5)
    lab = spin_begin()
    for t in range(8):
        so = ['s4', 's5', 's6'][t // 3]
        I(f'buffer_load_dwordx4 {vr(208+4*t)}, v3, {S(WS)}, {so} offen offset:{(t%3)*1280} sc1')
    I('s_waitcnt vmcnt(0)')
    anysent(range(208, 240), 6)
    spin_end(lab)
    stamp(3)
    tick(1)
    for t in range(8):
        c = '0' if t == 0 else 'v[180:183]'
        I(f'v_mfma_f32_16x16x32_bf16 v[180:183], v[204:207], {vr(208+4*t)}, {c}')
    nop(9)
    for r in range(4):
        bfround(180 + r)
        I(f'v_mul_f32 v{180+r}, v{164+r}, v{180+r}')
        bfround(180 + r)
        I(f'v_add_f32 v{180+r}, v{176+r}, v{180+r}')
        bfround(180 + r)
    tick(2)
    I('v_cmp_gt_u32 vcc, 32, v1')
    I('v_add_f32 v6, v180, v181')
    I('v_add_f32 v7, v182, v183')
    I('v_add_f32 v6, v6, v7')
    I('v_cndmask_b32 v6, 0, v6, vcc')
    allreduce('v_add_f32', 6, 7)
    I('v_mul_f32 v6, 0x3c000000, v6')
    for r in range(4): I(f'v_sub_f32 v{184+r}, v{180+r}, v6')
    I('v_mul_f32 v8, v184, v184')
    for r in range(1, 4): I(f'v_fmac_f32 v8, v{184+r}, v{184+r}')
    I('v_cndmask_b32 v8, 0, v8, vcc')
    allreduce('v_add_f32', 8, 7)
    I('v_mov_b32 v7, v8')
    I('s_lshl_b32 s4, s3, 3')
    I(f's_add_u32 s4, s4, {L_E_STAT}')
    I('v_mov_b32 v2, s4')
    I('v_lshlrev_b32 v3, 2, v12')
    I(f'v_add_u32 v3, {L_E_X1}, v3')
    setexec(1)
    I('ds_write_b64 v2, v[6:7]')
    setexec(0xffffffff)
    I('ds_write_b128 v3, v[180:183]')
    fullexec()
    I('s_waitcnt lgkmcnt(0)')
    L(sk5)
    tick(3)
    barrier()
    tick(4)
    sk5 = uid('w5b')
    I('s_cmp_gt_u32 s3, 4')
    skip_if(sk5)
    I(f'v_mov_b32 v2, {L_E_STAT}')
    I('ds_read_b128 v[184:187], v2')
    I('ds_read_b128 v[188:191], v2 offset:16')
    I('ds_read_b64 v[192:193], v2 offset:32')
    I('s_waitcnt lgkmcnt(0)')
    I('v_add_f32 v6, v184, v186')
    I('v_add_f32 v6, v6, v188')
    I('v_add_f32 v6, v6, v190')
    I('v_add_f32 v6, v6, v192')
    I('v_mul_f32 v6, 0x3e4ccccd, v6')
    I('v_add_f32 v7, v185, v187')
    I('v_add_f32 v7, v7, v189')
    I('v_add_f32 v7, v7, v191')
    I('v_add_f32 v7, v7, v193')
    for k in range(5):
        I(f'v_sub_f32 v8, v{184+2*k}, v6')
        I('v_mul_f32 v8, v8, v8')
        I('v_fmac_f32 v7, 0x43000000, v8')
    I('v_mul_f32 v7, 0x3acccccd, v7')
    bfround(6); bfround(7)
    I('v_add_f32 v7, 0x3727c5ac, v7')
    bfround(7)
    I('v_sqrt_f32 v7, v7')
    nop(1)
    bfround(7)
    I('v_rcp_f32 v7, v7')
    for r in range(4):
        I(f'v_sub_f32 v{184+r}, v{180+r}, v6')
        bfround(184 + r)
        I(f'v_mul_f32 v{184+r}, v{184+r}, v7')
        bfround(184 + r)
        I(f'v_mul_f32 v{184+r}, v{184+r}, v{172+r}')
        bfround(184 + r)
        I(f'v_add_f32 v{184+r}, v{184+r}, v{168+r}')
    I('v_cvt_pk_bf16_f32 v184, v184, v185')
    I('v_cvt_pk_bf16_f32 v185, v186, v187')
    I('v_lshlrev_b32 v3, 1, v12')
    I(f'v_add_u32 v3, {L_E_HT}, v3')
    setexec(0xffffffff)
    I('ds_write_b64 v3, v[184:185]')
    fullexec()
    I('s_waitcnt lgkmcnt(0)')
    L(sk5)
    tick(5)
    barrier()
    tick(6)
    stamp(4)
    I('v_mul_u32_u24 v2, 40, v14')
    I('s_mul_i32 s4, s3, 160')
    I(f's_add_u32 s4, s4, {L_E_HT}')
    I('v_add_u32 v2, s4, v2')
    for q in range(5):
        I(f'ds_read_b64 {vr(164+2*q,2)}, v2 offset:{q*8}')
    I('s_lshl_b32 s4, s3, 9')
    I(f's_add_u32 s4, s4, {L_E_RED}')
    I('v_add_u32 v3, s4, v13')
    I('s_waitcnt lgkmcnt(0)')
    gemv_pair(10, lambda p: 164 + p, 240, [204, 208], lambda blk, t: 20 + 4 * t, [212], [216])
    setexec(0xffff)
    I('ds_write_b128 v3, v[212:215]')
    I('ds_write_b128 v3, v[216:219] offset:256')
    fullexec()
    I('s_waitcnt lgkmcnt(0)')
    tick(7)
    barrier()
    tick(8)
    sk = uid('nohh')
    I('s_cmp_lg_u32 s3, 0')
    skip_if(sk)
    I('v_lshrrev_b32 v2, 5, v1')
    I('v_and_b32 v3, 31, v1')
    I('v_lshlrev_b32 v3, 2, v3')
    I('v_lshl_add_u32 v3, v2, 8, v3')
    I(f'v_add_u32 v3, {L_E_RED}, v3')
    for w in range(8):
        I(f'ds_read2_b32 {vr(164+2*w,2)}, v3 offset0:{(w%2)*128} offset1:{(w%2)*128+32}' if w < 2 else
          f'ds_read2_b32 {vr(164+2*w,2)}, v{4+w//2} offset0:{(w%2)*128} offset1:{(w%2)*128+32}')
        if w % 2 == 1 and w < 7: I(f'v_add_u32 v{5+w//2}, {1024*(w//2+1)}, v3')
    I('v_and_b32 v3, 31, v1')
    I('v_lshlrev_b32 v3, 2, v3')
    I('v_lshl_add_u32 v3, v2, 1, v3')
    I(f'v_add_u32 v3, {L_E_HH}, v3')
    I('s_waitcnt lgkmcnt(0)')
    for st in (1, 2, 4):
        for w in range(0, 8, 2 * st):
            I(f'v_pk_add_f32 {vr(164+2*w,2)}, {vr(164+2*w,2)}, {vr(164+2*(w+st),2)}')
    I('v_cvt_pk_bf16_f32 v166, v164, v165')
    I('v_lshlrev_b32 v164, 16, v166')
    I('v_and_b32 v165, 0xffff0000, v166')
    I('v_mul_f32 v164, 0xbfb8aa3b, v164')
    I('v_exp_f32 v164, v164')
    nop(1)
    I('v_add_f32 v164, 1.0, v164')
    I('v_rcp_f32 v164, v164')
    nop(1)
    bfround(164)
    I('v_mul_f32 v164, v164, v165')
    I('v_cvt_pk_bf16_f32 v164, v164, v164')
    I('ds_write_b16 v3, v164')
    I('s_waitcnt lgkmcnt(0)')
    L(sk)
    I('s_mul_i32 s4, s43, 27')
    I('s_add_u32 s4, s4, s42')
    I('s_mul_i32 s4, s4, 2560')
    I(f's_add_u32 s4, s4, {FP}')
    tick(9)
    barrier()
    delay(3)
    tick(10)
    I('s_cmp_gt_u32 s3, 3')
    I('s_cbranch_scc1 L_e_hi2')
    I('v_lshlrev_b32 v2, 5, v14')
    I(f'v_add_u32 v2, {L_E_HH}, v2')
    for q in range(2):
        I(f'ds_read_b128 {vr(164+4*q)}, v2 offset:{q*16}')
    I('s_lshl_b32 s5, s3, 9')
    I('s_add_u32 s4, s4, s5')
    I('s_waitcnt lgkmcnt(0)')
    gemv_pair(8, lambda p: 164 + p, 240, [204, 208], lambda blk, t: 100 + 4 * t, [212], [216])
    for r in range(8): I(f'v_min_u32 v{212+r}, 0xfffffffe, v{212+r}')
    setexec(0xffff)
    I(f'buffer_store_dwordx4 v[212:215], v13, {S(WS)}, s4 offen sc1')
    I(f'buffer_store_dwordx4 v[216:219], v13, {S(WS)}, s4 offen offset:256 sc1')
    fullexec()
    tick(11)
    tick_dump(12)
    stamp(5)
    barrier()
    I('s_branch L_end')
    L('L_e_hi2')
    I('s_sub_u32 s46, s3, 4')
    I('v_lshlrev_b32 v2, 3, v14')
    I('s_lshl_b32 s5, s46, 5')
    I(f's_add_u32 s5, s5, {L_E_HH}')
    I('v_add_u32 v2, s5, v2')
    I('ds_read_b64 v[164:165], v2')
    I('s_lshl_b32 s5, s46, 9')
    I(f's_add_u32 s5, s5, {L_E_RED}')
    I('v_add_u32 v3, s5, v13')
    I('s_waitcnt lgkmcnt(0)')
    gemv_pair(2, lambda p: 164 + p, 240, [204, 208], lambda blk, t: 100 + 4 * t, [212], [216])
    setexec(0xffff)
    I('ds_write_b128 v3, v[212:215]')
    I('ds_write_b128 v3, v[216:219] offset:256')
    fullexec()
    I('s_waitcnt lgkmcnt(0)')
    barrier()
    I('s_cmp_lg_u32 s3, 4')
    I('s_cbranch_scc1 L_final')
    I(f'v_add_u32 v3, {L_E_RED}, v13')
    setexec(0xffff)
    for w in range(4):
        I(f'ds_read_b128 {vr(20+8*w)}, v3 offset:{w*512}')
        I(f'ds_read_b128 {vr(24+8*w)}, v3 offset:{w*512+256}')
    I('s_waitcnt lgkmcnt(0)')
    for q in range(4):
        I(f'v_pk_add_f32 {vr(20+2*q,2)}, {vr(20+2*q,2)}, {vr(28+2*q,2)}')
        I(f'v_pk_add_f32 {vr(36+2*q,2)}, {vr(36+2*q,2)}, {vr(44+2*q,2)}')
        I(f'v_pk_add_f32 {vr(20+2*q,2)}, {vr(20+2*q,2)}, {vr(36+2*q,2)}')
    for r in range(8): I(f'v_min_u32 v{20+r}, 0xfffffffe, v{20+r}')
    I('s_add_u32 s4, s4, 2048')
    I(f'buffer_store_dwordx4 v[20:23], v13, {S(WS)}, s4 offen sc1')
    I(f'buffer_store_dwordx4 v[24:27], v13, {S(WS)}, s4 offen offset:256 sc1')
    fullexec()
    I('s_branch L_end')
    L('L_final')
    I('s_cmp_lg_u32 s3, 5')
    skip_if('L_end')
    I('s_cmp_ge_u32 s42, 10')
    skip_if('L_end')
    I('s_lshl_b32 s4, s42, 6')
    I('v_add_u32 v12, s4, v1')
    I('v_lshlrev_b32 v2, 2, v12')
    I(f'v_add_u32 v3, {L_E_X1}, v2')
    I('ds_read_b32 v10, v3')
    I('v_lshrrev_b32 v4, 7, v12')
    I('v_lshlrev_b32 v4, 9, v4')
    I('v_and_b32 v5, 1, v12')
    I('v_lshl_add_u32 v4, v5, 8, v4')
    I('v_bfe_u32 v5, v12, 3, 4')
    I('v_lshl_add_u32 v4, v5, 4, v4')
    I('v_bfe_u32 v5, v12, 1, 2')
    I('v_lshl_add_u32 v4, v5, 2, v4')
    I('s_mul_i32 s4, s43, 15360')
    I(f's_add_u32 s4, s4, {MOD + 5*2560}')
    I('s_mul_i32 s5, s43, 69120')
    I(f's_add_u32 s5, s5, {FP}')
    lab = spin_begin()
    I('s_mov_b32 s6, s4')
    for kq in range(4):
        I(f'buffer_load_dword v{48+kq}, v2, {S(WS)}, s6 offen sc1')
        if kq < 3: I('s_add_u32 s6, s6, 30720')
    I('s_waitcnt vmcnt(0)')
    anysent(list(range(48, 52)), 6)
    spin_end(lab)
    for p in range(9): I(f's_add_u32 s{48+p}, s5, {p*7680}')
    def fissue(base):
        for p in range(27):
            I(f'buffer_load_dword v{base+p}, v4, {S(WS)}, s{48+p//3} offen offset:{(p%3)*2560 if (p%3)*2560 < 4096 else 0} sc1'
              if p % 3 < 2 else f'buffer_load_dword v{base+p}, v5, {S(WS)}, s{48+p//3} offen sc1')
    I('v_add_u32 v5, 5120, v4')
    I('s_mov_b32 s98, 0')
    fissue(20)
    I('s_sleep 6')
    L('L_fin_top')
    fissue(60)
    I('s_waitcnt vmcnt(27)')
    anysent(list(range(20, 47)), 6)
    I('s_cbranch_vccz L_fin_done')
    fissue(20)
    I('s_waitcnt vmcnt(27)')
    anysent(list(range(60, 87)), 6)
    I('s_cbranch_vccz L_fin_b')
    I('s_add_u32 s98, s98, 1')
    I(f's_cmp_gt_u32 s98, {SPIN_LIMIT}')
    I('s_cbranch_scc1 L_end')
    I('s_branch L_fin_top')
    L('L_fin_b')
    I('s_waitcnt vmcnt(0)')
    for p in range(27): I(f'v_mov_b32 v{20+p}, v{60+p}')
    L('L_fin_done')
    I('v_add_f32 v11, v48, v49')
    I('v_add_f32 v50, v50, v51')
    I('v_add_f32 v11, v11, v50')
    bfround(11)
    for p in range(1, 27): I(f'v_add_f32 v20, v20, v{20+p}')
    bfround(20)
    I('v_mul_f32 v20, v11, v20')
    bfround(20)
    I('s_waitcnt lgkmcnt(0)')
    I('v_add_f32 v20, v10, v20')
    I('v_cvt_pk_bf16_f32 v20, v20, v20')
    I('v_lshlrev_b32 v2, 1, v12')
    I('s_mul_i32 s4, s43, 1280')
    I(f'buffer_store_short v20, v2, {S(OUT)}, s4 offen')
    stamp(7, 5)
    if DBGT:
        I('s_memrealtime s[60:61]')
        I('s_mov_b32 s20, s90')
        I('s_and_b32 s21, s91, 0xffff')
        I('s_mov_b32 s22, 256')
        I('s_mov_b32 s23, 0x00020000')
        I('s_waitcnt lgkmcnt(0)')
        I('s_sub_u32 s60, s60, s56')
        I('v_mov_b32 v4, s60')
        I('s_mul_i32 s5, s43, 10')
        I('s_add_u32 s5, s5, s42')
        I('s_lshl_b32 s5, s5, 2')
        I('v_mov_b32 v5, 0')
        setexec(1)
        I('buffer_store_dword v4, v5, s[20:23], s5 offen')
        fullexec()
    role_end('L_e_main')

prologue()
role_P12()
role_P3()
role_DE_common()
role_D()
role_E()
L('L_end')
I('s_endpgm')

def wrap_vm(ls):
    out = []; i = 0; n = 0
    while i < len(ls):
        x = ls[i].strip()
        def isvm(k):
            y = ls[k].strip()
            return y.startswith('buffer_store') or (not INSPIN[k] and (y.startswith('s_waitcnt vmcnt') or (y.startswith('buffer_load') and ' nt' not in y)))
        if isvm(i):
            j = i
            while j < len(ls) and isvm(j):
                j += 1
            n += 1
            out.append(f'    s_cbranch_execz L_vs_{n}')
            out += ls[i:j]
            out.append(f'L_vs_{n}:')
            i = j
        else:
            out.append(ls[i]); i += 1
    return out
if DRY:
    INSPIN = []
    ins = False
    for x in lines:
        t = x.strip()
        if re.match(r'L_spin_\d+:$', t): ins = True
        if re.match(r'L_spin_\d+_x:$', t): ins = False
        INSPIN.append(ins)
    lines = wrap_vm(lines)
hdr = open('cdna_kernels/' + NAME + '.s.ref').read().split('\n')
out = []
for ln in hdr:
    if ln.startswith('; @launch'):
        out.append(f'; @launch grid=(256,1,1) block=(512,1,1) lds={LDS_BYTES}')
    elif ln.startswith(';'):
        out.append(ln)
    else:
        break
out += ['.amdgcn_target "amdgcn-amd-amdhsa--gfx950"', '.text', f'.globl {NAME}_kernel', '.p2align 8',
        f'.type {NAME}_kernel,@function', f'{NAME}_kernel:']
out += lines
out += ['.section .rodata,"a"', '.p2align 6', f'.amdhsa_kernel {NAME}_kernel',
        '  .amdhsa_next_free_vgpr 256', '  .amdhsa_next_free_sgpr 102', '  .amdhsa_accum_offset 256',
        '  .amdhsa_group_segment_fixed_size 0', '  .amdhsa_kernarg_size 120', '  .amdhsa_user_sgpr_count 2',
        '  .amdhsa_user_sgpr_kernarg_segment_ptr 1', '  .amdhsa_system_sgpr_workgroup_id_x 1',
        '.end_amdhsa_kernel', '']
open(sys.argv[1], 'w').write('\n'.join(out))
```

```python
import sys, re

NAME = 'adaLN_cond__compressed_kv_cla__glu_gated_glu__decode'
STAMP = int(sys.argv[2]) if len(sys.argv) > 2 else 0
DBGT = (STAMP == 2)
if DBGT: STAMP = 0
SPIN_LIMIT = 200000

EPOCH = 0
FLAGS = 2048
MOD = 8192
QP = 131072
QA = 262144
ML = 327680
AP = 360448
FP = 442368
STP = 589824
OP = 1048576
WS_BYTES = OP + 2 * 32 * 32 * 1024

CKS = 1040
L_WU = 0
L_HD = 66560
L_RED = L_HD + 2560
L_QT2 = L_RED + 5120
L_CNT = L_QT2 + 512
L_CK = 0
L_QT = 0
PTS = 272
L_PT = 133120
L_MX = L_PT + 32 * PTS
LDS_BYTES = L_MX + 1024
L_WT0 = 0
L_WT1 = 20480
L_ST = 40960
L_FC = 44032
L_D_WD = 45056
L_D_CD = 46080
L_D_RED = 49152
L_D_RED2 = 53248
L_E_STAT = 45056
L_E_X1 = 45312
L_E_HT = 48128
L_E_RED = 53248
L_E_HH = 57344
PACE = int(sys.argv[3]) if len(sys.argv) > 3 else 6
SLOWN = int(sys.argv[4]) if len(sys.argv) > 4 else 6
DRY = int(sys.argv[5]) if len(sys.argv) > 5 else 0
EGATE = int(sys.argv[6]) if len(sys.argv) > 6 else 1
EPACE = int(sys.argv[7]) if len(sys.argv) > 7 else 6
SLOWP = int(sys.argv[8]) if len(sys.argv) > 8 else 2
LATEC = int(sys.argv[9]) if len(sys.argv) > 9 else 0
CK0 = int(sys.argv[10]) if len(sys.argv) > 10 else 4
CK1 = int(sys.argv[11]) if len(sys.argv) > 11 else 6
W1GATE = int(sys.argv[12]) if len(sys.argv) > 12 else 0
XSPLIT = int(sys.argv[13]) if len(sys.argv) > 13 else 0
P3GATE = int(sys.argv[14]) if len(sys.argv) > 14 else 0
WU0 = int(sys.argv[15]) if len(sys.argv) > 15 else 6
THR = int(sys.argv[16]) if len(sys.argv) > 16 else 1
DELAY = int(sys.argv[17]) if len(sys.argv) > 17 else 0
AGATE = int(sys.argv[18]) if len(sys.argv) > 18 else 0

TAGC_LO = 0x7F4A7C15
TAGC_HI = 0x9E3779B9

lines = []
def I(s): lines.append('    ' + s)
def L(s): lines.append(s + ':')
def C(s): lines.append('    ; ' + s)
def nop(n):
    while n > 0:
        k = min(n, 16)
        I(f's_nop {k-1}')
        n -= k
_uid = [0]
def uid(p):
    _uid[0] += 1
    return f'L_{p}_{_uid[0]}'
def vr(a, n=4): return f'v[{a}:{a+n-1}]'

PTR = {k: 64 + 2 * i for i, k in enumerate(
    ['x', 'ckv', 'wq', 'wuk', 'wuv', 'wo', 'bx', 'wg', 'wu', 'wd', 'c', 'wmod', 'out', 'dbg', 'ws'])}
NBYTES = dict(x=2560, ckv=8388608, wq=5242880, wuk=4194304, wuv=4194304, wo=5242880, wg=2211840, wu=2211840,
              wd=2211840, c=2560, wmod=4915200, out=2560, ws=WS_BYTES)
def srd(d, name):
    p = PTR[name]
    I(f's_mov_b32 s{d}, s{p}')
    I(f's_and_b32 s{d+1}, s{p+1}, 0xffff')
    I(f's_mov_b32 s{d+2}, {NBYTES[name]}')
    I(f's_mov_b32 s{d+3}, 0x00020000')
def S(d): return f's[{d}:{d+3}]'
WS = 8

def setexec(lo, hi=0):
    I(f's_and_b32 exec_lo, s100, 0x{lo:x}')
    if hi: I(f's_and_b32 exec_hi, s100, 0x{hi:x}')
    else: I('s_mov_b32 exec_hi, 0')
def fullexec():
    I('s_mov_b64 exec, s[100:101]')
def skip_if(lab):
    I('s_cselect_b32 s99, s100, 0')
    I('s_cmp_lg_u32 s99, 0')
    I(f's_cbranch_scc1 {lab}')
def barrier():
    o = uid('bar')
    I('s_cmp_eq_u32 s100, 0')
    I(f's_cbranch_scc1 {o}')
    I('s_barrier')
    L(o)
def enter_dry(target):
    I('s_mov_b64 s[100:101], 0')
    I('s_mov_b64 exec, 0')
    I(f's_branch {target}')
def role_end(back):
    I('s_cmp_lg_u32 s100, 0')
    I('s_cbranch_scc1 L_end')
    I('s_mov_b64 s[100:101], -1')
    I('s_mov_b64 exec, -1')
    I(f's_branch {back}')

def stamp(idx, wave=0):
    if STAMP != 1: return
    skip = uid('st')
    I(f's_cmp_lg_u32 s3, {wave}')
    I(f's_cbranch_scc1 {skip}')
    I('s_memrealtime s[60:61]')
    I('s_waitcnt lgkmcnt(0)')
    I('v_mov_b32 v254, s60')
    I('v_mov_b32 v255, s61')
    I(f's_lshl_b32 s62, s2, 7')
    I(f's_add_u32 s62, s62, {STP + idx*8}')
    I('v_mov_b32 v253, 0')
    I('s_mov_b64 s[58:59], exec')
    setexec(1)
    I(f'buffer_store_dwordx2 v[254:255], v253, {S(WS)}, s62 offen')
    I('s_mov_b64 exec, s[58:59]')
    L(skip)

TICK = (STAMP == 3)
def tick(i):
    if TICK: I(f's_memtime s[{64+2*i}:{65+2*i}]')
def tick_dump(n):
    if not TICK: return
    skip = uid('tk')
    I('s_cmp_lg_u32 s3, 0')
    I(f's_cbranch_scc1 {skip}')
    I('s_waitcnt lgkmcnt(0)')
    I('s_mov_b64 s[58:59], exec')
    setexec(1)
    I('v_mov_b32 v253, 0')
    for i in range(n):
        I(f'v_mov_b32 v254, s{64+2*i}')
        I(f'v_mov_b32 v255, s{65+2*i}')
        I(f's_lshl_b32 s62, s2, 7')
        I(f's_add_u32 s62, s62, {STP + i*8}')
        I(f'buffer_store_dwordx2 v[254:255], v253, {S(WS)}, s62 offen')
        nop(2)
    I('s_mov_b64 exec, s[58:59]')
    L(skip)

def delay(place):
    if DELAY == place:
        for _ in range(1): I('s_sleep 110')

def spin_begin():
    lab = uid('spin')
    I(f's_cbranch_execz {lab}_x')
    I('s_mov_b32 s98, 0')
    L(lab)
    return lab
def spin_end(lab, sleep=1):
    done = uid('spd')
    I(f's_cbranch_vccz {done}')
    I('s_add_u32 s98, s98, 1')
    I(f's_cmp_gt_u32 s98, {SPIN_LIMIT}')
    I('s_cbranch_scc1 L_end')
    I(f's_sleep {sleep}')
    I(f's_branch {lab}')
    L(done)
    L(f'{lab}_x')

def anysent(regs, tmp):
    regs = list(regs)
    cur = regs[0]; rest = regs[1:]
    while rest:
        if len(rest) >= 2:
            I(f'v_max3_u32 v{tmp}, v{cur}, v{rest[0]}, v{rest[1]}'); rest = rest[2:]
        else:
            I(f'v_max_u32 v{tmp}, v{cur}, v{rest[0]}'); rest = rest[1:]
        cur = tmp
    I(f'v_cmp_eq_u32 vcc, -1, v{cur}')

def allreduce(op, x, tmp, rows_only=False, skip_row=False, half=False):
    if not skip_row:
        for ctl in ['quad_perm:[1,0,3,2]', 'quad_perm:[2,3,0,1]', 'row_half_mirror', 'row_mirror']:
            nop(2)
            I(f'{op}_dpp v{x}, v{x}, v{x} {ctl} row_mask:0xf bank_mask:0xf')
    if rows_only: return
    for sw in (['v_permlane16_swap_b32'] if half else ['v_permlane16_swap_b32', 'v_permlane32_swap_b32']):
        I(f'v_mov_b32 v{tmp}, v{x}')
        nop(2)
        I(f'{sw} v{x}, v{tmp}')
        nop(1)
        I(f'{op} v{x}, v{x}, v{tmp}')

def bfround(x, tmp=None):
    I(f'v_cvt_pk_bf16_f32 v{x}, v{x}, v{x}')
    I(f'v_and_b32 v{x}, 0xffff0000, v{x}')

def make_masks(m, single):
    I('v_and_b32 v2, 1, v1')
    I('v_cmp_eq_u32 vcc, 1, v2')
    I('v_mov_b32 v3, 0xffff')
    I('v_mov_b32 v2, 0xffff0000')
    nop(1)
    I('v_cndmask_b32 v3, v3, v2, vcc')
    if single:
        I('v_and_b32 v2, 8, v1')
        I('v_cmp_eq_u32 vcc, 0, v2')
        nop(2)
        I('v_cndmask_b32 v3, 0, v3, vcc')
    I('v_bfe_u32 v2, v1, 1, 2')
    for d in range(4):
        I(f'v_cmp_eq_u32 vcc, {d}, v2')
        nop(2)
        I(f'v_cndmask_b32 v{m+d}, 0, v3, vcc')

def gemv_diag(T, aval, masks, abuf, bq, accs):
    def build(t):
        a = abuf[t % 2]
        for d in range(4):
            I(f'v_and_b32 v{a+d}, v{masks+d}, v{aval(t)}')
    build(0)
    for t in range(T):
        a = abuf[t % 2]
        if t + 1 < T:
            build(t + 1)
        else:
            nop(2)
        for blk, acc in enumerate(accs):
            c = '0' if t == 0 else vr(acc)
            I(f'v_mfma_f32_16x16x32_bf16 {vr(acc)}, {vr(a)}, {vr(bq(blk, t))}, {c}')
    nop(9)

def make_masks4(m, nb):
    I('v_bfe_u32 v2, v1, 2, 2')
    I(f'v_cmp_gt_u32 vcc, {nb}, v2')
    nop(2)
    I('v_cndmask_b32 v3, 0, -1, vcc')
    I('v_and_b32 v2, 3, v1')
    for d in range(4):
        I(f'v_cmp_eq_u32 vcc, {d}, v2')
        nop(2)
        I(f'v_cndmask_b32 v{m+d}, 0, v3, vcc')

def pairperm(quads, tmp):
    I('s_mov_b32 s4, 0x05040100')
    I('s_mov_b32 s5, 0x07060302')
    for n, (x0, x1) in enumerate(quads):
        for q in range(4):
            t = tmp + (q & 1)
            I(f'v_perm_b32 v{t}, v{x1+q}, v{x0+q}, s4')
            I(f'v_perm_b32 v{x1+q}, v{x1+q}, v{x0+q}, s5')
            I(f'v_mov_b32 v{x0+q}, v{t}')

def gemv_pair(P, aval, masks, abuf, bq, accE, accO):
    def build(p):
        a = abuf[p % 2]
        for d in range(4):
            I(f'v_and_b32 v{a+d}, v{masks+d}, v{aval(p)}')
    build(0)
    for p in range(P):
        a = abuf[p % 2]
        if p + 1 < P: build(p + 1)
        else: nop(2)
        for blk in range(len(accE)):
            for acc, t in ((accE[blk], 2 * p), (accO[blk], 2 * p + 1)):
                c = '0' if p == 0 else vr(acc)
                I(f'v_mfma_f32_16x16x32_bf16 {vr(acc)}, {vr(a)}, {vr(bq(blk, t))}, {c}')
    nop(9)

def spin_end_thr(lab, thr, sleep=1):
    done = uid('spd')
    I('s_bcnt1_i32_b64 s99, vcc')
    I(f's_cmp_le_u32 s99, {thr}')
    I(f's_cbranch_scc1 {done}')
    I('s_add_u32 s98, s98, 1')
    I(f's_cmp_gt_u32 s98, {SPIN_LIMIT}')
    I('s_cbranch_scc1 L_end')
    I(f's_sleep {sleep}')
    I(f's_branch {lab}')
    L(done)
    L(f'{lab}_x')

def light_poll(load, regs_per, base, thr, NS=3, gap=5):
    top = uid('lp'); done = uid('lpd')
    I(f's_cbranch_execz {done}')
    I('s_mov_b32 s98, 0')
    for i in range(NS - 1):
        load(base + i * regs_per)
        I(f's_sleep {gap}')
    L(top)
    for i in range(NS):
        load(base + ((i + NS - 1) % NS) * regs_per)
        I(f's_waitcnt vmcnt({NS-1})')
        r = base + i * regs_per
        if regs_per == 1: I(f'v_cmp_eq_u32 vcc, -1, v{r}')
        else:
            I(f'v_max_u32 v{base + NS*regs_per}, v{r}, v{r+1}')
            I(f'v_cmp_eq_u32 vcc, -1, v{base + NS*regs_per}')
        I('s_bcnt1_i32_b64 s99, vcc')
        I(f's_cmp_le_u32 s99, {thr}')
        I(f's_cbranch_scc1 {done}')
    I('s_add_u32 s98, s98, 1')
    I(f's_cmp_gt_u32 s98, {SPIN_LIMIT}')
    I('s_cbranch_scc1 L_end')
    I(f's_branch {top}')
    L(done)

def flags_wait(which, first=0, count=256, sleep=1):
    I('v_lshlrev_b32 v2, 4, v1')
    I(f'v_add_u32 v2, {FLAGS + 2048*which + 8*first}, v2')
    if count == 64: setexec(0xffffffff)
    lab = spin_begin()
    I(f'buffer_load_dwordx4 v[4:7], v2, {S(WS)}, 0 offen sc1')
    if count == 256:
        I(f'buffer_load_dwordx4 v[8:11], v2, {S(WS)}, 0 offen offset:1024 sc1')
    I('s_waitcnt vmcnt(0)')
    n = 12 if count == 256 else 8
    for r in range(4, n):
        I(f'v_xor_b32 v{r}, s{96 + (r & 1)}, v{r}')
    I('v_or3_b32 v4, v4, v5, v6')
    if count == 256:
        I('v_or3_b32 v4, v4, v7, v8')
        I('v_or3_b32 v4, v4, v9, v10')
        I('v_or_b32 v4, v4, v11')
    else:
        I('v_or_b32 v4, v4, v7')
    I('v_cmp_ne_u32 vcc, 0, v4')
    spin_end(lab, sleep)
    if count == 64: fullexec()

def flag_store(which, t0=4):
    I('s_waitcnt vmcnt(0) lgkmcnt(0)')
    I(f's_add_u32 s96, s94, 0x{TAGC_LO:x}')
    I(f's_addc_u32 s97, s95, 0x{TAGC_HI:x}')
    I(f'v_mov_b32 v{t0}, s96')
    I(f'v_mov_b32 v{t0+1}, s97')
    I('s_lshl_b32 s4, s2, 3')
    I(f's_add_u32 s4, s4, {FLAGS + 2048*which}')
    I(f'v_mov_b32 v{t0+2}, 0')
    setexec(1)
    I(f'buffer_store_dwordx2 v[{t0}:{t0+1}], v{t0+2}, {S(WS)}, s4 offen sc1')
    fullexec()

def lds_gate():
    I(f'v_mov_b32 v4, {L_FC}')
    lab = spin_begin()
    I('ds_read_b32 v5, v4')
    I('s_waitcnt lgkmcnt(0)')
    I('v_cmp_ne_u32 vcc, 1, v5')
    spin_end(lab, 2)

def paced(loads, depth):
    for i, ld in enumerate(loads):
        if i >= depth: I(f's_waitcnt vmcnt({depth-1})')
        for x in ld: I(x)

def tag_compute():
    I('s_waitcnt lgkmcnt(0)')
    I(f's_add_u32 s96, s94, 0x{TAGC_LO:x}')
    I(f's_addc_u32 s97, s95, 0x{TAGC_HI:x}')

def prologue():
    I('s_cmp_ge_u32 s2, 256')
    I('s_cbranch_scc1 L_end')
    I('s_mov_b64 s[100:101], -1')
    if XSPLIT == 2:
        I('s_bfe_u32 s4, s2, 0x40003')
        I('s_lshl_b32 s4, s4, 2')
        I('s_and_b32 s5, s2, 3')
        I('s_add_u32 s4, s4, s5')
        I('s_bfe_u32 s5, s2, 0x10002')
        I('s_lshr_b32 s6, s2, 7')
        I('s_xor_b32 s7, s5, s6')
        I('s_lshl_b32 s6, s6, 1')
        I('s_add_u32 s6, s6, s7')
        I('s_lshl_b32 s6, s6, 6')
        I('s_add_u32 s2, s4, s6')
    elif XSPLIT:
        I('s_lshr_b32 s4, s2, 3')
        I('s_lshl_b32 s4, s4, 2')
        I('s_and_b32 s5, s2, 3')
        I('s_add_u32 s4, s4, s5')
        I('s_bfe_u32 s5, s2, 0x10002')
        I('s_lshl_b32 s5, s5, 7')
        I('s_add_u32 s2, s4, s5')
    if DBGT: I('s_memrealtime s[56:57]')
    I('s_load_dwordx16 s[64:79], s[0:1], 0')
    I('s_load_dwordx8 s[80:87], s[0:1], 64')
    I('s_load_dwordx4 s[88:91], s[0:1], 96')
    I('s_load_dwordx2 s[92:93], s[0:1], 112')
    I('v_lshrrev_b32 v1, 6, v0')
    nop(1)
    I('v_readfirstlane_b32 s3, v1')
    I('v_and_b32 v1, 63, v0')
    for r in range(2, 13): I(f'v_mov_b32 v{r}, 0')
    if STAMP: I('v_mov_b32 v253, 0')
    I('s_waitcnt lgkmcnt(0)')
    I('s_load_dwordx2 s[94:95], s[92:93], 0')
    srd(WS, 'ws')
    stamp(0)
    I('v_lshrrev_b32 v14, 4, v1')
    I('v_and_b32 v15, 15, v1')
    I('v_lshlrev_b32 v13, 4, v1')
    I('s_cmp_ge_u32 s2, 128')
    I('s_cbranch_scc1 L_de')
    I('s_cmp_ge_u32 s2, 64')
    I('s_cbranch_scc1 L_p3')

def role_P12():
    X_, WQ, WUK = 12, 16, 20
    srd(X_, 'x'); srd(WQ, 'wq'); srd(WUK, 'wuk')
    I('s_lshr_b32 s40, s2, 1')
    I('s_and_b32 s41, s2, 1')
    I('s_mul_i32 s45, s41, 320')
    I('s_cmp_lg_u32 s3, 7')
    I('s_cbranch_scc1 L_a_init')
    for r in range(4, 8): I(f'v_mov_b32 v{r}, -1')
    I('s_lshl_b32 s4, s2, 10')
    I(f's_add_u32 s4, s4, {QP}')
    I(f'buffer_store_dwordx4 v[4:7], v13, {S(WS)}, s4 offen sc1')
    I('v_lshrrev_b32 v3, 5, v1')
    I('v_lshlrev_b32 v3, 15, v3')
    I('v_and_b32 v2, 31, v1')
    I('v_lshl_add_u32 v3, v2, 4, v3')
    I('s_lshl_b32 s4, s2, 9')
    I(f's_add_u32 s4, s4, {QA}')
    I(f'buffer_store_dwordx4 v[4:7], v3, {S(WS)}, s4 offen sc1')
    if DRY: enter_dry('L_a_h1b')
    L('L_a_w7')
    flag_store(0, 8)
    stamp(9, 7)
    I(f'v_mov_b32 v4, {L_CNT}')
    I('v_mov_b32 v5, 0')
    I('ds_write_b32 v4, v5')
    I('s_xor_b32 s4, s2, 1')
    I('s_lshl_b32 s4, s4, 3')
    I(f's_add_u32 s4, s4, {FLAGS}')
    I('v_mov_b32 v2, 0')
    lab = spin_begin()
    I(f'buffer_load_dwordx2 v[6:7], v2, {S(WS)}, s4 offen sc1')
    I('s_waitcnt vmcnt(0)')
    I('v_xor_b32 v6, s96, v6')
    I('v_xor_b32 v7, s97, v7')
    I('v_or_b32 v6, v6, v7')
    I('v_cmp_ne_u32 vcc, 0, v6')
    spin_end(lab, 2)
    I('s_waitcnt lgkmcnt(0)')
    I('s_branch L_a_main')
    L('L_a_init')
    I('s_cmp_gt_u32 s3, 4')
    I('s_cbranch_scc1 L_a_h1')
    if AGATE & 1:
        tag_compute()
        flags_wait(0, 128, 128, 2)
    I('v_lshlrev_b32 v2, 17, v14')
    I('v_lshl_add_u32 v2, v15, 4, v2')
    I('s_lshl_b32 s4, s3, 6')
    I('s_add_u32 s4, s4, s45')
    I('s_lshl_b32 s4, s4, 13')
    I('s_lshl_b32 s5, s40, 8')
    I('s_add_u32 s4, s4, s5')
    for t in range(16):
        I(f'buffer_load_dwordx4 {vr(20+4*t)}, v2, {S(WQ)}, s4 offen nt')
        if t < 15: I('s_add_u32 s4, s4, 8192')
    def wuk_dma(first, per, w0, nw):
        assert per % 4 == 0 and first % 4 == 0
        for k in range(4):
            I(f'v_add_u32 v3, {4*k}, v14')
            I('v_xor_b32 v3, v3, v15')
            I('v_lshlrev_b32 v3, 4, v3')
            I(f'v_lshl_add_u32 v{6+k}, v14, 13, v3')
        I('s_lshl_b32 s4, s41, 21')
        I('s_lshl_b32 s5, s40, 8')
        I('s_add_u32 s4, s4, s5')
        I(f's_sub_u32 s6, s3, {w0}')
        I(f's_mul_i32 s6, s6, {per}')
        I(f's_add_u32 s6, s6, {first}')
        I('s_lshl_b32 s5, s6, 15')
        I('s_add_u32 s4, s4, s5')
        I('s_lshl_b32 s5, s6, 10')
        done = uid('dmad')
        for q in range(per):
            if first + (nw - 1) * per + q >= 64:
                I(f's_cmp_eq_u32 s3, {w0 + nw - 1}')
                I(f's_cbranch_scc1 {done}')
            I('s_mov_b32 m0, s5')
            nop(1)
            I(f'buffer_load_dwordx4 v{6+q%4}, {S(WUK)}, s4 offen nt lds')
            if q < per - 1:
                I('s_add_u32 s4, s4, 32768')
                I('s_add_u32 s5, s5, 1024')
        L(done)
    def cnt_add():
        I('s_waitcnt vmcnt(0)')
        I(f'v_mov_b32 v4, {L_CNT}')
        I('v_mov_b32 v5, 1')
        setexec(1)
        I('ds_add_u32 v4, v5')
        fullexec()
    def wuk_reads():
        I('v_xor_b32 v2, v14, v15')
        for q in range(4):
            I(f'v_xor_b32 v3, {4*q}, v2')
            I('v_lshlrev_b32 v3, 4, v3')
            I(f'v_lshl_add_u32 v{6+q}, v15, 8, v3')
        I('s_lshl_b32 s4, s3, 13')
        for q in range(4): I(f'v_add_u32 v{6+q}, s4, v{6+q}')
        for t_ in range(4):
            for n in range(2):
                I(f'ds_read_b128 {vr(20+16*n+4*t_)}, v{6+t_} offset:{L_WU + n*4096}')
    sk = uid('w0n')
    I('s_cmp_eq_u32 s3, 0')
    I(f's_cbranch_scc1 {sk}')
    wuk_dma(0, WU0, 1, 4)
    I(f's_waitcnt vmcnt({WU0})')
    L(sk)
    I(f's_cbranch_scc0 {sk}_b') if False else None
    sk = uid('w0m')
    I('s_cmp_lg_u32 s3, 0')
    I(f's_cbranch_scc1 {sk}')
    I('s_waitcnt vmcnt(0)')
    L(sk)
    make_masks4(16, 2)
    tag_compute()
    if LATEC == 2:
        sk = uid('nofc')
        I('s_cmp_lg_u32 s3, 4')
        I(f's_cbranch_scc1 {sk}')
        I(f'v_mov_b32 v8, s96')
        I(f'v_mov_b32 v9, s97')
        I('s_lshl_b32 s4, s2, 3')
        I(f's_add_u32 s4, s4, {FLAGS + 4096}')
        I(f'v_mov_b32 v10, 0')
        setexec(1)
        I(f'buffer_store_dwordx2 v[8:9], v10, {S(WS)}, s4 offen sc1')
        fullexec()
        L(sk)
    pairperm([(20 + 8 * p, 24 + 8 * p) for p in range(8)], 4)
    stamp(10, 4)
    I('s_branch L_a_main')
    L('L_a_h1')
    I('s_sub_u32 s46, s3, 5')
    I('s_mul_i32 s4, s46, 1280')
    I('v_lshlrev_b32 v3, 2, v1')
    for k in range(5):
        I(f'buffer_load_dword v{80 + k}, v3, {S(X_)}, s4 offen offset:{k*256}')
    I('s_lshl_b32 s5, s45, 1')
    I('s_add_u32 s5, s5, s4')
    I(f'buffer_load_dwordx4 v[84+4:84+7], v13, {S(X_)}, s5 offen'.replace('84+4', '88').replace('84+7', '91'))
    tag_compute()
    I('s_waitcnt vmcnt(0)')
    for k in range(5):
        I(f'v_lshlrev_b32 v{96+2*k}, 16, v{80+k}')
        I(f'v_and_b32 v{97+2*k}, 0xffff0000, v{80+k}')
    I('v_add_f32 v92, v96, v97')
    for k in range(2, 10): I(f'v_add_f32 v92, v92, v{96+k}')
    allreduce('v_add_f32', 92, 93)
    I('v_mul_f32 v92, 0x3acccccd, v92')
    for k in range(10): I(f'v_sub_f32 v{96+k}, v{96+k}, v92')
    I('v_mul_f32 v94, v96, v96')
    for k in range(1, 10): I(f'v_fmac_f32 v94, v{96+k}, v{96+k}')
    allreduce('v_add_f32', 94, 93)
    I('v_mul_f32 v94, 0x3acccccd, v94')
    bfround(92); bfround(94)
    I('v_add_f32 v94, 0x3727c5ac, v94')
    bfround(94)
    I('v_sqrt_f32 v94, v94')
    nop(1)
    bfround(94)
    I('v_rcp_f32 v94, v94')
    for k in range(4):
        I(f'v_lshlrev_b32 v{72+2*k}, 16, v{88+k}')
        I(f'v_and_b32 v{73+2*k}, 0xffff0000, v{88+k}')
    for r in range(8):
        I(f'v_sub_f32 v{72+r}, v{72+r}, v92')
        bfround(72 + r)
        I(f'v_mul_f32 v{72+r}, v{72+r}, v94')
        bfround(72 + r)
    L('L_a_h1b')
    flags_wait(0, 128, 128)
    stamp(1, 5)
    I('s_mul_i32 s4, s46, 15360')
    I('s_lshl_b32 s5, s45, 2')
    I('s_add_u32 s4, s4, s5')
    I(f's_add_u32 s48, s4, {MOD}')
    for kq in range(1, 4): I(f's_add_u32 s{48+kq}, s48, {kq*30720}')
    I('v_lshlrev_b32 v2, 5, v1')
    I('s_mul_i32 s4, s46, 640')
    I(f's_add_u32 s4, s4, {L_HD}')
    I('v_add_u32 v3, s4, v13')
    setexec(0xffffffff, 0xff)
    lab = spin_begin()
    for kq in range(4):
        I(f'buffer_load_dwordx4 {vr(96+16*kq)}, v2, {S(WS)}, s{48+kq} offen sc1')
        I(f'buffer_load_dwordx4 {vr(100+16*kq)}, v2, {S(WS)}, s{48+kq} offen offset:16 sc1')
        I(f'buffer_load_dwordx4 {vr(104+16*kq)}, v2, {S(WS)}, s{48+kq} offen offset:2560 sc1')
        I(f'buffer_load_dwordx4 {vr(108+16*kq)}, v2, {S(WS)}, s{48+kq} offen offset:2576 sc1')
    I('s_waitcnt vmcnt(0)')
    anysent(range(96, 160), 12)
    spin_end(lab)
    for r in range(16):
        I(f'v_add_f32 v{96+r}, v{96+r}, v{112+r}')
        I(f'v_add_f32 v{128+r}, v{128+r}, v{144+r}')
        I(f'v_add_f32 v{96+r}, v{96+r}, v{128+r}')
        bfround(96 + r)
    for r in range(8):
        I(f'v_add_f32 v{104+r}, 1.0, v{104+r}')
        bfround(104 + r)
        I(f'v_mul_f32 v{104+r}, v{72+r}, v{104+r}')
        bfround(104 + r)
        I(f'v_add_f32 v{104+r}, v{104+r}, v{96+r}')
    for q in range(4):
        I(f'v_cvt_pk_bf16_f32 v{96+q}, v{104+2*q}, v{105+2*q}')
    I('ds_write_b128 v3, v[96:99]')
    fullexec()
    I('s_waitcnt lgkmcnt(0)')
    L('L_a_main')
    barrier()
    stamp(2)
    tick(0)
    if not LATEC:
        sk = uid('nofc')
        I('s_cmp_lg_u32 s3, 6')
        skip_if(sk)
        flag_store(2, 8)
        L(sk)
    sk = uid('nop1')
    sk57 = uid('w57')
    I('s_cmp_lt_u32 s3, 5')
    I(f's_cbranch_scc1 {sk57}')
    REM = 64 - 4 * WU0
    if REM: wuk_dma(4 * WU0, ((REM + 2) // 3 + 3) // 4 * 4, 5, 3)
    I(f's_branch {sk}')
    L(sk57)
    I('v_bfe_u32 v2, v1, 2, 1')
    I('v_mul_u32_u24 v2, 640, v2')
    I('v_lshl_add_u32 v2, v14, 5, v2')
    I('s_lshl_b32 s4, s3, 7')
    I(f's_add_u32 s4, s4, {L_HD}')
    I('v_add_u32 v2, s4, v2')
    for q in range(2):
        I(f'ds_read_b128 {vr(84+4*q)}, v2 offset:{q*16}')
    I('v_lshlrev_b32 v2, 9, v14')
    I('v_lshl_add_u32 v2, v15, 4, v2')
    I('s_lshl_b32 s4, s3, 10')
    I(f's_add_u32 s4, s4, {L_RED}')
    I('v_add_u32 v2, s4, v2')
    I('s_waitcnt lgkmcnt(0)')
    tick(1)
    gemv_pair(8, lambda p: 84 + p, 16, [100, 104], lambda blk, t: 20 + 4 * t, [108], [112])
    setexec(0xffffffff)
    I('ds_write_b128 v2, v[108:111]')
    I('ds_write_b128 v2, v[112:115] offset:256')
    fullexec()
    I('s_waitcnt lgkmcnt(0)')
    L(sk)
    tick(2)
    barrier()
    tick(3)
    sk = uid('nop1r')
    skw = uid('w0p')
    I('s_cmp_eq_u32 s3, 0')
    I(f's_cbranch_scc1 {skw}')
    cnt_add()
    lab = spin_begin()
    I('ds_read_b32 v5, v4')
    I('s_waitcnt lgkmcnt(0)')
    I('v_cmp_ne_u32 vcc, 7, v5')
    spin_end(lab, 1)
    wuk_reads()
    I(f's_branch {sk}')
    L(skw)
    I(f'v_add_u32 v2, {L_RED}, v13')
    for w in range(5):
        I(f'ds_read_b128 {vr(164+4*w)}, v2 offset:{w*1024}')
    I('s_lshl_b32 s4, s2, 10')
    I(f's_add_u32 s4, s4, {QP}')
    I('s_waitcnt lgkmcnt(0)')
    for r in range(4):
        I(f'v_add_f32 v{164+r}, v{164+r}, v{168+r}')
        I(f'v_add_f32 v{172+r}, v{172+r}, v{176+r}')
        I(f'v_add_f32 v{164+r}, v{164+r}, v{180+r}')
        I(f'v_add_f32 v{164+r}, v{164+r}, v{172+r}')
        I(f'v_min_u32 v{164+r}, 0xfffffffe, v{164+r}')
    I(f'buffer_store_dwordx4 v[164:167], v13, {S(WS)}, s4 offen sc1')
    stamp(3)
    tick(4)
    tick(5)
    I('s_xor_b32 s4, s2, 1')
    I('s_lshl_b32 s4, s4, 10')
    I(f's_add_u32 s4, s4, {QP}')
    lab = spin_begin()
    I(f'buffer_load_dwordx4 v[168:171], v13, {S(WS)}, s4 offen sc1')
    I('s_waitcnt vmcnt(0)')
    anysent(range(168, 172), 2)
    spin_end(lab)
    tick(6)
    for r in range(4):
        I(f'v_add_f32 v{168+r}, v{168+r}, v{164+r}')
    I('v_lshrrev_b32 v2, 1, v14')
    I('v_lshlrev_b32 v2, 8, v2')
    I('v_lshl_add_u32 v2, v15, 4, v2')
    I('v_and_b32 v3, 1, v14')
    I('v_lshl_add_u32 v2, v3, 1, v2')
    I(f'v_add_u32 v2, {L_QT2}, v2')
    for r in range(4):
        I(f'v_cvt_pk_bf16_f32 v{168+r}, v{168+r}, v{168+r}')
        I(f'ds_write_b16 v2, v{168+r} offset:{4*r}')
    L(sk)

    I('s_waitcnt lgkmcnt(0)')
    tick(7)
    barrier()
    tick(8)
    delay(1)
    stamp(4)
    I('v_and_b32 v2, 1, v15')
    I('v_lshlrev_b32 v2, 8, v2')
    I('v_lshl_add_u32 v2, v14, 4, v2')
    I(f'v_add_u32 v2, {L_QT2}, v2')
    for t in range(4):
        I(f'ds_read_b128 {vr(164+4*t)}, v2 offset:{t*64}')
    sk = uid('w0r')
    I('s_cmp_lg_u32 s3, 0')
    I(f's_cbranch_scc1 {sk}')
    wuk_reads()
    L(sk)
    I('v_lshlrev_b32 v2, 15, v15')
    I('v_lshl_add_u32 v2, v14, 3, v2')
    I('s_lshl_b32 s4, s2, 9')
    I('s_lshl_b32 s5, s3, 6')
    I('s_add_u32 s4, s4, s5')
    I(f's_add_u32 s4, s4, {QA}')
    tick(9)
    I('s_mov_b32 s5, 0x3e0293ee')
    for t in range(4):
        if t == 0: I('s_waitcnt lgkmcnt(0)')
        for n in range(2):
            c = '0' if t == 0 else vr(180 + 4 * n)
            I(f'v_mfma_f32_16x16x32_bf16 {vr(180+4*n)}, {vr(20+16*n+4*t)}, {vr(164+4*t)}, {c}')
    nop(9)
    tick(10)
    for r in range(8): I(f'v_mul_f32 v{180+r}, s5, v{180+r}')
    for q in range(4):
        I(f'v_cvt_pk_bf16_f32 v{188+q}, v{180+2*q}, v{181+2*q}')
        I(f'v_min_u32 v{188+q}, 0xfffffffe, v{188+q}')
    setexec(0x00030003, 0x00030003)
    I(f'buffer_store_dwordx2 v[188:189], v2, {S(WS)}, s4 offen sc1')
    I(f'buffer_store_dwordx2 v[190:191], v2, {S(WS)}, s4 offen offset:32 sc1')
    fullexec()
    tick(11)
    tick_dump(12)
    stamp(5)
    if LATEC == 1:
        sk = uid('nofc')
        I('s_cmp_lg_u32 s3, 6')
        skip_if(sk)
        flag_store(2, 8)
        L(sk)
    I('s_cmp_lg_u32 s2, 0')
    I('s_cbranch_scc1 L_end')
    I('s_cmp_lg_u32 s3, 0')
    I('s_cbranch_scc1 L_end')
    flags_wait(0, 0, 256)
    I('v_mov_b32 v10, s96')
    I('v_mov_b32 v11, s97')
    I('v_mov_b32 v12, 0')
    setexec(1)
    I(f'buffer_store_dwordx2 v[10:11], v12, {S(WS)}, 0 offen sc1')
    fullexec()
    I('s_branch L_end')

def role_P3():
    L('L_p3')
    CKV = 12
    srd(CKV, 'ckv')
    I('s_sub_u32 s40, s2, 64')
    I('s_lshr_b32 s42, s40, 5')
    I('s_and_b32 s43, s40, 31')
    sk = uid('nofa')
    I('s_cmp_lg_u32 s3, 7')
    I(f's_cbranch_scc1 {sk}')
    flag_store(0, 8)
    L(sk)
    tag_compute()
    if P3GATE:
        flags_wait(2, 0, 64, 4)
    if AGATE & 2:
        flags_wait(0, 128, 128, 2)
    I('s_lshl_b32 s4, s40, 17')
    I('s_lshl_b32 s5, s3, 14')
    I('s_add_u32 s4, s4, s5')
    I(f's_mul_i32 s5, s3, {16*CKS}')
    for r in range(16):
        I('s_mov_b32 m0, s5')
        nop(1)
        I(f'buffer_load_dwordx4 v13, {S(CKV)}, s4 offen nt lds')
        if r < 15:
            I('s_add_u32 s4, s4, 1024')
            I(f's_add_u32 s5, s5, {CKS}')
    if DRY:
        I('s_cmp_lg_u32 s3, 7')
        I('s_cbranch_scc1 L_p3_real')
        enter_dry('L_p3_main')
    L('L_p3_real')
    I('s_waitcnt vmcnt(0)')
    barrier()
    L('L_p3_main')
    stamp(1)
    I(f'v_mul_u32_u24 v2, {CKS}, v15')
    I('v_lshl_add_u32 v2, v14, 4, v2')
    I(f's_mul_i32 s4, s3, {16*CKS}')
    I('v_add_u32 v2, s4, v2')
    for t in range(16):
        I(f'ds_read_b128 {vr(20+4*t)}, v2 offset:{t*64}')
    I('v_lshrrev_b32 v2, 2, v15')
    I('v_lshl_add_u32 v2, v14, 3, v2')
    I(f'v_mul_u32_u24 v2, {CKS}, v2')
    I('v_and_b32 v3, 3, v15')
    I('v_lshl_add_u32 v2, v3, 4, v2')
    I('s_lshl_b32 s4, s3, 7')
    I('v_add_u32 v2, s4, v2')
    I(f'v_add_u32 v3, {64*CKS}, v2')
    for n in range(4):
        for t in range(4):
            base = 84 + 16 * n + 4 * t
            ad = 'v2' if t < 2 else 'v3'
            off = (t % 2) * 32 * CKS + (n >> 1) * 64 + (n & 1) * 8
            I(f'ds_read_b64_tr_b16 {vr(base,2)}, {ad} offset:{off}')
            I(f'ds_read_b64_tr_b16 {vr(base+2,2)}, {ad} offset:{off + 4*CKS}')
    for r in range(4): I(f'v_mov_b32 v{16+r}, 0x3f803f80')
    I('s_waitcnt lgkmcnt(0)')
    sk = uid('noh2l')
    I('s_cmp_lg_u32 s3, 0')
    skip_if(sk)
    flags_wait(0, 0, 64)
    flags_wait(1, 192, 64)
    I('v_lshlrev_b32 v2, 9, v1')
    I('s_lshl_b32 s4, s42, 15')
    I(f's_add_u32 s4, s4, {QA + 508}')
    light_poll(lambda r: I(f'buffer_load_dword v{r}, v2, {S(WS)}, s4 offen sc1'), 1, 4, 24 * THR)
    L(sk)
    barrier()
    stamp(6)
    tick(0)
    I('s_lshl_b32 s4, s42, 15')
    I('s_lshl_b32 s5, s3, 12')
    I('s_add_u32 s4, s4, s5')
    I(f's_add_u32 s4, s4, {QA}')
    lab = spin_begin()
    for k in range(4):
        I(f'buffer_load_dwordx4 {vr(148+4*k)}, v13, {S(WS)}, s4 offen offset:{k*1024} sc1')
    I('s_waitcnt vmcnt(0)')
    anysent(range(148, 164), 2)
    spin_end(lab)
    tick(1)
    I('s_lshl_b32 s4, s3, 12')
    I('s_and_b32 s5, s3, 3')
    I('s_lshl_b32 s5, s5, 2')
    for k in range(4):
        I(f's_add_u32 s6, s5, {k}')
        I('v_xor_b32 v2, s6, v1')
        I('v_lshlrev_b32 v2, 4, v2')
        I('v_add_u32 v2, s4, v2')
        I(f'ds_write_b128 v2, {vr(148+4*k)} offset:{L_QT + k*1024}')
    I('v_and_b32 v2, 3, v15')
    I('v_xor_b32 v2, v2, v14')
    I('v_and_b32 v3, 12, v15')
    I('v_or_b32 v2, v2, v3')
    for q in range(4):
        I(f'v_xor_b32 v3, {4*q}, v2')
        I('v_lshlrev_b32 v3, 4, v3')
        I(f'v_lshl_add_u32 v{8+q}, v15, 10, v3')
    I('v_lshlrev_b32 v4, 5, v15')
    I(f'v_add_u32 v4, {L_MX}, v4')
    I('s_lshl_b32 s4, s3, 2')
    I('v_add_u32 v3, s4, v4')
    I('s_waitcnt lgkmcnt(0)')
    tick(2)
    barrier()
    tick(3)
    stamp(7)
    for t in range(16):
        I(f'ds_read_b128 {vr(148+4*t)}, v{8+t%4} offset:{L_QT + (t//4)*256}')
    for t in range(16):
        I(f's_waitcnt lgkmcnt({15 if t else 15})') if False else I('s_waitcnt lgkmcnt(15)')
        c = '0' if t == 0 else 'v[212:215]'
        I(f'v_mfma_f32_16x16x32_bf16 v[212:215], {vr(20+4*t)}, {vr(148+4*t)}, {c}')
        I(f'ds_read_b128 {vr(148+4*t)}, v{8+t%4} offset:{L_QT + 16384 + (t//4)*256}')
    for t in range(16):
        I(f's_waitcnt lgkmcnt({15-t})')
        c = '0' if t == 0 else 'v[216:219]'
        I(f'v_mfma_f32_16x16x32_bf16 v[216:219], {vr(20+4*t)}, {vr(148+4*t)}, {c}')
    tick(4)
    I('v_max_f32 v220, v212, v213')
    I('v_max3_f32 v220, v220, v214, v215')
    allreduce('v_max_f32', 220, 222, skip_row=True)
    I('v_max_f32 v221, v216, v217')
    I('v_max3_f32 v221, v221, v218, v219')
    allreduce('v_max_f32', 221, 222, skip_row=True)
    I('ds_write_b32 v3, v220')
    I('ds_write_b32 v3, v221 offset:512')
    I(f'v_mul_u32_u24 v5, {PTS}, v15')
    I(f'v_add_u32 v5, {L_PT}, v5')
    I('v_lshl_add_u32 v3, v14, 3, v5')
    I('s_lshl_b32 s4, s3, 5')
    I('v_add_u32 v3, s4, v3')
    I('v_lshl_add_u32 v5, v14, 4, v5')
    I('s_waitcnt lgkmcnt(0)')
    tick(5)
    barrier()
    tick(6)
    for ht in range(2):
        I(f'ds_read_b128 {vr(148+8*ht)}, v4 offset:{ht*512}')
        I(f'ds_read_b128 {vr(152+8*ht)}, v4 offset:{ht*512+16}')
    I('s_waitcnt lgkmcnt(0)')
    for ht in range(2):
        q = 148 + 8 * ht
        I(f'v_max3_f32 v{220+ht}, v{q}, v{q+1}, v{q+2}')
        I(f'v_max3_f32 v{220+ht}, v{220+ht}, v{q+3}, v{q+4}')
        I(f'v_max3_f32 v{220+ht}, v{220+ht}, v{q+5}, v{q+6}')
        I(f'v_max_f32 v{220+ht}, v{220+ht}, v{q+7}')
    for ht in range(2):
        for r in range(4):
            I(f'v_sub_f32 v{212+4*ht+r}, v{212+4*ht+r}, v{220+ht}')
    for r in range(8):
        I(f'v_exp_f32 v{212+r}, v{212+r}')
    nop(1)
    for q in range(4):
        I(f'v_cvt_pk_bf16_f32 v{224+q}, v{212+2*q}, v{213+2*q}')
    I('ds_write_b64 v3, v[224:225]')
    I(f'ds_write_b64 v3, v[226:227] offset:{16*PTS}')
    I('v_lshlrev_b32 v2, 15, v15')
    I('v_lshl_add_u32 v2, v14, 4, v2')
    I('s_lshl_b32 s4, s42, 20')
    I('s_lshl_b32 s5, s43, 10')
    I('s_add_u32 s4, s4, s5')
    I('s_lshl_b32 s5, s3, 7')
    I('s_add_u32 s4, s4, s5')
    I(f's_add_u32 s4, s4, {OP}')
    I('s_add_u32 s5, s4, 0x80000')
    I('s_waitcnt lgkmcnt(0)')
    tick(7)
    barrier()
    tick(8)
    for ht in range(2):
        for t in range(4):
            I(f'ds_read_b128 {vr(148+16*ht+4*t)}, v5 offset:{ht*16*PTS + t*64}')
    for ht in range(2):
        for t in range(4):
            I(f's_waitcnt lgkmcnt({7-4*ht-t})')
            for n in range(4):
                acc = 180 + 16 * ht + 4 * n
                c = '0' if t == 0 else vr(acc)
                I(f'v_mfma_f32_16x16x32_bf16 {vr(acc)}, {vr(84+16*n+4*t)}, {vr(148+16*ht+4*t)}, {c}')
    tick(9)
    nop(1)
    for ht in range(2):
        for n in range(4):
            I(f'v_cvt_pk_bf16_f32 v{20+8*ht+2*n}, v{180+16*ht+4*n}, v{181+16*ht+4*n}')
            I(f'v_cvt_pk_bf16_f32 v{21+8*ht+2*n}, v{182+16*ht+4*n}, v{183+16*ht+4*n}')
        for r in range(8): I(f'v_min_u32 v{20+8*ht+r}, 0xfffffffe, v{20+8*ht+r}')
        so = 's4' if ht == 0 else 's5'
        I(f'buffer_store_dwordx4 {vr(20+8*ht)}, v2, {S(WS)}, {so} offen sc1')
        I(f'buffer_store_dwordx4 {vr(24+8*ht)}, v2, {S(WS)}, {so} offen offset:64 sc1')
    tick(10)
    I('s_cmp_gt_u32 s3, 1')
    skip_if('L_p3_done')
    for ht in range(2):
        for t in range(4):
            acc = 36 + 4 * ht
            c = '0' if t == 0 else vr(acc)
            I(f'v_mfma_f32_16x16x32_bf16 {vr(acc)}, v[16:19], {vr(148+16*ht+4*t)}, {c}')
    I('v_lshlrev_b32 v3, 8, v1')
    I('s_lshl_b32 s4, s42, 13')
    I('s_lshl_b32 s5, s3, 12')
    I('s_add_u32 s4, s4, s5')
    I('s_lshl_b32 s5, s43, 3')
    I('s_add_u32 s4, s4, s5')
    I(f's_add_u32 s4, s4, {ML}')
    I('s_cmp_eq_u32 s3, 0')
    I('s_cselect_b64 vcc, -1, 0')
    nop(2)
    I('v_cndmask_b32 v44, v221, v220, vcc')
    I('v_cndmask_b32 v45, v40, v36, vcc')
    I('v_min_u32 v44, 0xfffffffe, v44')
    I('v_min_u32 v45, 0xfffffffe, v45')
    setexec(0xffff)
    I(f'buffer_store_dwordx2 v[44:45], v3, {S(WS)}, s4 offen sc1')
    fullexec()
    L('L_p3_done')
    tick(11)
    tick_dump(12)
    stamp(8)
    role_end('L_p3_real')

def role_DE_common():
    L('L_de')
    C_, WM = 12, 16
    srd(C_, 'c'); srd(WM, 'wmod')
    I('s_sub_u32 s40, s2, 128')
    I('v_lshrrev_b32 v14, 4, v1')
    I('v_and_b32 v15, 15, v1')
    I('v_lshlrev_b32 v13, 4, v1')
    if XSPLIT:
        I('s_and_b32 s4, s40, 63')
        I('s_and_b32 s5, s4, 3')
        I('s_lshr_b32 s6, s4, 3')
        I('s_lshl_b32 s6, s6, 2')
        I('s_add_u32 s42, s6, s5')
        I('s_bfe_u32 s43, s4, 0x10002')
        I('s_mov_b32 s47, 0')
        I('s_cmp_lt_u32 s40, 64')
        I('s_cbranch_scc1 L_dec_done')
        I('s_cmp_ge_u32 s42, 27')
        I('s_cselect_b32 s47, 1, 0')
    else:
        I('s_cmp_ge_u32 s40, 118')
        I('s_cselect_b32 s47, 1, 0')
        I('s_cmp_ge_u32 s40, 64')
        I('s_cbranch_scc1 L_dec_e')
        I('s_lshr_b32 s4, s40, 4')
        I('s_lshl_b32 s4, s4, 3')
        I('s_and_b32 s5, s40, 7')
        I('s_add_u32 s42, s4, s5')
        I('s_bfe_u32 s43, s40, 0x10003')
        I('s_branch L_dec_done')
        L('L_dec_e')
        I('s_sub_u32 s6, s40, 64')
        I('s_lshr_b32 s4, s6, 4')
        I('s_lshl_b32 s4, s4, 3')
        I('s_and_b32 s5, s6, 7')
        I('s_add_u32 s42, s4, s5')
        I('s_bfe_u32 s43, s6, 0x10003')
        I('s_cmp_lt_u32 s6, 48')
        I('s_cbranch_scc1 L_dec_done')
        I('s_sub_u32 s6, s6, 48')
        I('s_cmp_ge_u32 s6, 3')
        I('s_cselect_b32 s43, 1, 0')
        I('s_mul_i32 s4, s43, 3')
        I('s_sub_u32 s6, s6, s4')
        I('s_add_u32 s42, s6, 24')
    L('L_dec_done')
    sk = uid('noclr')
    I('s_cmp_lg_u32 s3, 7')
    I(f's_cbranch_scc1 {sk}')
    for r in range(4, 8): I(f'v_mov_b32 v{r}, -1')
    I('v_lshrrev_b32 v2, 5, v1')
    I('v_lshlrev_b32 v2, 13, v2')
    I('v_bfe_u32 v3, v1, 4, 1')
    I('v_mul_u32_u24 v3, 15360, v3')
    I('v_add_u32 v2, v2, v3')
    I('v_lshl_add_u32 v2, v15, 4, v2')
    I('s_and_b32 s4, s40, 3')
    I('s_mul_i32 s4, s4, 30720')
    I('s_lshr_b32 s5, s40, 2')
    I('s_lshl_b32 s5, s5, 8')
    I('s_add_u32 s4, s4, s5')
    I(f's_add_u32 s4, s4, {MOD}')
    I('s_cmp_lt_u32 s40, 112')
    I('s_cselect_b32 exec_hi, -1, 0')
    I(f'buffer_store_dwordx4 v[4:7], v2, {S(WS)}, s4 offen sc1')
    fullexec()
    I('s_cmp_ge_u32 s40, 64')
    I('s_cbranch_scc1 L_clr_e')
    I('s_lshl_b32 s4, s43, 5')
    I('s_add_u32 s4, s4, s42')
    I('s_mul_i32 s4, s4, 1280')
    I(f's_add_u32 s4, s4, {AP}')
    I(f'buffer_store_dwordx4 v[4:7], v13, {S(WS)}, s4 offen sc1')
    setexec(0xffff)
    I(f'buffer_store_dwordx4 v[4:7], v13, {S(WS)}, s4 offen offset:1024 sc1')
    fullexec()
    I('s_branch L_clr_done')
    L('L_clr_e')
    I('s_cmp_lg_u32 s47, 0')
    I('s_cbranch_scc1 L_clr_done')
    I('s_mul_i32 s4, s43, 27')
    I('s_add_u32 s4, s4, s42')
    I('s_mul_i32 s4, s4, 2560')
    I(f's_add_u32 s4, s4, {FP}')
    I(f'buffer_store_dwordx4 v[4:7], v13, {S(WS)}, s4 offen sc1')
    I(f'buffer_store_dwordx4 v[4:7], v13, {S(WS)}, s4 offen offset:1024 sc1')
    setexec(0xffffffff)
    I(f'buffer_store_dwordx4 v[4:7], v13, {S(WS)}, s4 offen offset:2048 sc1')
    fullexec()
    L('L_clr_done')
    flag_store(0, 8)
    stamp(9, 7)
    L(sk)
    I('s_and_b32 s45, s40, 3')
    I('s_lshr_b32 s46, s40, 2')
    def dma_addr():
        I('v_lshrrev_b32 v2, 3, v1')
        I('v_and_b32 v3, 7, v1')
        I('v_xor_b32 v3, v3, v2')
        I('v_mul_u32_u24 v2, 7680, v2')
        I('v_lshl_add_u32 v2, v3, 4, v2')
        I('s_mul_i32 s4, s45, 1228800')
        I('s_lshl_b32 s5, s46, 7')
        I('s_add_u32 s4, s4, s5')
    def dma_n(n):
        for q in range(n):
            I('s_mov_b32 m0, s5')
            nop(1)
            I(f'buffer_load_dwordx4 v2, {S(WM)}, s4 offen nt lds')
            if q < n - 1:
                I('s_add_u32 s4, s4, 61440')
                I('s_add_u32 s5, s5, 1024')
    def tr_base(wt):
        I('v_lshrrev_b32 v2, 2, v15')
        I('v_lshl_add_u32 v2, v14, 2, v2')
        I('v_and_b32 v3, 7, v2')
        I('v_bfe_u32 v4, v15, 1, 1')
        I('v_xor_b32 v3, v3, v4')
        I('v_lshlrev_b32 v2, 7, v2')
        I('v_and_b32 v4, 1, v15')
        I('v_lshl_add_u32 v2, v4, 3, v2')
        if wt: I(f'v_add_u32 v2, {wt}, v2')
    def st_reads():
        I('v_and_b32 v5, 1, v15')
        I('v_mul_u32_u24 v5, 320, v5')
        I('v_lshl_add_u32 v5, v14, 4, v5')
        for t in range(5):
            I(f'ds_read_b128 {vr(20+4*t)}, v5 offset:{L_ST + t*64}')
    I('s_cmp_gt_u32 s3, 3')
    I('s_cbranch_scc1 L_c_hi')
    dma_addr()
    I('s_mul_i32 s6, s3, 307200')
    I('s_add_u32 s4, s4, s6')
    I('s_mul_i32 s5, s3, 5120')
    dma_n(5)
    tr_base(0)
    I('s_lshl_b32 s6, s3, 1')
    I('v_xor_b32 v4, s6, v3')
    I('v_lshl_add_u32 v8, v4, 4, v2')
    I('v_mul_u32_u24 v9, 15360, v15')
    I('v_lshl_add_u32 v9, v14, 4, v9')
    I('s_mul_i32 s4, s45, 30720')
    I('s_lshl_b32 s5, s46, 8')
    I('s_add_u32 s4, s4, s5')
    I('s_lshl_b32 s5, s3, 6')
    I('s_add_u32 s4, s4, s5')
    I(f's_add_u32 s44, s4, {MOD}')
    I('s_waitcnt vmcnt(0)')
    I('s_branch L_c_bar')
    L('L_c_hi')
    I('s_cmp_gt_u32 s3, 5')
    I('s_cbranch_scc1 L_c_bar')
    I('s_sub_u32 s6, s3, 4')
    I('s_mul_i32 s4, s6, 1280')
    I('s_mul_i32 s5, s45, 320')
    I('s_add_u32 s4, s4, s5')
    I('v_lshlrev_b32 v2, 3, v1')
    I(f'buffer_load_dwordx2 v[4:5], v2, {S(C_)}, s4 offen')
    I('v_lshrrev_b32 v8, 3, v1')
    I('v_and_b32 v9, 3, v1')
    I('v_bfe_u32 v10, v1, 2, 1')
    I('v_lshlrev_b32 v6, 6, v8')
    I('v_lshl_add_u32 v6, v9, 4, v6')
    I('v_lshl_add_u32 v6, v10, 3, v6')
    I('s_mul_i32 s4, s6, 320')
    I(f's_add_u32 s4, s4, {L_ST}')
    I('v_add_u32 v6, s4, v6')
    I(f'v_mov_b32 v12, {L_FC}')
    I('v_mov_b32 v7, 0')
    I('ds_write_b32 v12, v7')
    I('s_waitcnt vmcnt(0)')
    I('v_lshlrev_b32 v8, 16, v4')
    I('v_and_b32 v9, 0xffff0000, v4')
    I('v_lshlrev_b32 v10, 16, v5')
    I('v_and_b32 v11, 0xffff0000, v5')
    for r in range(4): I(f'v_mul_f32 v{16+r}, 0xbfb8aa3b, v{8+r}')
    for r in range(4): I(f'v_exp_f32 v{16+r}, v{16+r}')
    for r in range(4): I(f'v_add_f32 v{16+r}, 1.0, v{16+r}')
    for r in range(4): I(f'v_rcp_f32 v{16+r}, v{16+r}')
    for r in range(4): I(f'v_mul_f32 v{16+r}, v{8+r}, v{16+r}')
    I('v_cvt_pk_bf16_f32 v4, v16, v17')
    I('v_cvt_pk_bf16_f32 v5, v18, v19')
    setexec(0xffffffff, 0xff)
    I('ds_write_b64 v6, v[4:5]')
    fullexec()
    I('s_waitcnt lgkmcnt(0)')
    L('L_c_bar')
    barrier()
    I('s_cmp_gt_u32 s3, 3')
    I('s_cbranch_scc1 L_c_hi2')
    delay(4)
    st_reads()
    for t in range(5):
        I(f'ds_read_b64_tr_b16 {vr(40+4*t,2)}, v8 offset:{t*4096}')
        I(f'ds_read_b64_tr_b16 {vr(42+4*t,2)}, v8 offset:{t*4096+2048}')
    for t in range(5):
        I(f's_waitcnt lgkmcnt({8-2*t})')
        c = '0' if t == 0 else 'v[60:63]'
        I(f'v_mfma_f32_16x16x32_bf16 v[60:63], {vr(40+4*t)}, {vr(20+4*t)}, {c}')
    nop(9)
    for r in range(4): I(f'v_min_u32 v{60+r}, 0xfffffffe, v{60+r}')
    setexec(0x00030003, 0x00030003)
    I(f'buffer_store_dwordx4 v[60:63], v9, {S(WS)}, s44 offen sc1')
    fullexec()
    tag_compute()
    I('s_branch L_c_done')
    L('L_c_hi2')
    tag_compute()
    I('s_cmp_lg_u32 s3, 6')
    I('s_cbranch_scc1 L_c_n6')
    I('s_cmp_lt_u32 s40, 64')
    I('s_cbranch_scc1 L_c_done')
    for r in range(4, 8): I(f'v_mov_b32 v{r}, -1')
    I('s_sub_u32 s6, s40, 64')
    I('s_lshl_b32 s7, s6, 15')
    I(f's_add_u32 s7, s7, {OP}')
    for i in range(32):
        I(f'buffer_store_dwordx4 v[4:7], v13, {S(WS)}, s7 offen offset:{(i%4)*1024} sc1')
        if i % 4 == 3 and i < 31: I('s_add_u32 s7, s7, 4096')
    I('s_lshl_b32 s7, s6, 8')
    I(f's_add_u32 s7, s7, {ML}')
    setexec(0xffff)
    I(f'buffer_store_dwordx4 v[4:7], v13, {S(WS)}, s7 offen sc1')
    fullexec()
    flag_store(1, 8)
    stamp(10, 6)
    I('s_branch L_c_done')
    L('L_c_n6')
    if EGATE or W1GATE:
        I('s_cmp_lg_u32 s3, 4')
        I('s_cbranch_scc1 L_c_n4')
        flags_wait(2, 0, 64, 2)
        I(f'v_mov_b32 v4, {L_FC}')
        I('v_mov_b32 v5, 1')
        I('ds_write_b32 v4, v5')
        I('s_waitcnt lgkmcnt(0)')
        I('s_branch L_c_done')
        L('L_c_n4')
    I('s_cmp_lg_u32 s3, 5')
    I('s_cbranch_scc1 L_c_done')
    I('s_cmp_ge_u32 s40, 112')
    I('s_cbranch_scc1 L_c_done')
    if W1GATE: lds_gate()
    I('s_add_u32 s46, s46, 32')
    dma_addr()
    I(f's_mov_b32 s5, {L_WT1}')
    dma_n(20)
    st_reads()
    tr_base(L_WT1)
    for n in range(4):
        I(f'v_xor_b32 v4, {2*n}, v3')
        I(f'v_lshl_add_u32 v{8+n}, v4, 4, v2')
    I('s_waitcnt vmcnt(0)')
    for n in range(4):
        for t in range(5):
            I(f'ds_read_b64_tr_b16 {vr(40+20*n+4*t,2)}, v{8+n} offset:{t*4096}')
            I(f'ds_read_b64_tr_b16 {vr(42+20*n+4*t,2)}, v{8+n} offset:{t*4096+2048}')
    I('s_waitcnt lgkmcnt(0)')
    for t in range(5):
        for n in range(4):
            c = '0' if t == 0 else vr(120 + 4 * n)
            I(f'v_mfma_f32_16x16x32_bf16 {vr(120+4*n)}, {vr(40+20*n+4*t)}, {vr(20+4*t)}, {c}')
    nop(9)
    for r in range(16): I(f'v_min_u32 v{120+r}, 0xfffffffe, v{120+r}')
    I('v_mul_u32_u24 v2, 15360, v15')
    I('v_lshl_add_u32 v2, v14, 4, v2')
    I('s_mul_i32 s4, s45, 30720')
    I('s_lshl_b32 s5, s46, 8')
    I('s_add_u32 s4, s4, s5')
    I(f's_add_u32 s4, s4, {MOD}')
    setexec(0x00030003, 0x00030003)
    for n in range(4):
        I(f'buffer_store_dwordx4 {vr(120+4*n)}, v2, {S(WS)}, s4 offen offset:{n*64} sc1')
    fullexec()
    L('L_c_done')
    stamp(1)
    I('s_cmp_ge_u32 s40, 64')
    I('s_cbranch_scc1 L_role_e')

def role_D():
    WUV, WO = 20, 24
    srd(WUV, 'wuv'); srd(WO, 'wo')
    make_masks(16, True)
    make_masks4(244, 1)
    if SLOWN == 0: lds_gate()
    I('v_lshlrev_b32 v2, 17, v14')
    I('v_lshl_add_u32 v2, v15, 4, v2')
    I('s_lshl_b32 s4, s3, 19')
    I('s_lshl_b32 s5, s42, 8')
    I('s_add_u32 s4, s4, s5')
    for t in range(16):
        I(f'buffer_load_dwordx4 {vr(20+4*t)}, v2, {S(WUV)}, s4 offen nt')
        if t < 15: I('s_add_u32 s4, s4, 8192')
    I('s_mul_i32 s5, s42, 163840')
    I('s_cmp_gt_u32 s3, 3')
    I('s_cbranch_scc1 L_d_hi')
    I('v_mul_u32_u24 v3, 40960, v14')
    I('v_lshl_add_u32 v3, v15, 4, v3')
    I('s_lshl_b32 s6, s3, 8')
    I('s_add_u32 s5, s5, s6')
    for t in range(32):
        I(f'buffer_load_dwordx4 {vr(84+4*t)}, v3, {S(WO)}, s5 offen offset:{(t%3)*1280} nt')
        if t % 3 == 2: I('s_add_u32 s5, s5, 3840')
    I('s_waitcnt vmcnt(0)')
    pairperm([(20 + 8 * p, 24 + 8 * p) for p in range(24)], 6)
    I('s_branch L_d_main')
    L('L_d_hi')
    I('v_mul_u32_u24 v3, 10240, v14')
    I('v_lshl_add_u32 v3, v15, 4, v3')
    I('s_sub_u32 s6, s3, 4')
    I('s_mul_i32 s6, s6, 40960')
    I('s_add_u32 s5, s5, s6')
    I('s_add_u32 s5, s5, 1024')
    for t in range(8):
        I(f'buffer_load_dwordx4 {vr(84+4*t)}, v3, {S(WO)}, s5 offen offset:{(t%3)*1280} nt')
        if t % 3 == 2: I('s_add_u32 s5, s5, 3840')
    I('s_waitcnt vmcnt(0)')
    pairperm([(20 + 8 * p, 24 + 8 * p) for p in range(12)], 6)
    L('L_d_main')
    stamp(2)
    I('v_and_b32 v2, 31, v1')
    I('v_lshlrev_b32 v2, 3, v2')
    I('s_lshl_b32 s4, s43, 5')
    I('s_add_u32 s4, s4, s42')
    I('s_lshl_b32 s5, s4, 8')
    I(f's_add_u32 s5, s5, {ML}')
    sk = uid('nolp')
    I('s_cmp_lg_u32 s3, 4')
    I(f's_cbranch_scc1 {sk}')
    I('v_mov_b32 v12, v2')
    flags_wait(1, 192, 64)
    I('v_mov_b32 v2, v12')
    light_poll(lambda r: I(f'buffer_load_dwordx2 v[{r}:{r+1}], v2, {S(WS)}, s5 offen sc1'), 2, 120, 24 * THR)
    L(sk)
    barrier()
    stamp(6)
    sk = uid('noz')
    I('s_cmp_lt_u32 s3, 4')
    I(f's_cbranch_scc1 {sk}')
    I('v_lshlrev_b32 v3, 13, v14')
    I('v_lshl_add_u32 v3, v15, 4, v3')
    I('s_lshl_b32 s6, s4, 15')
    I('s_sub_u32 s46, s3, 4')
    I('s_lshl_b32 s7, s46, 8')
    I('s_add_u32 s6, s6, s7')
    I(f's_add_u32 s48, s6, {OP}')
    I('s_add_u32 s49, s48, 4096')
    lab = spin_begin()
    I(f'buffer_load_dwordx2 v[4:5], v2, {S(WS)}, s5 offen sc1')
    for t in range(8):
        I(f'buffer_load_dwordx4 {vr(164+4*t)}, v3, {S(WS)}, s{48+t//4} offen offset:{(t%4)*1024} sc1')
    I('s_waitcnt vmcnt(0)')
    anysent([4, 5] + list(range(164, 196)), 6)
    spin_end(lab)
    stamp(3, 4)
    I('v_mov_b32 v6, v4')
    allreduce('v_max_f32', 6, 7, half=True)
    I('v_sub_f32 v4, v4, v6')
    I('v_exp_f32 v4, v4')
    I('v_lshlrev_b32 v2, 2, v1')
    I(f's_add_u32 s7, s7, {L_D_WD}')
    I('v_add_u32 v2, s7, v2')
    I('v_cvt_pk_bf16_f32 v8, v4, v4')
    I('ds_write_b32 v2, v8')
    I('v_and_b32 v4, 0xffff0000, v8')
    I('v_mul_f32 v5, v4, v5')
    I('v_lshlrev_b32 v2, 5, v14')
    I('v_add_u32 v2, s7, v2')
    I('s_waitcnt lgkmcnt(0)')
    for q in range(2):
        I(f'ds_read_b128 {vr(196+4*q)}, v2 offset:{q*16}')
    allreduce('v_add_f32', 5, 7, half=True)
    I('v_rcp_f32 v5, v5')
    I('v_lshlrev_b32 v2, 4, v15')
    I('v_lshl_add_u32 v2, v14, 3, v2')
    I('s_lshl_b32 s4, s46, 8')
    I(f's_add_u32 s4, s4, {L_D_CD}')
    I('v_add_u32 v2, s4, v2')
    I('s_waitcnt lgkmcnt(0)')
    gemv_diag(8, lambda t: 196 + t, 16, [204, 208], lambda blk, t: 164 + 4 * t, [8])
    for r in range(4):
        I(f'v_mul_f32 v{8+r}, v{8+r}, v5')
    I('v_cvt_pk_bf16_f32 v8, v8, v9')
    I('v_cvt_pk_bf16_f32 v9, v10, v11')
    setexec(0xffffffff)
    I('ds_write_b64 v2, v[8:9]')
    fullexec()
    L(sk)
    I('v_lshlrev_b32 v2, 5, v14')
    I('s_lshl_b32 s4, s3, 7')
    I(f's_add_u32 s4, s4, {L_D_CD}')
    I('v_add_u32 v2, s4, v2')
    I('s_lshl_b32 s4, s3, 9')
    I(f's_add_u32 s4, s4, {L_D_RED}')
    I('v_add_u32 v3, s4, v13')
    I('s_waitcnt lgkmcnt(0)')
    barrier()
    stamp(4)
    for q in range(2):
        I(f'ds_read_b128 {vr(212+4*q)}, v2 offset:{q*16}')
    I('s_waitcnt lgkmcnt(0)')
    gemv_pair(8, lambda p: 212 + p, 244, [228, 232], lambda blk, t: 20 + 4 * t, [236], [240])
    setexec(0xffff)
    I('ds_write_b128 v3, v[236:239]')
    I('ds_write_b128 v3, v[240:243] offset:256')
    fullexec()
    I('s_waitcnt lgkmcnt(0)')
    barrier()
    sk = uid('nored')
    I('s_cmp_lg_u32 s3, 0')
    I(f's_cbranch_scc1 {sk}')
    I('v_lshlrev_b32 v3, 3, v1')
    I(f'v_add_u32 v3, {L_D_RED}, v3')
    I('v_add_u32 v2, 2048, v3')
    setexec(0xffffffff)
    for w in range(8):
        ad = 'v3' if w < 4 else 'v2'
        I(f'ds_read2_b64 {vr(20+4*w)}, {ad} offset0:{(w%4)*64} offset1:{(w%4)*64+32}')
    I('v_lshlrev_b32 v3, 3, v1')
    I(f'v_add_u32 v3, {L_D_CD}, v3')
    I('s_waitcnt lgkmcnt(0)')
    for st in (1, 2, 4):
        for w in range(0, 8, 2 * st):
            I(f'v_pk_add_f32 {vr(20+4*w,2)}, {vr(20+4*w,2)}, {vr(20+4*(w+st),2)}')
            I(f'v_pk_add_f32 {vr(22+4*w,2)}, {vr(22+4*w,2)}, {vr(22+4*(w+st),2)}')
    I('v_cvt_pk_bf16_f32 v20, v20, v22')
    I('v_cvt_pk_bf16_f32 v21, v21, v23')
    I('ds_write_b64 v3, v[20:21]')
    fullexec()
    I('s_waitcnt lgkmcnt(0)')
    L(sk)
    I('s_lshl_b32 s4, s43, 5')
    I('s_add_u32 s4, s4, s42')
    I('s_mul_i32 s4, s4, 1280')
    I(f's_add_u32 s4, s4, {AP}')
    barrier()
    delay(2)
    I('s_cmp_gt_u32 s3, 3')
    I('s_cbranch_scc1 L_d_hi2')
    I('v_lshlrev_b32 v2, 6, v14')
    I(f'v_add_u32 v2, {L_D_CD}, v2')
    for q in range(4):
        I(f'ds_read_b128 {vr(212+4*q)}, v2 offset:{q*16}')
    I('s_lshl_b32 s5, s3, 8')
    I('s_add_u32 s4, s4, s5')
    I('s_waitcnt lgkmcnt(0)')
    gemv_pair(16, lambda p: 212 + p, 244, [228, 232], lambda blk, t: 84 + 4 * t, [236], [240])
    for r in range(4):
        I(f'v_cvt_pk_bf16_f32 v{236+r}, v{236+r}, v{240+r}')
        I(f'v_min_u32 v{236+r}, 0xfffffffe, v{236+r}')
    setexec(0xffff)
    I(f'buffer_store_dwordx4 v[236:239], v13, {S(WS)}, s4 offen sc1')
    fullexec()
    stamp(5)
    barrier()
    I('s_branch L_end')
    L('L_d_hi2')
    I('v_lshlrev_b32 v2, 4, v14')
    I('s_lshl_b32 s5, s46, 6')
    I(f's_add_u32 s5, s5, {L_D_CD}')
    I('v_add_u32 v2, s5, v2')
    I('ds_read_b128 v[212:215], v2')
    I('s_lshl_b32 s5, s46, 9')
    I(f's_add_u32 s5, s5, {L_D_RED}')
    I('v_add_u32 v3, s5, v13')
    I('s_waitcnt lgkmcnt(0)')
    gemv_pair(4, lambda p: 212 + p, 244, [228, 232], lambda blk, t: 84 + 4 * t, [236], [240])
    setexec(0xffff)
    I('ds_write_b128 v3, v[236:239]')
    I('ds_write_b128 v3, v[240:243] offset:256')
    fullexec()
    I('s_waitcnt lgkmcnt(0)')
    barrier()
    I('s_cmp_lg_u32 s3, 4')
    I('s_cbranch_scc1 L_end')
    I(f'v_add_u32 v3, {L_D_RED}, v13')
    setexec(0xffff)
    for w in range(4):
        I(f'ds_read_b128 {vr(20+8*w)}, v3 offset:{w*512}')
        I(f'ds_read_b128 {vr(24+8*w)}, v3 offset:{w*512+256}')
    I('s_waitcnt lgkmcnt(0)')
    for q in range(4):
        I(f'v_pk_add_f32 {vr(20+2*q,2)}, {vr(20+2*q,2)}, {vr(28+2*q,2)}')
        I(f'v_pk_add_f32 {vr(36+2*q,2)}, {vr(36+2*q,2)}, {vr(44+2*q,2)}')
        I(f'v_pk_add_f32 {vr(20+2*q,2)}, {vr(20+2*q,2)}, {vr(36+2*q,2)}')
    for r in range(4):
        I(f'v_cvt_pk_bf16_f32 v{20+r}, v{20+r}, v{24+r}')
        I(f'v_min_u32 v{20+r}, 0xfffffffe, v{20+r}')
    I(f'buffer_store_dwordx4 v[20:23], v13, {S(WS)}, s4 offen offset:1024 sc1')
    fullexec()
    stamp(7, 4)
    I('s_branch L_end')

def role_E():
    L('L_role_e')
    WG, WU, WD, X_, OUT = 20, 24, 28, 32, 36
    srd(WG, 'wg'); srd(WU, 'wu'); srd(WD, 'wd'); srd(X_, 'x'); srd(OUT, 'out')
    make_masks(16, True)
    make_masks4(240, 1)
    L('L_e_init')
    if EGATE: lds_gate()
    I('s_cmp_lg_u32 s47, 0')
    I('s_cbranch_scc1 L_end')
    I('v_mul_u32_u24 v2, 69120, v14')
    I('v_and_b32 v3, 7, v15')
    I('v_lshl_add_u32 v2, v3, 4, v2')
    I('s_mul_i32 s4, s3, 276480')
    I('s_lshl_b32 s5, s42, 7')
    I('s_add_u32 s4, s4, s5')
    I('s_mov_b32 s6, 0x00ff00ff')
    I('s_mov_b32 s7, 0x00ff00ff')
    I('s_mov_b32 s48, 0xff00ff00')
    I('s_mov_b32 s49, 0xff00ff00')
    lds = []
    for t in range(20):
        lds.append(([] if t == 0 else ['s_add_u32 s4, s4, 3456']) + ['s_mov_b64 exec, s[6:7]',
                   f'buffer_load_dwordx4 {vr(20+4*t)}, v2, {S(WG)}, s4 offen nt'])
        lds.append(['s_mov_b64 exec, s[48:49]', f'buffer_load_dwordx4 {vr(20+4*t)}, v2, {S(WU)}, s4 offen nt'])
    paced(lds, 2 * EPACE)
    fullexec()
    I('s_mul_i32 s4, s42, 81920')
    I('s_cmp_gt_u32 s3, 3')
    I('s_cbranch_scc1 L_e_hi')
    I('v_mul_u32_u24 v2, 20480, v14')
    I('v_lshl_add_u32 v2, v15, 4, v2')
    I('s_lshl_b32 s5, s3, 8')
    I('s_add_u32 s4, s4, s5')
    for t in range(16):
        I(f'buffer_load_dwordx4 {vr(100+4*t)}, v2, {S(WD)}, s4 offen nt')
        if t < 15: I('s_add_u32 s4, s4, 1280')
    I('s_waitcnt vmcnt(0)')
    pairperm([(20 + 8 * p, 24 + 8 * p) for p in range(18)], 6)
    I('s_branch L_e_main')
    L('L_e_hi')
    I('v_mul_u32_u24 v2, 5120, v14')
    I('v_lshl_add_u32 v2, v15, 4, v2')
    I('s_sub_u32 s5, s3, 4')
    I('s_mul_i32 s5, s5, 20480')
    I('s_add_u32 s4, s4, s5')
    I('s_add_u32 s4, s4, 1024')
    for t in range(4):
        I(f'buffer_load_dwordx4 {vr(100+4*t)}, v2, {S(WD)}, s4 offen nt')
        if t < 3: I('s_add_u32 s4, s4, 1280')
    I('s_waitcnt vmcnt(0)')
    pairperm([(20 + 8 * p, 24 + 8 * p) for p in range(12)], 6)
    if DRY:
        I('s_cmp_lg_u32 s3, 7')
        I('s_cbranch_scc1 L_e_main')
        enter_dry('L_e_main')
    L('L_e_main')
    sk = uid('nofw')
    I('s_cmp_lg_u32 s3, 0')
    skip_if(sk)
    flags_wait(0)
    L(sk)
    barrier()
    stamp(2)
    I('v_and_b32 v2, 1, v14')
    I('v_lshlrev_b32 v2, 2, v2')
    I('v_lshl_add_u32 v2, v15, 3, v2')
    I('s_lshl_b32 s4, s3, 7')
    I('v_add_u32 v12, s4, v2')
    sk5 = uid('w5')
    I('s_cmp_gt_u32 s3, 4')
    skip_if(sk5)
    I('v_lshlrev_b32 v2, 1, v12')
    I('s_mul_i32 s4, s43, 1280')
    I(f'buffer_load_dwordx2 v[4:5], v2, {S(X_)}, s4 offen')
    I('v_lshlrev_b32 v2, 2, v12')
    I('s_mul_i32 s4, s43, 15360')
    I(f's_add_u32 s48, s4, {MOD + 2*2560}')
    for i in range(1, 12):
        p, kq = i % 3, i // 3
        I(f's_add_u32 s{48+i}, s48, {p*2560 + kq*30720}')
    lab = spin_begin()
    for i in range(12):
        I(f'buffer_load_dwordx4 {vr(164+4*i)}, v2, {S(WS)}, s{48+i} offen sc1')
    I('s_waitcnt vmcnt(0)')
    anysent(range(164, 212), 6)
    spin_end(lab)
    for p in range(3):
        for r in range(4):
            a = 164 + 4 * p + r
            I(f'v_add_f32 v{a}, v{a}, v{a+12}')
            I(f'v_add_f32 v{a+24}, v{a+24}, v{a+36}')
            I(f'v_add_f32 v{a}, v{a}, v{a+24}')
            bfround(a)
    I('v_lshlrev_b32 v176, 16, v4')
    I('v_and_b32 v177, 0xffff0000, v4')
    I('v_lshlrev_b32 v178, 16, v5')
    I('v_and_b32 v179, 0xffff0000, v5')
    for r in range(4):
        I(f'v_add_f32 v{172+r}, 1.0, v{172+r}')
        bfround(172 + r)
    for d in range(4): I(f'v_and_b32 v{204+d}, 0x3f803f80, v{16+d}')
    I('v_mul_u32_u24 v3, 10240, v14')
    I('v_lshl_add_u32 v3, v15, 4, v3')
    I('s_mul_i32 s4, s43, 40960')
    I('s_lshl_b32 s5, s3, 8')
    I('s_add_u32 s4, s4, s5')
    I(f's_add_u32 s4, s4, {AP}')
    I('s_add_u32 s5, s4, 3840')
    I('s_add_u32 s6, s4, 7680')
    L(sk5)
    sk = uid('nolp')
    I('s_cmp_lg_u32 s3, 5')
    skip_if(sk)
    I('v_and_b32 v2, 31, v1')
    I('v_mul_u32_u24 v2, 1280, v2')
    I('s_mul_i32 s4, s43, 40960')
    I(f's_add_u32 s4, s4, {AP + 1276}')
    light_poll(lambda r: I(f'buffer_load_dword v{r}, v2, {S(WS)}, s4 offen sc1'), 1, 4, 24 * THR)
    L(sk)
    barrier()
    stamp(6)
    tick(0)
    sk5 = uid('w5a')
    I('s_cmp_gt_u32 s3, 4')
    skip_if(sk5)
    lab = spin_begin()
    for t in range(8):
        so = ['s4', 's5', 's6'][t // 3]
        I(f'buffer_load_dwordx4 {vr(208+4*t)}, v3, {S(WS)}, {so} offen offset:{(t%3)*1280} sc1')
    I('s_waitcnt vmcnt(0)')
    anysent(range(208, 240), 6)
    spin_end(lab)
    stamp(3)
    tick(1)
    for t in range(8):
        c = '0' if t == 0 else 'v[180:183]'
        I(f'v_mfma_f32_16x16x32_bf16 v[180:183], v[204:207], {vr(208+4*t)}, {c}')
    nop(9)
    for r in range(4):
        bfround(180 + r)
        I(f'v_mul_f32 v{180+r}, v{164+r}, v{180+r}')
        bfround(180 + r)
        I(f'v_add_f32 v{180+r}, v{176+r}, v{180+r}')
        bfround(180 + r)
    tick(2)
    I('v_cmp_gt_u32 vcc, 32, v1')
    I('v_add_f32 v6, v180, v181')
    I('v_add_f32 v7, v182, v183')
    I('v_add_f32 v6, v6, v7')
    I('v_cndmask_b32 v6, 0, v6, vcc')
    allreduce('v_add_f32', 6, 7)
    I('v_mul_f32 v6, 0x3c000000, v6')
    for r in range(4): I(f'v_sub_f32 v{184+r}, v{180+r}, v6')
    I('v_mul_f32 v8, v184, v184')
    for r in range(1, 4): I(f'v_fmac_f32 v8, v{184+r}, v{184+r}')
    I('v_cndmask_b32 v8, 0, v8, vcc')
    allreduce('v_add_f32', 8, 7)
    I('v_mov_b32 v7, v8')
    I('s_lshl_b32 s4, s3, 3')
    I(f's_add_u32 s4, s4, {L_E_STAT}')
    I('v_mov_b32 v2, s4')
    I('v_lshlrev_b32 v3, 2, v12')
    I(f'v_add_u32 v3, {L_E_X1}, v3')
    setexec(1)
    I('ds_write_b64 v2, v[6:7]')
    setexec(0xffffffff)
    I('ds_write_b128 v3, v[180:183]')
    fullexec()
    I('s_waitcnt lgkmcnt(0)')
    L(sk5)
    tick(3)
    barrier()
    tick(4)
    sk5 = uid('w5b')
    I('s_cmp_gt_u32 s3, 4')
    skip_if(sk5)
    I(f'v_mov_b32 v2, {L_E_STAT}')
    I('ds_read_b128 v[184:187], v2')
    I('ds_read_b128 v[188:191], v2 offset:16')
    I('ds_read_b64 v[192:193], v2 offset:32')
    I('s_waitcnt lgkmcnt(0)')
    I('v_add_f32 v6, v184, v186')
    I('v_add_f32 v6, v6, v188')
    I('v_add_f32 v6, v6, v190')
    I('v_add_f32 v6, v6, v192')
    I('v_mul_f32 v6, 0x3e4ccccd, v6')
    I('v_add_f32 v7, v185, v187')
    I('v_add_f32 v7, v7, v189')
    I('v_add_f32 v7, v7, v191')
    I('v_add_f32 v7, v7, v193')
    for k in range(5):
        I(f'v_sub_f32 v8, v{184+2*k}, v6')
        I('v_mul_f32 v8, v8, v8')
        I('v_fmac_f32 v7, 0x43000000, v8')
    I('v_mul_f32 v7, 0x3acccccd, v7')
    bfround(6); bfround(7)
    I('v_add_f32 v7, 0x3727c5ac, v7')
    bfround(7)
    I('v_sqrt_f32 v7, v7')
    nop(1)
    bfround(7)
    I('v_rcp_f32 v7, v7')
    for r in range(4):
        I(f'v_sub_f32 v{184+r}, v{180+r}, v6')
        bfround(184 + r)
        I(f'v_mul_f32 v{184+r}, v{184+r}, v7')
        bfround(184 + r)
        I(f'v_mul_f32 v{184+r}, v{184+r}, v{172+r}')
        bfround(184 + r)
        I(f'v_add_f32 v{184+r}, v{184+r}, v{168+r}')
    I('v_cvt_pk_bf16_f32 v184, v184, v185')
    I('v_cvt_pk_bf16_f32 v185, v186, v187')
    I('v_lshlrev_b32 v3, 1, v12')
    I(f'v_add_u32 v3, {L_E_HT}, v3')
    setexec(0xffffffff)
    I('ds_write_b64 v3, v[184:185]')
    fullexec()
    I('s_waitcnt lgkmcnt(0)')
    L(sk5)
    tick(5)
    barrier()
    tick(6)
    stamp(4)
    I('v_mul_u32_u24 v2, 40, v14')
    I('s_mul_i32 s4, s3, 160')
    I(f's_add_u32 s4, s4, {L_E_HT}')
    I('v_add_u32 v2, s4, v2')
    for q in range(5):
        I(f'ds_read_b64 {vr(164+2*q,2)}, v2 offset:{q*8}')
    I('s_lshl_b32 s4, s3, 9')
    I(f's_add_u32 s4, s4, {L_E_RED}')
    I('v_add_u32 v3, s4, v13')
    I('s_waitcnt lgkmcnt(0)')
    gemv_pair(10, lambda p: 164 + p, 240, [204, 208], lambda blk, t: 20 + 4 * t, [212], [216])
    setexec(0xffff)
    I('ds_write_b128 v3, v[212:215]')
    I('ds_write_b128 v3, v[216:219] offset:256')
    fullexec()
    I('s_waitcnt lgkmcnt(0)')
    tick(7)
    barrier()
    tick(8)
    sk = uid('nohh')
    I('s_cmp_lg_u32 s3, 0')
    skip_if(sk)
    I('v_lshrrev_b32 v2, 5, v1')
    I('v_and_b32 v3, 31, v1')
    I('v_lshlrev_b32 v3, 2, v3')
    I('v_lshl_add_u32 v3, v2, 8, v3')
    I(f'v_add_u32 v3, {L_E_RED}, v3')
    for w in range(8):
        I(f'ds_read2_b32 {vr(164+2*w,2)}, v3 offset0:{(w%2)*128} offset1:{(w%2)*128+32}' if w < 2 else
          f'ds_read2_b32 {vr(164+2*w,2)}, v{4+w//2} offset0:{(w%2)*128} offset1:{(w%2)*128+32}')
        if w % 2 == 1 and w < 7: I(f'v_add_u32 v{5+w//2}, {1024*(w//2+1)}, v3')
    I('v_and_b32 v3, 31, v1')
    I('v_lshlrev_b32 v3, 2, v3')
    I('v_lshl_add_u32 v3, v2, 1, v3')
    I(f'v_add_u32 v3, {L_E_HH}, v3')
    I('s_waitcnt lgkmcnt(0)')
    for st in (1, 2, 4):
        for w in range(0, 8, 2 * st):
            I(f'v_pk_add_f32 {vr(164+2*w,2)}, {vr(164+2*w,2)}, {vr(164+2*(w+st),2)}')
    I('v_cvt_pk_bf16_f32 v166, v164, v165')
    I('v_lshlrev_b32 v164, 16, v166')
    I('v_and_b32 v165, 0xffff0000, v166')
    I('v_mul_f32 v164, 0xbfb8aa3b, v164')
    I('v_exp_f32 v164, v164')
    nop(1)
    I('v_add_f32 v164, 1.0, v164')
    I('v_rcp_f32 v164, v164')
    nop(1)
    bfround(164)
    I('v_mul_f32 v164, v164, v165')
    I('v_cvt_pk_bf16_f32 v164, v164, v164')
    I('ds_write_b16 v3, v164')
    I('s_waitcnt lgkmcnt(0)')
    L(sk)
    I('s_mul_i32 s4, s43, 27')
    I('s_add_u32 s4, s4, s42')
    I('s_mul_i32 s4, s4, 2560')
    I(f's_add_u32 s4, s4, {FP}')
    tick(9)
    barrier()
    delay(3)
    tick(10)
    I('s_cmp_gt_u32 s3, 3')
    I('s_cbranch_scc1 L_e_hi2')
    I('v_lshlrev_b32 v2, 5, v14')
    I(f'v_add_u32 v2, {L_E_HH}, v2')
    for q in range(2):
        I(f'ds_read_b128 {vr(164+4*q)}, v2 offset:{q*16}')
    I('s_lshl_b32 s5, s3, 9')
    I('s_add_u32 s4, s4, s5')
    I('s_waitcnt lgkmcnt(0)')
    gemv_pair(8, lambda p: 164 + p, 240, [204, 208], lambda blk, t: 100 + 4 * t, [212], [216])
    for r in range(8): I(f'v_min_u32 v{212+r}, 0xfffffffe, v{212+r}')
    setexec(0xffff)
    I(f'buffer_store_dwordx4 v[212:215], v13, {S(WS)}, s4 offen sc1')
    I(f'buffer_store_dwordx4 v[216:219], v13, {S(WS)}, s4 offen offset:256 sc1')
    fullexec()
    tick(11)
    tick_dump(12)
    stamp(5)
    barrier()
    I('s_branch L_end')
    L('L_e_hi2')
    I('s_sub_u32 s46, s3, 4')
    I('v_lshlrev_b32 v2, 3, v14')
    I('s_lshl_b32 s5, s46, 5')
    I(f's_add_u32 s5, s5, {L_E_HH}')
    I('v_add_u32 v2, s5, v2')
    I('ds_read_b64 v[164:165], v2')
    I('s_lshl_b32 s5, s46, 9')
    I(f's_add_u32 s5, s5, {L_E_RED}')
    I('v_add_u32 v3, s5, v13')
    I('s_waitcnt lgkmcnt(0)')
    gemv_pair(2, lambda p: 164 + p, 240, [204, 208], lambda blk, t: 100 + 4 * t, [212], [216])
    setexec(0xffff)
    I('ds_write_b128 v3, v[212:215]')
    I('ds_write_b128 v3, v[216:219] offset:256')
    fullexec()
    I('s_waitcnt lgkmcnt(0)')
    barrier()
    I('s_cmp_lg_u32 s3, 4')
    I('s_cbranch_scc1 L_final')
    I(f'v_add_u32 v3, {L_E_RED}, v13')
    setexec(0xffff)
    for w in range(4):
        I(f'ds_read_b128 {vr(20+8*w)}, v3 offset:{w*512}')
        I(f'ds_read_b128 {vr(24+8*w)}, v3 offset:{w*512+256}')
    I('s_waitcnt lgkmcnt(0)')
    for q in range(4):
        I(f'v_pk_add_f32 {vr(20+2*q,2)}, {vr(20+2*q,2)}, {vr(28+2*q,2)}')
        I(f'v_pk_add_f32 {vr(36+2*q,2)}, {vr(36+2*q,2)}, {vr(44+2*q,2)}')
        I(f'v_pk_add_f32 {vr(20+2*q,2)}, {vr(20+2*q,2)}, {vr(36+2*q,2)}')
    for r in range(8): I(f'v_min_u32 v{20+r}, 0xfffffffe, v{20+r}')
    I('s_add_u32 s4, s4, 2048')
    I(f'buffer_store_dwordx4 v[20:23], v13, {S(WS)}, s4 offen sc1')
    I(f'buffer_store_dwordx4 v[24:27], v13, {S(WS)}, s4 offen offset:256 sc1')
    fullexec()
    I('s_branch L_end')
    L('L_final')
    I('s_cmp_lg_u32 s3, 5')
    skip_if('L_end')
    I('s_cmp_ge_u32 s42, 10')
    skip_if('L_end')
    I('s_lshl_b32 s4, s42, 6')
    I('v_add_u32 v12, s4, v1')
    I('v_lshlrev_b32 v2, 2, v12')
    I(f'v_add_u32 v3, {L_E_X1}, v2')
    I('ds_read_b32 v10, v3')
    I('v_lshrrev_b32 v4, 7, v12')
    I('v_lshlrev_b32 v4, 9, v4')
    I('v_and_b32 v5, 1, v12')
    I('v_lshl_add_u32 v4, v5, 8, v4')
    I('v_bfe_u32 v5, v12, 3, 4')
    I('v_lshl_add_u32 v4, v5, 4, v4')
    I('v_bfe_u32 v5, v12, 1, 2')
    I('v_lshl_add_u32 v4, v5, 2, v4')
    I('s_mul_i32 s4, s43, 15360')
    I(f's_add_u32 s4, s4, {MOD + 5*2560}')
    I('s_mul_i32 s5, s43, 69120')
    I(f's_add_u32 s5, s5, {FP}')
    lab = spin_begin()
    I('s_mov_b32 s6, s4')
    for kq in range(4):
        I(f'buffer_load_dword v{48+kq}, v2, {S(WS)}, s6 offen sc1')
        if kq < 3: I('s_add_u32 s6, s6, 30720')
    I('s_waitcnt vmcnt(0)')
    anysent(list(range(48, 52)), 6)
    spin_end(lab)
    for p in range(9): I(f's_add_u32 s{48+p}, s5, {p*7680}')
    def fissue(base):
        for p in range(27):
            I(f'buffer_load_dword v{base+p}, v4, {S(WS)}, s{48+p//3} offen offset:{(p%3)*2560 if (p%3)*2560 < 4096 else 0} sc1'
              if p % 3 < 2 else f'buffer_load_dword v{base+p}, v5, {S(WS)}, s{48+p//3} offen sc1')
    I('v_add_u32 v5, 5120, v4')
    I('s_mov_b32 s98, 0')
    fissue(20)
    I('s_sleep 6')
    L('L_fin_top')
    fissue(60)
    I('s_waitcnt vmcnt(27)')
    anysent(list(range(20, 47)), 6)
    I('s_cbranch_vccz L_fin_done')
    fissue(20)
    I('s_waitcnt vmcnt(27)')
    anysent(list(range(60, 87)), 6)
    I('s_cbranch_vccz L_fin_b')
    I('s_add_u32 s98, s98, 1')
    I(f's_cmp_gt_u32 s98, {SPIN_LIMIT}')
    I('s_cbranch_scc1 L_end')
    I('s_branch L_fin_top')
    L('L_fin_b')
    I('s_waitcnt vmcnt(0)')
    for p in range(27): I(f'v_mov_b32 v{20+p}, v{60+p}')
    L('L_fin_done')
    I('v_add_f32 v11, v48, v49')
    I('v_add_f32 v50, v50, v51')
    I('v_add_f32 v11, v11, v50')
    bfround(11)
    for p in range(1, 27): I(f'v_add_f32 v20, v20, v{20+p}')
    bfround(20)
    I('v_mul_f32 v20, v11, v20')
    bfround(20)
    I('s_waitcnt lgkmcnt(0)')
    I('v_add_f32 v20, v10, v20')
    I('v_cvt_pk_bf16_f32 v20, v20, v20')
    I('v_lshlrev_b32 v2, 1, v12')
    I('s_mul_i32 s4, s43, 1280')
    I(f'buffer_store_short v20, v2, {S(OUT)}, s4 offen')
    stamp(7, 5)
    if DBGT:
        I('s_memrealtime s[60:61]')
        I('s_mov_b32 s20, s90')
        I('s_and_b32 s21, s91, 0xffff')
        I('s_mov_b32 s22, 256')
        I('s_mov_b32 s23, 0x00020000')
        I('s_waitcnt lgkmcnt(0)')
        I('s_sub_u32 s60, s60, s56')
        I('v_mov_b32 v4, s60')
        I('s_mul_i32 s5, s43, 10')
        I('s_add_u32 s5, s5, s42')
        I('s_lshl_b32 s5, s5, 2')
        I('v_mov_b32 v5, 0')
        setexec(1)
        I('buffer_store_dword v4, v5, s[20:23], s5 offen')
        fullexec()
    role_end('L_e_main')

prologue()
role_P12()
role_P3()
role_DE_common()
role_D()
role_E()
L('L_end')
I('s_endpgm')

def wrap_vm(ls):
    out = []; i = 0; n = 0
    while i < len(ls):
        x = ls[i].strip()
        def isvm(k):
            y = ls[k].strip()
            return y.startswith('buffer_store') or (not INSPIN[k] and (y.startswith('s_waitcnt vmcnt') or (y.startswith('buffer_load') and ' nt' not in y)))
        if isvm(i):
            j = i
            while j < len(ls) and isvm(j):
                j += 1
            n += 1
            out.append(f'    s_cbranch_execz L_vs_{n}')
            out += ls[i:j]
            out.append(f'L_vs_{n}:')
            i = j
        else:
            out.append(ls[i]); i += 1
    return out
if DRY:
    INSPIN = []
    ins = False
    for x in lines:
        t = x.strip()
        if re.match(r'L_spin_\d+:$', t): ins = True
        if re.match(r'L_spin_\d+_x:$', t): ins = False
        INSPIN.append(ins)
    lines = wrap_vm(lines)
hdr = open('cdna_kernels/' + NAME + '.s.ref').read().split('\n')
out = []
for ln in hdr:
    if ln.startswith('; @launch'):
        out.append(f'; @launch grid=(256,1,1) block=(512,1,1) lds={LDS_BYTES}')
    elif ln.startswith(';'):
        out.append(ln)
    else:
        break
out += ['.amdgcn_target "amdgcn-amd-amdhsa--gfx950"', '.text', f'.globl {NAME}_kernel', '.p2align 8',
        f'.type {NAME}_kernel,@function', f'{NAME}_kernel:']
out += lines
out += ['.section .rodata,"a"', '.p2align 6', f'.amdhsa_kernel {NAME}_kernel',
        '  .amdhsa_next_free_vgpr 256', '  .amdhsa_next_free_sgpr 102', '  .amdhsa_accum_offset 256',
        '  .amdhsa_group_segment_fixed_size 0', '  .amdhsa_kernarg_size 120', '  .amdhsa_user_sgpr_count 2',
        '  .amdhsa_user_sgpr_kernarg_segment_ptr 1', '  .amdhsa_system_sgpr_workgroup_id_x 1',
        '.end_amdhsa_kernel', '']
open(sys.argv[1], 'w').write('\n'.join(out))
```

```python
import sys, re

NAME = 'adaLN_cond__compressed_kv_cla__glu_gated_glu__decode'
STAMP = int(sys.argv[2]) if len(sys.argv) > 2 else 0
DBGT = (STAMP == 2)
if DBGT: STAMP = 0
SPIN_LIMIT = 200000

EPOCH = 0
FLAGS = 2048
MOD = 8192
QP = 131072
QA = 262144
ML = 327680
AP = 360448
FP = 442368
STP = 589824
OP = 1048576
WS_BYTES = OP + 2 * 32 * 32 * 1024

CKS = 1040
L_WU = 0
L_HD = 66560
L_RED = L_HD + 2560
L_QT2 = L_RED + 5120
L_CNT = L_QT2 + 512
L_CK = 0
L_QT = 0
PTS = 272
L_PT = 133120
L_MX = L_PT + 32 * PTS
LDS_BYTES = L_MX + 1024
L_WT0 = 0
L_WT1 = 20480
L_ST = 40960
L_FC = 44032
L_D_WD = 45056
L_D_CD = 46080
L_D_RED = 49152
L_D_RED2 = 53248
L_E_STAT = 45056
L_E_X1 = 45312
L_E_HT = 48128
L_E_RED = 53248
L_E_HH = 57344
PACE = int(sys.argv[3]) if len(sys.argv) > 3 else 6
SLOWN = int(sys.argv[4]) if len(sys.argv) > 4 else 6
DRY = int(sys.argv[5]) if len(sys.argv) > 5 else 0
EGATE = int(sys.argv[6]) if len(sys.argv) > 6 else 1
EPACE = int(sys.argv[7]) if len(sys.argv) > 7 else 6
SLOWP = int(sys.argv[8]) if len(sys.argv) > 8 else 2
LATEC = int(sys.argv[9]) if len(sys.argv) > 9 else 0
CK0 = int(sys.argv[10]) if len(sys.argv) > 10 else 4
CK1 = int(sys.argv[11]) if len(sys.argv) > 11 else 6
W1GATE = int(sys.argv[12]) if len(sys.argv) > 12 else 0
XSPLIT = int(sys.argv[13]) if len(sys.argv) > 13 else 0
P3GATE = int(sys.argv[14]) if len(sys.argv) > 14 else 0
WU0 = int(sys.argv[15]) if len(sys.argv) > 15 else 6
THR = int(sys.argv[16]) if len(sys.argv) > 16 else 1
DELAY = int(sys.argv[17]) if len(sys.argv) > 17 else 0
AGATE = int(sys.argv[18]) if len(sys.argv) > 18 else 0
SFLAG = int(sys.argv[19]) if len(sys.argv) > 19 else 0

TAGC_LO = 0x7F4A7C15
TAGC_HI = 0x9E3779B9

lines = []
def I(s): lines.append('    ' + s)
def L(s): lines.append(s + ':')
def C(s): lines.append('    ; ' + s)
def nop(n):
    while n > 0:
        k = min(n, 16)
        I(f's_nop {k-1}')
        n -= k
_uid = [0]
def uid(p):
    _uid[0] += 1
    return f'L_{p}_{_uid[0]}'
def vr(a, n=4): return f'v[{a}:{a+n-1}]'

PTR = {k: 64 + 2 * i for i, k in enumerate(
    ['x', 'ckv', 'wq', 'wuk', 'wuv', 'wo', 'bx', 'wg', 'wu', 'wd', 'c', 'wmod', 'out', 'dbg', 'ws'])}
NBYTES = dict(x=2560, ckv=8388608, wq=5242880, wuk=4194304, wuv=4194304, wo=5242880, wg=2211840, wu=2211840,
              wd=2211840, c=2560, wmod=4915200, out=2560, ws=WS_BYTES)
def srd(d, name):
    p = PTR[name]
    I(f's_mov_b32 s{d}, s{p}')
    I(f's_and_b32 s{d+1}, s{p+1}, 0xffff')
    I(f's_mov_b32 s{d+2}, {NBYTES[name]}')
    I(f's_mov_b32 s{d+3}, 0x00020000')
def S(d): return f's[{d}:{d+3}]'
WS = 8

def setexec(lo, hi=0):
    I(f's_and_b32 exec_lo, s100, 0x{lo:x}')
    if hi: I(f's_and_b32 exec_hi, s100, 0x{hi:x}')
    else: I('s_mov_b32 exec_hi, 0')
def fullexec():
    I('s_mov_b64 exec, s[100:101]')
def skip_if(lab):
    I('s_cselect_b32 s99, s100, 0')
    I('s_cmp_lg_u32 s99, 0')
    I(f's_cbranch_scc1 {lab}')
def barrier():
    o = uid('bar')
    I('s_cmp_eq_u32 s100, 0')
    I(f's_cbranch_scc1 {o}')
    I('s_barrier')
    L(o)
def enter_dry(target):
    I('s_mov_b64 s[100:101], 0')
    I('s_mov_b64 exec, 0')
    I(f's_branch {target}')
def role_end(back):
    I('s_cmp_lg_u32 s100, 0')
    I('s_cbranch_scc1 L_end')
    I('s_mov_b64 s[100:101], -1')
    I('s_mov_b64 exec, -1')
    I(f's_branch {back}')

def stamp(idx, wave=0):
    if STAMP != 1: return
    skip = uid('st')
    I(f's_cmp_lg_u32 s3, {wave}')
    I(f's_cbranch_scc1 {skip}')
    I('s_memrealtime s[60:61]')
    I('s_waitcnt lgkmcnt(0)')
    I('v_mov_b32 v254, s60')
    I('v_mov_b32 v255, s61')
    I(f's_lshl_b32 s62, s2, 7')
    I(f's_add_u32 s62, s62, {STP + idx*8}')
    I('v_mov_b32 v253, 0')
    I('s_mov_b64 s[58:59], exec')
    setexec(1)
    I(f'buffer_store_dwordx2 v[254:255], v253, {S(WS)}, s62 offen')
    I('s_mov_b64 exec, s[58:59]')
    L(skip)

TICK = (STAMP == 3)
def tick(i):
    if TICK: I(f's_memtime s[{64+2*i}:{65+2*i}]')
def tick_dump(n):
    if not TICK: return
    skip = uid('tk')
    I('s_cmp_lg_u32 s3, 0')
    I(f's_cbranch_scc1 {skip}')
    I('s_waitcnt lgkmcnt(0)')
    I('s_mov_b64 s[58:59], exec')
    setexec(1)
    I('v_mov_b32 v253, 0')
    for i in range(n):
        I(f'v_mov_b32 v254, s{64+2*i}')
        I(f'v_mov_b32 v255, s{65+2*i}')
        I(f's_lshl_b32 s62, s2, 7')
        I(f's_add_u32 s62, s62, {STP + i*8}')
        I(f'buffer_store_dwordx2 v[254:255], v253, {S(WS)}, s62 offen')
        nop(2)
    I('s_mov_b64 exec, s[58:59]')
    L(skip)

def delay(place):
    if DELAY == place:
        for _ in range(1): I('s_sleep 110')

def spin_begin():
    lab = uid('spin')
    I(f's_cbranch_execz {lab}_x')
    I('s_mov_b32 s98, 0')
    L(lab)
    return lab
def spin_end(lab, sleep=1):
    done = uid('spd')
    I(f's_cbranch_vccz {done}')
    I('s_add_u32 s98, s98, 1')
    I(f's_cmp_gt_u32 s98, {SPIN_LIMIT}')
    I('s_cbranch_scc1 L_end')
    I(f's_sleep {sleep}')
    I(f's_branch {lab}')
    L(done)
    L(f'{lab}_x')

def anysent(regs, tmp):
    regs = list(regs)
    cur = regs[0]; rest = regs[1:]
    while rest:
        if len(rest) >= 2:
            I(f'v_max3_u32 v{tmp}, v{cur}, v{rest[0]}, v{rest[1]}'); rest = rest[2:]
        else:
            I(f'v_max_u32 v{tmp}, v{cur}, v{rest[0]}'); rest = rest[1:]
        cur = tmp
    I(f'v_cmp_eq_u32 vcc, -1, v{cur}')

def allreduce(op, x, tmp, rows_only=False, skip_row=False, half=False):
    if not skip_row:
        for ctl in ['quad_perm:[1,0,3,2]', 'quad_perm:[2,3,0,1]', 'row_half_mirror', 'row_mirror']:
            nop(2)
            I(f'{op}_dpp v{x}, v{x}, v{x} {ctl} row_mask:0xf bank_mask:0xf')
    if rows_only: return
    for sw in (['v_permlane16_swap_b32'] if half else ['v_permlane16_swap_b32', 'v_permlane32_swap_b32']):
        I(f'v_mov_b32 v{tmp}, v{x}')
        nop(2)
        I(f'{sw} v{x}, v{tmp}')
        nop(1)
        I(f'{op} v{x}, v{x}, v{tmp}')

def bfround(x, tmp=None):
    I(f'v_cvt_pk_bf16_f32 v{x}, v{x}, v{x}')
    I(f'v_and_b32 v{x}, 0xffff0000, v{x}')

def make_masks(m, single):
    I('v_and_b32 v2, 1, v1')
    I('v_cmp_eq_u32 vcc, 1, v2')
    I('v_mov_b32 v3, 0xffff')
    I('v_mov_b32 v2, 0xffff0000')
    nop(1)
    I('v_cndmask_b32 v3, v3, v2, vcc')
    if single:
        I('v_and_b32 v2, 8, v1')
        I('v_cmp_eq_u32 vcc, 0, v2')
        nop(2)
        I('v_cndmask_b32 v3, 0, v3, vcc')
    I('v_bfe_u32 v2, v1, 1, 2')
    for d in range(4):
        I(f'v_cmp_eq_u32 vcc, {d}, v2')
        nop(2)
        I(f'v_cndmask_b32 v{m+d}, 0, v3, vcc')

def gemv_diag(T, aval, masks, abuf, bq, accs):
    def build(t):
        a = abuf[t % 2]
        for d in range(4):
            I(f'v_and_b32 v{a+d}, v{masks+d}, v{aval(t)}')
    build(0)
    for t in range(T):
        a = abuf[t % 2]
        if t + 1 < T:
            build(t + 1)
        else:
            nop(2)
        for blk, acc in enumerate(accs):
            c = '0' if t == 0 else vr(acc)
            I(f'v_mfma_f32_16x16x32_bf16 {vr(acc)}, {vr(a)}, {vr(bq(blk, t))}, {c}')
    nop(9)

def make_masks4(m, nb):
    I('v_bfe_u32 v2, v1, 2, 2')
    I(f'v_cmp_gt_u32 vcc, {nb}, v2')
    nop(2)
    I('v_cndmask_b32 v3, 0, -1, vcc')
    I('v_and_b32 v2, 3, v1')
    for d in range(4):
        I(f'v_cmp_eq_u32 vcc, {d}, v2')
        nop(2)
        I(f'v_cndmask_b32 v{m+d}, 0, v3, vcc')

def pairperm(quads, tmp):
    I('s_mov_b32 s4, 0x05040100')
    I('s_mov_b32 s5, 0x07060302')
    for n, (x0, x1) in enumerate(quads):
        for q in range(4):
            t = tmp + (q & 1)
            I(f'v_perm_b32 v{t}, v{x1+q}, v{x0+q}, s4')
            I(f'v_perm_b32 v{x1+q}, v{x1+q}, v{x0+q}, s5')
            I(f'v_mov_b32 v{x0+q}, v{t}')

def gemv_pair(P, aval, masks, abuf, bq, accE, accO):
    def build(p):
        a = abuf[p % 2]
        for d in range(4):
            I(f'v_and_b32 v{a+d}, v{masks+d}, v{aval(p)}')
    build(0)
    for p in range(P):
        a = abuf[p % 2]
        if p + 1 < P: build(p + 1)
        else: nop(2)
        for blk in range(len(accE)):
            for acc, t in ((accE[blk], 2 * p), (accO[blk], 2 * p + 1)):
                c = '0' if p == 0 else vr(acc)
                I(f'v_mfma_f32_16x16x32_bf16 {vr(acc)}, {vr(a)}, {vr(bq(blk, t))}, {c}')
    nop(9)

def spin_end_thr(lab, thr, sleep=1):
    done = uid('spd')
    I('s_bcnt1_i32_b64 s99, vcc')
    I(f's_cmp_le_u32 s99, {thr}')
    I(f's_cbranch_scc1 {done}')
    I('s_add_u32 s98, s98, 1')
    I(f's_cmp_gt_u32 s98, {SPIN_LIMIT}')
    I('s_cbranch_scc1 L_end')
    I(f's_sleep {sleep}')
    I(f's_branch {lab}')
    L(done)
    L(f'{lab}_x')

def light_poll(load, regs_per, base, thr, NS=3, gap=5):
    top = uid('lp'); done = uid('lpd')
    I(f's_cbranch_execz {done}')
    I('s_mov_b32 s98, 0')
    for i in range(NS - 1):
        load(base + i * regs_per)
        I(f's_sleep {gap}')
    L(top)
    for i in range(NS):
        load(base + ((i + NS - 1) % NS) * regs_per)
        I(f's_waitcnt vmcnt({NS-1})')
        r = base + i * regs_per
        if regs_per == 1: I(f'v_cmp_eq_u32 vcc, -1, v{r}')
        else:
            I(f'v_max_u32 v{base + NS*regs_per}, v{r}, v{r+1}')
            I(f'v_cmp_eq_u32 vcc, -1, v{base + NS*regs_per}')
        I('s_bcnt1_i32_b64 s99, vcc')
        I(f's_cmp_le_u32 s99, {thr}')
        I(f's_cbranch_scc1 {done}')
    I('s_add_u32 s98, s98, 1')
    I(f's_cmp_gt_u32 s98, {SPIN_LIMIT}')
    I('s_cbranch_scc1 L_end')
    I(f's_branch {top}')
    L(done)

def flags_wait(which, first=0, count=256, sleep=1):
    I('v_lshlrev_b32 v2, 4, v1')
    I(f'v_add_u32 v2, {FLAGS + 2048*which + 8*first}, v2')
    if count == 64: setexec(0xffffffff)
    lab = spin_begin()
    I(f'buffer_load_dwordx4 v[4:7], v2, {S(WS)}, 0 offen sc1')
    if count == 256:
        I(f'buffer_load_dwordx4 v[8:11], v2, {S(WS)}, 0 offen offset:1024 sc1')
    I('s_waitcnt vmcnt(0)')
    n = 12 if count == 256 else 8
    for r in range(4, n):
        I(f'v_xor_b32 v{r}, s{96 + (r & 1)}, v{r}')
    I('v_or3_b32 v4, v4, v5, v6')
    if count == 256:
        I('v_or3_b32 v4, v4, v7, v8')
        I('v_or3_b32 v4, v4, v9, v10')
        I('v_or_b32 v4, v4, v11')
    else:
        I('v_or_b32 v4, v4, v7')
    I('v_cmp_ne_u32 vcc, 0, v4')
    spin_end(lab, sleep)
    if count == 64: fullexec()

def flag_store(which, t0=4):
    I('s_waitcnt vmcnt(0) lgkmcnt(0)')
    I(f's_add_u32 s96, s94, 0x{TAGC_LO:x}')
    I(f's_addc_u32 s97, s95, 0x{TAGC_HI:x}')
    I(f'v_mov_b32 v{t0}, s96')
    I(f'v_mov_b32 v{t0+1}, s97')
    I('s_lshl_b32 s4, s2, 3')
    I(f's_add_u32 s4, s4, {FLAGS + 2048*which}')
    I(f'v_mov_b32 v{t0+2}, 0')
    setexec(1)
    I(f'buffer_store_dwordx2 v[{t0}:{t0+1}], v{t0+2}, {S(WS)}, s4 offen sc1')
    fullexec()

def lds_gate():
    I(f'v_mov_b32 v4, {L_FC}')
    lab = spin_begin()
    I('ds_read_b32 v5, v4')
    I('s_waitcnt lgkmcnt(0)')
    I('v_cmp_ne_u32 vcc, 1, v5')
    spin_end(lab, 2)

def paced(loads, depth):
    for i, ld in enumerate(loads):
        if i >= depth: I(f's_waitcnt vmcnt({depth-1})')
        for x in ld: I(x)

def tag_compute():
    I('s_waitcnt lgkmcnt(0)')
    I(f's_add_u32 s96, s94, 0x{TAGC_LO:x}')
    I(f's_addc_u32 s97, s95, 0x{TAGC_HI:x}')

def prologue():
    I('s_cmp_ge_u32 s2, 256')
    I('s_cbranch_scc1 L_end')
    I('s_mov_b64 s[100:101], -1')
    if XSPLIT == 2:
        I('s_bfe_u32 s4, s2, 0x40003')
        I('s_lshl_b32 s4, s4, 2')
        I('s_and_b32 s5, s2, 3')
        I('s_add_u32 s4, s4, s5')
        I('s_bfe_u32 s5, s2, 0x10002')
        I('s_lshr_b32 s6, s2, 7')
        I('s_xor_b32 s7, s5, s6')
        I('s_lshl_b32 s6, s6, 1')
        I('s_add_u32 s6, s6, s7')
        I('s_lshl_b32 s6, s6, 6')
        I('s_add_u32 s2, s4, s6')
    elif XSPLIT:
        I('s_lshr_b32 s4, s2, 3')
        I('s_lshl_b32 s4, s4, 2')
        I('s_and_b32 s5, s2, 3')
        I('s_add_u32 s4, s4, s5')
        I('s_bfe_u32 s5, s2, 0x10002')
        I('s_lshl_b32 s5, s5, 7')
        I('s_add_u32 s2, s4, s5')
    if DBGT: I('s_memrealtime s[56:57]')
    I('s_load_dwordx16 s[64:79], s[0:1], 0')
    I('s_load_dwordx8 s[80:87], s[0:1], 64')
    I('s_load_dwordx4 s[88:91], s[0:1], 96')
    I('s_load_dwordx2 s[92:93], s[0:1], 112')
    I('v_lshrrev_b32 v1, 6, v0')
    nop(1)
    I('v_readfirstlane_b32 s3, v1')
    I('v_and_b32 v1, 63, v0')
    for r in range(2, 13): I(f'v_mov_b32 v{r}, 0')
    if STAMP: I('v_mov_b32 v253, 0')
    I('s_waitcnt lgkmcnt(0)')
    I('s_load_dwordx2 s[94:95], s[92:93], 0')
    srd(WS, 'ws')
    stamp(0)
    I('v_lshrrev_b32 v14, 4, v1')
    I('v_and_b32 v15, 15, v1')
    I('v_lshlrev_b32 v13, 4, v1')
    I('s_cmp_ge_u32 s2, 128')
    I('s_cbranch_scc1 L_de')
    I('s_cmp_ge_u32 s2, 64')
    I('s_cbranch_scc1 L_p3')

def role_P12():
    X_, WQ, WUK = 12, 16, 20
    srd(X_, 'x'); srd(WQ, 'wq'); srd(WUK, 'wuk')
    I('s_lshr_b32 s40, s2, 1')
    I('s_and_b32 s41, s2, 1')
    I('s_mul_i32 s45, s41, 320')
    I('s_cmp_lg_u32 s3, 7')
    I('s_cbranch_scc1 L_a_init')
    for r in range(4, 8): I(f'v_mov_b32 v{r}, -1')
    I('s_lshl_b32 s4, s2, 10')
    I(f's_add_u32 s4, s4, {QP}')
    I(f'buffer_store_dwordx4 v[4:7], v13, {S(WS)}, s4 offen sc1')
    I('v_lshrrev_b32 v3, 5, v1')
    I('v_lshlrev_b32 v3, 15, v3')
    I('v_and_b32 v2, 31, v1')
    I('v_lshl_add_u32 v3, v2, 4, v3')
    I('s_lshl_b32 s4, s2, 9')
    I(f's_add_u32 s4, s4, {QA}')
    I(f'buffer_store_dwordx4 v[4:7], v3, {S(WS)}, s4 offen sc1')
    if DRY: enter_dry('L_a_h1b')
    L('L_a_w7')
    flag_store(0, 8)
    stamp(9, 7)
    I(f'v_mov_b32 v4, {L_CNT}')
    I('v_mov_b32 v5, 0')
    I('v_mov_b32 v6, 0')
    I('v_mov_b32 v7, 0')
    I('ds_write_b64 v4, v[6:7]')
    I('s_waitcnt lgkmcnt(0)')
    I('s_xor_b32 s4, s2, 1')
    I('s_lshl_b32 s4, s4, 3')
    I(f's_add_u32 s4, s4, {FLAGS}')
    I('v_mov_b32 v2, 0')
    lab = spin_begin()
    I(f'buffer_load_dwordx2 v[6:7], v2, {S(WS)}, s4 offen sc1')
    I('s_waitcnt vmcnt(0)')
    I('v_xor_b32 v6, s96, v6')
    I('v_xor_b32 v7, s97, v7')
    I('v_or_b32 v6, v6, v7')
    I('v_cmp_ne_u32 vcc, 0, v6')
    spin_end(lab, 2)
    I('s_waitcnt lgkmcnt(0)')
    I('s_branch L_a_main')
    L('L_a_init')
    I('s_cmp_gt_u32 s3, 4')
    I('s_cbranch_scc1 L_a_h1')
    if AGATE & 1:
        tag_compute()
        flags_wait(0, 128, 128, 2)
    I('v_lshlrev_b32 v2, 17, v14')
    I('v_lshl_add_u32 v2, v15, 4, v2')
    I('s_lshl_b32 s4, s3, 6')
    I('s_add_u32 s4, s4, s45')
    I('s_lshl_b32 s4, s4, 13')
    I('s_lshl_b32 s5, s40, 8')
    I('s_add_u32 s4, s4, s5')
    for t in range(16):
        I(f'buffer_load_dwordx4 {vr(20+4*t)}, v2, {S(WQ)}, s4 offen nt')
        if t < 15: I('s_add_u32 s4, s4, 8192')
    def wuk_dma(first, per, w0, nw):
        assert per % 4 == 0 and first % 4 == 0
        for k in range(4):
            I(f'v_add_u32 v3, {4*k}, v14')
            I('v_xor_b32 v3, v3, v15')
            I('v_lshlrev_b32 v3, 4, v3')
            I(f'v_lshl_add_u32 v{6+k}, v14, 13, v3')
        I('s_lshl_b32 s4, s41, 21')
        I('s_lshl_b32 s5, s40, 8')
        I('s_add_u32 s4, s4, s5')
        I(f's_sub_u32 s6, s3, {w0}')
        I(f's_mul_i32 s6, s6, {per}')
        I(f's_add_u32 s6, s6, {first}')
        I('s_lshl_b32 s5, s6, 15')
        I('s_add_u32 s4, s4, s5')
        I('s_lshl_b32 s5, s6, 10')
        done = uid('dmad')
        for q in range(per):
            if first + (nw - 1) * per + q >= 64:
                I(f's_cmp_ge_u32 s5, {64*1024}')
                I(f's_cbranch_scc1 {done}')
            I('s_mov_b32 m0, s5')
            nop(1)
            I(f'buffer_load_dwordx4 v{6+q%4}, {S(WUK)}, s4 offen nt lds')
            if q < per - 1:
                I('s_add_u32 s4, s4, 32768')
                I('s_add_u32 s5, s5, 1024')
        L(done)
    def cnt_add():
        I('s_waitcnt vmcnt(0)')
        I(f'v_mov_b32 v4, {L_CNT}')
        I('v_mov_b32 v5, 1')
        setexec(1)
        I('ds_add_u32 v4, v5')
        fullexec()
    def wuk_reads():
        I('v_xor_b32 v2, v14, v15')
        for q in range(4):
            I(f'v_xor_b32 v3, {4*q}, v2')
            I('v_lshlrev_b32 v3, 4, v3')
            I(f'v_lshl_add_u32 v{6+q}, v15, 8, v3')
        I('s_lshl_b32 s4, s3, 13')
        for q in range(4): I(f'v_add_u32 v{6+q}, s4, v{6+q}')
        for t_ in range(4):
            for n in range(2):
                I(f'ds_read_b128 {vr(20+16*n+4*t_)}, v{6+t_} offset:{L_WU + n*4096}')
    sk = uid('w0n')
    I('s_cmp_eq_u32 s3, 0')
    I(f's_cbranch_scc1 {sk}')
    wuk_dma(0, WU0, 1, 4)
    I(f's_waitcnt vmcnt({WU0})')
    L(sk)
    I(f's_cbranch_scc0 {sk}_b') if False else None
    sk = uid('w0m')
    I('s_cmp_lg_u32 s3, 0')
    I(f's_cbranch_scc1 {sk}')
    I('s_waitcnt vmcnt(0)')
    L(sk)
    make_masks4(16, 2)
    tag_compute()
    if LATEC == 2:
        sk = uid('nofc')
        I('s_cmp_lg_u32 s3, 4')
        I(f's_cbranch_scc1 {sk}')
        I(f'v_mov_b32 v8, s96')
        I(f'v_mov_b32 v9, s97')
        I('s_lshl_b32 s4, s2, 3')
        I(f's_add_u32 s4, s4, {FLAGS + 4096}')
        I(f'v_mov_b32 v10, 0')
        setexec(1)
        I(f'buffer_store_dwordx2 v[8:9], v10, {S(WS)}, s4 offen sc1')
        fullexec()
        L(sk)
    pairperm([(20 + 8 * p, 24 + 8 * p) for p in range(8)], 4)
    stamp(10, 4)
    I('s_branch L_a_main')
    L('L_a_h1')
    I('s_sub_u32 s46, s3, 5')
    I('s_mul_i32 s4, s46, 1280')
    I('v_lshlrev_b32 v3, 2, v1')
    for k in range(5):
        I(f'buffer_load_dword v{80 + k}, v3, {S(X_)}, s4 offen offset:{k*256}')
    I('s_lshl_b32 s5, s45, 1')
    I('s_add_u32 s5, s5, s4')
    I(f'buffer_load_dwordx4 v[84+4:84+7], v13, {S(X_)}, s5 offen'.replace('84+4', '88').replace('84+7', '91'))
    tag_compute()
    I('s_waitcnt vmcnt(0)')
    for k in range(5):
        I(f'v_lshlrev_b32 v{96+2*k}, 16, v{80+k}')
        I(f'v_and_b32 v{97+2*k}, 0xffff0000, v{80+k}')
    I('v_add_f32 v92, v96, v97')
    for k in range(2, 10): I(f'v_add_f32 v92, v92, v{96+k}')
    allreduce('v_add_f32', 92, 93)
    I('v_mul_f32 v92, 0x3acccccd, v92')
    for k in range(10): I(f'v_sub_f32 v{96+k}, v{96+k}, v92')
    I('v_mul_f32 v94, v96, v96')
    for k in range(1, 10): I(f'v_fmac_f32 v94, v{96+k}, v{96+k}')
    allreduce('v_add_f32', 94, 93)
    I('v_mul_f32 v94, 0x3acccccd, v94')
    bfround(92); bfround(94)
    I('v_add_f32 v94, 0x3727c5ac, v94')
    bfround(94)
    I('v_sqrt_f32 v94, v94')
    nop(1)
    bfround(94)
    I('v_rcp_f32 v94, v94')
    for k in range(4):
        I(f'v_lshlrev_b32 v{72+2*k}, 16, v{88+k}')
        I(f'v_and_b32 v{73+2*k}, 0xffff0000, v{88+k}')
    for r in range(8):
        I(f'v_sub_f32 v{72+r}, v{72+r}, v92')
        bfround(72 + r)
        I(f'v_mul_f32 v{72+r}, v{72+r}, v94')
        bfround(72 + r)
    L('L_a_h1b')
    if SFLAG:
        for rg in range(2):
            I('s_mul_i32 s4, s41, 160')
            I(f's_add_u32 s4, s4, {FLAGS + (128 + 40*rg)*8}')
            I('s_add_u32 s5, s4, 64')
            I('s_add_u32 s6, s4, 128')
            I('s_mov_b32 s98, 0')
            top = uid('sf'); done = uid('sfd')
            L(top)
            I('s_load_dwordx16 s[48:63], s[92:93], s4 glc')
            I('s_load_dwordx16 s[64:79], s[92:93], s5 glc')
            I('s_load_dwordx8 s[80:87], s[92:93], s6 glc')
            I('s_waitcnt lgkmcnt(0)')
            I('s_mov_b64 s[88:89], 0')
            for i in range(20):
                I(f's_xor_b64 s[{48+2*i}:{49+2*i}], s[{48+2*i}:{49+2*i}], s[96:97]')
                I(f's_or_b64 s[88:89], s[88:89], s[{48+2*i}:{49+2*i}]')
            I(f's_cbranch_scc0 {done}')
            I('s_add_u32 s98, s98, 1')
            I(f's_cmp_gt_u32 s98, {SPIN_LIMIT}')
            I('s_cbranch_scc1 L_end')
            I('s_sleep 2')
            I(f's_branch {top}')
            L(done)
    else:
        flags_wait(0, 128, 128)
    stamp(1, 5)
    I('s_mul_i32 s4, s46, 15360')
    I('s_lshl_b32 s5, s45, 2')
    I('s_add_u32 s4, s4, s5')
    I(f's_add_u32 s48, s4, {MOD}')
    for kq in range(1, 4): I(f's_add_u32 s{48+kq}, s48, {kq*30720}')
    I('v_lshlrev_b32 v2, 5, v1')
    I('s_mul_i32 s4, s46, 640')
    I(f's_add_u32 s4, s4, {L_HD}')
    I('v_add_u32 v3, s4, v13')
    setexec(0xffffffff, 0xff)
    lab = spin_begin()
    for kq in range(4):
        I(f'buffer_load_dwordx4 {vr(96+16*kq)}, v2, {S(WS)}, s{48+kq} offen sc1')
        I(f'buffer_load_dwordx4 {vr(100+16*kq)}, v2, {S(WS)}, s{48+kq} offen offset:16 sc1')
        I(f'buffer_load_dwordx4 {vr(104+16*kq)}, v2, {S(WS)}, s{48+kq} offen offset:2560 sc1')
        I(f'buffer_load_dwordx4 {vr(108+16*kq)}, v2, {S(WS)}, s{48+kq} offen offset:2576 sc1')
    I('s_waitcnt vmcnt(0)')
    anysent(range(96, 160), 12)
    spin_end(lab)
    for r in range(16):
        I(f'v_add_f32 v{96+r}, v{96+r}, v{112+r}')
        I(f'v_add_f32 v{128+r}, v{128+r}, v{144+r}')
        I(f'v_add_f32 v{96+r}, v{96+r}, v{128+r}')
        bfround(96 + r)
    for r in range(8):
        I(f'v_add_f32 v{104+r}, 1.0, v{104+r}')
        bfround(104 + r)
        I(f'v_mul_f32 v{104+r}, v{72+r}, v{104+r}')
        bfround(104 + r)
        I(f'v_add_f32 v{104+r}, v{104+r}, v{96+r}')
    for q in range(4):
        I(f'v_cvt_pk_bf16_f32 v{96+q}, v{104+2*q}, v{105+2*q}')
    I('ds_write_b128 v3, v[96:99]')
    fullexec()
    I('s_waitcnt lgkmcnt(0)')
    L('L_a_main')
    barrier()
    stamp(2)
    tick(0)
    if not LATEC:
        sk = uid('nofc')
        I('s_cmp_lg_u32 s3, 6')
        skip_if(sk)
        flag_store(2, 8)
        L(sk)
    sk = uid('nop1')
    sk57 = uid('w57')
    I('s_cmp_lt_u32 s3, 5')
    I(f's_cbranch_scc1 {sk57}')
    REM = 64 - 4 * WU0
    if REM: wuk_dma(4 * WU0, ((REM + 2) // 3 + 3) // 4 * 4, 5, 3)
    I(f's_branch {sk}')
    L(sk57)
    I('v_bfe_u32 v2, v1, 2, 1')
    I('v_mul_u32_u24 v2, 640, v2')
    I('v_lshl_add_u32 v2, v14, 5, v2')
    I('s_lshl_b32 s4, s3, 7')
    I(f's_add_u32 s4, s4, {L_HD}')
    I('v_add_u32 v2, s4, v2')
    for q in range(2):
        I(f'ds_read_b128 {vr(84+4*q)}, v2 offset:{q*16}')
    I('v_lshlrev_b32 v2, 9, v14')
    I('v_lshl_add_u32 v2, v15, 4, v2')
    I('s_lshl_b32 s4, s3, 10')
    I(f's_add_u32 s4, s4, {L_RED}')
    I('v_add_u32 v2, s4, v2')
    I('s_waitcnt lgkmcnt(0)')
    tick(1)
    gemv_pair(8, lambda p: 84 + p, 16, [100, 104], lambda blk, t: 20 + 4 * t, [108], [112])
    I(f'v_mov_b32 v4, {L_CNT + 4}')
    I('v_mov_b32 v5, 1')
    setexec(0xffffffff)
    I('ds_write_b128 v2, v[108:111]')
    I('ds_write_b128 v2, v[112:115] offset:256')
    setexec(1)
    I('s_waitcnt lgkmcnt(0)')
    I('ds_add_u32 v4, v5')
    fullexec()
    L(sk)
    tick(2)
    tick(3)
    sk = uid('nop1r')
    skw = uid('w0p')
    I('s_cmp_eq_u32 s3, 0')
    I(f's_cbranch_scc1 {skw}')
    cnt_add()
    lab = spin_begin()
    I('ds_read_b32 v5, v4')
    I('s_waitcnt lgkmcnt(0)')
    I('v_cmp_ne_u32 vcc, 7, v5')
    spin_end(lab, 1)
    wuk_reads()
    I(f's_branch {sk}')
    L(skw)
    lab = spin_begin()
    I('ds_read_b32 v5, v4')
    I('s_waitcnt lgkmcnt(0)')
    I('v_cmp_ne_u32 vcc, 5, v5')
    spin_end(lab, 0)
    I(f'v_add_u32 v2, {L_RED}, v13')
    for w in range(5):
        I(f'ds_read_b128 {vr(164+4*w)}, v2 offset:{w*1024}')
    I('s_lshl_b32 s4, s2, 10')
    I(f's_add_u32 s4, s4, {QP}')
    I('s_waitcnt lgkmcnt(0)')
    for r in range(4):
        I(f'v_add_f32 v{164+r}, v{164+r}, v{168+r}')
        I(f'v_add_f32 v{172+r}, v{172+r}, v{176+r}')
        I(f'v_add_f32 v{164+r}, v{164+r}, v{180+r}')
        I(f'v_add_f32 v{164+r}, v{164+r}, v{172+r}')
        I(f'v_min_u32 v{164+r}, 0xfffffffe, v{164+r}')
    I(f'buffer_store_dwordx4 v[164:167], v13, {S(WS)}, s4 offen sc1')
    stamp(3)
    tick(4)
    tick(5)
    I('s_xor_b32 s4, s2, 1')
    I('s_lshl_b32 s4, s4, 10')
    I(f's_add_u32 s4, s4, {QP}')
    lab = spin_begin()
    I(f'buffer_load_dwordx4 v[168:171], v13, {S(WS)}, s4 offen sc1')
    I('s_waitcnt vmcnt(0)')
    anysent(range(168, 172), 2)
    spin_end(lab)
    tick(6)
    for r in range(4):
        I(f'v_add_f32 v{168+r}, v{168+r}, v{164+r}')
    I('v_lshrrev_b32 v2, 1, v14')
    I('v_lshlrev_b32 v2, 8, v2')
    I('v_lshl_add_u32 v2, v15, 4, v2')
    I('v_and_b32 v3, 1, v14')
    I('v_lshl_add_u32 v2, v3, 1, v2')
    I(f'v_add_u32 v2, {L_QT2}, v2')
    for r in range(4):
        I(f'v_cvt_pk_bf16_f32 v{168+r}, v{168+r}, v{168+r}')
        I(f'ds_write_b16 v2, v{168+r} offset:{4*r}')
    L(sk)

    I('s_waitcnt lgkmcnt(0)')
    tick(7)
    barrier()
    tick(8)
    delay(1)
    stamp(4)
    I('v_and_b32 v2, 1, v15')
    I('v_lshlrev_b32 v2, 8, v2')
    I('v_lshl_add_u32 v2, v14, 4, v2')
    I(f'v_add_u32 v2, {L_QT2}, v2')
    for t in range(4):
        I(f'ds_read_b128 {vr(164+4*t)}, v2 offset:{t*64}')
    sk = uid('w0r')
    I('s_cmp_lg_u32 s3, 0')
    I(f's_cbranch_scc1 {sk}')
    wuk_reads()
    L(sk)
    I('v_lshlrev_b32 v2, 15, v15')
    I('v_lshl_add_u32 v2, v14, 3, v2')
    I('s_lshl_b32 s4, s2, 9')
    I('s_lshl_b32 s5, s3, 6')
    I('s_add_u32 s4, s4, s5')
    I(f's_add_u32 s4, s4, {QA}')
    tick(9)
    I('s_mov_b32 s5, 0x3e0293ee')
    for t in range(4):
        if t == 0: I('s_waitcnt lgkmcnt(0)')
        for n in range(2):
            c = '0' if t == 0 else vr(180 + 4 * n)
            I(f'v_mfma_f32_16x16x32_bf16 {vr(180+4*n)}, {vr(20+16*n+4*t)}, {vr(164+4*t)}, {c}')
    nop(9)
    tick(10)
    for r in range(8): I(f'v_mul_f32 v{180+r}, s5, v{180+r}')
    for q in range(4):
        I(f'v_cvt_pk_bf16_f32 v{188+q}, v{180+2*q}, v{181+2*q}')
        I(f'v_min_u32 v{188+q}, 0xfffffffe, v{188+q}')
    setexec(0x00030003, 0x00030003)
    I(f'buffer_store_dwordx2 v[188:189], v2, {S(WS)}, s4 offen sc1')
    I(f'buffer_store_dwordx2 v[190:191], v2, {S(WS)}, s4 offen offset:32 sc1')
    fullexec()
    tick(11)
    tick_dump(12)
    stamp(5)
    if LATEC == 1:
        sk = uid('nofc')
        I('s_cmp_lg_u32 s3, 6')
        skip_if(sk)
        flag_store(2, 8)
        L(sk)
    I('s_cmp_lg_u32 s2, 0')
    I('s_cbranch_scc1 L_end')
    I('s_cmp_lg_u32 s3, 0')
    I('s_cbranch_scc1 L_end')
    flags_wait(0, 0, 256)
    I('v_mov_b32 v10, s96')
    I('v_mov_b32 v11, s97')
    I('v_mov_b32 v12, 0')
    setexec(1)
    I(f'buffer_store_dwordx2 v[10:11], v12, {S(WS)}, 0 offen sc1')
    fullexec()
    I('s_branch L_end')

def role_P3():
    L('L_p3')
    CKV = 12
    srd(CKV, 'ckv')
    I('s_sub_u32 s40, s2, 64')
    I('s_lshr_b32 s42, s40, 5')
    I('s_and_b32 s43, s40, 31')
    sk = uid('nofa')
    I('s_cmp_lg_u32 s3, 7')
    I(f's_cbranch_scc1 {sk}')
    flag_store(0, 8)
    L(sk)
    tag_compute()
    if P3GATE:
        flags_wait(2, 0, 64, 4)
    if AGATE & 2:
        flags_wait(0, 128, 128, 2)
    delay(7)
    I('s_lshl_b32 s4, s40, 17')
    I('s_lshl_b32 s5, s3, 14')
    I('s_add_u32 s4, s4, s5')
    I(f's_mul_i32 s5, s3, {16*CKS}')
    for r in range(16):
        I('s_mov_b32 m0, s5')
        nop(1)
        I(f'buffer_load_dwordx4 v13, {S(CKV)}, s4 offen nt lds')
        if r < 15:
            I('s_add_u32 s4, s4, 1024')
            I(f's_add_u32 s5, s5, {CKS}')
    if DRY:
        I('s_cmp_lg_u32 s3, 7')
        I('s_cbranch_scc1 L_p3_real')
        enter_dry('L_p3_main')
    L('L_p3_real')
    I('s_waitcnt vmcnt(0)')
    barrier()
    L('L_p3_main')
    stamp(1)
    I(f'v_mul_u32_u24 v2, {CKS}, v15')
    I('v_lshl_add_u32 v2, v14, 4, v2')
    I(f's_mul_i32 s4, s3, {16*CKS}')
    I('v_add_u32 v2, s4, v2')
    for t in range(16):
        I(f'ds_read_b128 {vr(20+4*t)}, v2 offset:{t*64}')
    I('v_lshrrev_b32 v2, 2, v15')
    I('v_lshl_add_u32 v2, v14, 3, v2')
    I(f'v_mul_u32_u24 v2, {CKS}, v2')
    I('v_and_b32 v3, 3, v15')
    I('v_lshl_add_u32 v2, v3, 4, v2')
    I('s_lshl_b32 s4, s3, 7')
    I('v_add_u32 v2, s4, v2')
    I(f'v_add_u32 v3, {64*CKS}, v2')
    for n in range(4):
        for t in range(4):
            base = 84 + 16 * n + 4 * t
            ad = 'v2' if t < 2 else 'v3'
            off = (t % 2) * 32 * CKS + (n >> 1) * 64 + (n & 1) * 8
            I(f'ds_read_b64_tr_b16 {vr(base,2)}, {ad} offset:{off}')
            I(f'ds_read_b64_tr_b16 {vr(base+2,2)}, {ad} offset:{off + 4*CKS}')
    for r in range(4): I(f'v_mov_b32 v{16+r}, 0x3f803f80')
    I('s_waitcnt lgkmcnt(0)')
    sk = uid('noh2l')
    I('s_cmp_lg_u32 s3, 0')
    skip_if(sk)
    flags_wait(0, 0, 64)
    flags_wait(1, 192, 64)
    I('v_lshlrev_b32 v2, 9, v1')
    I('s_lshl_b32 s4, s42, 15')
    I(f's_add_u32 s4, s4, {QA + 508}')
    light_poll(lambda r: I(f'buffer_load_dword v{r}, v2, {S(WS)}, s4 offen sc1'), 1, 4, 24 * THR)
    L(sk)
    barrier()
    stamp(6)
    tick(0)
    I('s_lshl_b32 s4, s42, 15')
    I('s_lshl_b32 s5, s3, 12')
    I('s_add_u32 s4, s4, s5')
    I(f's_add_u32 s4, s4, {QA}')
    lab = spin_begin()
    for k in range(4):
        I(f'buffer_load_dwordx4 {vr(148+4*k)}, v13, {S(WS)}, s4 offen offset:{k*1024} sc1')
    I('s_waitcnt vmcnt(0)')
    anysent(range(148, 164), 2)
    spin_end(lab)
    tick(1)
    I('s_lshl_b32 s4, s3, 12')
    I('s_and_b32 s5, s3, 3')
    I('s_lshl_b32 s5, s5, 2')
    for k in range(4):
        I(f's_add_u32 s6, s5, {k}')
        I('v_xor_b32 v2, s6, v1')
        I('v_lshlrev_b32 v2, 4, v2')
        I('v_add_u32 v2, s4, v2')
        I(f'ds_write_b128 v2, {vr(148+4*k)} offset:{L_QT + k*1024}')
    I('v_and_b32 v2, 3, v15')
    I('v_xor_b32 v2, v2, v14')
    I('v_and_b32 v3, 12, v15')
    I('v_or_b32 v2, v2, v3')
    for q in range(4):
        I(f'v_xor_b32 v3, {4*q}, v2')
        I('v_lshlrev_b32 v3, 4, v3')
        I(f'v_lshl_add_u32 v{8+q}, v15, 10, v3')
    I('v_lshlrev_b32 v4, 5, v15')
    I(f'v_add_u32 v4, {L_MX}, v4')
    I('s_lshl_b32 s4, s3, 2')
    I('v_add_u32 v3, s4, v4')
    I('s_waitcnt lgkmcnt(0)')
    tick(2)
    barrier()
    tick(3)
    stamp(7)
    for t in range(16):
        I(f'ds_read_b128 {vr(148+4*t)}, v{8+t%4} offset:{L_QT + (t//4)*256}')
    for t in range(16):
        I(f's_waitcnt lgkmcnt({15 if t else 15})') if False else I('s_waitcnt lgkmcnt(15)')
        c = '0' if t == 0 else 'v[212:215]'
        I(f'v_mfma_f32_16x16x32_bf16 v[212:215], {vr(20+4*t)}, {vr(148+4*t)}, {c}')
        I(f'ds_read_b128 {vr(148+4*t)}, v{8+t%4} offset:{L_QT + 16384 + (t//4)*256}')
    for t in range(16):
        I(f's_waitcnt lgkmcnt({15-t})')
        c = '0' if t == 0 else 'v[216:219]'
        I(f'v_mfma_f32_16x16x32_bf16 v[216:219], {vr(20+4*t)}, {vr(148+4*t)}, {c}')
    tick(4)
    I('v_max_f32 v220, v212, v213')
    I('v_max3_f32 v220, v220, v214, v215')
    allreduce('v_max_f32', 220, 222, skip_row=True)
    I('v_max_f32 v221, v216, v217')
    I('v_max3_f32 v221, v221, v218, v219')
    allreduce('v_max_f32', 221, 222, skip_row=True)
    I('ds_write_b32 v3, v220')
    I('ds_write_b32 v3, v221 offset:512')
    I(f'v_mul_u32_u24 v5, {PTS}, v15')
    I(f'v_add_u32 v5, {L_PT}, v5')
    I('v_lshl_add_u32 v3, v14, 3, v5')
    I('s_lshl_b32 s4, s3, 5')
    I('v_add_u32 v3, s4, v3')
    I('v_lshl_add_u32 v5, v14, 4, v5')
    I('s_waitcnt lgkmcnt(0)')
    tick(5)
    barrier()
    tick(6)
    for ht in range(2):
        I(f'ds_read_b128 {vr(148+8*ht)}, v4 offset:{ht*512}')
        I(f'ds_read_b128 {vr(152+8*ht)}, v4 offset:{ht*512+16}')
    I('s_waitcnt lgkmcnt(0)')
    for ht in range(2):
        q = 148 + 8 * ht
        I(f'v_max3_f32 v{220+ht}, v{q}, v{q+1}, v{q+2}')
        I(f'v_max3_f32 v{220+ht}, v{220+ht}, v{q+3}, v{q+4}')
        I(f'v_max3_f32 v{220+ht}, v{220+ht}, v{q+5}, v{q+6}')
        I(f'v_max_f32 v{220+ht}, v{220+ht}, v{q+7}')
    for ht in range(2):
        for r in range(4):
            I(f'v_sub_f32 v{212+4*ht+r}, v{212+4*ht+r}, v{220+ht}')
    for r in range(8):
        I(f'v_exp_f32 v{212+r}, v{212+r}')
    nop(1)
    for q in range(4):
        I(f'v_cvt_pk_bf16_f32 v{224+q}, v{212+2*q}, v{213+2*q}')
    I('ds_write_b64 v3, v[224:225]')
    I(f'ds_write_b64 v3, v[226:227] offset:{16*PTS}')
    I('v_lshlrev_b32 v2, 15, v15')
    I('v_lshl_add_u32 v2, v14, 4, v2')
    I('s_lshl_b32 s4, s42, 20')
    I('s_lshl_b32 s5, s43, 10')
    I('s_add_u32 s4, s4, s5')
    I('s_lshl_b32 s5, s3, 7')
    I('s_add_u32 s4, s4, s5')
    I(f's_add_u32 s4, s4, {OP}')
    I('s_add_u32 s5, s4, 0x80000')
    I('s_waitcnt lgkmcnt(0)')
    tick(7)
    barrier()
    tick(8)
    for ht in range(2):
        for t in range(4):
            I(f'ds_read_b128 {vr(148+16*ht+4*t)}, v5 offset:{ht*16*PTS + t*64}')
    for ht in range(2):
        for t in range(4):
            I(f's_waitcnt lgkmcnt({7-4*ht-t})')
            for n in range(4):
                acc = 180 + 16 * ht + 4 * n
                c = '0' if t == 0 else vr(acc)
                I(f'v_mfma_f32_16x16x32_bf16 {vr(acc)}, {vr(84+16*n+4*t)}, {vr(148+16*ht+4*t)}, {c}')
    tick(9)
    nop(1)
    for ht in range(2):
        for n in range(4):
            I(f'v_cvt_pk_bf16_f32 v{20+8*ht+2*n}, v{180+16*ht+4*n}, v{181+16*ht+4*n}')
            I(f'v_cvt_pk_bf16_f32 v{21+8*ht+2*n}, v{182+16*ht+4*n}, v{183+16*ht+4*n}')
        for r in range(8): I(f'v_min_u32 v{20+8*ht+r}, 0xfffffffe, v{20+8*ht+r}')
        so = 's4' if ht == 0 else 's5'
        I(f'buffer_store_dwordx4 {vr(20+8*ht)}, v2, {S(WS)}, {so} offen sc1')
        I(f'buffer_store_dwordx4 {vr(24+8*ht)}, v2, {S(WS)}, {so} offen offset:64 sc1')
    tick(10)
    I('s_cmp_gt_u32 s3, 1')
    skip_if('L_p3_done')
    for ht in range(2):
        for t in range(4):
            acc = 36 + 4 * ht
            c = '0' if t == 0 else vr(acc)
            I(f'v_mfma_f32_16x16x32_bf16 {vr(acc)}, v[16:19], {vr(148+16*ht+4*t)}, {c}')
    I('v_lshlrev_b32 v3, 8, v1')
    I('s_lshl_b32 s4, s42, 13')
    I('s_lshl_b32 s5, s3, 12')
    I('s_add_u32 s4, s4, s5')
    I('s_lshl_b32 s5, s43, 3')
    I('s_add_u32 s4, s4, s5')
    I(f's_add_u32 s4, s4, {ML}')
    I('s_cmp_eq_u32 s3, 0')
    I('s_cselect_b64 vcc, -1, 0')
    nop(2)
    I('v_cndmask_b32 v44, v221, v220, vcc')
    I('v_cndmask_b32 v45, v40, v36, vcc')
    I('v_min_u32 v44, 0xfffffffe, v44')
    I('v_min_u32 v45, 0xfffffffe, v45')
    setexec(0xffff)
    I(f'buffer_store_dwordx2 v[44:45], v3, {S(WS)}, s4 offen sc1')
    fullexec()
    L('L_p3_done')
    tick(11)
    tick_dump(12)
    stamp(8)
    role_end('L_p3_real')

def role_DE_common():
    L('L_de')
    C_, WM = 12, 16
    srd(C_, 'c'); srd(WM, 'wmod')
    I('s_sub_u32 s40, s2, 128')
    I('v_lshrrev_b32 v14, 4, v1')
    I('v_and_b32 v15, 15, v1')
    I('v_lshlrev_b32 v13, 4, v1')
    if XSPLIT:
        I('s_and_b32 s4, s40, 63')
        I('s_and_b32 s5, s4, 3')
        I('s_lshr_b32 s6, s4, 3')
        I('s_lshl_b32 s6, s6, 2')
        I('s_add_u32 s42, s6, s5')
        I('s_bfe_u32 s43, s4, 0x10002')
        I('s_mov_b32 s47, 0')
        I('s_cmp_lt_u32 s40, 64')
        I('s_cbranch_scc1 L_dec_done')
        I('s_cmp_ge_u32 s42, 27')
        I('s_cselect_b32 s47, 1, 0')
    else:
        I('s_cmp_ge_u32 s40, 118')
        I('s_cselect_b32 s47, 1, 0')
        I('s_cmp_ge_u32 s40, 64')
        I('s_cbranch_scc1 L_dec_e')
        I('s_lshr_b32 s4, s40, 4')
        I('s_lshl_b32 s4, s4, 3')
        I('s_and_b32 s5, s40, 7')
        I('s_add_u32 s42, s4, s5')
        I('s_bfe_u32 s43, s40, 0x10003')
        I('s_branch L_dec_done')
        L('L_dec_e')
        I('s_sub_u32 s6, s40, 64')
        I('s_lshr_b32 s4, s6, 4')
        I('s_lshl_b32 s4, s4, 3')
        I('s_and_b32 s5, s6, 7')
        I('s_add_u32 s42, s4, s5')
        I('s_bfe_u32 s43, s6, 0x10003')
        I('s_cmp_lt_u32 s6, 48')
        I('s_cbranch_scc1 L_dec_done')
        I('s_sub_u32 s6, s6, 48')
        I('s_cmp_ge_u32 s6, 3')
        I('s_cselect_b32 s43, 1, 0')
        I('s_mul_i32 s4, s43, 3')
        I('s_sub_u32 s6, s6, s4')
        I('s_add_u32 s42, s6, 24')
    L('L_dec_done')
    sk = uid('noclr')
    I('s_cmp_lg_u32 s3, 7')
    I(f's_cbranch_scc1 {sk}')
    for r in range(4, 8): I(f'v_mov_b32 v{r}, -1')
    I('v_lshrrev_b32 v2, 5, v1')
    I('v_lshlrev_b32 v2, 13, v2')
    I('v_bfe_u32 v3, v1, 4, 1')
    I('v_mul_u32_u24 v3, 15360, v3')
    I('v_add_u32 v2, v2, v3')
    I('v_lshl_add_u32 v2, v15, 4, v2')
    I('s_and_b32 s4, s40, 3')
    I('s_mul_i32 s4, s4, 30720')
    I('s_lshr_b32 s5, s40, 2')
    I('s_lshl_b32 s5, s5, 8')
    I('s_add_u32 s4, s4, s5')
    I(f's_add_u32 s4, s4, {MOD}')
    I('s_cmp_lt_u32 s40, 112')
    I('s_cselect_b32 exec_hi, -1, 0')
    I(f'buffer_store_dwordx4 v[4:7], v2, {S(WS)}, s4 offen sc1')
    fullexec()
    I('s_cmp_ge_u32 s40, 64')
    I('s_cbranch_scc1 L_clr_e')
    I('s_lshl_b32 s4, s43, 5')
    I('s_add_u32 s4, s4, s42')
    I('s_mul_i32 s4, s4, 1280')
    I(f's_add_u32 s4, s4, {AP}')
    I(f'buffer_store_dwordx4 v[4:7], v13, {S(WS)}, s4 offen sc1')
    setexec(0xffff)
    I(f'buffer_store_dwordx4 v[4:7], v13, {S(WS)}, s4 offen offset:1024 sc1')
    fullexec()
    I('s_branch L_clr_done')
    L('L_clr_e')
    I('s_cmp_lg_u32 s47, 0')
    I('s_cbranch_scc1 L_clr_done')
    I('s_mul_i32 s4, s43, 27')
    I('s_add_u32 s4, s4, s42')
    I('s_mul_i32 s4, s4, 2560')
    I(f's_add_u32 s4, s4, {FP}')
    I(f'buffer_store_dwordx4 v[4:7], v13, {S(WS)}, s4 offen sc1')
    I(f'buffer_store_dwordx4 v[4:7], v13, {S(WS)}, s4 offen offset:1024 sc1')
    setexec(0xffffffff)
    I(f'buffer_store_dwordx4 v[4:7], v13, {S(WS)}, s4 offen offset:2048 sc1')
    fullexec()
    L('L_clr_done')
    flag_store(0, 8)
    stamp(9, 7)
    L(sk)
    I('s_and_b32 s45, s40, 3')
    I('s_lshr_b32 s46, s40, 2')
    def dma_addr():
        I('v_lshrrev_b32 v2, 3, v1')
        I('v_and_b32 v3, 7, v1')
        I('v_xor_b32 v3, v3, v2')
        I('v_mul_u32_u24 v2, 7680, v2')
        I('v_lshl_add_u32 v2, v3, 4, v2')
        I('s_mul_i32 s4, s45, 1228800')
        I('s_lshl_b32 s5, s46, 7')
        I('s_add_u32 s4, s4, s5')
    def dma_n(n):
        for q in range(n):
            I('s_mov_b32 m0, s5')
            nop(1)
            I(f'buffer_load_dwordx4 v2, {S(WM)}, s4 offen nt lds')
            if q < n - 1:
                I('s_add_u32 s4, s4, 61440')
                I('s_add_u32 s5, s5, 1024')
    def tr_base(wt):
        I('v_lshrrev_b32 v2, 2, v15')
        I('v_lshl_add_u32 v2, v14, 2, v2')
        I('v_and_b32 v3, 7, v2')
        I('v_bfe_u32 v4, v15, 1, 1')
        I('v_xor_b32 v3, v3, v4')
        I('v_lshlrev_b32 v2, 7, v2')
        I('v_and_b32 v4, 1, v15')
        I('v_lshl_add_u32 v2, v4, 3, v2')
        if wt: I(f'v_add_u32 v2, {wt}, v2')
    def st_reads():
        I('v_and_b32 v5, 1, v15')
        I('v_mul_u32_u24 v5, 320, v5')
        I('v_lshl_add_u32 v5, v14, 4, v5')
        for t in range(5):
            I(f'ds_read_b128 {vr(20+4*t)}, v5 offset:{L_ST + t*64}')
    I('s_cmp_gt_u32 s3, 3')
    I('s_cbranch_scc1 L_c_hi')
    dma_addr()
    I('s_mul_i32 s6, s3, 307200')
    I('s_add_u32 s4, s4, s6')
    I('s_mul_i32 s5, s3, 5120')
    dma_n(5)
    tr_base(0)
    I('s_lshl_b32 s6, s3, 1')
    I('v_xor_b32 v4, s6, v3')
    I('v_lshl_add_u32 v8, v4, 4, v2')
    I('v_mul_u32_u24 v9, 15360, v15')
    I('v_lshl_add_u32 v9, v14, 4, v9')
    I('s_mul_i32 s4, s45, 30720')
    I('s_lshl_b32 s5, s46, 8')
    I('s_add_u32 s4, s4, s5')
    I('s_lshl_b32 s5, s3, 6')
    I('s_add_u32 s4, s4, s5')
    I(f's_add_u32 s44, s4, {MOD}')
    I('s_waitcnt vmcnt(0)')
    I('s_branch L_c_bar')
    L('L_c_hi')
    I('s_cmp_gt_u32 s3, 5')
    I('s_cbranch_scc1 L_c_bar')
    I('s_sub_u32 s6, s3, 4')
    I('s_mul_i32 s4, s6, 1280')
    I('s_mul_i32 s5, s45, 320')
    I('s_add_u32 s4, s4, s5')
    I('v_lshlrev_b32 v2, 3, v1')
    I(f'buffer_load_dwordx2 v[4:5], v2, {S(C_)}, s4 offen')
    I('v_lshrrev_b32 v8, 3, v1')
    I('v_and_b32 v9, 3, v1')
    I('v_bfe_u32 v10, v1, 2, 1')
    I('v_lshlrev_b32 v6, 6, v8')
    I('v_lshl_add_u32 v6, v9, 4, v6')
    I('v_lshl_add_u32 v6, v10, 3, v6')
    I('s_mul_i32 s4, s6, 320')
    I(f's_add_u32 s4, s4, {L_ST}')
    I('v_add_u32 v6, s4, v6')
    I(f'v_mov_b32 v12, {L_FC}')
    I('v_mov_b32 v7, 0')
    I('ds_write_b32 v12, v7')
    I('s_waitcnt vmcnt(0)')
    I('v_lshlrev_b32 v8, 16, v4')
    I('v_and_b32 v9, 0xffff0000, v4')
    I('v_lshlrev_b32 v10, 16, v5')
    I('v_and_b32 v11, 0xffff0000, v5')
    for r in range(4): I(f'v_mul_f32 v{16+r}, 0xbfb8aa3b, v{8+r}')
    for r in range(4): I(f'v_exp_f32 v{16+r}, v{16+r}')
    for r in range(4): I(f'v_add_f32 v{16+r}, 1.0, v{16+r}')
    for r in range(4): I(f'v_rcp_f32 v{16+r}, v{16+r}')
    for r in range(4): I(f'v_mul_f32 v{16+r}, v{8+r}, v{16+r}')
    I('v_cvt_pk_bf16_f32 v4, v16, v17')
    I('v_cvt_pk_bf16_f32 v5, v18, v19')
    setexec(0xffffffff, 0xff)
    I('ds_write_b64 v6, v[4:5]')
    fullexec()
    I('s_waitcnt lgkmcnt(0)')
    L('L_c_bar')
    barrier()
    I('s_cmp_gt_u32 s3, 3')
    I('s_cbranch_scc1 L_c_hi2')
    delay(4)
    st_reads()
    for t in range(5):
        I(f'ds_read_b64_tr_b16 {vr(40+4*t,2)}, v8 offset:{t*4096}')
        I(f'ds_read_b64_tr_b16 {vr(42+4*t,2)}, v8 offset:{t*4096+2048}')
    for t in range(5):
        I(f's_waitcnt lgkmcnt({8-2*t})')
        c = '0' if t == 0 else 'v[60:63]'
        I(f'v_mfma_f32_16x16x32_bf16 v[60:63], {vr(40+4*t)}, {vr(20+4*t)}, {c}')
    nop(9)
    for r in range(4): I(f'v_min_u32 v{60+r}, 0xfffffffe, v{60+r}')
    setexec(0x00030003, 0x00030003)
    I(f'buffer_store_dwordx4 v[60:63], v9, {S(WS)}, s44 offen sc1')
    fullexec()
    tag_compute()
    I('s_branch L_c_done')
    L('L_c_hi2')
    tag_compute()
    I('s_cmp_lg_u32 s3, 6')
    I('s_cbranch_scc1 L_c_n6')
    I('s_cmp_lt_u32 s40, 64')
    I('s_cbranch_scc1 L_c_done')
    for r in range(4, 8): I(f'v_mov_b32 v{r}, -1')
    I('s_sub_u32 s6, s40, 64')
    I('s_lshl_b32 s7, s6, 15')
    I(f's_add_u32 s7, s7, {OP}')
    for i in range(32):
        I(f'buffer_store_dwordx4 v[4:7], v13, {S(WS)}, s7 offen offset:{(i%4)*1024} sc1')
        if i % 4 == 3 and i < 31: I('s_add_u32 s7, s7, 4096')
    I('s_lshl_b32 s7, s6, 8')
    I(f's_add_u32 s7, s7, {ML}')
    setexec(0xffff)
    I(f'buffer_store_dwordx4 v[4:7], v13, {S(WS)}, s7 offen sc1')
    fullexec()
    flag_store(1, 8)
    stamp(10, 6)
    I('s_branch L_c_done')
    L('L_c_n6')
    if EGATE or W1GATE:
        I('s_cmp_lg_u32 s3, 4')
        I('s_cbranch_scc1 L_c_n4')
        flags_wait(2, 0, 64, 2)
        I(f'v_mov_b32 v4, {L_FC}')
        I('v_mov_b32 v5, 1')
        I('ds_write_b32 v4, v5')
        I('s_waitcnt lgkmcnt(0)')
        I('s_branch L_c_done')
        L('L_c_n4')
    I('s_cmp_lg_u32 s3, 5')
    I('s_cbranch_scc1 L_c_done')
    I('s_cmp_ge_u32 s40, 112')
    I('s_cbranch_scc1 L_c_done')
    if W1GATE: lds_gate()
    I('s_add_u32 s46, s46, 32')
    dma_addr()
    I(f's_mov_b32 s5, {L_WT1}')
    dma_n(20)
    st_reads()
    tr_base(L_WT1)
    for n in range(4):
        I(f'v_xor_b32 v4, {2*n}, v3')
        I(f'v_lshl_add_u32 v{8+n}, v4, 4, v2')
    I('s_waitcnt vmcnt(0)')
    for n in range(4):
        for t in range(5):
            I(f'ds_read_b64_tr_b16 {vr(40+20*n+4*t,2)}, v{8+n} offset:{t*4096}')
            I(f'ds_read_b64_tr_b16 {vr(42+20*n+4*t,2)}, v{8+n} offset:{t*4096+2048}')
    I('s_waitcnt lgkmcnt(0)')
    for t in range(5):
        for n in range(4):
            c = '0' if t == 0 else vr(120 + 4 * n)
            I(f'v_mfma_f32_16x16x32_bf16 {vr(120+4*n)}, {vr(40+20*n+4*t)}, {vr(20+4*t)}, {c}')
    nop(9)
    for r in range(16): I(f'v_min_u32 v{120+r}, 0xfffffffe, v{120+r}')
    I('v_mul_u32_u24 v2, 15360, v15')
    I('v_lshl_add_u32 v2, v14, 4, v2')
    I('s_mul_i32 s4, s45, 30720')
    I('s_lshl_b32 s5, s46, 8')
    I('s_add_u32 s4, s4, s5')
    I(f's_add_u32 s4, s4, {MOD}')
    setexec(0x00030003, 0x00030003)
    for n in range(4):
        I(f'buffer_store_dwordx4 {vr(120+4*n)}, v2, {S(WS)}, s4 offen offset:{n*64} sc1')
    fullexec()
    L('L_c_done')
    stamp(1)
    I('s_cmp_ge_u32 s40, 64')
    I('s_cbranch_scc1 L_role_e')

def role_D():
    WUV, WO = 20, 24
    srd(WUV, 'wuv'); srd(WO, 'wo')
    make_masks(16, True)
    make_masks4(244, 1)
    delay(5)
    if SLOWN == 0: lds_gate()
    I('v_lshlrev_b32 v2, 17, v14')
    I('v_lshl_add_u32 v2, v15, 4, v2')
    I('s_lshl_b32 s4, s3, 19')
    I('s_lshl_b32 s5, s42, 8')
    I('s_add_u32 s4, s4, s5')
    for t in range(16):
        I(f'buffer_load_dwordx4 {vr(20+4*t)}, v2, {S(WUV)}, s4 offen nt')
        if t < 15: I('s_add_u32 s4, s4, 8192')
    I('s_mul_i32 s5, s42, 163840')
    I('s_cmp_gt_u32 s3, 3')
    I('s_cbranch_scc1 L_d_hi')
    I('v_mul_u32_u24 v3, 40960, v14')
    I('v_lshl_add_u32 v3, v15, 4, v3')
    I('s_lshl_b32 s6, s3, 8')
    I('s_add_u32 s5, s5, s6')
    for t in range(32):
        I(f'buffer_load_dwordx4 {vr(84+4*t)}, v3, {S(WO)}, s5 offen offset:{(t%3)*1280} nt')
        if t % 3 == 2: I('s_add_u32 s5, s5, 3840')
    I('s_waitcnt vmcnt(0)')
    pairperm([(20 + 8 * p, 24 + 8 * p) for p in range(24)], 6)
    I('s_branch L_d_main')
    L('L_d_hi')
    I('v_mul_u32_u24 v3, 10240, v14')
    I('v_lshl_add_u32 v3, v15, 4, v3')
    I('s_sub_u32 s6, s3, 4')
    I('s_mul_i32 s6, s6, 40960')
    I('s_add_u32 s5, s5, s6')
    I('s_add_u32 s5, s5, 1024')
    for t in range(8):
        I(f'buffer_load_dwordx4 {vr(84+4*t)}, v3, {S(WO)}, s5 offen offset:{(t%3)*1280} nt')
        if t % 3 == 2: I('s_add_u32 s5, s5, 3840')
    I('s_waitcnt vmcnt(0)')
    pairperm([(20 + 8 * p, 24 + 8 * p) for p in range(12)], 6)
    L('L_d_main')
    stamp(2)
    I('v_and_b32 v2, 31, v1')
    I('v_lshlrev_b32 v2, 3, v2')
    I('s_lshl_b32 s4, s43, 5')
    I('s_add_u32 s4, s4, s42')
    I('s_lshl_b32 s5, s4, 8')
    I(f's_add_u32 s5, s5, {ML}')
    sk = uid('nolp')
    I('s_cmp_lg_u32 s3, 4')
    I(f's_cbranch_scc1 {sk}')
    I('v_mov_b32 v12, v2')
    flags_wait(1, 192, 64)
    I('v_mov_b32 v2, v12')
    light_poll(lambda r: I(f'buffer_load_dwordx2 v[{r}:{r+1}], v2, {S(WS)}, s5 offen sc1'), 2, 120, 24 * THR)
    L(sk)
    barrier()
    stamp(6)
    sk = uid('noz')
    I('s_cmp_lt_u32 s3, 4')
    I(f's_cbranch_scc1 {sk}')
    I('v_lshlrev_b32 v3, 13, v14')
    I('v_lshl_add_u32 v3, v15, 4, v3')
    I('s_lshl_b32 s6, s4, 15')
    I('s_sub_u32 s46, s3, 4')
    I('s_lshl_b32 s7, s46, 8')
    I('s_add_u32 s6, s6, s7')
    I(f's_add_u32 s48, s6, {OP}')
    I('s_add_u32 s49, s48, 4096')
    lab = spin_begin()
    I(f'buffer_load_dwordx2 v[4:5], v2, {S(WS)}, s5 offen sc1')
    for t in range(8):
        I(f'buffer_load_dwordx4 {vr(164+4*t)}, v3, {S(WS)}, s{48+t//4} offen offset:{(t%4)*1024} sc1')
    I('s_waitcnt vmcnt(0)')
    anysent([4, 5] + list(range(164, 196)), 6)
    spin_end(lab)
    stamp(3, 4)
    I('v_mov_b32 v6, v4')
    allreduce('v_max_f32', 6, 7, half=True)
    I('v_sub_f32 v4, v4, v6')
    I('v_exp_f32 v4, v4')
    I('v_lshlrev_b32 v2, 2, v1')
    I(f's_add_u32 s7, s7, {L_D_WD}')
    I('v_add_u32 v2, s7, v2')
    I('v_cvt_pk_bf16_f32 v8, v4, v4')
    I('ds_write_b32 v2, v8')
    I('v_and_b32 v4, 0xffff0000, v8')
    I('v_mul_f32 v5, v4, v5')
    I('v_lshlrev_b32 v2, 5, v14')
    I('v_add_u32 v2, s7, v2')
    I('s_waitcnt lgkmcnt(0)')
    for q in range(2):
        I(f'ds_read_b128 {vr(196+4*q)}, v2 offset:{q*16}')
    allreduce('v_add_f32', 5, 7, half=True)
    I('v_rcp_f32 v5, v5')
    I('v_lshlrev_b32 v2, 4, v15')
    I('v_lshl_add_u32 v2, v14, 3, v2')
    I('s_lshl_b32 s4, s46, 8')
    I(f's_add_u32 s4, s4, {L_D_CD}')
    I('v_add_u32 v2, s4, v2')
    I('s_waitcnt lgkmcnt(0)')
    gemv_diag(8, lambda t: 196 + t, 16, [204, 208], lambda blk, t: 164 + 4 * t, [8])
    for r in range(4):
        I(f'v_mul_f32 v{8+r}, v{8+r}, v5')
    I('v_cvt_pk_bf16_f32 v8, v8, v9')
    I('v_cvt_pk_bf16_f32 v9, v10, v11')
    setexec(0xffffffff)
    I('ds_write_b64 v2, v[8:9]')
    fullexec()
    L(sk)
    I('v_lshlrev_b32 v2, 5, v14')
    I('s_lshl_b32 s4, s3, 7')
    I(f's_add_u32 s4, s4, {L_D_CD}')
    I('v_add_u32 v2, s4, v2')
    I('s_lshl_b32 s4, s3, 9')
    I(f's_add_u32 s4, s4, {L_D_RED}')
    I('v_add_u32 v3, s4, v13')
    I('s_waitcnt lgkmcnt(0)')
    barrier()
    stamp(4)
    for q in range(2):
        I(f'ds_read_b128 {vr(212+4*q)}, v2 offset:{q*16}')
    I('s_waitcnt lgkmcnt(0)')
    gemv_pair(8, lambda p: 212 + p, 244, [228, 232], lambda blk, t: 20 + 4 * t, [236], [240])
    setexec(0xffff)
    I('ds_write_b128 v3, v[236:239]')
    I('ds_write_b128 v3, v[240:243] offset:256')
    fullexec()
    I('s_waitcnt lgkmcnt(0)')
    barrier()
    sk = uid('nored')
    I('s_cmp_lg_u32 s3, 0')
    I(f's_cbranch_scc1 {sk}')
    I('v_lshlrev_b32 v3, 3, v1')
    I(f'v_add_u32 v3, {L_D_RED}, v3')
    I('v_add_u32 v2, 2048, v3')
    setexec(0xffffffff)
    for w in range(8):
        ad = 'v3' if w < 4 else 'v2'
        I(f'ds_read2_b64 {vr(20+4*w)}, {ad} offset0:{(w%4)*64} offset1:{(w%4)*64+32}')
    I('v_lshlrev_b32 v3, 3, v1')
    I(f'v_add_u32 v3, {L_D_CD}, v3')
    I('s_waitcnt lgkmcnt(0)')
    for st in (1, 2, 4):
        for w in range(0, 8, 2 * st):
            I(f'v_pk_add_f32 {vr(20+4*w,2)}, {vr(20+4*w,2)}, {vr(20+4*(w+st),2)}')
            I(f'v_pk_add_f32 {vr(22+4*w,2)}, {vr(22+4*w,2)}, {vr(22+4*(w+st),2)}')
    I('v_cvt_pk_bf16_f32 v20, v20, v22')
    I('v_cvt_pk_bf16_f32 v21, v21, v23')
    I('ds_write_b64 v3, v[20:21]')
    fullexec()
    I('s_waitcnt lgkmcnt(0)')
    L(sk)
    I('s_lshl_b32 s4, s43, 5')
    I('s_add_u32 s4, s4, s42')
    I('s_mul_i32 s4, s4, 1280')
    I(f's_add_u32 s4, s4, {AP}')
    barrier()
    delay(2)
    I('s_cmp_gt_u32 s3, 3')
    I('s_cbranch_scc1 L_d_hi2')
    I('v_lshlrev_b32 v2, 6, v14')
    I(f'v_add_u32 v2, {L_D_CD}, v2')
    for q in range(4):
        I(f'ds_read_b128 {vr(212+4*q)}, v2 offset:{q*16}')
    I('s_lshl_b32 s5, s3, 8')
    I('s_add_u32 s4, s4, s5')
    I('s_waitcnt lgkmcnt(0)')
    gemv_pair(16, lambda p: 212 + p, 244, [228, 232], lambda blk, t: 84 + 4 * t, [236], [240])
    for r in range(4):
        I(f'v_cvt_pk_bf16_f32 v{236+r}, v{236+r}, v{240+r}')
        I(f'v_min_u32 v{236+r}, 0xfffffffe, v{236+r}')
    setexec(0xffff)
    I(f'buffer_store_dwordx4 v[236:239], v13, {S(WS)}, s4 offen sc1')
    fullexec()
    stamp(5)
    barrier()
    I('s_branch L_end')
    L('L_d_hi2')
    I('v_lshlrev_b32 v2, 4, v14')
    I('s_lshl_b32 s5, s46, 6')
    I(f's_add_u32 s5, s5, {L_D_CD}')
    I('v_add_u32 v2, s5, v2')
    I('ds_read_b128 v[212:215], v2')
    I('s_lshl_b32 s5, s46, 9')
    I(f's_add_u32 s5, s5, {L_D_RED}')
    I('v_add_u32 v3, s5, v13')
    I('s_waitcnt lgkmcnt(0)')
    gemv_pair(4, lambda p: 212 + p, 244, [228, 232], lambda blk, t: 84 + 4 * t, [236], [240])
    setexec(0xffff)
    I('ds_write_b128 v3, v[236:239]')
    I('ds_write_b128 v3, v[240:243] offset:256')
    fullexec()
    I('s_waitcnt lgkmcnt(0)')
    barrier()
    I('s_cmp_lg_u32 s3, 4')
    I('s_cbranch_scc1 L_end')
    I(f'v_add_u32 v3, {L_D_RED}, v13')
    setexec(0xffff)
    for w in range(4):
        I(f'ds_read_b128 {vr(20+8*w)}, v3 offset:{w*512}')
        I(f'ds_read_b128 {vr(24+8*w)}, v3 offset:{w*512+256}')
    I('s_waitcnt lgkmcnt(0)')
    for q in range(4):
        I(f'v_pk_add_f32 {vr(20+2*q,2)}, {vr(20+2*q,2)}, {vr(28+2*q,2)}')
        I(f'v_pk_add_f32 {vr(36+2*q,2)}, {vr(36+2*q,2)}, {vr(44+2*q,2)}')
        I(f'v_pk_add_f32 {vr(20+2*q,2)}, {vr(20+2*q,2)}, {vr(36+2*q,2)}')
    for r in range(4):
        I(f'v_cvt_pk_bf16_f32 v{20+r}, v{20+r}, v{24+r}')
        I(f'v_min_u32 v{20+r}, 0xfffffffe, v{20+r}')
    I(f'buffer_store_dwordx4 v[20:23], v13, {S(WS)}, s4 offen offset:1024 sc1')
    fullexec()
    stamp(7, 4)
    I('s_branch L_end')

def role_E():
    L('L_role_e')
    WG, WU, WD, X_, OUT = 20, 24, 28, 32, 36
    srd(WG, 'wg'); srd(WU, 'wu'); srd(WD, 'wd'); srd(X_, 'x'); srd(OUT, 'out')
    make_masks(16, True)
    make_masks4(240, 1)
    L('L_e_init')
    delay(6)
    if EGATE: lds_gate()
    I('s_cmp_lg_u32 s47, 0')
    I('s_cbranch_scc1 L_end')
    I('v_mul_u32_u24 v2, 69120, v14')
    I('v_and_b32 v3, 7, v15')
    I('v_lshl_add_u32 v2, v3, 4, v2')
    I('s_mul_i32 s4, s3, 276480')
    I('s_lshl_b32 s5, s42, 7')
    I('s_add_u32 s4, s4, s5')
    I('s_mov_b32 s6, 0x00ff00ff')
    I('s_mov_b32 s7, 0x00ff00ff')
    I('s_mov_b32 s48, 0xff00ff00')
    I('s_mov_b32 s49, 0xff00ff00')
    lds = []
    for t in range(20):
        lds.append(([] if t == 0 else ['s_add_u32 s4, s4, 3456']) + ['s_mov_b64 exec, s[6:7]',
                   f'buffer_load_dwordx4 {vr(20+4*t)}, v2, {S(WG)}, s4 offen nt'])
        lds.append(['s_mov_b64 exec, s[48:49]', f'buffer_load_dwordx4 {vr(20+4*t)}, v2, {S(WU)}, s4 offen nt'])
    paced(lds, 2 * EPACE)
    fullexec()
    I('s_mul_i32 s4, s42, 81920')
    I('s_cmp_gt_u32 s3, 3')
    I('s_cbranch_scc1 L_e_hi')
    I('v_mul_u32_u24 v2, 20480, v14')
    I('v_lshl_add_u32 v2, v15, 4, v2')
    I('s_lshl_b32 s5, s3, 8')
    I('s_add_u32 s4, s4, s5')
    for t in range(16):
        I(f'buffer_load_dwordx4 {vr(100+4*t)}, v2, {S(WD)}, s4 offen nt')
        if t < 15: I('s_add_u32 s4, s4, 1280')
    I('s_waitcnt vmcnt(0)')
    pairperm([(20 + 8 * p, 24 + 8 * p) for p in range(18)], 6)
    I('s_branch L_e_main')
    L('L_e_hi')
    I('v_mul_u32_u24 v2, 5120, v14')
    I('v_lshl_add_u32 v2, v15, 4, v2')
    I('s_sub_u32 s5, s3, 4')
    I('s_mul_i32 s5, s5, 20480')
    I('s_add_u32 s4, s4, s5')
    I('s_add_u32 s4, s4, 1024')
    for t in range(4):
        I(f'buffer_load_dwordx4 {vr(100+4*t)}, v2, {S(WD)}, s4 offen nt')
        if t < 3: I('s_add_u32 s4, s4, 1280')
    I('s_waitcnt vmcnt(0)')
    pairperm([(20 + 8 * p, 24 + 8 * p) for p in range(12)], 6)
    if DRY:
        I('s_cmp_lg_u32 s3, 7')
        I('s_cbranch_scc1 L_e_main')
        enter_dry('L_e_main')
    L('L_e_main')
    sk = uid('nofw')
    I('s_cmp_lg_u32 s3, 0')
    skip_if(sk)
    flags_wait(0)
    L(sk)
    barrier()
    stamp(2)
    I('v_and_b32 v2, 1, v14')
    I('v_lshlrev_b32 v2, 2, v2')
    I('v_lshl_add_u32 v2, v15, 3, v2')
    I('s_lshl_b32 s4, s3, 7')
    I('v_add_u32 v12, s4, v2')
    sk5 = uid('w5')
    I('s_cmp_gt_u32 s3, 4')
    skip_if(sk5)
    I('v_lshlrev_b32 v2, 1, v12')
    I('s_mul_i32 s4, s43, 1280')
    I(f'buffer_load_dwordx2 v[4:5], v2, {S(X_)}, s4 offen')
    I('v_lshlrev_b32 v2, 2, v12')
    I('s_mul_i32 s4, s43, 15360')
    I(f's_add_u32 s48, s4, {MOD + 2*2560}')
    for i in range(1, 12):
        p, kq = i % 3, i // 3
        I(f's_add_u32 s{48+i}, s48, {p*2560 + kq*30720}')
    lab = spin_begin()
    for i in range(12):
        I(f'buffer_load_dwordx4 {vr(164+4*i)}, v2, {S(WS)}, s{48+i} offen sc1')
    I('s_waitcnt vmcnt(0)')
    anysent(range(164, 212), 6)
    spin_end(lab)
    for p in range(3):
        for r in range(4):
            a = 164 + 4 * p + r
            I(f'v_add_f32 v{a}, v{a}, v{a+12}')
            I(f'v_add_f32 v{a+24}, v{a+24}, v{a+36}')
            I(f'v_add_f32 v{a}, v{a}, v{a+24}')
            bfround(a)
    I('v_lshlrev_b32 v176, 16, v4')
    I('v_and_b32 v177, 0xffff0000, v4')
    I('v_lshlrev_b32 v178, 16, v5')
    I('v_and_b32 v179, 0xffff0000, v5')
    for r in range(4):
        I(f'v_add_f32 v{172+r}, 1.0, v{172+r}')
        bfround(172 + r)
    for d in range(4): I(f'v_and_b32 v{204+d}, 0x3f803f80, v{16+d}')
    I('v_mul_u32_u24 v3, 10240, v14')
    I('v_lshl_add_u32 v3, v15, 4, v3')
    I('s_mul_i32 s4, s43, 40960')
    I('s_lshl_b32 s5, s3, 8')
    I('s_add_u32 s4, s4, s5')
    I(f's_add_u32 s4, s4, {AP}')
    I('s_add_u32 s5, s4, 3840')
    I('s_add_u32 s6, s4, 7680')
    L(sk5)
    sk = uid('nolp')
    I('s_cmp_lg_u32 s3, 5')
    skip_if(sk)
    I('v_and_b32 v2, 31, v1')
    I('v_mul_u32_u24 v2, 1280, v2')
    I('s_mul_i32 s4, s43, 40960')
    I(f's_add_u32 s4, s4, {AP + 1276}')
    light_poll(lambda r: I(f'buffer_load_dword v{r}, v2, {S(WS)}, s4 offen sc1'), 1, 4, 24 * THR)
    L(sk)
    barrier()
    stamp(6)
    tick(0)
    sk5 = uid('w5a')
    I('s_cmp_gt_u32 s3, 4')
    skip_if(sk5)
    lab = spin_begin()
    for t in range(8):
        so = ['s4', 's5', 's6'][t // 3]
        I(f'buffer_load_dwordx4 {vr(208+4*t)}, v3, {S(WS)}, {so} offen offset:{(t%3)*1280} sc1')
    I('s_waitcnt vmcnt(0)')
    anysent(range(208, 240), 6)
    spin_end(lab)
    stamp(3)
    tick(1)
    for t in range(8):
        c = '0' if t == 0 else 'v[180:183]'
        I(f'v_mfma_f32_16x16x32_bf16 v[180:183], v[204:207], {vr(208+4*t)}, {c}')
    nop(9)
    for r in range(4):
        bfround(180 + r)
        I(f'v_mul_f32 v{180+r}, v{164+r}, v{180+r}')
        bfround(180 + r)
        I(f'v_add_f32 v{180+r}, v{176+r}, v{180+r}')
        bfround(180 + r)
    tick(2)
    I('v_cmp_gt_u32 vcc, 32, v1')
    I('v_add_f32 v6, v180, v181')
    I('v_add_f32 v7, v182, v183')
    I('v_add_f32 v6, v6, v7')
    I('v_cndmask_b32 v6, 0, v6, vcc')
    allreduce('v_add_f32', 6, 7)
    I('v_mul_f32 v6, 0x3c000000, v6')
    for r in range(4): I(f'v_sub_f32 v{184+r}, v{180+r}, v6')
    I('v_mul_f32 v8, v184, v184')
    for r in range(1, 4): I(f'v_fmac_f32 v8, v{184+r}, v{184+r}')
    I('v_cndmask_b32 v8, 0, v8, vcc')
    allreduce('v_add_f32', 8, 7)
    I('v_mov_b32 v7, v8')
    I('s_lshl_b32 s4, s3, 3')
    I(f's_add_u32 s4, s4, {L_E_STAT}')
    I('v_mov_b32 v2, s4')
    I('v_lshlrev_b32 v3, 2, v12')
    I(f'v_add_u32 v3, {L_E_X1}, v3')
    setexec(1)
    I('ds_write_b64 v2, v[6:7]')
    setexec(0xffffffff)
    I('ds_write_b128 v3, v[180:183]')
    fullexec()
    I('s_waitcnt lgkmcnt(0)')
    L(sk5)
    tick(3)
    barrier()
    tick(4)
    sk5 = uid('w5b')
    I('s_cmp_gt_u32 s3, 4')
    skip_if(sk5)
    I(f'v_mov_b32 v2, {L_E_STAT}')
    I('ds_read_b128 v[184:187], v2')
    I('ds_read_b128 v[188:191], v2 offset:16')
    I('ds_read_b64 v[192:193], v2 offset:32')
    I('s_waitcnt lgkmcnt(0)')
    I('v_add_f32 v6, v184, v186')
    I('v_add_f32 v6, v6, v188')
    I('v_add_f32 v6, v6, v190')
    I('v_add_f32 v6, v6, v192')
    I('v_mul_f32 v6, 0x3e4ccccd, v6')
    I('v_add_f32 v7, v185, v187')
    I('v_add_f32 v7, v7, v189')
    I('v_add_f32 v7, v7, v191')
    I('v_add_f32 v7, v7, v193')
    for k in range(5):
        I(f'v_sub_f32 v8, v{184+2*k}, v6')
        I('v_mul_f32 v8, v8, v8')
        I('v_fmac_f32 v7, 0x43000000, v8')
    I('v_mul_f32 v7, 0x3acccccd, v7')
    bfround(6); bfround(7)
    I('v_add_f32 v7, 0x3727c5ac, v7')
    bfround(7)
    I('v_sqrt_f32 v7, v7')
    nop(1)
    bfround(7)
    I('v_rcp_f32 v7, v7')
    for r in range(4):
        I(f'v_sub_f32 v{184+r}, v{180+r}, v6')
        bfround(184 + r)
        I(f'v_mul_f32 v{184+r}, v{184+r}, v7')
        bfround(184 + r)
        I(f'v_mul_f32 v{184+r}, v{184+r}, v{172+r}')
        bfround(184 + r)
        I(f'v_add_f32 v{184+r}, v{184+r}, v{168+r}')
    I('v_cvt_pk_bf16_f32 v184, v184, v185')
    I('v_cvt_pk_bf16_f32 v185, v186, v187')
    I('v_lshlrev_b32 v3, 1, v12')
    I(f'v_add_u32 v3, {L_E_HT}, v3')
    setexec(0xffffffff)
    I('ds_write_b64 v3, v[184:185]')
    fullexec()
    I('s_waitcnt lgkmcnt(0)')
    L(sk5)
    tick(5)
    barrier()
    tick(6)
    stamp(4)
    I('v_mul_u32_u24 v2, 40, v14')
    I('s_mul_i32 s4, s3, 160')
    I(f's_add_u32 s4, s4, {L_E_HT}')
    I('v_add_u32 v2, s4, v2')
    for q in range(5):
        I(f'ds_read_b64 {vr(164+2*q,2)}, v2 offset:{q*8}')
    I('s_lshl_b32 s4, s3, 9')
    I(f's_add_u32 s4, s4, {L_E_RED}')
    I('v_add_u32 v3, s4, v13')
    I('s_waitcnt lgkmcnt(0)')
    gemv_pair(10, lambda p: 164 + p, 240, [204, 208], lambda blk, t: 20 + 4 * t, [212], [216])
    setexec(0xffff)
    I('ds_write_b128 v3, v[212:215]')
    I('ds_write_b128 v3, v[216:219] offset:256')
    fullexec()
    I('s_waitcnt lgkmcnt(0)')
    tick(7)
    barrier()
    tick(8)
    sk = uid('nohh')
    I('s_cmp_lg_u32 s3, 0')
    skip_if(sk)
    I('v_lshrrev_b32 v2, 5, v1')
    I('v_and_b32 v3, 31, v1')
    I('v_lshlrev_b32 v3, 2, v3')
    I('v_lshl_add_u32 v3, v2, 8, v3')
    I(f'v_add_u32 v3, {L_E_RED}, v3')
    for w in range(8):
        I(f'ds_read2_b32 {vr(164+2*w,2)}, v3 offset0:{(w%2)*128} offset1:{(w%2)*128+32}' if w < 2 else
          f'ds_read2_b32 {vr(164+2*w,2)}, v{4+w//2} offset0:{(w%2)*128} offset1:{(w%2)*128+32}')
        if w % 2 == 1 and w < 7: I(f'v_add_u32 v{5+w//2}, {1024*(w//2+1)}, v3')
    I('v_and_b32 v3, 31, v1')
    I('v_lshlrev_b32 v3, 2, v3')
    I('v_lshl_add_u32 v3, v2, 1, v3')
    I(f'v_add_u32 v3, {L_E_HH}, v3')
    I('s_waitcnt lgkmcnt(0)')
    for st in (1, 2, 4):
        for w in range(0, 8, 2 * st):
            I(f'v_pk_add_f32 {vr(164+2*w,2)}, {vr(164+2*w,2)}, {vr(164+2*(w+st),2)}')
    I('v_cvt_pk_bf16_f32 v166, v164, v165')
    I('v_lshlrev_b32 v164, 16, v166')
    I('v_and_b32 v165, 0xffff0000, v166')
    I('v_mul_f32 v164, 0xbfb8aa3b, v164')
    I('v_exp_f32 v164, v164')
    nop(1)
    I('v_add_f32 v164, 1.0, v164')
    I('v_rcp_f32 v164, v164')
    nop(1)
    bfround(164)
    I('v_mul_f32 v164, v164, v165')
    I('v_cvt_pk_bf16_f32 v164, v164, v164')
    I('ds_write_b16 v3, v164')
    I('s_waitcnt lgkmcnt(0)')
    L(sk)
    I('s_mul_i32 s4, s43, 27')
    I('s_add_u32 s4, s4, s42')
    I('s_mul_i32 s4, s4, 2560')
    I(f's_add_u32 s4, s4, {FP}')
    tick(9)
    barrier()
    delay(3)
    tick(10)
    I('s_cmp_gt_u32 s3, 3')
    I('s_cbranch_scc1 L_e_hi2')
    I('v_lshlrev_b32 v2, 5, v14')
    I(f'v_add_u32 v2, {L_E_HH}, v2')
    for q in range(2):
        I(f'ds_read_b128 {vr(164+4*q)}, v2 offset:{q*16}')
    I('s_lshl_b32 s5, s3, 9')
    I('s_add_u32 s4, s4, s5')
    I('s_waitcnt lgkmcnt(0)')
    gemv_pair(8, lambda p: 164 + p, 240, [204, 208], lambda blk, t: 100 + 4 * t, [212], [216])
    for r in range(8): I(f'v_min_u32 v{212+r}, 0xfffffffe, v{212+r}')
    setexec(0xffff)
    I(f'buffer_store_dwordx4 v[212:215], v13, {S(WS)}, s4 offen sc1')
    I(f'buffer_store_dwordx4 v[216:219], v13, {S(WS)}, s4 offen offset:256 sc1')
    fullexec()
    tick(11)
    tick_dump(12)
    stamp(5)
    barrier()
    I('s_branch L_end')
    L('L_e_hi2')
    I('s_sub_u32 s46, s3, 4')
    I('v_lshlrev_b32 v2, 3, v14')
    I('s_lshl_b32 s5, s46, 5')
    I(f's_add_u32 s5, s5, {L_E_HH}')
    I('v_add_u32 v2, s5, v2')
    I('ds_read_b64 v[164:165], v2')
    I('s_lshl_b32 s5, s46, 9')
    I(f's_add_u32 s5, s5, {L_E_RED}')
    I('v_add_u32 v3, s5, v13')
    I('s_waitcnt lgkmcnt(0)')
    gemv_pair(2, lambda p: 164 + p, 240, [204, 208], lambda blk, t: 100 + 4 * t, [212], [216])
    setexec(0xffff)
    I('ds_write_b128 v3, v[212:215]')
    I('ds_write_b128 v3, v[216:219] offset:256')
    fullexec()
    I('s_waitcnt lgkmcnt(0)')
    barrier()
    I('s_cmp_lg_u32 s3, 4')
    I('s_cbranch_scc1 L_final')
    I(f'v_add_u32 v3, {L_E_RED}, v13')
    setexec(0xffff)
    for w in range(4):
        I(f'ds_read_b128 {vr(20+8*w)}, v3 offset:{w*512}')
        I(f'ds_read_b128 {vr(24+8*w)}, v3 offset:{w*512+256}')
    I('s_waitcnt lgkmcnt(0)')
    for q in range(4):
        I(f'v_pk_add_f32 {vr(20+2*q,2)}, {vr(20+2*q,2)}, {vr(28+2*q,2)}')
        I(f'v_pk_add_f32 {vr(36+2*q,2)}, {vr(36+2*q,2)}, {vr(44+2*q,2)}')
        I(f'v_pk_add_f32 {vr(20+2*q,2)}, {vr(20+2*q,2)}, {vr(36+2*q,2)}')
    for r in range(8): I(f'v_min_u32 v{20+r}, 0xfffffffe, v{20+r}')
    I('s_add_u32 s4, s4, 2048')
    I(f'buffer_store_dwordx4 v[20:23], v13, {S(WS)}, s4 offen sc1')
    I(f'buffer_store_dwordx4 v[24:27], v13, {S(WS)}, s4 offen offset:256 sc1')
    fullexec()
    I('s_branch L_end')
    L('L_final')
    I('s_cmp_lg_u32 s3, 5')
    skip_if('L_end')
    I('s_cmp_ge_u32 s42, 10')
    skip_if('L_end')
    I('s_lshl_b32 s4, s42, 6')
    I('v_add_u32 v12, s4, v1')
    I('v_lshlrev_b32 v2, 2, v12')
    I(f'v_add_u32 v3, {L_E_X1}, v2')
    I('ds_read_b32 v10, v3')
    I('v_lshrrev_b32 v4, 7, v12')
    I('v_lshlrev_b32 v4, 9, v4')
    I('v_and_b32 v5, 1, v12')
    I('v_lshl_add_u32 v4, v5, 8, v4')
    I('v_bfe_u32 v5, v12, 3, 4')
    I('v_lshl_add_u32 v4, v5, 4, v4')
    I('v_bfe_u32 v5, v12, 1, 2')
    I('v_lshl_add_u32 v4, v5, 2, v4')
    I('s_mul_i32 s4, s43, 15360')
    I(f's_add_u32 s4, s4, {MOD + 5*2560}')
    I('s_mul_i32 s5, s43, 69120')
    I(f's_add_u32 s5, s5, {FP}')
    lab = spin_begin()
    I('s_mov_b32 s6, s4')
    for kq in range(4):
        I(f'buffer_load_dword v{48+kq}, v2, {S(WS)}, s6 offen sc1')
        if kq < 3: I('s_add_u32 s6, s6, 30720')
    I('s_waitcnt vmcnt(0)')
    anysent(list(range(48, 52)), 6)
    spin_end(lab)
    for p in range(9): I(f's_add_u32 s{48+p}, s5, {p*7680}')
    def fissue(base):
        for p in range(27):
            I(f'buffer_load_dword v{base+p}, v4, {S(WS)}, s{48+p//3} offen offset:{(p%3)*2560 if (p%3)*2560 < 4096 else 0} sc1'
              if p % 3 < 2 else f'buffer_load_dword v{base+p}, v5, {S(WS)}, s{48+p//3} offen sc1')
    I('v_add_u32 v5, 5120, v4')
    I('s_mov_b32 s98, 0')
    fissue(20)
    I('s_sleep 6')
    L('L_fin_top')
    fissue(60)
    I('s_waitcnt vmcnt(27)')
    anysent(list(range(20, 47)), 6)
    I('s_cbranch_vccz L_fin_done')
    fissue(20)
    I('s_waitcnt vmcnt(27)')
    anysent(list(range(60, 87)), 6)
    I('s_cbranch_vccz L_fin_b')
    I('s_add_u32 s98, s98, 1')
    I(f's_cmp_gt_u32 s98, {SPIN_LIMIT}')
    I('s_cbranch_scc1 L_end')
    I('s_branch L_fin_top')
    L('L_fin_b')
    I('s_waitcnt vmcnt(0)')
    for p in range(27): I(f'v_mov_b32 v{20+p}, v{60+p}')
    L('L_fin_done')
    I('v_add_f32 v11, v48, v49')
    I('v_add_f32 v50, v50, v51')
    I('v_add_f32 v11, v11, v50')
    bfround(11)
    for p in range(1, 27): I(f'v_add_f32 v20, v20, v{20+p}')
    bfround(20)
    I('v_mul_f32 v20, v11, v20')
    bfround(20)
    I('s_waitcnt lgkmcnt(0)')
    I('v_add_f32 v20, v10, v20')
    I('v_cvt_pk_bf16_f32 v20, v20, v20')
    I('v_lshlrev_b32 v2, 1, v12')
    I('s_mul_i32 s4, s43, 1280')
    I(f'buffer_store_short v20, v2, {S(OUT)}, s4 offen')
    stamp(7, 5)
    if DBGT:
        I('s_memrealtime s[60:61]')
        I('s_mov_b32 s20, s90')
        I('s_and_b32 s21, s91, 0xffff')
        I('s_mov_b32 s22, 256')
        I('s_mov_b32 s23, 0x00020000')
        I('s_waitcnt lgkmcnt(0)')
        I('s_sub_u32 s60, s60, s56')
        I('v_mov_b32 v4, s60')
        I('s_mul_i32 s5, s43, 10')
        I('s_add_u32 s5, s5, s42')
        I('s_lshl_b32 s5, s5, 2')
        I('v_mov_b32 v5, 0')
        setexec(1)
        I('buffer_store_dword v4, v5, s[20:23], s5 offen')
        fullexec()
    role_end('L_e_main')

prologue()
role_P12()
role_P3()
role_DE_common()
role_D()
role_E()
L('L_end')
I('s_endpgm')

def wrap_vm(ls):
    out = []; i = 0; n = 0
    while i < len(ls):
        x = ls[i].strip()
        def isvm(k):
            y = ls[k].strip()
            return y.startswith('buffer_store') or (not INSPIN[k] and (y.startswith('s_waitcnt vmcnt') or (y.startswith('buffer_load') and ' nt' not in y)))
        if isvm(i):
            j = i
            while j < len(ls) and isvm(j):
                j += 1
            n += 1
            out.append(f'    s_cbranch_execz L_vs_{n}')
            out += ls[i:j]
            out.append(f'L_vs_{n}:')
            i = j
        else:
            out.append(ls[i]); i += 1
    return out
if DRY:
    INSPIN = []
    ins = False
    for x in lines:
        t = x.strip()
        if re.match(r'L_spin_\d+:$', t): ins = True
        if re.match(r'L_spin_\d+_x:$', t): ins = False
        INSPIN.append(ins)
    lines = wrap_vm(lines)
hdr = open('cdna_kernels/' + NAME + '.s.ref').read().split('\n')
out = []
for ln in hdr:
    if ln.startswith('; @launch'):
        out.append(f'; @launch grid=(256,1,1) block=(512,1,1) lds={LDS_BYTES}')
    elif ln.startswith(';'):
        out.append(ln)
    else:
        break
out += ['.amdgcn_target "amdgcn-amd-amdhsa--gfx950"', '.text', f'.globl {NAME}_kernel', '.p2align 8',
        f'.type {NAME}_kernel,@function', f'{NAME}_kernel:']
out += lines
out += ['.section .rodata,"a"', '.p2align 6', f'.amdhsa_kernel {NAME}_kernel',
        '  .amdhsa_next_free_vgpr 256', '  .amdhsa_next_free_sgpr 102', '  .amdhsa_accum_offset 256',
        '  .amdhsa_group_segment_fixed_size 0', '  .amdhsa_kernarg_size 120', '  .amdhsa_user_sgpr_count 2',
        '  .amdhsa_user_sgpr_kernarg_segment_ptr 1', '  .amdhsa_system_sgpr_workgroup_id_x 1',
        '.end_amdhsa_kernel', '']
open(sys.argv[1], 'w').write('\n'.join(out))
```

```python
import sys, re

NAME = 'adaLN_cond__compressed_kv_cla__glu_gated_glu__decode'
STAMP = int(sys.argv[2]) if len(sys.argv) > 2 else 0
DBGT = (STAMP == 2)
if DBGT: STAMP = 0
SPIN_LIMIT = 200000

EPOCH = 0
FLAGS = 2048
MOD = 8192
QP = 131072
QA = 262144
ML = 327680
AP = 360448
FP = 442368
STP = 589824
OP = 1048576
WS_BYTES = OP + 2 * 32 * 32 * 1024

CKS = 1040
L_WU = 0
L_HD = 66560
L_RED = L_HD + 2560
L_QT2 = L_RED + 5120
L_CNT = L_QT2 + 512
L_CK = 0
L_QT = 0
PTS = 272
L_PT = 133120
L_MX = L_PT + 32 * PTS
LDS_BYTES = L_MX + 1024
L_WT0 = 0
L_WT1 = 20480
L_ST = 40960
L_FC = 44032
L_D_WD = 45056
L_D_CD = 46080
L_D_RED = 49152
L_D_RED2 = 53248
L_E_STAT = 45056
L_E_X1 = 45312
L_E_HT = 48128
L_E_RED = 53248
L_E_HH = 57344
PACE = int(sys.argv[3]) if len(sys.argv) > 3 else 6
SLOWN = int(sys.argv[4]) if len(sys.argv) > 4 else 6
DRY = int(sys.argv[5]) if len(sys.argv) > 5 else 0
EGATE = int(sys.argv[6]) if len(sys.argv) > 6 else 1
EPACE = int(sys.argv[7]) if len(sys.argv) > 7 else 6
SLOWP = int(sys.argv[8]) if len(sys.argv) > 8 else 2
LATEC = int(sys.argv[9]) if len(sys.argv) > 9 else 0
CK0 = int(sys.argv[10]) if len(sys.argv) > 10 else 4
CK1 = int(sys.argv[11]) if len(sys.argv) > 11 else 6
W1GATE = int(sys.argv[12]) if len(sys.argv) > 12 else 0
XSPLIT = int(sys.argv[13]) if len(sys.argv) > 13 else 0
P3GATE = int(sys.argv[14]) if len(sys.argv) > 14 else 0
WU0 = int(sys.argv[15]) if len(sys.argv) > 15 else 6
THR = int(sys.argv[16]) if len(sys.argv) > 16 else 1
DELAY = int(sys.argv[17]) if len(sys.argv) > 17 else 0
AGATE = int(sys.argv[18]) if len(sys.argv) > 18 else 0
SFLAG = int(sys.argv[19]) if len(sys.argv) > 19 else 0

TAGC_LO = 0x7F4A7C15
TAGC_HI = 0x9E3779B9

lines = []
def I(s): lines.append('    ' + s)
def L(s): lines.append(s + ':')
def C(s): lines.append('    ; ' + s)
def nop(n):
    while n > 0:
        k = min(n, 16)
        I(f's_nop {k-1}')
        n -= k
_uid = [0]
def uid(p):
    _uid[0] += 1
    return f'L_{p}_{_uid[0]}'
def vr(a, n=4): return f'v[{a}:{a+n-1}]'

PTR = {k: 64 + 2 * i for i, k in enumerate(
    ['x', 'ckv', 'wq', 'wuk', 'wuv', 'wo', 'bx', 'wg', 'wu', 'wd', 'c', 'wmod', 'out', 'dbg', 'ws'])}
NBYTES = dict(x=2560, ckv=8388608, wq=5242880, wuk=4194304, wuv=4194304, wo=5242880, wg=2211840, wu=2211840,
              wd=2211840, c=2560, wmod=4915200, out=2560, ws=WS_BYTES)
def srd(d, name):
    p = PTR[name]
    I(f's_mov_b32 s{d}, s{p}')
    I(f's_and_b32 s{d+1}, s{p+1}, 0xffff')
    I(f's_mov_b32 s{d+2}, {NBYTES[name]}')
    I(f's_mov_b32 s{d+3}, 0x00020000')
def S(d): return f's[{d}:{d+3}]'
WS = 8

def setexec(lo, hi=0):
    I(f's_and_b32 exec_lo, s100, 0x{lo:x}')
    if hi: I(f's_and_b32 exec_hi, s100, 0x{hi:x}')
    else: I('s_mov_b32 exec_hi, 0')
def fullexec():
    I('s_mov_b64 exec, s[100:101]')
def skip_if(lab):
    I('s_cselect_b32 s99, s100, 0')
    I('s_cmp_lg_u32 s99, 0')
    I(f's_cbranch_scc1 {lab}')
def barrier():
    o = uid('bar')
    I('s_cmp_eq_u32 s100, 0')
    I(f's_cbranch_scc1 {o}')
    I('s_barrier')
    L(o)
def enter_dry(target):
    I('s_mov_b64 s[100:101], 0')
    I('s_mov_b64 exec, 0')
    I(f's_branch {target}')
def role_end(back):
    I('s_cmp_lg_u32 s100, 0')
    I('s_cbranch_scc1 L_end')
    I('s_mov_b64 s[100:101], -1')
    I('s_mov_b64 exec, -1')
    I(f's_branch {back}')

def stamp(idx, wave=0):
    if STAMP != 1: return
    skip = uid('st')
    I(f's_cmp_lg_u32 s3, {wave}')
    I(f's_cbranch_scc1 {skip}')
    I('s_memrealtime s[60:61]')
    I('s_waitcnt lgkmcnt(0)')
    I('v_mov_b32 v254, s60')
    I('v_mov_b32 v255, s61')
    I(f's_lshl_b32 s62, s2, 7')
    I(f's_add_u32 s62, s62, {STP + idx*8}')
    I('v_mov_b32 v253, 0')
    I('s_mov_b64 s[58:59], exec')
    setexec(1)
    I(f'buffer_store_dwordx2 v[254:255], v253, {S(WS)}, s62 offen')
    I('s_mov_b64 exec, s[58:59]')
    L(skip)

TICK = (STAMP == 3)
def tick(i):
    if TICK: I(f's_memtime s[{64+2*i}:{65+2*i}]')
def tick_dump(n):
    if not TICK: return
    skip = uid('tk')
    I('s_cmp_lg_u32 s3, 0')
    I(f's_cbranch_scc1 {skip}')
    I('s_waitcnt lgkmcnt(0)')
    I('s_mov_b64 s[58:59], exec')
    setexec(1)
    I('v_mov_b32 v253, 0')
    for i in range(n):
        I(f'v_mov_b32 v254, s{64+2*i}')
        I(f'v_mov_b32 v255, s{65+2*i}')
        I(f's_lshl_b32 s62, s2, 7')
        I(f's_add_u32 s62, s62, {STP + i*8}')
        I(f'buffer_store_dwordx2 v[254:255], v253, {S(WS)}, s62 offen')
        nop(2)
    I('s_mov_b64 exec, s[58:59]')
    L(skip)

def delay(place):
    if DELAY == place:
        for _ in range(1): I('s_sleep 110')
    if DELAY >= 8 and place in (5, 6, 7):
        n = {8: 75, 9: 110, 10: 127}[DELAY] - (0 if place == 7 else 60)
        I(f's_sleep {n}')
        if DELAY == 10: I('s_sleep 40')

def spin_begin():
    lab = uid('spin')
    I(f's_cbranch_execz {lab}_x')
    I('s_mov_b32 s98, 0')
    L(lab)
    return lab
def spin_end(lab, sleep=1):
    done = uid('spd')
    I(f's_cbranch_vccz {done}')
    I('s_add_u32 s98, s98, 1')
    I(f's_cmp_gt_u32 s98, {SPIN_LIMIT}')
    I('s_cbranch_scc1 L_end')
    I(f's_sleep {sleep}')
    I(f's_branch {lab}')
    L(done)
    L(f'{lab}_x')

def anysent(regs, tmp):
    regs = list(regs)
    cur = regs[0]; rest = regs[1:]
    while rest:
        if len(rest) >= 2:
            I(f'v_max3_u32 v{tmp}, v{cur}, v{rest[0]}, v{rest[1]}'); rest = rest[2:]
        else:
            I(f'v_max_u32 v{tmp}, v{cur}, v{rest[0]}'); rest = rest[1:]
        cur = tmp
    I(f'v_cmp_eq_u32 vcc, -1, v{cur}')

def allreduce(op, x, tmp, rows_only=False, skip_row=False, half=False):
    if not skip_row:
        for ctl in ['quad_perm:[1,0,3,2]', 'quad_perm:[2,3,0,1]', 'row_half_mirror', 'row_mirror']:
            nop(2)
            I(f'{op}_dpp v{x}, v{x}, v{x} {ctl} row_mask:0xf bank_mask:0xf')
    if rows_only: return
    for sw in (['v_permlane16_swap_b32'] if half else ['v_permlane16_swap_b32', 'v_permlane32_swap_b32']):
        I(f'v_mov_b32 v{tmp}, v{x}')
        nop(2)
        I(f'{sw} v{x}, v{tmp}')
        nop(1)
        I(f'{op} v{x}, v{x}, v{tmp}')

def bfround(x, tmp=None):
    I(f'v_cvt_pk_bf16_f32 v{x}, v{x}, v{x}')
    I(f'v_and_b32 v{x}, 0xffff0000, v{x}')

def make_masks(m, single):
    I('v_and_b32 v2, 1, v1')
    I('v_cmp_eq_u32 vcc, 1, v2')
    I('v_mov_b32 v3, 0xffff')
    I('v_mov_b32 v2, 0xffff0000')
    nop(1)
    I('v_cndmask_b32 v3, v3, v2, vcc')
    if single:
        I('v_and_b32 v2, 8, v1')
        I('v_cmp_eq_u32 vcc, 0, v2')
        nop(2)
        I('v_cndmask_b32 v3, 0, v3, vcc')
    I('v_bfe_u32 v2, v1, 1, 2')
    for d in range(4):
        I(f'v_cmp_eq_u32 vcc, {d}, v2')
        nop(2)
        I(f'v_cndmask_b32 v{m+d}, 0, v3, vcc')

def gemv_diag(T, aval, masks, abuf, bq, accs):
    def build(t):
        a = abuf[t % 2]
        for d in range(4):
            I(f'v_and_b32 v{a+d}, v{masks+d}, v{aval(t)}')
    build(0)
    for t in range(T):
        a = abuf[t % 2]
        if t + 1 < T:
            build(t + 1)
        else:
            nop(2)
        for blk, acc in enumerate(accs):
            c = '0' if t == 0 else vr(acc)
            I(f'v_mfma_f32_16x16x32_bf16 {vr(acc)}, {vr(a)}, {vr(bq(blk, t))}, {c}')
    nop(9)

def make_masks4(m, nb):
    I('v_bfe_u32 v2, v1, 2, 2')
    I(f'v_cmp_gt_u32 vcc, {nb}, v2')
    nop(2)
    I('v_cndmask_b32 v3, 0, -1, vcc')
    I('v_and_b32 v2, 3, v1')
    for d in range(4):
        I(f'v_cmp_eq_u32 vcc, {d}, v2')
        nop(2)
        I(f'v_cndmask_b32 v{m+d}, 0, v3, vcc')

def pairperm(quads, tmp):
    I('s_mov_b32 s4, 0x05040100')
    I('s_mov_b32 s5, 0x07060302')
    for n, (x0, x1) in enumerate(quads):
        for q in range(4):
            t = tmp + (q & 1)
            I(f'v_perm_b32 v{t}, v{x1+q}, v{x0+q}, s4')
            I(f'v_perm_b32 v{x1+q}, v{x1+q}, v{x0+q}, s5')
            I(f'v_mov_b32 v{x0+q}, v{t}')

def gemv_pair(P, aval, masks, abuf, bq, accE, accO):
    def build(p):
        a = abuf[p % 2]
        for d in range(4):
            I(f'v_and_b32 v{a+d}, v{masks+d}, v{aval(p)}')
    build(0)
    for p in range(P):
        a = abuf[p % 2]
        if p + 1 < P: build(p + 1)
        else: nop(2)
        for blk in range(len(accE)):
            for acc, t in ((accE[blk], 2 * p), (accO[blk], 2 * p + 1)):
                c = '0' if p == 0 else vr(acc)
                I(f'v_mfma_f32_16x16x32_bf16 {vr(acc)}, {vr(a)}, {vr(bq(blk, t))}, {c}')
    nop(9)

def spin_end_thr(lab, thr, sleep=1):
    done = uid('spd')
    I('s_bcnt1_i32_b64 s99, vcc')
    I(f's_cmp_le_u32 s99, {thr}')
    I(f's_cbranch_scc1 {done}')
    I('s_add_u32 s98, s98, 1')
    I(f's_cmp_gt_u32 s98, {SPIN_LIMIT}')
    I('s_cbranch_scc1 L_end')
    I(f's_sleep {sleep}')
    I(f's_branch {lab}')
    L(done)
    L(f'{lab}_x')

def light_poll(load, regs_per, base, thr, NS=3, gap=5):
    top = uid('lp'); done = uid('lpd')
    I(f's_cbranch_execz {done}')
    I('s_mov_b32 s98, 0')
    for i in range(NS - 1):
        load(base + i * regs_per)
        I(f's_sleep {gap}')
    L(top)
    for i in range(NS):
        load(base + ((i + NS - 1) % NS) * regs_per)
        I(f's_waitcnt vmcnt({NS-1})')
        r = base + i * regs_per
        if regs_per == 1: I(f'v_cmp_eq_u32 vcc, -1, v{r}')
        else:
            I(f'v_max_u32 v{base + NS*regs_per}, v{r}, v{r+1}')
            I(f'v_cmp_eq_u32 vcc, -1, v{base + NS*regs_per}')
        I('s_bcnt1_i32_b64 s99, vcc')
        I(f's_cmp_le_u32 s99, {thr}')
        I(f's_cbranch_scc1 {done}')
    I('s_add_u32 s98, s98, 1')
    I(f's_cmp_gt_u32 s98, {SPIN_LIMIT}')
    I('s_cbranch_scc1 L_end')
    I(f's_branch {top}')
    L(done)

def flags_wait(which, first=0, count=256, sleep=1):
    I('v_lshlrev_b32 v2, 4, v1')
    I(f'v_add_u32 v2, {FLAGS + 2048*which + 8*first}, v2')
    if count == 64: setexec(0xffffffff)
    lab = spin_begin()
    I(f'buffer_load_dwordx4 v[4:7], v2, {S(WS)}, 0 offen sc1')
    if count == 256:
        I(f'buffer_load_dwordx4 v[8:11], v2, {S(WS)}, 0 offen offset:1024 sc1')
    I('s_waitcnt vmcnt(0)')
    n = 12 if count == 256 else 8
    for r in range(4, n):
        I(f'v_xor_b32 v{r}, s{96 + (r & 1)}, v{r}')
    I('v_or3_b32 v4, v4, v5, v6')
    if count == 256:
        I('v_or3_b32 v4, v4, v7, v8')
        I('v_or3_b32 v4, v4, v9, v10')
        I('v_or_b32 v4, v4, v11')
    else:
        I('v_or_b32 v4, v4, v7')
    I('v_cmp_ne_u32 vcc, 0, v4')
    spin_end(lab, sleep)
    if count == 64: fullexec()

def flag_store(which, t0=4):
    I('s_waitcnt vmcnt(0) lgkmcnt(0)')
    I(f's_add_u32 s96, s94, 0x{TAGC_LO:x}')
    I(f's_addc_u32 s97, s95, 0x{TAGC_HI:x}')
    I(f'v_mov_b32 v{t0}, s96')
    I(f'v_mov_b32 v{t0+1}, s97')
    I('s_lshl_b32 s4, s2, 3')
    I(f's_add_u32 s4, s4, {FLAGS + 2048*which}')
    I(f'v_mov_b32 v{t0+2}, 0')
    setexec(1)
    I(f'buffer_store_dwordx2 v[{t0}:{t0+1}], v{t0+2}, {S(WS)}, s4 offen sc1')
    fullexec()

def lds_gate():
    I(f'v_mov_b32 v4, {L_FC}')
    lab = spin_begin()
    I('ds_read_b32 v5, v4')
    I('s_waitcnt lgkmcnt(0)')
    I('v_cmp_ne_u32 vcc, 1, v5')
    spin_end(lab, 2)

def paced(loads, depth):
    for i, ld in enumerate(loads):
        if i >= depth: I(f's_waitcnt vmcnt({depth-1})')
        for x in ld: I(x)

def tag_compute():
    I('s_waitcnt lgkmcnt(0)')
    I(f's_add_u32 s96, s94, 0x{TAGC_LO:x}')
    I(f's_addc_u32 s97, s95, 0x{TAGC_HI:x}')

def prologue():
    I('s_cmp_ge_u32 s2, 256')
    I('s_cbranch_scc1 L_end')
    I('s_mov_b64 s[100:101], -1')
    if XSPLIT == 2:
        I('s_bfe_u32 s4, s2, 0x40003')
        I('s_lshl_b32 s4, s4, 2')
        I('s_and_b32 s5, s2, 3')
        I('s_add_u32 s4, s4, s5')
        I('s_bfe_u32 s5, s2, 0x10002')
        I('s_lshr_b32 s6, s2, 7')
        I('s_xor_b32 s7, s5, s6')
        I('s_lshl_b32 s6, s6, 1')
        I('s_add_u32 s6, s6, s7')
        I('s_lshl_b32 s6, s6, 6')
        I('s_add_u32 s2, s4, s6')
    elif XSPLIT:
        I('s_lshr_b32 s4, s2, 3')
        I('s_lshl_b32 s4, s4, 2')
        I('s_and_b32 s5, s2, 3')
        I('s_add_u32 s4, s4, s5')
        I('s_bfe_u32 s5, s2, 0x10002')
        I('s_lshl_b32 s5, s5, 7')
        I('s_add_u32 s2, s4, s5')
    if DBGT: I('s_memrealtime s[56:57]')
    I('s_load_dwordx16 s[64:79], s[0:1], 0')
    I('s_load_dwordx8 s[80:87], s[0:1], 64')
    I('s_load_dwordx4 s[88:91], s[0:1], 96')
    I('s_load_dwordx2 s[92:93], s[0:1], 112')
    I('v_lshrrev_b32 v1, 6, v0')
    nop(1)
    I('v_readfirstlane_b32 s3, v1')
    I('v_and_b32 v1, 63, v0')
    for r in range(2, 13): I(f'v_mov_b32 v{r}, 0')
    if STAMP: I('v_mov_b32 v253, 0')
    I('s_waitcnt lgkmcnt(0)')
    I('s_load_dwordx2 s[94:95], s[92:93], 0')
    srd(WS, 'ws')
    stamp(0)
    I('v_lshrrev_b32 v14, 4, v1')
    I('v_and_b32 v15, 15, v1')
    I('v_lshlrev_b32 v13, 4, v1')
    I('s_cmp_ge_u32 s2, 128')
    I('s_cbranch_scc1 L_de')
    I('s_cmp_ge_u32 s2, 64')
    I('s_cbranch_scc1 L_p3')

def role_P12():
    X_, WQ, WUK = 12, 16, 20
    srd(X_, 'x'); srd(WQ, 'wq'); srd(WUK, 'wuk')
    I('s_lshr_b32 s40, s2, 1')
    I('s_and_b32 s41, s2, 1')
    I('s_mul_i32 s45, s41, 320')
    I('s_cmp_lg_u32 s3, 7')
    I('s_cbranch_scc1 L_a_init')
    for r in range(4, 8): I(f'v_mov_b32 v{r}, -1')
    I('s_lshl_b32 s4, s2, 10')
    I(f's_add_u32 s4, s4, {QP}')
    I(f'buffer_store_dwordx4 v[4:7], v13, {S(WS)}, s4 offen sc1')
    I('v_lshrrev_b32 v3, 5, v1')
    I('v_lshlrev_b32 v3, 15, v3')
    I('v_and_b32 v2, 31, v1')
    I('v_lshl_add_u32 v3, v2, 4, v3')
    I('s_lshl_b32 s4, s2, 9')
    I(f's_add_u32 s4, s4, {QA}')
    I(f'buffer_store_dwordx4 v[4:7], v3, {S(WS)}, s4 offen sc1')
    if DRY: enter_dry('L_a_h1b')
    L('L_a_w7')
    flag_store(0, 8)
    stamp(9, 7)
    I(f'v_mov_b32 v4, {L_CNT}')
    I('v_mov_b32 v5, 0')
    I('v_mov_b32 v6, 0')
    I('v_mov_b32 v7, 0')
    I('ds_write_b64 v4, v[6:7]')
    I('s_waitcnt lgkmcnt(0)')
    I('s_xor_b32 s4, s2, 1')
    I('s_lshl_b32 s4, s4, 3')
    I(f's_add_u32 s4, s4, {FLAGS}')
    I('v_mov_b32 v2, 0')
    lab = spin_begin()
    I(f'buffer_load_dwordx2 v[6:7], v2, {S(WS)}, s4 offen sc1')
    I('s_waitcnt vmcnt(0)')
    I('v_xor_b32 v6, s96, v6')
    I('v_xor_b32 v7, s97, v7')
    I('v_or_b32 v6, v6, v7')
    I('v_cmp_ne_u32 vcc, 0, v6')
    spin_end(lab, 2)
    I('s_waitcnt lgkmcnt(0)')
    I('s_branch L_a_main')
    L('L_a_init')
    I('s_cmp_gt_u32 s3, 4')
    I('s_cbranch_scc1 L_a_h1')
    if AGATE & 1:
        tag_compute()
        flags_wait(0, 128, 128, 2)
    I('v_lshlrev_b32 v2, 17, v14')
    I('v_lshl_add_u32 v2, v15, 4, v2')
    I('s_lshl_b32 s4, s3, 6')
    I('s_add_u32 s4, s4, s45')
    I('s_lshl_b32 s4, s4, 13')
    I('s_lshl_b32 s5, s40, 8')
    I('s_add_u32 s4, s4, s5')
    for t in range(16):
        I(f'buffer_load_dwordx4 {vr(20+4*t)}, v2, {S(WQ)}, s4 offen nt')
        if t < 15: I('s_add_u32 s4, s4, 8192')
    def wuk_dma(first, per, w0, nw):
        assert per % 4 == 0 and first % 4 == 0
        for k in range(4):
            I(f'v_add_u32 v3, {4*k}, v14')
            I('v_xor_b32 v3, v3, v15')
            I('v_lshlrev_b32 v3, 4, v3')
            I(f'v_lshl_add_u32 v{6+k}, v14, 13, v3')
        I('s_lshl_b32 s4, s41, 21')
        I('s_lshl_b32 s5, s40, 8')
        I('s_add_u32 s4, s4, s5')
        I(f's_sub_u32 s6, s3, {w0}')
        I(f's_mul_i32 s6, s6, {per}')
        I(f's_add_u32 s6, s6, {first}')
        I('s_lshl_b32 s5, s6, 15')
        I('s_add_u32 s4, s4, s5')
        I('s_lshl_b32 s5, s6, 10')
        done = uid('dmad')
        for q in range(per):
            if first + (nw - 1) * per + q >= 64:
                I(f's_cmp_ge_u32 s5, {64*1024}')
                I(f's_cbranch_scc1 {done}')
            I('s_mov_b32 m0, s5')
            nop(1)
            I(f'buffer_load_dwordx4 v{6+q%4}, {S(WUK)}, s4 offen nt lds')
            if q < per - 1:
                I('s_add_u32 s4, s4, 32768')
                I('s_add_u32 s5, s5, 1024')
        L(done)
    def cnt_add():
        I('s_waitcnt vmcnt(0)')
        I(f'v_mov_b32 v4, {L_CNT}')
        I('v_mov_b32 v5, 1')
        setexec(1)
        I('ds_add_u32 v4, v5')
        fullexec()
    def wuk_reads():
        I('v_xor_b32 v2, v14, v15')
        for q in range(4):
            I(f'v_xor_b32 v3, {4*q}, v2')
            I('v_lshlrev_b32 v3, 4, v3')
            I(f'v_lshl_add_u32 v{6+q}, v15, 8, v3')
        I('s_lshl_b32 s4, s3, 13')
        for q in range(4): I(f'v_add_u32 v{6+q}, s4, v{6+q}')
        for t_ in range(4):
            for n in range(2):
                I(f'ds_read_b128 {vr(20+16*n+4*t_)}, v{6+t_} offset:{L_WU + n*4096}')
    sk = uid('w0n')
    I('s_cmp_eq_u32 s3, 0')
    I(f's_cbranch_scc1 {sk}')
    wuk_dma(0, WU0, 1, 4)
    I(f's_waitcnt vmcnt({WU0})')
    L(sk)
    I(f's_cbranch_scc0 {sk}_b') if False else None
    sk = uid('w0m')
    I('s_cmp_lg_u32 s3, 0')
    I(f's_cbranch_scc1 {sk}')
    I('s_waitcnt vmcnt(0)')
    L(sk)
    make_masks4(16, 2)
    tag_compute()
    if LATEC == 2:
        sk = uid('nofc')
        I('s_cmp_lg_u32 s3, 4')
        I(f's_cbranch_scc1 {sk}')
        I(f'v_mov_b32 v8, s96')
        I(f'v_mov_b32 v9, s97')
        I('s_lshl_b32 s4, s2, 3')
        I(f's_add_u32 s4, s4, {FLAGS + 4096}')
        I(f'v_mov_b32 v10, 0')
        setexec(1)
        I(f'buffer_store_dwordx2 v[8:9], v10, {S(WS)}, s4 offen sc1')
        fullexec()
        L(sk)
    pairperm([(20 + 8 * p, 24 + 8 * p) for p in range(8)], 4)
    stamp(10, 4)
    I('s_branch L_a_main')
    L('L_a_h1')
    I('s_sub_u32 s46, s3, 5')
    I('s_mul_i32 s4, s46, 1280')
    I('v_lshlrev_b32 v3, 2, v1')
    for k in range(5):
        I(f'buffer_load_dword v{80 + k}, v3, {S(X_)}, s4 offen offset:{k*256}')
    I('s_lshl_b32 s5, s45, 1')
    I('s_add_u32 s5, s5, s4')
    I(f'buffer_load_dwordx4 v[84+4:84+7], v13, {S(X_)}, s5 offen'.replace('84+4', '88').replace('84+7', '91'))
    tag_compute()
    I('s_waitcnt vmcnt(0)')
    for k in range(5):
        I(f'v_lshlrev_b32 v{96+2*k}, 16, v{80+k}')
        I(f'v_and_b32 v{97+2*k}, 0xffff0000, v{80+k}')
    I('v_add_f32 v92, v96, v97')
    for k in range(2, 10): I(f'v_add_f32 v92, v92, v{96+k}')
    allreduce('v_add_f32', 92, 93)
    I('v_mul_f32 v92, 0x3acccccd, v92')
    for k in range(10): I(f'v_sub_f32 v{96+k}, v{96+k}, v92')
    I('v_mul_f32 v94, v96, v96')
    for k in range(1, 10): I(f'v_fmac_f32 v94, v{96+k}, v{96+k}')
    allreduce('v_add_f32', 94, 93)
    I('v_mul_f32 v94, 0x3acccccd, v94')
    bfround(92); bfround(94)
    I('v_add_f32 v94, 0x3727c5ac, v94')
    bfround(94)
    I('v_sqrt_f32 v94, v94')
    nop(1)
    bfround(94)
    I('v_rcp_f32 v94, v94')
    for k in range(4):
        I(f'v_lshlrev_b32 v{72+2*k}, 16, v{88+k}')
        I(f'v_and_b32 v{73+2*k}, 0xffff0000, v{88+k}')
    for r in range(8):
        I(f'v_sub_f32 v{72+r}, v{72+r}, v92')
        bfround(72 + r)
        I(f'v_mul_f32 v{72+r}, v{72+r}, v94')
        bfround(72 + r)
    L('L_a_h1b')
    if SFLAG:
        for rg in range(2):
            I('s_mul_i32 s4, s41, 160')
            I(f's_add_u32 s4, s4, {FLAGS + (128 + 40*rg)*8}')
            I('s_add_u32 s5, s4, 64')
            I('s_add_u32 s6, s4, 128')
            I('s_mov_b32 s98, 0')
            top = uid('sf'); done = uid('sfd')
            L(top)
            I('s_load_dwordx16 s[48:63], s[92:93], s4 glc')
            I('s_load_dwordx16 s[64:79], s[92:93], s5 glc')
            I('s_load_dwordx8 s[80:87], s[92:93], s6 glc')
            I('s_waitcnt lgkmcnt(0)')
            I('s_mov_b64 s[88:89], 0')
            for i in range(20):
                I(f's_xor_b64 s[{48+2*i}:{49+2*i}], s[{48+2*i}:{49+2*i}], s[96:97]')
                I(f's_or_b64 s[88:89], s[88:89], s[{48+2*i}:{49+2*i}]')
            I(f's_cbranch_scc0 {done}')
            I('s_add_u32 s98, s98, 1')
            I(f's_cmp_gt_u32 s98, {SPIN_LIMIT}')
            I('s_cbranch_scc1 L_end')
            I('s_sleep 2')
            I(f's_branch {top}')
            L(done)
    else:
        flags_wait(0, 128, 128)
    stamp(1, 5)
    I('s_mul_i32 s4, s46, 15360')
    I('s_lshl_b32 s5, s45, 2')
    I('s_add_u32 s4, s4, s5')
    I(f's_add_u32 s48, s4, {MOD}')
    for kq in range(1, 4): I(f's_add_u32 s{48+kq}, s48, {kq*30720}')
    I('v_lshlrev_b32 v2, 5, v1')
    I('s_mul_i32 s4, s46, 640')
    I(f's_add_u32 s4, s4, {L_HD}')
    I('v_add_u32 v3, s4, v13')
    setexec(0xffffffff, 0xff)
    lab = spin_begin()
    for kq in range(4):
        I(f'buffer_load_dwordx4 {vr(96+16*kq)}, v2, {S(WS)}, s{48+kq} offen sc1')
        I(f'buffer_load_dwordx4 {vr(100+16*kq)}, v2, {S(WS)}, s{48+kq} offen offset:16 sc1')
        I(f'buffer_load_dwordx4 {vr(104+16*kq)}, v2, {S(WS)}, s{48+kq} offen offset:2560 sc1')
        I(f'buffer_load_dwordx4 {vr(108+16*kq)}, v2, {S(WS)}, s{48+kq} offen offset:2576 sc1')
    I('s_waitcnt vmcnt(0)')
    anysent(range(96, 160), 12)
    spin_end(lab)
    for r in range(16):
        I(f'v_add_f32 v{96+r}, v{96+r}, v{112+r}')
        I(f'v_add_f32 v{128+r}, v{128+r}, v{144+r}')
        I(f'v_add_f32 v{96+r}, v{96+r}, v{128+r}')
        bfround(96 + r)
    for r in range(8):
        I(f'v_add_f32 v{104+r}, 1.0, v{104+r}')
        bfround(104 + r)
        I(f'v_mul_f32 v{104+r}, v{72+r}, v{104+r}')
        bfround(104 + r)
        I(f'v_add_f32 v{104+r}, v{104+r}, v{96+r}')
    for q in range(4):
        I(f'v_cvt_pk_bf16_f32 v{96+q}, v{104+2*q}, v{105+2*q}')
    I('ds_write_b128 v3, v[96:99]')
    fullexec()
    I('s_waitcnt lgkmcnt(0)')
    L('L_a_main')
    barrier()
    stamp(2)
    tick(0)
    if not LATEC:
        sk = uid('nofc')
        I('s_cmp_lg_u32 s3, 6')
        skip_if(sk)
        flag_store(2, 8)
        L(sk)
    sk = uid('nop1')
    sk57 = uid('w57')
    I('s_cmp_lt_u32 s3, 5')
    I(f's_cbranch_scc1 {sk57}')
    REM = 64 - 4 * WU0
    if REM: wuk_dma(4 * WU0, ((REM + 2) // 3 + 3) // 4 * 4, 5, 3)
    I(f's_branch {sk}')
    L(sk57)
    I('v_bfe_u32 v2, v1, 2, 1')
    I('v_mul_u32_u24 v2, 640, v2')
    I('v_lshl_add_u32 v2, v14, 5, v2')
    I('s_lshl_b32 s4, s3, 7')
    I(f's_add_u32 s4, s4, {L_HD}')
    I('v_add_u32 v2, s4, v2')
    for q in range(2):
        I(f'ds_read_b128 {vr(84+4*q)}, v2 offset:{q*16}')
    I('v_lshlrev_b32 v2, 9, v14')
    I('v_lshl_add_u32 v2, v15, 4, v2')
    I('s_lshl_b32 s4, s3, 10')
    I(f's_add_u32 s4, s4, {L_RED}')
    I('v_add_u32 v2, s4, v2')
    I('s_waitcnt lgkmcnt(0)')
    tick(1)
    gemv_pair(8, lambda p: 84 + p, 16, [100, 104], lambda blk, t: 20 + 4 * t, [108], [112])
    I(f'v_mov_b32 v4, {L_CNT + 4}')
    I('v_mov_b32 v5, 1')
    setexec(0xffffffff)
    I('ds_write_b128 v2, v[108:111]')
    I('ds_write_b128 v2, v[112:115] offset:256')
    setexec(1)
    I('s_waitcnt lgkmcnt(0)')
    I('ds_add_u32 v4, v5')
    fullexec()
    L(sk)
    tick(2)
    tick(3)
    sk = uid('nop1r')
    skw = uid('w0p')
    I('s_cmp_eq_u32 s3, 0')
    I(f's_cbranch_scc1 {skw}')
    cnt_add()
    lab = spin_begin()
    I('ds_read_b32 v5, v4')
    I('s_waitcnt lgkmcnt(0)')
    I('v_cmp_ne_u32 vcc, 7, v5')
    spin_end(lab, 1)
    wuk_reads()
    I(f's_branch {sk}')
    L(skw)
    lab = spin_begin()
    I('ds_read_b32 v5, v4')
    I('s_waitcnt lgkmcnt(0)')
    I('v_cmp_ne_u32 vcc, 5, v5')
    spin_end(lab, 0)
    I(f'v_add_u32 v2, {L_RED}, v13')
    for w in range(5):
        I(f'ds_read_b128 {vr(164+4*w)}, v2 offset:{w*1024}')
    I('s_lshl_b32 s4, s2, 10')
    I(f's_add_u32 s4, s4, {QP}')
    I('s_waitcnt lgkmcnt(0)')
    for r in range(4):
        I(f'v_add_f32 v{164+r}, v{164+r}, v{168+r}')
        I(f'v_add_f32 v{172+r}, v{172+r}, v{176+r}')
        I(f'v_add_f32 v{164+r}, v{164+r}, v{180+r}')
        I(f'v_add_f32 v{164+r}, v{164+r}, v{172+r}')
        I(f'v_min_u32 v{164+r}, 0xfffffffe, v{164+r}')
    I(f'buffer_store_dwordx4 v[164:167], v13, {S(WS)}, s4 offen sc1')
    stamp(3)
    tick(4)
    tick(5)
    I('s_xor_b32 s4, s2, 1')
    I('s_lshl_b32 s4, s4, 10')
    I(f's_add_u32 s4, s4, {QP}')
    lab = spin_begin()
    I(f'buffer_load_dwordx4 v[168:171], v13, {S(WS)}, s4 offen sc1')
    I('s_waitcnt vmcnt(0)')
    anysent(range(168, 172), 2)
    spin_end(lab)
    tick(6)
    for r in range(4):
        I(f'v_add_f32 v{168+r}, v{168+r}, v{164+r}')
    I('v_lshrrev_b32 v2, 1, v14')
    I('v_lshlrev_b32 v2, 8, v2')
    I('v_lshl_add_u32 v2, v15, 4, v2')
    I('v_and_b32 v3, 1, v14')
    I('v_lshl_add_u32 v2, v3, 1, v2')
    I(f'v_add_u32 v2, {L_QT2}, v2')
    for r in range(4):
        I(f'v_cvt_pk_bf16_f32 v{168+r}, v{168+r}, v{168+r}')
        I(f'ds_write_b16 v2, v{168+r} offset:{4*r}')
    L(sk)

    I('s_waitcnt lgkmcnt(0)')
    tick(7)
    barrier()
    tick(8)
    delay(1)
    stamp(4)
    I('v_and_b32 v2, 1, v15')
    I('v_lshlrev_b32 v2, 8, v2')
    I('v_lshl_add_u32 v2, v14, 4, v2')
    I(f'v_add_u32 v2, {L_QT2}, v2')
    for t in range(4):
        I(f'ds_read_b128 {vr(164+4*t)}, v2 offset:{t*64}')
    sk = uid('w0r')
    I('s_cmp_lg_u32 s3, 0')
    I(f's_cbranch_scc1 {sk}')
    wuk_reads()
    L(sk)
    I('v_lshlrev_b32 v2, 15, v15')
    I('v_lshl_add_u32 v2, v14, 3, v2')
    I('s_lshl_b32 s4, s2, 9')
    I('s_lshl_b32 s5, s3, 6')
    I('s_add_u32 s4, s4, s5')
    I(f's_add_u32 s4, s4, {QA}')
    tick(9)
    I('s_mov_b32 s5, 0x3e0293ee')
    for t in range(4):
        if t == 0: I('s_waitcnt lgkmcnt(0)')
        for n in range(2):
            c = '0' if t == 0 else vr(180 + 4 * n)
            I(f'v_mfma_f32_16x16x32_bf16 {vr(180+4*n)}, {vr(20+16*n+4*t)}, {vr(164+4*t)}, {c}')
    nop(9)
    tick(10)
    for r in range(8): I(f'v_mul_f32 v{180+r}, s5, v{180+r}')
    for q in range(4):
        I(f'v_cvt_pk_bf16_f32 v{188+q}, v{180+2*q}, v{181+2*q}')
        I(f'v_min_u32 v{188+q}, 0xfffffffe, v{188+q}')
    setexec(0x00030003, 0x00030003)
    I(f'buffer_store_dwordx2 v[188:189], v2, {S(WS)}, s4 offen sc1')
    I(f'buffer_store_dwordx2 v[190:191], v2, {S(WS)}, s4 offen offset:32 sc1')
    fullexec()
    tick(11)
    tick_dump(12)
    stamp(5)
    if LATEC == 1:
        sk = uid('nofc')
        I('s_cmp_lg_u32 s3, 6')
        skip_if(sk)
        flag_store(2, 8)
        L(sk)
    I('s_cmp_lg_u32 s2, 0')
    I('s_cbranch_scc1 L_end')
    I('s_cmp_lg_u32 s3, 0')
    I('s_cbranch_scc1 L_end')
    flags_wait(0, 0, 256)
    I('v_mov_b32 v10, s96')
    I('v_mov_b32 v11, s97')
    I('v_mov_b32 v12, 0')
    setexec(1)
    I(f'buffer_store_dwordx2 v[10:11], v12, {S(WS)}, 0 offen sc1')
    fullexec()
    I('s_branch L_end')

def role_P3():
    L('L_p3')
    CKV = 12
    srd(CKV, 'ckv')
    I('s_sub_u32 s40, s2, 64')
    I('s_lshr_b32 s42, s40, 5')
    I('s_and_b32 s43, s40, 31')
    sk = uid('nofa')
    I('s_cmp_lg_u32 s3, 7')
    I(f's_cbranch_scc1 {sk}')
    flag_store(0, 8)
    L(sk)
    tag_compute()
    if P3GATE:
        flags_wait(2, 0, 64, 4)
    if AGATE & 2:
        flags_wait(0, 128, 128, 2)
    delay(7)
    I('s_lshl_b32 s4, s40, 17')
    I('s_lshl_b32 s5, s3, 14')
    I('s_add_u32 s4, s4, s5')
    I(f's_mul_i32 s5, s3, {16*CKS}')
    for r in range(16):
        I('s_mov_b32 m0, s5')
        nop(1)
        I(f'buffer_load_dwordx4 v13, {S(CKV)}, s4 offen nt lds')
        if r < 15:
            I('s_add_u32 s4, s4, 1024')
            I(f's_add_u32 s5, s5, {CKS}')
    if DRY:
        I('s_cmp_lg_u32 s3, 7')
        I('s_cbranch_scc1 L_p3_real')
        enter_dry('L_p3_main')
    L('L_p3_real')
    I('s_waitcnt vmcnt(0)')
    barrier()
    L('L_p3_main')
    stamp(1)
    I(f'v_mul_u32_u24 v2, {CKS}, v15')
    I('v_lshl_add_u32 v2, v14, 4, v2')
    I(f's_mul_i32 s4, s3, {16*CKS}')
    I('v_add_u32 v2, s4, v2')
    for t in range(16):
        I(f'ds_read_b128 {vr(20+4*t)}, v2 offset:{t*64}')
    I('v_lshrrev_b32 v2, 2, v15')
    I('v_lshl_add_u32 v2, v14, 3, v2')
    I(f'v_mul_u32_u24 v2, {CKS}, v2')
    I('v_and_b32 v3, 3, v15')
    I('v_lshl_add_u32 v2, v3, 4, v2')
    I('s_lshl_b32 s4, s3, 7')
    I('v_add_u32 v2, s4, v2')
    I(f'v_add_u32 v3, {64*CKS}, v2')
    for n in range(4):
        for t in range(4):
            base = 84 + 16 * n + 4 * t
            ad = 'v2' if t < 2 else 'v3'
            off = (t % 2) * 32 * CKS + (n >> 1) * 64 + (n & 1) * 8
            I(f'ds_read_b64_tr_b16 {vr(base,2)}, {ad} offset:{off}')
            I(f'ds_read_b64_tr_b16 {vr(base+2,2)}, {ad} offset:{off + 4*CKS}')
    for r in range(4): I(f'v_mov_b32 v{16+r}, 0x3f803f80')
    I('s_waitcnt lgkmcnt(0)')
    sk = uid('noh2l')
    I('s_cmp_lg_u32 s3, 0')
    skip_if(sk)
    flags_wait(0, 0, 64)
    flags_wait(1, 192, 64)
    I('v_lshlrev_b32 v2, 9, v1')
    I('s_lshl_b32 s4, s42, 15')
    I(f's_add_u32 s4, s4, {QA + 508}')
    light_poll(lambda r: I(f'buffer_load_dword v{r}, v2, {S(WS)}, s4 offen sc1'), 1, 4, 24 * THR)
    L(sk)
    barrier()
    stamp(6)
    tick(0)
    I('s_lshl_b32 s4, s42, 15')
    I('s_lshl_b32 s5, s3, 12')
    I('s_add_u32 s4, s4, s5')
    I(f's_add_u32 s4, s4, {QA}')
    lab = spin_begin()
    for k in range(4):
        I(f'buffer_load_dwordx4 {vr(148+4*k)}, v13, {S(WS)}, s4 offen offset:{k*1024} sc1')
    I('s_waitcnt vmcnt(0)')
    anysent(range(148, 164), 2)
    spin_end(lab)
    tick(1)
    I('s_lshl_b32 s4, s3, 12')
    I('s_and_b32 s5, s3, 3')
    I('s_lshl_b32 s5, s5, 2')
    for k in range(4):
        I(f's_add_u32 s6, s5, {k}')
        I('v_xor_b32 v2, s6, v1')
        I('v_lshlrev_b32 v2, 4, v2')
        I('v_add_u32 v2, s4, v2')
        I(f'ds_write_b128 v2, {vr(148+4*k)} offset:{L_QT + k*1024}')
    I('v_and_b32 v2, 3, v15')
    I('v_xor_b32 v2, v2, v14')
    I('v_and_b32 v3, 12, v15')
    I('v_or_b32 v2, v2, v3')
    for q in range(4):
        I(f'v_xor_b32 v3, {4*q}, v2')
        I('v_lshlrev_b32 v3, 4, v3')
        I(f'v_lshl_add_u32 v{8+q}, v15, 10, v3')
    I('v_lshlrev_b32 v4, 5, v15')
    I(f'v_add_u32 v4, {L_MX}, v4')
    I('s_lshl_b32 s4, s3, 2')
    I('v_add_u32 v3, s4, v4')
    I('s_waitcnt lgkmcnt(0)')
    tick(2)
    barrier()
    tick(3)
    stamp(7)
    for t in range(16):
        I(f'ds_read_b128 {vr(148+4*t)}, v{8+t%4} offset:{L_QT + (t//4)*256}')
    for t in range(16):
        I(f's_waitcnt lgkmcnt({15 if t else 15})') if False else I('s_waitcnt lgkmcnt(15)')
        c = '0' if t == 0 else 'v[212:215]'
        I(f'v_mfma_f32_16x16x32_bf16 v[212:215], {vr(20+4*t)}, {vr(148+4*t)}, {c}')
        I(f'ds_read_b128 {vr(148+4*t)}, v{8+t%4} offset:{L_QT + 16384 + (t//4)*256}')
    for t in range(16):
        I(f's_waitcnt lgkmcnt({15-t})')
        c = '0' if t == 0 else 'v[216:219]'
        I(f'v_mfma_f32_16x16x32_bf16 v[216:219], {vr(20+4*t)}, {vr(148+4*t)}, {c}')
    tick(4)
    I('v_max_f32 v220, v212, v213')
    I('v_max3_f32 v220, v220, v214, v215')
    allreduce('v_max_f32', 220, 222, skip_row=True)
    I('v_max_f32 v221, v216, v217')
    I('v_max3_f32 v221, v221, v218, v219')
    allreduce('v_max_f32', 221, 222, skip_row=True)
    I('ds_write_b32 v3, v220')
    I('ds_write_b32 v3, v221 offset:512')
    I(f'v_mul_u32_u24 v5, {PTS}, v15')
    I(f'v_add_u32 v5, {L_PT}, v5')
    I('v_lshl_add_u32 v3, v14, 3, v5')
    I('s_lshl_b32 s4, s3, 5')
    I('v_add_u32 v3, s4, v3')
    I('v_lshl_add_u32 v5, v14, 4, v5')
    I('s_waitcnt lgkmcnt(0)')
    tick(5)
    barrier()
    tick(6)
    for ht in range(2):
        I(f'ds_read_b128 {vr(148+8*ht)}, v4 offset:{ht*512}')
        I(f'ds_read_b128 {vr(152+8*ht)}, v4 offset:{ht*512+16}')
    I('s_waitcnt lgkmcnt(0)')
    for ht in range(2):
        q = 148 + 8 * ht
        I(f'v_max3_f32 v{220+ht}, v{q}, v{q+1}, v{q+2}')
        I(f'v_max3_f32 v{220+ht}, v{220+ht}, v{q+3}, v{q+4}')
        I(f'v_max3_f32 v{220+ht}, v{220+ht}, v{q+5}, v{q+6}')
        I(f'v_max_f32 v{220+ht}, v{220+ht}, v{q+7}')
    for ht in range(2):
        for r in range(4):
            I(f'v_sub_f32 v{212+4*ht+r}, v{212+4*ht+r}, v{220+ht}')
    for r in range(8):
        I(f'v_exp_f32 v{212+r}, v{212+r}')
    nop(1)
    for q in range(4):
        I(f'v_cvt_pk_bf16_f32 v{224+q}, v{212+2*q}, v{213+2*q}')
    I('ds_write_b64 v3, v[224:225]')
    I(f'ds_write_b64 v3, v[226:227] offset:{16*PTS}')
    I('v_lshlrev_b32 v2, 15, v15')
    I('v_lshl_add_u32 v2, v14, 4, v2')
    I('s_lshl_b32 s4, s42, 20')
    I('s_lshl_b32 s5, s43, 10')
    I('s_add_u32 s4, s4, s5')
    I('s_lshl_b32 s5, s3, 7')
    I('s_add_u32 s4, s4, s5')
    I(f's_add_u32 s4, s4, {OP}')
    I('s_add_u32 s5, s4, 0x80000')
    I('s_waitcnt lgkmcnt(0)')
    tick(7)
    barrier()
    tick(8)
    for ht in range(2):
        for t in range(4):
            I(f'ds_read_b128 {vr(148+16*ht+4*t)}, v5 offset:{ht*16*PTS + t*64}')
    I('s_cmp_gt_u32 s3, 1')
    I('s_cbranch_scc1 L_p3_nol')
    I('s_waitcnt lgkmcnt(0)')
    I('s_cmp_gt_u32 s3, 1')
    I('s_cbranch_scc1 L_p3_nol')
    for ht in range(2):
        for t in range(4):
            acc = 36 + 4 * ht
            c = '0' if t == 0 else vr(acc)
            I(f'v_mfma_f32_16x16x32_bf16 {vr(acc)}, v[16:19], {vr(148+16*ht+4*t)}, {c}')
    I('v_lshlrev_b32 v3, 8, v1')
    I('s_lshl_b32 s6, s42, 13')
    I('s_lshl_b32 s7, s3, 12')
    I('s_add_u32 s6, s6, s7')
    I('s_lshl_b32 s7, s43, 3')
    I('s_add_u32 s6, s6, s7')
    I(f's_add_u32 s6, s6, {ML}')
    I('s_cmp_eq_u32 s3, 0')
    I('s_cselect_b64 vcc, -1, 0')
    nop(2)
    I('v_cndmask_b32 v44, v221, v220, vcc')
    I('v_cndmask_b32 v45, v40, v36, vcc')
    I('v_min_u32 v44, 0xfffffffe, v44')
    I('v_min_u32 v45, 0xfffffffe, v45')
    setexec(0xffff)
    I(f'buffer_store_dwordx2 v[44:45], v3, {S(WS)}, s6 offen sc1')
    fullexec()
    L('L_p3_nol')
    for ht in range(2):
        for t in range(4):
            I(f's_waitcnt lgkmcnt({7-4*ht-t})')
            for n in range(4):
                acc = 180 + 16 * ht + 4 * n
                c = '0' if t == 0 else vr(acc)
                I(f'v_mfma_f32_16x16x32_bf16 {vr(acc)}, {vr(84+16*n+4*t)}, {vr(148+16*ht+4*t)}, {c}')
    tick(9)
    nop(1)
    for ht in range(2):
        for n in range(4):
            I(f'v_cvt_pk_bf16_f32 v{20+8*ht+2*n}, v{180+16*ht+4*n}, v{181+16*ht+4*n}')
            I(f'v_cvt_pk_bf16_f32 v{21+8*ht+2*n}, v{182+16*ht+4*n}, v{183+16*ht+4*n}')
        for r in range(8): I(f'v_min_u32 v{20+8*ht+r}, 0xfffffffe, v{20+8*ht+r}')
        so = 's4' if ht == 0 else 's5'
        I(f'buffer_store_dwordx4 {vr(20+8*ht)}, v2, {S(WS)}, {so} offen sc1')
        I(f'buffer_store_dwordx4 {vr(24+8*ht)}, v2, {S(WS)}, {so} offen offset:64 sc1')
    L('L_p3_done')
    tick(11)
    tick_dump(12)
    stamp(8)
    role_end('L_p3_real')

def role_DE_common():
    L('L_de')
    C_, WM = 12, 16
    srd(C_, 'c'); srd(WM, 'wmod')
    I('s_sub_u32 s40, s2, 128')
    I('v_lshrrev_b32 v14, 4, v1')
    I('v_and_b32 v15, 15, v1')
    I('v_lshlrev_b32 v13, 4, v1')
    if XSPLIT:
        I('s_and_b32 s4, s40, 63')
        I('s_and_b32 s5, s4, 3')
        I('s_lshr_b32 s6, s4, 3')
        I('s_lshl_b32 s6, s6, 2')
        I('s_add_u32 s42, s6, s5')
        I('s_bfe_u32 s43, s4, 0x10002')
        I('s_mov_b32 s47, 0')
        I('s_cmp_lt_u32 s40, 64')
        I('s_cbranch_scc1 L_dec_done')
        I('s_cmp_ge_u32 s42, 27')
        I('s_cselect_b32 s47, 1, 0')
    else:
        I('s_cmp_ge_u32 s40, 118')
        I('s_cselect_b32 s47, 1, 0')
        I('s_cmp_ge_u32 s40, 64')
        I('s_cbranch_scc1 L_dec_e')
        I('s_lshr_b32 s4, s40, 4')
        I('s_lshl_b32 s4, s4, 3')
        I('s_and_b32 s5, s40, 7')
        I('s_add_u32 s42, s4, s5')
        I('s_bfe_u32 s43, s40, 0x10003')
        I('s_branch L_dec_done')
        L('L_dec_e')
        I('s_sub_u32 s6, s40, 64')
        I('s_lshr_b32 s4, s6, 4')
        I('s_lshl_b32 s4, s4, 3')
        I('s_and_b32 s5, s6, 7')
        I('s_add_u32 s42, s4, s5')
        I('s_bfe_u32 s43, s6, 0x10003')
        I('s_cmp_lt_u32 s6, 48')
        I('s_cbranch_scc1 L_dec_done')
        I('s_sub_u32 s6, s6, 48')
        I('s_cmp_ge_u32 s6, 3')
        I('s_cselect_b32 s43, 1, 0')
        I('s_mul_i32 s4, s43, 3')
        I('s_sub_u32 s6, s6, s4')
        I('s_add_u32 s42, s6, 24')
    L('L_dec_done')
    sk = uid('noclr')
    I('s_cmp_lg_u32 s3, 7')
    I(f's_cbranch_scc1 {sk}')
    for r in range(4, 8): I(f'v_mov_b32 v{r}, -1')
    I('v_lshrrev_b32 v2, 5, v1')
    I('v_lshlrev_b32 v2, 13, v2')
    I('v_bfe_u32 v3, v1, 4, 1')
    I('v_mul_u32_u24 v3, 15360, v3')
    I('v_add_u32 v2, v2, v3')
    I('v_lshl_add_u32 v2, v15, 4, v2')
    I('s_and_b32 s4, s40, 3')
    I('s_mul_i32 s4, s4, 30720')
    I('s_lshr_b32 s5, s40, 2')
    I('s_lshl_b32 s5, s5, 8')
    I('s_add_u32 s4, s4, s5')
    I(f's_add_u32 s4, s4, {MOD}')
    I('s_cmp_lt_u32 s40, 112')
    I('s_cselect_b32 exec_hi, -1, 0')
    I(f'buffer_store_dwordx4 v[4:7], v2, {S(WS)}, s4 offen sc1')
    fullexec()
    I('s_cmp_ge_u32 s40, 64')
    I('s_cbranch_scc1 L_clr_e')
    I('s_lshl_b32 s4, s43, 5')
    I('s_add_u32 s4, s4, s42')
    I('s_mul_i32 s4, s4, 1280')
    I(f's_add_u32 s4, s4, {AP}')
    I(f'buffer_store_dwordx4 v[4:7], v13, {S(WS)}, s4 offen sc1')
    setexec(0xffff)
    I(f'buffer_store_dwordx4 v[4:7], v13, {S(WS)}, s4 offen offset:1024 sc1')
    fullexec()
    I('s_branch L_clr_done')
    L('L_clr_e')
    I('s_cmp_lg_u32 s47, 0')
    I('s_cbranch_scc1 L_clr_done')
    I('s_mul_i32 s4, s43, 27')
    I('s_add_u32 s4, s4, s42')
    I('s_mul_i32 s4, s4, 2560')
    I(f's_add_u32 s4, s4, {FP}')
    I(f'buffer_store_dwordx4 v[4:7], v13, {S(WS)}, s4 offen sc1')
    I(f'buffer_store_dwordx4 v[4:7], v13, {S(WS)}, s4 offen offset:1024 sc1')
    setexec(0xffffffff)
    I(f'buffer_store_dwordx4 v[4:7], v13, {S(WS)}, s4 offen offset:2048 sc1')
    fullexec()
    L('L_clr_done')
    flag_store(0, 8)
    stamp(9, 7)
    L(sk)
    I('s_and_b32 s45, s40, 3')
    I('s_lshr_b32 s46, s40, 2')
    def dma_addr():
        I('v_lshrrev_b32 v2, 3, v1')
        I('v_and_b32 v3, 7, v1')
        I('v_xor_b32 v3, v3, v2')
        I('v_mul_u32_u24 v2, 7680, v2')
        I('v_lshl_add_u32 v2, v3, 4, v2')
        I('s_mul_i32 s4, s45, 1228800')
        I('s_lshl_b32 s5, s46, 7')
        I('s_add_u32 s4, s4, s5')
    def dma_n(n):
        for q in range(n):
            I('s_mov_b32 m0, s5')
            nop(1)
            I(f'buffer_load_dwordx4 v2, {S(WM)}, s4 offen nt lds')
            if q < n - 1:
                I('s_add_u32 s4, s4, 61440')
                I('s_add_u32 s5, s5, 1024')
    def tr_base(wt):
        I('v_lshrrev_b32 v2, 2, v15')
        I('v_lshl_add_u32 v2, v14, 2, v2')
        I('v_and_b32 v3, 7, v2')
        I('v_bfe_u32 v4, v15, 1, 1')
        I('v_xor_b32 v3, v3, v4')
        I('v_lshlrev_b32 v2, 7, v2')
        I('v_and_b32 v4, 1, v15')
        I('v_lshl_add_u32 v2, v4, 3, v2')
        if wt: I(f'v_add_u32 v2, {wt}, v2')
    def st_reads():
        I('v_and_b32 v5, 1, v15')
        I('v_mul_u32_u24 v5, 320, v5')
        I('v_lshl_add_u32 v5, v14, 4, v5')
        for t in range(5):
            I(f'ds_read_b128 {vr(20+4*t)}, v5 offset:{L_ST + t*64}')
    I('s_cmp_gt_u32 s3, 3')
    I('s_cbranch_scc1 L_c_hi')
    dma_addr()
    I('s_mul_i32 s6, s3, 307200')
    I('s_add_u32 s4, s4, s6')
    I('s_mul_i32 s5, s3, 5120')
    dma_n(5)
    tr_base(0)
    I('s_lshl_b32 s6, s3, 1')
    I('v_xor_b32 v4, s6, v3')
    I('v_lshl_add_u32 v8, v4, 4, v2')
    I('v_mul_u32_u24 v9, 15360, v15')
    I('v_lshl_add_u32 v9, v14, 4, v9')
    I('s_mul_i32 s4, s45, 30720')
    I('s_lshl_b32 s5, s46, 8')
    I('s_add_u32 s4, s4, s5')
    I('s_lshl_b32 s5, s3, 6')
    I('s_add_u32 s4, s4, s5')
    I(f's_add_u32 s44, s4, {MOD}')
    I('s_waitcnt vmcnt(0)')
    I('s_branch L_c_bar')
    L('L_c_hi')
    I('s_cmp_gt_u32 s3, 5')
    I('s_cbranch_scc1 L_c_bar')
    I('s_sub_u32 s6, s3, 4')
    I('s_mul_i32 s4, s6, 1280')
    I('s_mul_i32 s5, s45, 320')
    I('s_add_u32 s4, s4, s5')
    I('v_lshlrev_b32 v2, 3, v1')
    I(f'buffer_load_dwordx2 v[4:5], v2, {S(C_)}, s4 offen')
    I('v_lshrrev_b32 v8, 3, v1')
    I('v_and_b32 v9, 3, v1')
    I('v_bfe_u32 v10, v1, 2, 1')
    I('v_lshlrev_b32 v6, 6, v8')
    I('v_lshl_add_u32 v6, v9, 4, v6')
    I('v_lshl_add_u32 v6, v10, 3, v6')
    I('s_mul_i32 s4, s6, 320')
    I(f's_add_u32 s4, s4, {L_ST}')
    I('v_add_u32 v6, s4, v6')
    I(f'v_mov_b32 v12, {L_FC}')
    I('v_mov_b32 v7, 0')
    I('ds_write_b32 v12, v7')
    I('s_waitcnt vmcnt(0)')
    I('v_lshlrev_b32 v8, 16, v4')
    I('v_and_b32 v9, 0xffff0000, v4')
    I('v_lshlrev_b32 v10, 16, v5')
    I('v_and_b32 v11, 0xffff0000, v5')
    for r in range(4): I(f'v_mul_f32 v{16+r}, 0xbfb8aa3b, v{8+r}')
    for r in range(4): I(f'v_exp_f32 v{16+r}, v{16+r}')
    for r in range(4): I(f'v_add_f32 v{16+r}, 1.0, v{16+r}')
    for r in range(4): I(f'v_rcp_f32 v{16+r}, v{16+r}')
    for r in range(4): I(f'v_mul_f32 v{16+r}, v{8+r}, v{16+r}')
    I('v_cvt_pk_bf16_f32 v4, v16, v17')
    I('v_cvt_pk_bf16_f32 v5, v18, v19')
    setexec(0xffffffff, 0xff)
    I('ds_write_b64 v6, v[4:5]')
    fullexec()
    I('s_waitcnt lgkmcnt(0)')
    L('L_c_bar')
    barrier()
    I('s_cmp_gt_u32 s3, 3')
    I('s_cbranch_scc1 L_c_hi2')
    delay(4)
    st_reads()
    for t in range(5):
        I(f'ds_read_b64_tr_b16 {vr(40+4*t,2)}, v8 offset:{t*4096}')
        I(f'ds_read_b64_tr_b16 {vr(42+4*t,2)}, v8 offset:{t*4096+2048}')
    for t in range(5):
        I(f's_waitcnt lgkmcnt({8-2*t})')
        c = '0' if t == 0 else 'v[60:63]'
        I(f'v_mfma_f32_16x16x32_bf16 v[60:63], {vr(40+4*t)}, {vr(20+4*t)}, {c}')
    nop(9)
    for r in range(4): I(f'v_min_u32 v{60+r}, 0xfffffffe, v{60+r}')
    setexec(0x00030003, 0x00030003)
    I(f'buffer_store_dwordx4 v[60:63], v9, {S(WS)}, s44 offen sc1')
    fullexec()
    tag_compute()
    I('s_branch L_c_done')
    L('L_c_hi2')
    tag_compute()
    I('s_cmp_lg_u32 s3, 6')
    I('s_cbranch_scc1 L_c_n6')
    I('s_cmp_lt_u32 s40, 64')
    I('s_cbranch_scc1 L_c_done')
    for r in range(4, 8): I(f'v_mov_b32 v{r}, -1')
    I('s_sub_u32 s6, s40, 64')
    I('s_lshl_b32 s7, s6, 15')
    I(f's_add_u32 s7, s7, {OP}')
    for i in range(32):
        I(f'buffer_store_dwordx4 v[4:7], v13, {S(WS)}, s7 offen offset:{(i%4)*1024} sc1')
        if i % 4 == 3 and i < 31: I('s_add_u32 s7, s7, 4096')
    I('s_lshl_b32 s7, s6, 8')
    I(f's_add_u32 s7, s7, {ML}')
    setexec(0xffff)
    I(f'buffer_store_dwordx4 v[4:7], v13, {S(WS)}, s7 offen sc1')
    fullexec()
    flag_store(1, 8)
    stamp(10, 6)
    I('s_branch L_c_done')
    L('L_c_n6')
    if EGATE or W1GATE:
        I('s_cmp_lg_u32 s3, 4')
        I('s_cbranch_scc1 L_c_n4')
        flags_wait(2, 0, 64, 2)
        I(f'v_mov_b32 v4, {L_FC}')
        I('v_mov_b32 v5, 1')
        I('ds_write_b32 v4, v5')
        I('s_waitcnt lgkmcnt(0)')
        I('s_branch L_c_done')
        L('L_c_n4')
    I('s_cmp_lg_u32 s3, 5')
    I('s_cbranch_scc1 L_c_done')
    I('s_cmp_ge_u32 s40, 112')
    I('s_cbranch_scc1 L_c_done')
    if W1GATE: lds_gate()
    I('s_add_u32 s46, s46, 32')
    dma_addr()
    I(f's_mov_b32 s5, {L_WT1}')
    dma_n(20)
    st_reads()
    tr_base(L_WT1)
    for n in range(4):
        I(f'v_xor_b32 v4, {2*n}, v3')
        I(f'v_lshl_add_u32 v{8+n}, v4, 4, v2')
    I('s_waitcnt vmcnt(0)')
    for n in range(4):
        for t in range(5):
            I(f'ds_read_b64_tr_b16 {vr(40+20*n+4*t,2)}, v{8+n} offset:{t*4096}')
            I(f'ds_read_b64_tr_b16 {vr(42+20*n+4*t,2)}, v{8+n} offset:{t*4096+2048}')
    I('s_waitcnt lgkmcnt(0)')
    for t in range(5):
        for n in range(4):
            c = '0' if t == 0 else vr(120 + 4 * n)
            I(f'v_mfma_f32_16x16x32_bf16 {vr(120+4*n)}, {vr(40+20*n+4*t)}, {vr(20+4*t)}, {c}')
    nop(9)
    for r in range(16): I(f'v_min_u32 v{120+r}, 0xfffffffe, v{120+r}')
    I('v_mul_u32_u24 v2, 15360, v15')
    I('v_lshl_add_u32 v2, v14, 4, v2')
    I('s_mul_i32 s4, s45, 30720')
    I('s_lshl_b32 s5, s46, 8')
    I('s_add_u32 s4, s4, s5')
    I(f's_add_u32 s4, s4, {MOD}')
    setexec(0x00030003, 0x00030003)
    for n in range(4):
        I(f'buffer_store_dwordx4 {vr(120+4*n)}, v2, {S(WS)}, s4 offen offset:{n*64} sc1')
    fullexec()
    L('L_c_done')
    stamp(1)
    I('s_cmp_ge_u32 s40, 64')
    I('s_cbranch_scc1 L_role_e')

def role_D():
    WUV, WO = 20, 24
    srd(WUV, 'wuv'); srd(WO, 'wo')
    make_masks(16, True)
    make_masks4(244, 1)
    delay(5)
    if SLOWN == 0: lds_gate()
    I('v_lshlrev_b32 v2, 17, v14')
    I('v_lshl_add_u32 v2, v15, 4, v2')
    I('s_lshl_b32 s4, s3, 19')
    I('s_lshl_b32 s5, s42, 8')
    I('s_add_u32 s4, s4, s5')
    for t in range(16):
        I(f'buffer_load_dwordx4 {vr(20+4*t)}, v2, {S(WUV)}, s4 offen nt')
        if t < 15: I('s_add_u32 s4, s4, 8192')
    I('s_mul_i32 s5, s42, 163840')
    I('s_cmp_gt_u32 s3, 3')
    I('s_cbranch_scc1 L_d_hi')
    I('v_mul_u32_u24 v3, 40960, v14')
    I('v_lshl_add_u32 v3, v15, 4, v3')
    I('s_lshl_b32 s6, s3, 8')
    I('s_add_u32 s5, s5, s6')
    for t in range(32):
        I(f'buffer_load_dwordx4 {vr(84+4*t)}, v3, {S(WO)}, s5 offen offset:{(t%3)*1280} nt')
        if t % 3 == 2: I('s_add_u32 s5, s5, 3840')
    I('s_waitcnt vmcnt(0)')
    pairperm([(20 + 8 * p, 24 + 8 * p) for p in range(24)], 6)
    I('s_branch L_d_main')
    L('L_d_hi')
    I('v_mul_u32_u24 v3, 10240, v14')
    I('v_lshl_add_u32 v3, v15, 4, v3')
    I('s_sub_u32 s6, s3, 4')
    I('s_mul_i32 s6, s6, 40960')
    I('s_add_u32 s5, s5, s6')
    I('s_add_u32 s5, s5, 1024')
    for t in range(8):
        I(f'buffer_load_dwordx4 {vr(84+4*t)}, v3, {S(WO)}, s5 offen offset:{(t%3)*1280} nt')
        if t % 3 == 2: I('s_add_u32 s5, s5, 3840')
    I('s_waitcnt vmcnt(0)')
    pairperm([(20 + 8 * p, 24 + 8 * p) for p in range(12)], 6)
    L('L_d_main')
    stamp(2)
    I('v_and_b32 v2, 31, v1')
    I('v_lshlrev_b32 v2, 3, v2')
    I('s_lshl_b32 s4, s43, 5')
    I('s_add_u32 s4, s4, s42')
    I('s_lshl_b32 s5, s4, 8')
    I(f's_add_u32 s5, s5, {ML}')
    sk = uid('nolp')
    I('s_cmp_lg_u32 s3, 4')
    I(f's_cbranch_scc1 {sk}')
    I('v_mov_b32 v12, v2')
    flags_wait(1, 192, 64)
    I('v_mov_b32 v2, v12')
    light_poll(lambda r: I(f'buffer_load_dwordx2 v[{r}:{r+1}], v2, {S(WS)}, s5 offen sc1'), 2, 120, 24 * THR)
    L(sk)
    barrier()
    stamp(6)
    sk = uid('noz')
    I('s_cmp_lt_u32 s3, 4')
    I(f's_cbranch_scc1 {sk}')
    I('v_lshlrev_b32 v3, 13, v14')
    I('v_lshl_add_u32 v3, v15, 4, v3')
    I('s_lshl_b32 s6, s4, 15')
    I('s_sub_u32 s46, s3, 4')
    I('s_lshl_b32 s7, s46, 8')
    I('s_add_u32 s6, s6, s7')
    I(f's_add_u32 s48, s6, {OP}')
    I('s_add_u32 s49, s48, 4096')
    lab = spin_begin()
    I(f'buffer_load_dwordx2 v[4:5], v2, {S(WS)}, s5 offen sc1')
    for t in range(8):
        I(f'buffer_load_dwordx4 {vr(164+4*t)}, v3, {S(WS)}, s{48+t//4} offen offset:{(t%4)*1024} sc1')
    I('s_waitcnt vmcnt(0)')
    anysent([4, 5] + list(range(164, 196)), 6)
    spin_end(lab)
    stamp(3, 4)
    I('v_mov_b32 v6, v4')
    allreduce('v_max_f32', 6, 7, half=True)
    I('v_sub_f32 v4, v4, v6')
    I('v_exp_f32 v4, v4')
    I('v_lshlrev_b32 v2, 2, v1')
    I(f's_add_u32 s7, s7, {L_D_WD}')
    I('v_add_u32 v2, s7, v2')
    I('v_cvt_pk_bf16_f32 v8, v4, v4')
    I('ds_write_b32 v2, v8')
    I('v_and_b32 v4, 0xffff0000, v8')
    I('v_mul_f32 v5, v4, v5')
    I('v_lshlrev_b32 v2, 5, v14')
    I('v_add_u32 v2, s7, v2')
    I('s_waitcnt lgkmcnt(0)')
    for q in range(2):
        I(f'ds_read_b128 {vr(196+4*q)}, v2 offset:{q*16}')
    allreduce('v_add_f32', 5, 7, half=True)
    I('v_rcp_f32 v5, v5')
    I('v_lshlrev_b32 v2, 4, v15')
    I('v_lshl_add_u32 v2, v14, 3, v2')
    I('s_lshl_b32 s4, s46, 8')
    I(f's_add_u32 s4, s4, {L_D_CD}')
    I('v_add_u32 v2, s4, v2')
    I('s_waitcnt lgkmcnt(0)')
    gemv_diag(8, lambda t: 196 + t, 16, [204, 208], lambda blk, t: 164 + 4 * t, [8])
    for r in range(4):
        I(f'v_mul_f32 v{8+r}, v{8+r}, v5')
    I('v_cvt_pk_bf16_f32 v8, v8, v9')
    I('v_cvt_pk_bf16_f32 v9, v10, v11')
    setexec(0xffffffff)
    I('ds_write_b64 v2, v[8:9]')
    fullexec()
    L(sk)
    I('v_lshlrev_b32 v2, 5, v14')
    I('s_lshl_b32 s4, s3, 7')
    I(f's_add_u32 s4, s4, {L_D_CD}')
    I('v_add_u32 v2, s4, v2')
    I('s_lshl_b32 s4, s3, 9')
    I(f's_add_u32 s4, s4, {L_D_RED}')
    I('v_add_u32 v3, s4, v13')
    I('s_waitcnt lgkmcnt(0)')
    barrier()
    stamp(4)
    for q in range(2):
        I(f'ds_read_b128 {vr(212+4*q)}, v2 offset:{q*16}')
    I('s_waitcnt lgkmcnt(0)')
    gemv_pair(8, lambda p: 212 + p, 244, [228, 232], lambda blk, t: 20 + 4 * t, [236], [240])
    setexec(0xffff)
    I('ds_write_b128 v3, v[236:239]')
    I('ds_write_b128 v3, v[240:243] offset:256')
    fullexec()
    I('s_waitcnt lgkmcnt(0)')
    barrier()
    sk = uid('nored')
    I('s_cmp_lg_u32 s3, 0')
    I(f's_cbranch_scc1 {sk}')
    I('v_lshlrev_b32 v3, 3, v1')
    I(f'v_add_u32 v3, {L_D_RED}, v3')
    I('v_add_u32 v2, 2048, v3')
    setexec(0xffffffff)
    for w in range(8):
        ad = 'v3' if w < 4 else 'v2'
        I(f'ds_read2_b64 {vr(20+4*w)}, {ad} offset0:{(w%4)*64} offset1:{(w%4)*64+32}')
    I('v_lshlrev_b32 v3, 3, v1')
    I(f'v_add_u32 v3, {L_D_CD}, v3')
    I('s_waitcnt lgkmcnt(0)')
    for st in (1, 2, 4):
        for w in range(0, 8, 2 * st):
            I(f'v_pk_add_f32 {vr(20+4*w,2)}, {vr(20+4*w,2)}, {vr(20+4*(w+st),2)}')
            I(f'v_pk_add_f32 {vr(22+4*w,2)}, {vr(22+4*w,2)}, {vr(22+4*(w+st),2)}')
    I('v_cvt_pk_bf16_f32 v20, v20, v22')
    I('v_cvt_pk_bf16_f32 v21, v21, v23')
    I('ds_write_b64 v3, v[20:21]')
    fullexec()
    I('s_waitcnt lgkmcnt(0)')
    L(sk)
    I('s_lshl_b32 s4, s43, 5')
    I('s_add_u32 s4, s4, s42')
    I('s_mul_i32 s4, s4, 1280')
    I(f's_add_u32 s4, s4, {AP}')
    barrier()
    delay(2)
    I('s_cmp_gt_u32 s3, 3')
    I('s_cbranch_scc1 L_d_hi2')
    I('v_lshlrev_b32 v2, 6, v14')
    I(f'v_add_u32 v2, {L_D_CD}, v2')
    for q in range(4):
        I(f'ds_read_b128 {vr(212+4*q)}, v2 offset:{q*16}')
    I('s_lshl_b32 s5, s3, 8')
    I('s_add_u32 s4, s4, s5')
    I('s_waitcnt lgkmcnt(0)')
    gemv_pair(16, lambda p: 212 + p, 244, [228, 232], lambda blk, t: 84 + 4 * t, [236], [240])
    for r in range(4):
        I(f'v_cvt_pk_bf16_f32 v{236+r}, v{236+r}, v{240+r}')
        I(f'v_min_u32 v{236+r}, 0xfffffffe, v{236+r}')
    setexec(0xffff)
    I(f'buffer_store_dwordx4 v[236:239], v13, {S(WS)}, s4 offen sc1')
    fullexec()
    stamp(5)
    barrier()
    I('s_branch L_end')
    L('L_d_hi2')
    I('v_lshlrev_b32 v2, 4, v14')
    I('s_lshl_b32 s5, s46, 6')
    I(f's_add_u32 s5, s5, {L_D_CD}')
    I('v_add_u32 v2, s5, v2')
    I('ds_read_b128 v[212:215], v2')
    I('s_lshl_b32 s5, s46, 9')
    I(f's_add_u32 s5, s5, {L_D_RED}')
    I('v_add_u32 v3, s5, v13')
    I('s_waitcnt lgkmcnt(0)')
    gemv_pair(4, lambda p: 212 + p, 244, [228, 232], lambda blk, t: 84 + 4 * t, [236], [240])
    setexec(0xffff)
    I('ds_write_b128 v3, v[236:239]')
    I('ds_write_b128 v3, v[240:243] offset:256')
    fullexec()
    I('s_waitcnt lgkmcnt(0)')
    barrier()
    I('s_cmp_lg_u32 s3, 4')
    I('s_cbranch_scc1 L_end')
    I(f'v_add_u32 v3, {L_D_RED}, v13')
    setexec(0xffff)
    for w in range(4):
        I(f'ds_read_b128 {vr(20+8*w)}, v3 offset:{w*512}')
        I(f'ds_read_b128 {vr(24+8*w)}, v3 offset:{w*512+256}')
    I('s_waitcnt lgkmcnt(0)')
    for q in range(4):
        I(f'v_pk_add_f32 {vr(20+2*q,2)}, {vr(20+2*q,2)}, {vr(28+2*q,2)}')
        I(f'v_pk_add_f32 {vr(36+2*q,2)}, {vr(36+2*q,2)}, {vr(44+2*q,2)}')
        I(f'v_pk_add_f32 {vr(20+2*q,2)}, {vr(20+2*q,2)}, {vr(36+2*q,2)}')
    for r in range(4):
        I(f'v_cvt_pk_bf16_f32 v{20+r}, v{20+r}, v{24+r}')
        I(f'v_min_u32 v{20+r}, 0xfffffffe, v{20+r}')
    I(f'buffer_store_dwordx4 v[20:23], v13, {S(WS)}, s4 offen offset:1024 sc1')
    fullexec()
    stamp(7, 4)
    I('s_branch L_end')

def role_E():
    L('L_role_e')
    WG, WU, WD, X_, OUT = 20, 24, 28, 32, 36
    srd(WG, 'wg'); srd(WU, 'wu'); srd(WD, 'wd'); srd(X_, 'x'); srd(OUT, 'out')
    make_masks(16, True)
    make_masks4(240, 1)
    L('L_e_init')
    delay(6)
    if EGATE: lds_gate()
    I('s_cmp_lg_u32 s47, 0')
    I('s_cbranch_scc1 L_end')
    I('v_mul_u32_u24 v2, 69120, v14')
    I('v_and_b32 v3, 7, v15')
    I('v_lshl_add_u32 v2, v3, 4, v2')
    I('s_mul_i32 s4, s3, 276480')
    I('s_lshl_b32 s5, s42, 7')
    I('s_add_u32 s4, s4, s5')
    I('s_mov_b32 s6, 0x00ff00ff')
    I('s_mov_b32 s7, 0x00ff00ff')
    I('s_mov_b32 s48, 0xff00ff00')
    I('s_mov_b32 s49, 0xff00ff00')
    lds = []
    for t in range(20):
        lds.append(([] if t == 0 else ['s_add_u32 s4, s4, 3456']) + ['s_mov_b64 exec, s[6:7]',
                   f'buffer_load_dwordx4 {vr(20+4*t)}, v2, {S(WG)}, s4 offen nt'])
        lds.append(['s_mov_b64 exec, s[48:49]', f'buffer_load_dwordx4 {vr(20+4*t)}, v2, {S(WU)}, s4 offen nt'])
    paced(lds, 2 * EPACE)
    fullexec()
    I('s_mul_i32 s4, s42, 81920')
    I('s_cmp_gt_u32 s3, 3')
    I('s_cbranch_scc1 L_e_hi')
    I('v_mul_u32_u24 v2, 20480, v14')
    I('v_lshl_add_u32 v2, v15, 4, v2')
    I('s_lshl_b32 s5, s3, 8')
    I('s_add_u32 s4, s4, s5')
    for t in range(16):
        I(f'buffer_load_dwordx4 {vr(100+4*t)}, v2, {S(WD)}, s4 offen nt')
        if t < 15: I('s_add_u32 s4, s4, 1280')
    I('s_waitcnt vmcnt(0)')
    pairperm([(20 + 8 * p, 24 + 8 * p) for p in range(18)], 6)
    I('s_branch L_e_main')
    L('L_e_hi')
    I('v_mul_u32_u24 v2, 5120, v14')
    I('v_lshl_add_u32 v2, v15, 4, v2')
    I('s_sub_u32 s5, s3, 4')
    I('s_mul_i32 s5, s5, 20480')
    I('s_add_u32 s4, s4, s5')
    I('s_add_u32 s4, s4, 1024')
    for t in range(4):
        I(f'buffer_load_dwordx4 {vr(100+4*t)}, v2, {S(WD)}, s4 offen nt')
        if t < 3: I('s_add_u32 s4, s4, 1280')
    I('s_waitcnt vmcnt(0)')
    pairperm([(20 + 8 * p, 24 + 8 * p) for p in range(12)], 6)
    if DRY:
        I('s_cmp_lg_u32 s3, 7')
        I('s_cbranch_scc1 L_e_main')
        enter_dry('L_e_main')
    L('L_e_main')
    sk = uid('nofw')
    I('s_cmp_lg_u32 s3, 0')
    skip_if(sk)
    flags_wait(0)
    L(sk)
    barrier()
    stamp(2)
    I('v_and_b32 v2, 1, v14')
    I('v_lshlrev_b32 v2, 2, v2')
    I('v_lshl_add_u32 v2, v15, 3, v2')
    I('s_lshl_b32 s4, s3, 7')
    I('v_add_u32 v12, s4, v2')
    sk5 = uid('w5')
    I('s_cmp_gt_u32 s3, 4')
    skip_if(sk5)
    I('v_lshlrev_b32 v2, 1, v12')
    I('s_mul_i32 s4, s43, 1280')
    I(f'buffer_load_dwordx2 v[4:5], v2, {S(X_)}, s4 offen')
    I('v_lshlrev_b32 v2, 2, v12')
    I('s_mul_i32 s4, s43, 15360')
    I(f's_add_u32 s48, s4, {MOD + 2*2560}')
    for i in range(1, 12):
        p, kq = i % 3, i // 3
        I(f's_add_u32 s{48+i}, s48, {p*2560 + kq*30720}')
    lab = spin_begin()
    for i in range(12):
        I(f'buffer_load_dwordx4 {vr(164+4*i)}, v2, {S(WS)}, s{48+i} offen sc1')
    I('s_waitcnt vmcnt(0)')
    anysent(range(164, 212), 6)
    spin_end(lab)
    for p in range(3):
        for r in range(4):
            a = 164 + 4 * p + r
            I(f'v_add_f32 v{a}, v{a}, v{a+12}')
            I(f'v_add_f32 v{a+24}, v{a+24}, v{a+36}')
            I(f'v_add_f32 v{a}, v{a}, v{a+24}')
            bfround(a)
    I('v_lshlrev_b32 v176, 16, v4')
    I('v_and_b32 v177, 0xffff0000, v4')
    I('v_lshlrev_b32 v178, 16, v5')
    I('v_and_b32 v179, 0xffff0000, v5')
    for r in range(4):
        I(f'v_add_f32 v{172+r}, 1.0, v{172+r}')
        bfround(172 + r)
    for d in range(4): I(f'v_and_b32 v{204+d}, 0x3f803f80, v{16+d}')
    I('v_mul_u32_u24 v3, 10240, v14')
    I('v_lshl_add_u32 v3, v15, 4, v3')
    I('s_mul_i32 s4, s43, 40960')
    I('s_lshl_b32 s5, s3, 8')
    I('s_add_u32 s4, s4, s5')
    I(f's_add_u32 s4, s4, {AP}')
    I('s_add_u32 s5, s4, 3840')
    I('s_add_u32 s6, s4, 7680')
    L(sk5)
    sk = uid('nolp')
    I('s_cmp_lg_u32 s3, 5')
    skip_if(sk)
    I('v_and_b32 v2, 31, v1')
    I('v_mul_u32_u24 v2, 1280, v2')
    I('s_mul_i32 s4, s43, 40960')
    I(f's_add_u32 s4, s4, {AP + 252}')
    light_poll(lambda r: I(f'buffer_load_dword v{r}, v2, {S(WS)}, s4 offen sc1'), 1, 4, 24 * THR)
    L(sk)
    barrier()
    stamp(6)
    tick(0)
    sk5 = uid('w5a')
    I('s_cmp_gt_u32 s3, 4')
    skip_if(sk5)
    lab = spin_begin()
    for t in range(8):
        so = ['s4', 's5', 's6'][t // 3]
        I(f'buffer_load_dwordx4 {vr(208+4*t)}, v3, {S(WS)}, {so} offen offset:{(t%3)*1280} sc1')
    I('s_waitcnt vmcnt(0)')
    anysent(range(208, 240), 6)
    spin_end(lab)
    stamp(3)
    tick(1)
    for t in range(8):
        c = '0' if t == 0 else 'v[180:183]'
        I(f'v_mfma_f32_16x16x32_bf16 v[180:183], v[204:207], {vr(208+4*t)}, {c}')
    nop(9)
    for r in range(4):
        bfround(180 + r)
        I(f'v_mul_f32 v{180+r}, v{164+r}, v{180+r}')
        bfround(180 + r)
        I(f'v_add_f32 v{180+r}, v{176+r}, v{180+r}')
        bfround(180 + r)
    tick(2)
    I('v_cmp_gt_u32 vcc, 32, v1')
    I('v_add_f32 v6, v180, v181')
    I('v_add_f32 v7, v182, v183')
    I('v_add_f32 v6, v6, v7')
    I('v_cndmask_b32 v6, 0, v6, vcc')
    allreduce('v_add_f32', 6, 7)
    I('v_mul_f32 v6, 0x3c000000, v6')
    for r in range(4): I(f'v_sub_f32 v{184+r}, v{180+r}, v6')
    I('v_mul_f32 v8, v184, v184')
    for r in range(1, 4): I(f'v_fmac_f32 v8, v{184+r}, v{184+r}')
    I('v_cndmask_b32 v8, 0, v8, vcc')
    allreduce('v_add_f32', 8, 7)
    I('v_mov_b32 v7, v8')
    I('s_lshl_b32 s4, s3, 3')
    I(f's_add_u32 s4, s4, {L_E_STAT}')
    I('v_mov_b32 v2, s4')
    I('v_lshlrev_b32 v3, 2, v12')
    I(f'v_add_u32 v3, {L_E_X1}, v3')
    setexec(1)
    I('ds_write_b64 v2, v[6:7]')
    setexec(0xffffffff)
    I('ds_write_b128 v3, v[180:183]')
    fullexec()
    I('s_waitcnt lgkmcnt(0)')
    L(sk5)
    tick(3)
    barrier()
    tick(4)
    sk5 = uid('w5b')
    I('s_cmp_gt_u32 s3, 4')
    skip_if(sk5)
    I(f'v_mov_b32 v2, {L_E_STAT}')
    I('ds_read_b128 v[184:187], v2')
    I('ds_read_b128 v[188:191], v2 offset:16')
    I('ds_read_b64 v[192:193], v2 offset:32')
    I('s_waitcnt lgkmcnt(0)')
    I('v_add_f32 v6, v184, v186')
    I('v_add_f32 v6, v6, v188')
    I('v_add_f32 v6, v6, v190')
    I('v_add_f32 v6, v6, v192')
    I('v_mul_f32 v6, 0x3e4ccccd, v6')
    I('v_add_f32 v7, v185, v187')
    I('v_add_f32 v7, v7, v189')
    I('v_add_f32 v7, v7, v191')
    I('v_add_f32 v7, v7, v193')
    for k in range(5):
        I(f'v_sub_f32 v8, v{184+2*k}, v6')
        I('v_mul_f32 v8, v8, v8')
        I('v_fmac_f32 v7, 0x43000000, v8')
    I('v_mul_f32 v7, 0x3acccccd, v7')
    bfround(6); bfround(7)
    I('v_add_f32 v7, 0x3727c5ac, v7')
    bfround(7)
    I('v_sqrt_f32 v7, v7')
    nop(1)
    bfround(7)
    I('v_rcp_f32 v7, v7')
    for r in range(4):
        I(f'v_sub_f32 v{184+r}, v{180+r}, v6')
        bfround(184 + r)
        I(f'v_mul_f32 v{184+r}, v{184+r}, v7')
        bfround(184 + r)
        I(f'v_mul_f32 v{184+r}, v{184+r}, v{172+r}')
        bfround(184 + r)
        I(f'v_add_f32 v{184+r}, v{184+r}, v{168+r}')
    I('v_cvt_pk_bf16_f32 v184, v184, v185')
    I('v_cvt_pk_bf16_f32 v185, v186, v187')
    I('v_lshlrev_b32 v3, 1, v12')
    I(f'v_add_u32 v3, {L_E_HT}, v3')
    setexec(0xffffffff)
    I('ds_write_b64 v3, v[184:185]')
    fullexec()
    I('s_waitcnt lgkmcnt(0)')
    L(sk5)
    tick(5)
    barrier()
    tick(6)
    stamp(4)
    I('v_mul_u32_u24 v2, 40, v14')
    I('s_mul_i32 s4, s3, 160')
    I(f's_add_u32 s4, s4, {L_E_HT}')
    I('v_add_u32 v2, s4, v2')
    for q in range(5):
        I(f'ds_read_b64 {vr(164+2*q,2)}, v2 offset:{q*8}')
    I('s_lshl_b32 s4, s3, 9')
    I(f's_add_u32 s4, s4, {L_E_RED}')
    I('v_add_u32 v3, s4, v13')
    I('s_waitcnt lgkmcnt(0)')
    gemv_pair(10, lambda p: 164 + p, 240, [204, 208], lambda blk, t: 20 + 4 * t, [212], [216])
    setexec(0xffff)
    I('ds_write_b128 v3, v[212:215]')
    I('ds_write_b128 v3, v[216:219] offset:256')
    fullexec()
    I('s_waitcnt lgkmcnt(0)')
    tick(7)
    barrier()
    tick(8)
    sk = uid('nohh')
    I('s_cmp_lg_u32 s3, 0')
    skip_if(sk)
    I('v_lshrrev_b32 v2, 5, v1')
    I('v_and_b32 v3, 31, v1')
    I('v_lshlrev_b32 v3, 2, v3')
    I('v_lshl_add_u32 v3, v2, 8, v3')
    I(f'v_add_u32 v3, {L_E_RED}, v3')
    for w in range(8):
        I(f'ds_read2_b32 {vr(164+2*w,2)}, v3 offset0:{(w%2)*128} offset1:{(w%2)*128+32}' if w < 2 else
          f'ds_read2_b32 {vr(164+2*w,2)}, v{4+w//2} offset0:{(w%2)*128} offset1:{(w%2)*128+32}')
        if w % 2 == 1 and w < 7: I(f'v_add_u32 v{5+w//2}, {1024*(w//2+1)}, v3')
    I('v_and_b32 v3, 31, v1')
    I('v_lshlrev_b32 v3, 2, v3')
    I('v_lshl_add_u32 v3, v2, 1, v3')
    I(f'v_add_u32 v3, {L_E_HH}, v3')
    I('s_waitcnt lgkmcnt(0)')
    for st in (1, 2, 4):
        for w in range(0, 8, 2 * st):
            I(f'v_pk_add_f32 {vr(164+2*w,2)}, {vr(164+2*w,2)}, {vr(164+2*(w+st),2)}')
    I('v_cvt_pk_bf16_f32 v166, v164, v165')
    I('v_lshlrev_b32 v164, 16, v166')
    I('v_and_b32 v165, 0xffff0000, v166')
    I('v_mul_f32 v164, 0xbfb8aa3b, v164')
    I('v_exp_f32 v164, v164')
    nop(1)
    I('v_add_f32 v164, 1.0, v164')
    I('v_rcp_f32 v164, v164')
    nop(1)
    bfround(164)
    I('v_mul_f32 v164, v164, v165')
    I('v_cvt_pk_bf16_f32 v164, v164, v164')
    I('ds_write_b16 v3, v164')
    I('s_waitcnt lgkmcnt(0)')
    L(sk)
    I('s_mul_i32 s4, s43, 27')
    I('s_add_u32 s4, s4, s42')
    I('s_mul_i32 s4, s4, 2560')
    I(f's_add_u32 s4, s4, {FP}')
    tick(9)
    barrier()
    delay(3)
    tick(10)
    I('s_cmp_gt_u32 s3, 3')
    I('s_cbranch_scc1 L_e_hi2')
    I('v_lshlrev_b32 v2, 5, v14')
    I(f'v_add_u32 v2, {L_E_HH}, v2')
    for q in range(2):
        I(f'ds_read_b128 {vr(164+4*q)}, v2 offset:{q*16}')
    I('s_lshl_b32 s5, s3, 9')
    I('s_add_u32 s4, s4, s5')
    I('s_waitcnt lgkmcnt(0)')
    gemv_pair(8, lambda p: 164 + p, 240, [204, 208], lambda blk, t: 100 + 4 * t, [212], [216])
    for r in range(8): I(f'v_min_u32 v{212+r}, 0xfffffffe, v{212+r}')
    setexec(0xffff)
    I(f'buffer_store_dwordx4 v[212:215], v13, {S(WS)}, s4 offen sc1')
    I(f'buffer_store_dwordx4 v[216:219], v13, {S(WS)}, s4 offen offset:256 sc1')
    fullexec()
    tick(11)
    tick_dump(12)
    stamp(5)
    barrier()
    I('s_branch L_end')
    L('L_e_hi2')
    I('s_sub_u32 s46, s3, 4')
    I('v_lshlrev_b32 v2, 3, v14')
    I('s_lshl_b32 s5, s46, 5')
    I(f's_add_u32 s5, s5, {L_E_HH}')
    I('v_add_u32 v2, s5, v2')
    I('ds_read_b64 v[164:165], v2')
    I('s_lshl_b32 s5, s46, 9')
    I(f's_add_u32 s5, s5, {L_E_RED}')
    I('v_add_u32 v3, s5, v13')
    I('s_waitcnt lgkmcnt(0)')
    gemv_pair(2, lambda p: 164 + p, 240, [204, 208], lambda blk, t: 100 + 4 * t, [212], [216])
    setexec(0xffff)
    I('ds_write_b128 v3, v[212:215]')
    I('ds_write_b128 v3, v[216:219] offset:256')
    fullexec()
    I('s_waitcnt lgkmcnt(0)')
    barrier()
    I('s_cmp_lg_u32 s3, 4')
    I('s_cbranch_scc1 L_final')
    I(f'v_add_u32 v3, {L_E_RED}, v13')
    setexec(0xffff)
    for w in range(4):
        I(f'ds_read_b128 {vr(20+8*w)}, v3 offset:{w*512}')
        I(f'ds_read_b128 {vr(24+8*w)}, v3 offset:{w*512+256}')
    I('s_waitcnt lgkmcnt(0)')
    for q in range(4):
        I(f'v_pk_add_f32 {vr(20+2*q,2)}, {vr(20+2*q,2)}, {vr(28+2*q,2)}')
        I(f'v_pk_add_f32 {vr(36+2*q,2)}, {vr(36+2*q,2)}, {vr(44+2*q,2)}')
        I(f'v_pk_add_f32 {vr(20+2*q,2)}, {vr(20+2*q,2)}, {vr(36+2*q,2)}')
    for r in range(8): I(f'v_min_u32 v{20+r}, 0xfffffffe, v{20+r}')
    I('s_add_u32 s4, s4, 2048')
    I(f'buffer_store_dwordx4 v[20:23], v13, {S(WS)}, s4 offen sc1')
    I(f'buffer_store_dwordx4 v[24:27], v13, {S(WS)}, s4 offen offset:256 sc1')
    fullexec()
    I('s_branch L_end')
    L('L_final')
    I('s_cmp_lg_u32 s3, 5')
    skip_if('L_end')
    I('s_cmp_ge_u32 s42, 10')
    skip_if('L_end')
    I('s_waitcnt vmcnt(0)')
    I('s_lshl_b32 s4, s42, 6')
    I('v_add_u32 v12, s4, v1')
    I('v_lshlrev_b32 v2, 2, v12')
    I(f'v_add_u32 v3, {L_E_X1}, v2')
    I('ds_read_b32 v10, v3')
    I('v_lshrrev_b32 v4, 7, v12')
    I('v_lshlrev_b32 v4, 9, v4')
    I('v_and_b32 v5, 1, v12')
    I('v_lshl_add_u32 v4, v5, 8, v4')
    I('v_bfe_u32 v5, v12, 3, 4')
    I('v_lshl_add_u32 v4, v5, 4, v4')
    I('v_bfe_u32 v5, v12, 1, 2')
    I('v_lshl_add_u32 v4, v5, 2, v4')
    I('s_mul_i32 s4, s43, 15360')
    I(f's_add_u32 s4, s4, {MOD + 5*2560}')
    I('s_mul_i32 s5, s43, 69120')
    I(f's_add_u32 s5, s5, {FP}')
    lab = spin_begin()
    I('s_mov_b32 s6, s4')
    for kq in range(4):
        I(f'buffer_load_dword v{48+kq}, v2, {S(WS)}, s6 offen sc1')
        if kq < 3: I('s_add_u32 s6, s6, 30720')
    I('s_waitcnt vmcnt(0)')
    anysent(list(range(48, 52)), 6)
    spin_end(lab)
    for p in range(9): I(f's_add_u32 s{48+p}, s5, {p*7680}')
    def fissue(base):
        for p in range(27):
            I(f'buffer_load_dword v{base+p}, v4, {S(WS)}, s{48+p//3} offen offset:{(p%3)*2560 if (p%3)*2560 < 4096 else 0} sc1'
              if p % 3 < 2 else f'buffer_load_dword v{base+p}, v5, {S(WS)}, s{48+p//3} offen sc1')
    I('v_add_u32 v5, 5120, v4')
    I('s_mov_b32 s98, 0')
    fissue(20)
    I('s_sleep 6')
    L('L_fin_top')
    fissue(60)
    I('s_waitcnt vmcnt(27)')
    anysent(list(range(20, 47)), 6)
    I('s_cbranch_vccz L_fin_done')
    fissue(20)
    I('s_waitcnt vmcnt(27)')
    anysent(list(range(60, 87)), 6)
    I('s_cbranch_vccz L_fin_b')
    I('s_add_u32 s98, s98, 1')
    I(f's_cmp_gt_u32 s98, {SPIN_LIMIT}')
    I('s_cbranch_scc1 L_end')
    I('s_branch L_fin_top')
    L('L_fin_b')
    I('s_waitcnt vmcnt(0)')
    for p in range(27): I(f'v_mov_b32 v{20+p}, v{60+p}')
    L('L_fin_done')
    I('v_add_f32 v11, v48, v49')
    I('v_add_f32 v50, v50, v51')
    I('v_add_f32 v11, v11, v50')
    bfround(11)
    for p in range(1, 27): I(f'v_add_f32 v20, v20, v{20+p}')
    bfround(20)
    I('v_mul_f32 v20, v11, v20')
    bfround(20)
    I('s_waitcnt lgkmcnt(0)')
    I('v_add_f32 v20, v10, v20')
    I('v_cvt_pk_bf16_f32 v20, v20, v20')
    I('v_lshlrev_b32 v2, 1, v12')
    I('s_mul_i32 s4, s43, 1280')
    I(f'buffer_store_short v20, v2, {S(OUT)}, s4 offen')
    stamp(7, 5)
    if DBGT:
        I('s_memrealtime s[60:61]')
        I('s_mov_b32 s20, s90')
        I('s_and_b32 s21, s91, 0xffff')
        I('s_mov_b32 s22, 256')
        I('s_mov_b32 s23, 0x00020000')
        I('s_waitcnt lgkmcnt(0)')
        I('s_sub_u32 s60, s60, s56')
        I('v_mov_b32 v4, s60')
        I('s_mul_i32 s5, s43, 10')
        I('s_add_u32 s5, s5, s42')
        I('s_lshl_b32 s5, s5, 2')
        I('v_mov_b32 v5, 0')
        setexec(1)
        I('buffer_store_dword v4, v5, s[20:23], s5 offen')
        fullexec()
    role_end('L_e_main')

prologue()
role_P12()
role_P3()
role_DE_common()
role_D()
role_E()
L('L_end')
I('s_endpgm')

def wrap_vm(ls):
    out = []; i = 0; n = 0
    while i < len(ls):
        x = ls[i].strip()
        def isvm(k):
            y = ls[k].strip()
            return y.startswith('buffer_store') or (not INSPIN[k] and (y.startswith('s_waitcnt vmcnt') or (y.startswith('buffer_load') and ' nt' not in y)))
        if isvm(i):
            j = i
            while j < len(ls) and isvm(j):
                j += 1
            n += 1
            out.append(f'    s_cbranch_execz L_vs_{n}')
            out += ls[i:j]
            out.append(f'L_vs_{n}:')
            i = j
        else:
            out.append(ls[i]); i += 1
    return out
if DRY:
    INSPIN = []
    ins = False
    for x in lines:
        t = x.strip()
        if re.match(r'L_spin_\d+:$', t): ins = True
        if re.match(r'L_spin_\d+_x:$', t): ins = False
        INSPIN.append(ins)
    lines = wrap_vm(lines)
hdr = open('cdna_kernels/' + NAME + '.s.ref').read().split('\n')
out = []
for ln in hdr:
    if ln.startswith('; @launch'):
        out.append(f'; @launch grid=(256,1,1) block=(512,1,1) lds={LDS_BYTES}')
    elif ln.startswith(';'):
        out.append(ln)
    else:
        break
out += ['.amdgcn_target "amdgcn-amd-amdhsa--gfx950"', '.text', f'.globl {NAME}_kernel', '.p2align 8',
        f'.type {NAME}_kernel,@function', f'{NAME}_kernel:']
out += lines
out += ['.section .rodata,"a"', '.p2align 6', f'.amdhsa_kernel {NAME}_kernel',
        '  .amdhsa_next_free_vgpr 256', '  .amdhsa_next_free_sgpr 102', '  .amdhsa_accum_offset 256',
        '  .amdhsa_group_segment_fixed_size 0', '  .amdhsa_kernarg_size 120', '  .amdhsa_user_sgpr_count 2',
        '  .amdhsa_user_sgpr_kernarg_segment_ptr 1', '  .amdhsa_system_sgpr_workgroup_id_x 1',
        '.end_amdhsa_kernel', '']
open(sys.argv[1], 'w').write('\n'.join(out))
```

```python
import sys, re

NAME = 'adaLN_cond__compressed_kv_cla__glu_gated_glu__decode'
STAMP = int(sys.argv[2]) if len(sys.argv) > 2 else 0
DBGT = (STAMP == 2)
if DBGT: STAMP = 0
SPIN_LIMIT = 200000

EPOCH = 0
FLAGS = 2048
MOD = 8192
QP = 131072
QA = 262144
ML = 327680
AP = 360448
FP = 442368
STP = 589824
OP = 1048576
WS_BYTES = OP + 2 * 32 * 32 * 1024

CKS = 1040
L_WU = 0
L_HD = 66560
L_RED = L_HD + 2560
L_QT2 = L_RED + 5120
L_CNT = L_QT2 + 512
L_CK = 0
L_QT = 0
PTS = 272
L_PT = 133120
L_MX = L_PT + 32 * PTS
LDS_BYTES = L_MX + 1024
L_WT0 = 0
L_WT1 = 20480
L_ST = 40960
L_FC = 44032
L_D_WD = 45056
L_D_CD = 46080
L_D_RED = 49152
L_D_RED2 = 53248
L_E_STAT = 45056
L_E_X1 = 45312
L_E_HT = 48128
L_E_RED = 53248
L_E_HH = 57344
PACE = int(sys.argv[3]) if len(sys.argv) > 3 else 6
SLOWN = int(sys.argv[4]) if len(sys.argv) > 4 else 6
DRY = int(sys.argv[5]) if len(sys.argv) > 5 else 0
EGATE = int(sys.argv[6]) if len(sys.argv) > 6 else 1
EPACE = int(sys.argv[7]) if len(sys.argv) > 7 else 6
SLOWP = int(sys.argv[8]) if len(sys.argv) > 8 else 2
LATEC = int(sys.argv[9]) if len(sys.argv) > 9 else 0
CK0 = int(sys.argv[10]) if len(sys.argv) > 10 else 4
CK1 = int(sys.argv[11]) if len(sys.argv) > 11 else 6
W1GATE = int(sys.argv[12]) if len(sys.argv) > 12 else 0
XSPLIT = int(sys.argv[13]) if len(sys.argv) > 13 else 0
P3GATE = int(sys.argv[14]) if len(sys.argv) > 14 else 0
WU0 = int(sys.argv[15]) if len(sys.argv) > 15 else 6
THR = int(sys.argv[16]) if len(sys.argv) > 16 else 1
DELAY = int(sys.argv[17]) if len(sys.argv) > 17 else 0
AGATE = int(sys.argv[18]) if len(sys.argv) > 18 else 0
SFLAG = int(sys.argv[19]) if len(sys.argv) > 19 else 0
PAIRX = int(sys.argv[20]) if len(sys.argv) > 20 else 0

TAGC_LO = 0x7F4A7C15
TAGC_HI = 0x9E3779B9

lines = []
def I(s): lines.append('    ' + s)
def L(s): lines.append(s + ':')
def C(s): lines.append('    ; ' + s)
def nop(n):
    while n > 0:
        k = min(n, 16)
        I(f's_nop {k-1}')
        n -= k
_uid = [0]
def uid(p):
    _uid[0] += 1
    return f'L_{p}_{_uid[0]}'
def vr(a, n=4): return f'v[{a}:{a+n-1}]'

PTR = {k: 64 + 2 * i for i, k in enumerate(
    ['x', 'ckv', 'wq', 'wuk', 'wuv', 'wo', 'bx', 'wg', 'wu', 'wd', 'c', 'wmod', 'out', 'dbg', 'ws'])}
NBYTES = dict(x=2560, ckv=8388608, wq=5242880, wuk=4194304, wuv=4194304, wo=5242880, wg=2211840, wu=2211840,
              wd=2211840, c=2560, wmod=4915200, out=2560, ws=WS_BYTES)
def srd(d, name):
    p = PTR[name]
    I(f's_mov_b32 s{d}, s{p}')
    I(f's_and_b32 s{d+1}, s{p+1}, 0xffff')
    I(f's_mov_b32 s{d+2}, {NBYTES[name]}')
    I(f's_mov_b32 s{d+3}, 0x00020000')
def S(d): return f's[{d}:{d+3}]'
WS = 8

def setexec(lo, hi=0):
    I(f's_and_b32 exec_lo, s100, 0x{lo:x}')
    if hi: I(f's_and_b32 exec_hi, s100, 0x{hi:x}')
    else: I('s_mov_b32 exec_hi, 0')
def fullexec():
    I('s_mov_b64 exec, s[100:101]')
def skip_if(lab):
    I('s_cselect_b32 s99, s100, 0')
    I('s_cmp_lg_u32 s99, 0')
    I(f's_cbranch_scc1 {lab}')
def barrier():
    o = uid('bar')
    I('s_cmp_eq_u32 s100, 0')
    I(f's_cbranch_scc1 {o}')
    I('s_barrier')
    L(o)
def enter_dry(target):
    I('s_mov_b64 s[100:101], 0')
    I('s_mov_b64 exec, 0')
    I(f's_branch {target}')
def role_end(back):
    I('s_cmp_lg_u32 s100, 0')
    I('s_cbranch_scc1 L_end')
    I('s_mov_b64 s[100:101], -1')
    I('s_mov_b64 exec, -1')
    I(f's_branch {back}')

def stamp(idx, wave=0):
    if STAMP != 1: return
    skip = uid('st')
    I(f's_cmp_lg_u32 s3, {wave}')
    I(f's_cbranch_scc1 {skip}')
    I('s_memrealtime s[60:61]')
    I('s_waitcnt lgkmcnt(0)')
    I('v_mov_b32 v254, s60')
    I('v_mov_b32 v255, s61')
    I(f's_lshl_b32 s62, s2, 7')
    I(f's_add_u32 s62, s62, {STP + idx*8}')
    I('v_mov_b32 v253, 0')
    I('s_mov_b64 s[58:59], exec')
    setexec(1)
    I(f'buffer_store_dwordx2 v[254:255], v253, {S(WS)}, s62 offen')
    I('s_mov_b64 exec, s[58:59]')
    L(skip)

TICK = (STAMP == 3)
def tick(i):
    if TICK: I(f's_memtime s[{64+2*i}:{65+2*i}]')
def tick_dump(n):
    if not TICK: return
    skip = uid('tk')
    I('s_cmp_lg_u32 s3, 0')
    I(f's_cbranch_scc1 {skip}')
    I('s_waitcnt lgkmcnt(0)')
    I('s_mov_b64 s[58:59], exec')
    setexec(1)
    I('v_mov_b32 v253, 0')
    for i in range(n):
        I(f'v_mov_b32 v254, s{64+2*i}')
        I(f'v_mov_b32 v255, s{65+2*i}')
        I(f's_lshl_b32 s62, s2, 7')
        I(f's_add_u32 s62, s62, {STP + i*8}')
        I(f'buffer_store_dwordx2 v[254:255], v253, {S(WS)}, s62 offen')
        nop(2)
    I('s_mov_b64 exec, s[58:59]')
    L(skip)

def delay(place):
    if DELAY == place:
        for _ in range(1): I('s_sleep 110')
    if DELAY >= 8 and place in (5, 6, 7):
        n = {8: 75, 9: 110, 10: 127}[DELAY] - (0 if place == 7 else 60)
        I(f's_sleep {n}')
        if DELAY == 10: I('s_sleep 40')

def spin_begin():
    lab = uid('spin')
    I(f's_cbranch_execz {lab}_x')
    I('s_mov_b32 s98, 0')
    L(lab)
    return lab
def spin_end(lab, sleep=1):
    done = uid('spd')
    I(f's_cbranch_vccz {done}')
    I('s_add_u32 s98, s98, 1')
    I(f's_cmp_gt_u32 s98, {SPIN_LIMIT}')
    I('s_cbranch_scc1 L_end')
    I(f's_sleep {sleep}')
    I(f's_branch {lab}')
    L(done)
    L(f'{lab}_x')

def anysent(regs, tmp):
    regs = list(regs)
    cur = regs[0]; rest = regs[1:]
    while rest:
        if len(rest) >= 2:
            I(f'v_max3_u32 v{tmp}, v{cur}, v{rest[0]}, v{rest[1]}'); rest = rest[2:]
        else:
            I(f'v_max_u32 v{tmp}, v{cur}, v{rest[0]}'); rest = rest[1:]
        cur = tmp
    I(f'v_cmp_eq_u32 vcc, -1, v{cur}')

def allreduce(op, x, tmp, rows_only=False, skip_row=False, half=False):
    if not skip_row:
        for ctl in ['quad_perm:[1,0,3,2]', 'quad_perm:[2,3,0,1]', 'row_half_mirror', 'row_mirror']:
            nop(2)
            I(f'{op}_dpp v{x}, v{x}, v{x} {ctl} row_mask:0xf bank_mask:0xf')
    if rows_only: return
    for sw in (['v_permlane16_swap_b32'] if half else ['v_permlane16_swap_b32', 'v_permlane32_swap_b32']):
        I(f'v_mov_b32 v{tmp}, v{x}')
        nop(2)
        I(f'{sw} v{x}, v{tmp}')
        nop(1)
        I(f'{op} v{x}, v{x}, v{tmp}')

def bfround(x, tmp=None):
    I(f'v_cvt_pk_bf16_f32 v{x}, v{x}, v{x}')
    I(f'v_and_b32 v{x}, 0xffff0000, v{x}')

def make_masks(m, single):
    I('v_and_b32 v2, 1, v1')
    I('v_cmp_eq_u32 vcc, 1, v2')
    I('v_mov_b32 v3, 0xffff')
    I('v_mov_b32 v2, 0xffff0000')
    nop(1)
    I('v_cndmask_b32 v3, v3, v2, vcc')
    if single:
        I('v_and_b32 v2, 8, v1')
        I('v_cmp_eq_u32 vcc, 0, v2')
        nop(2)
        I('v_cndmask_b32 v3, 0, v3, vcc')
    I('v_bfe_u32 v2, v1, 1, 2')
    for d in range(4):
        I(f'v_cmp_eq_u32 vcc, {d}, v2')
        nop(2)
        I(f'v_cndmask_b32 v{m+d}, 0, v3, vcc')

def gemv_diag(T, aval, masks, abuf, bq, accs):
    def build(t):
        a = abuf[t % 2]
        for d in range(4):
            I(f'v_and_b32 v{a+d}, v{masks+d}, v{aval(t)}')
    build(0)
    for t in range(T):
        a = abuf[t % 2]
        if t + 1 < T:
            build(t + 1)
        else:
            nop(2)
        for blk, acc in enumerate(accs):
            c = '0' if t == 0 else vr(acc)
            I(f'v_mfma_f32_16x16x32_bf16 {vr(acc)}, {vr(a)}, {vr(bq(blk, t))}, {c}')
    nop(9)

def make_masks4(m, nb):
    I('v_bfe_u32 v2, v1, 2, 2')
    I(f'v_cmp_gt_u32 vcc, {nb}, v2')
    nop(2)
    I('v_cndmask_b32 v3, 0, -1, vcc')
    I('v_and_b32 v2, 3, v1')
    for d in range(4):
        I(f'v_cmp_eq_u32 vcc, {d}, v2')
        nop(2)
        I(f'v_cndmask_b32 v{m+d}, 0, v3, vcc')

def pairperm(quads, tmp):
    I('s_mov_b32 s4, 0x05040100')
    I('s_mov_b32 s5, 0x07060302')
    for n, (x0, x1) in enumerate(quads):
        for q in range(4):
            t = tmp + (q & 1)
            I(f'v_perm_b32 v{t}, v{x1+q}, v{x0+q}, s4')
            I(f'v_perm_b32 v{x1+q}, v{x1+q}, v{x0+q}, s5')
            I(f'v_mov_b32 v{x0+q}, v{t}')

def gemv_pair(P, aval, masks, abuf, bq, accE, accO):
    def build(p):
        a = abuf[p % 2]
        for d in range(4):
            I(f'v_and_b32 v{a+d}, v{masks+d}, v{aval(p)}')
    build(0)
    for p in range(P):
        a = abuf[p % 2]
        if p + 1 < P: build(p + 1)
        else: nop(2)
        for blk in range(len(accE)):
            for acc, t in ((accE[blk], 2 * p), (accO[blk], 2 * p + 1)):
                c = '0' if p == 0 else vr(acc)
                I(f'v_mfma_f32_16x16x32_bf16 {vr(acc)}, {vr(a)}, {vr(bq(blk, t))}, {c}')
    nop(9)

def spin_end_thr(lab, thr, sleep=1):
    done = uid('spd')
    I('s_bcnt1_i32_b64 s99, vcc')
    I(f's_cmp_le_u32 s99, {thr}')
    I(f's_cbranch_scc1 {done}')
    I('s_add_u32 s98, s98, 1')
    I(f's_cmp_gt_u32 s98, {SPIN_LIMIT}')
    I('s_cbranch_scc1 L_end')
    I(f's_sleep {sleep}')
    I(f's_branch {lab}')
    L(done)
    L(f'{lab}_x')

def light_poll(load, regs_per, base, thr, NS=3, gap=5):
    top = uid('lp'); done = uid('lpd')
    I(f's_cbranch_execz {done}')
    I('s_mov_b32 s98, 0')
    for i in range(NS - 1):
        load(base + i * regs_per)
        I(f's_sleep {gap}')
    L(top)
    for i in range(NS):
        load(base + ((i + NS - 1) % NS) * regs_per)
        I(f's_waitcnt vmcnt({NS-1})')
        r = base + i * regs_per
        if regs_per == 1: I(f'v_cmp_eq_u32 vcc, -1, v{r}')
        else:
            I(f'v_max_u32 v{base + NS*regs_per}, v{r}, v{r+1}')
            I(f'v_cmp_eq_u32 vcc, -1, v{base + NS*regs_per}')
        I('s_bcnt1_i32_b64 s99, vcc')
        I(f's_cmp_le_u32 s99, {thr}')
        I(f's_cbranch_scc1 {done}')
    I('s_add_u32 s98, s98, 1')
    I(f's_cmp_gt_u32 s98, {SPIN_LIMIT}')
    I('s_cbranch_scc1 L_end')
    I(f's_branch {top}')
    L(done)

def flags_wait(which, first=0, count=256, sleep=1):
    I('v_lshlrev_b32 v2, 4, v1')
    I(f'v_add_u32 v2, {FLAGS + 2048*which + 8*first}, v2')
    if count == 64: setexec(0xffffffff)
    lab = spin_begin()
    I(f'buffer_load_dwordx4 v[4:7], v2, {S(WS)}, 0 offen sc1')
    if count == 256:
        I(f'buffer_load_dwordx4 v[8:11], v2, {S(WS)}, 0 offen offset:1024 sc1')
    I('s_waitcnt vmcnt(0)')
    n = 12 if count == 256 else 8
    for r in range(4, n):
        I(f'v_xor_b32 v{r}, s{96 + (r & 1)}, v{r}')
    I('v_or3_b32 v4, v4, v5, v6')
    if count == 256:
        I('v_or3_b32 v4, v4, v7, v8')
        I('v_or3_b32 v4, v4, v9, v10')
        I('v_or_b32 v4, v4, v11')
    else:
        I('v_or_b32 v4, v4, v7')
    I('v_cmp_ne_u32 vcc, 0, v4')
    spin_end(lab, sleep)
    if count == 64: fullexec()

def flag_store(which, t0=4):
    I('s_waitcnt vmcnt(0) lgkmcnt(0)')
    I(f's_add_u32 s96, s94, 0x{TAGC_LO:x}')
    I(f's_addc_u32 s97, s95, 0x{TAGC_HI:x}')
    I(f'v_mov_b32 v{t0}, s96')
    I(f'v_mov_b32 v{t0+1}, s97')
    I('s_lshl_b32 s4, s2, 3')
    I(f's_add_u32 s4, s4, {FLAGS + 2048*which}')
    I(f'v_mov_b32 v{t0+2}, 0')
    setexec(1)
    I(f'buffer_store_dwordx2 v[{t0}:{t0+1}], v{t0+2}, {S(WS)}, s4 offen sc1')
    fullexec()

def lds_gate():
    I(f'v_mov_b32 v4, {L_FC}')
    lab = spin_begin()
    I('ds_read_b32 v5, v4')
    I('s_waitcnt lgkmcnt(0)')
    I('v_cmp_ne_u32 vcc, 1, v5')
    spin_end(lab, 2)

def paced(loads, depth):
    for i, ld in enumerate(loads):
        if i >= depth: I(f's_waitcnt vmcnt({depth-1})')
        for x in ld: I(x)

def tag_compute():
    I('s_waitcnt lgkmcnt(0)')
    I(f's_add_u32 s96, s94, 0x{TAGC_LO:x}')
    I(f's_addc_u32 s97, s95, 0x{TAGC_HI:x}')

def prologue():
    I('s_cmp_ge_u32 s2, 256')
    I('s_cbranch_scc1 L_end')
    I('s_mov_b64 s[100:101], -1')
    if XSPLIT == 2:
        I('s_bfe_u32 s4, s2, 0x40003')
        I('s_lshl_b32 s4, s4, 2')
        I('s_and_b32 s5, s2, 3')
        I('s_add_u32 s4, s4, s5')
        I('s_bfe_u32 s5, s2, 0x10002')
        I('s_lshr_b32 s6, s2, 7')
        I('s_xor_b32 s7, s5, s6')
        I('s_lshl_b32 s6, s6, 1')
        I('s_add_u32 s6, s6, s7')
        I('s_lshl_b32 s6, s6, 6')
        I('s_add_u32 s2, s4, s6')
    elif XSPLIT:
        I('s_lshr_b32 s4, s2, 3')
        I('s_lshl_b32 s4, s4, 2')
        I('s_and_b32 s5, s2, 3')
        I('s_add_u32 s4, s4, s5')
        I('s_bfe_u32 s5, s2, 0x10002')
        I('s_lshl_b32 s5, s5, 7')
        I('s_add_u32 s2, s4, s5')
        if PAIRX:
            I('s_lshr_b32 s4, s2, 3')
            I('s_lshl_b32 s4, s4, 2')
            I('s_and_b32 s5, s2, 3')
            I('s_add_u32 s4, s4, s5')
            I('s_lshl_b32 s4, s4, 1')
            I('s_bfe_u32 s5, s2, 0x10002')
            I('s_add_u32 s4, s4, s5')
            I('s_cmp_lt_u32 s2, 64')
            I('s_cselect_b32 s2, s4, s2')
    if DBGT: I('s_memrealtime s[56:57]')
    I('s_load_dwordx16 s[64:79], s[0:1], 0')
    I('s_load_dwordx8 s[80:87], s[0:1], 64')
    I('s_load_dwordx4 s[88:91], s[0:1], 96')
    I('s_load_dwordx2 s[92:93], s[0:1], 112')
    I('v_lshrrev_b32 v1, 6, v0')
    nop(1)
    I('v_readfirstlane_b32 s3, v1')
    I('v_and_b32 v1, 63, v0')
    for r in range(2, 13): I(f'v_mov_b32 v{r}, 0')
    if STAMP: I('v_mov_b32 v253, 0')
    I('s_waitcnt lgkmcnt(0)')
    I('s_load_dwordx2 s[94:95], s[92:93], 0')
    srd(WS, 'ws')
    stamp(0)
    I('v_lshrrev_b32 v14, 4, v1')
    I('v_and_b32 v15, 15, v1')
    I('v_lshlrev_b32 v13, 4, v1')
    I('s_cmp_ge_u32 s2, 128')
    I('s_cbranch_scc1 L_de')
    I('s_cmp_ge_u32 s2, 64')
    I('s_cbranch_scc1 L_p3')

def role_P12():
    X_, WQ, WUK = 12, 16, 20
    srd(X_, 'x'); srd(WQ, 'wq'); srd(WUK, 'wuk')
    I('s_lshr_b32 s40, s2, 1')
    I('s_and_b32 s41, s2, 1')
    I('s_mul_i32 s45, s41, 320')
    I('s_cmp_lg_u32 s3, 7')
    I('s_cbranch_scc1 L_a_init')
    for r in range(4, 8): I(f'v_mov_b32 v{r}, -1')
    I('s_lshl_b32 s4, s2, 10')
    I(f's_add_u32 s4, s4, {QP}')
    I(f'buffer_store_dwordx4 v[4:7], v13, {S(WS)}, s4 offen sc1')
    I('v_lshrrev_b32 v3, 5, v1')
    I('v_lshlrev_b32 v3, 15, v3')
    I('v_and_b32 v2, 31, v1')
    I('v_lshl_add_u32 v3, v2, 4, v3')
    I('s_lshl_b32 s4, s2, 9')
    I(f's_add_u32 s4, s4, {QA}')
    I(f'buffer_store_dwordx4 v[4:7], v3, {S(WS)}, s4 offen sc1')
    if DRY: enter_dry('L_a_h1b')
    L('L_a_w7')
    flag_store(0, 8)
    stamp(9, 7)
    I(f'v_mov_b32 v4, {L_CNT}')
    I('v_mov_b32 v5, 0')
    I('v_mov_b32 v6, 0')
    I('v_mov_b32 v7, 0')
    I('ds_write_b64 v4, v[6:7]')
    I('s_waitcnt lgkmcnt(0)')
    I('s_xor_b32 s4, s2, 1')
    I('s_lshl_b32 s4, s4, 3')
    I(f's_add_u32 s4, s4, {FLAGS}')
    I('v_mov_b32 v2, 0')
    lab = spin_begin()
    I(f'buffer_load_dwordx2 v[6:7], v2, {S(WS)}, s4 offen sc1')
    I('s_waitcnt vmcnt(0)')
    I('v_xor_b32 v6, s96, v6')
    I('v_xor_b32 v7, s97, v7')
    I('v_or_b32 v6, v6, v7')
    I('v_cmp_ne_u32 vcc, 0, v6')
    spin_end(lab, 2)
    I('s_waitcnt lgkmcnt(0)')
    I('s_branch L_a_main')
    L('L_a_init')
    I('s_cmp_gt_u32 s3, 4')
    I('s_cbranch_scc1 L_a_h1')
    if AGATE & 1:
        tag_compute()
        flags_wait(0, 128, 128, 2)
    I('v_lshlrev_b32 v2, 17, v14')
    I('v_lshl_add_u32 v2, v15, 4, v2')
    I('s_lshl_b32 s4, s3, 6')
    I('s_add_u32 s4, s4, s45')
    I('s_lshl_b32 s4, s4, 13')
    I('s_lshl_b32 s5, s40, 8')
    I('s_add_u32 s4, s4, s5')
    for t in range(16):
        I(f'buffer_load_dwordx4 {vr(20+4*t)}, v2, {S(WQ)}, s4 offen nt')
        if t < 15: I('s_add_u32 s4, s4, 8192')
    def wuk_dma(first, per, w0, nw):
        assert per % 4 == 0 and first % 4 == 0
        for k in range(4):
            I(f'v_add_u32 v3, {4*k}, v14')
            I('v_xor_b32 v3, v3, v15')
            I('v_lshlrev_b32 v3, 4, v3')
            I(f'v_lshl_add_u32 v{6+k}, v14, 13, v3')
        I('s_lshl_b32 s4, s41, 21')
        I('s_lshl_b32 s5, s40, 8')
        I('s_add_u32 s4, s4, s5')
        I(f's_sub_u32 s6, s3, {w0}')
        I(f's_mul_i32 s6, s6, {per}')
        I(f's_add_u32 s6, s6, {first}')
        I('s_lshl_b32 s5, s6, 15')
        I('s_add_u32 s4, s4, s5')
        I('s_lshl_b32 s5, s6, 10')
        done = uid('dmad')
        for q in range(per):
            if first + (nw - 1) * per + q >= 64:
                I(f's_cmp_ge_u32 s5, {64*1024}')
                I(f's_cbranch_scc1 {done}')
            I('s_mov_b32 m0, s5')
            nop(1)
            I(f'buffer_load_dwordx4 v{6+q%4}, {S(WUK)}, s4 offen nt lds')
            if q < per - 1:
                I('s_add_u32 s4, s4, 32768')
                I('s_add_u32 s5, s5, 1024')
        L(done)
    def cnt_add():
        I('s_waitcnt vmcnt(0)')
        I(f'v_mov_b32 v4, {L_CNT}')
        I('v_mov_b32 v5, 1')
        setexec(1)
        I('ds_add_u32 v4, v5')
        fullexec()
    def wuk_reads():
        I('v_xor_b32 v2, v14, v15')
        for q in range(4):
            I(f'v_xor_b32 v3, {4*q}, v2')
            I('v_lshlrev_b32 v3, 4, v3')
            I(f'v_lshl_add_u32 v{6+q}, v15, 8, v3')
        I('s_lshl_b32 s4, s3, 13')
        for q in range(4): I(f'v_add_u32 v{6+q}, s4, v{6+q}')
        for t_ in range(4):
            for n in range(2):
                I(f'ds_read_b128 {vr(20+16*n+4*t_)}, v{6+t_} offset:{L_WU + n*4096}')
    sk = uid('w0n')
    I('s_cmp_eq_u32 s3, 0')
    I(f's_cbranch_scc1 {sk}')
    wuk_dma(0, WU0, 1, 4)
    I(f's_waitcnt vmcnt({WU0})')
    L(sk)
    I(f's_cbranch_scc0 {sk}_b') if False else None
    sk = uid('w0m')
    I('s_cmp_lg_u32 s3, 0')
    I(f's_cbranch_scc1 {sk}')
    I('s_waitcnt vmcnt(0)')
    L(sk)
    make_masks4(16, 2)
    tag_compute()
    if LATEC == 2:
        sk = uid('nofc')
        I('s_cmp_lg_u32 s3, 4')
        I(f's_cbranch_scc1 {sk}')
        I(f'v_mov_b32 v8, s96')
        I(f'v_mov_b32 v9, s97')
        I('s_lshl_b32 s4, s2, 3')
        I(f's_add_u32 s4, s4, {FLAGS + 4096}')
        I(f'v_mov_b32 v10, 0')
        setexec(1)
        I(f'buffer_store_dwordx2 v[8:9], v10, {S(WS)}, s4 offen sc1')
        fullexec()
        L(sk)
    pairperm([(20 + 8 * p, 24 + 8 * p) for p in range(8)], 4)
    stamp(10, 4)
    I('s_branch L_a_main')
    L('L_a_h1')
    I('s_sub_u32 s46, s3, 5')
    I('s_mul_i32 s4, s46, 1280')
    I('v_lshlrev_b32 v3, 2, v1')
    for k in range(5):
        I(f'buffer_load_dword v{80 + k}, v3, {S(X_)}, s4 offen offset:{k*256}')
    I('s_lshl_b32 s5, s45, 1')
    I('s_add_u32 s5, s5, s4')
    I(f'buffer_load_dwordx4 v[84+4:84+7], v13, {S(X_)}, s5 offen'.replace('84+4', '88').replace('84+7', '91'))
    tag_compute()
    I('s_waitcnt vmcnt(0)')
    for k in range(5):
        I(f'v_lshlrev_b32 v{96+2*k}, 16, v{80+k}')
        I(f'v_and_b32 v{97+2*k}, 0xffff0000, v{80+k}')
    I('v_add_f32 v92, v96, v97')
    for k in range(2, 10): I(f'v_add_f32 v92, v92, v{96+k}')
    allreduce('v_add_f32', 92, 93)
    I('v_mul_f32 v92, 0x3acccccd, v92')
    for k in range(10): I(f'v_sub_f32 v{96+k}, v{96+k}, v92')
    I('v_mul_f32 v94, v96, v96')
    for k in range(1, 10): I(f'v_fmac_f32 v94, v{96+k}, v{96+k}')
    allreduce('v_add_f32', 94, 93)
    I('v_mul_f32 v94, 0x3acccccd, v94')
    bfround(92); bfround(94)
    I('v_add_f32 v94, 0x3727c5ac, v94')
    bfround(94)
    I('v_sqrt_f32 v94, v94')
    nop(1)
    bfround(94)
    I('v_rcp_f32 v94, v94')
    for k in range(4):
        I(f'v_lshlrev_b32 v{72+2*k}, 16, v{88+k}')
        I(f'v_and_b32 v{73+2*k}, 0xffff0000, v{88+k}')
    for r in range(8):
        I(f'v_sub_f32 v{72+r}, v{72+r}, v92')
        bfround(72 + r)
        I(f'v_mul_f32 v{72+r}, v{72+r}, v94')
        bfround(72 + r)
    L('L_a_h1b')
    if SFLAG:
        for rg in range(2):
            I('s_mul_i32 s4, s41, 160')
            I(f's_add_u32 s4, s4, {FLAGS + (128 + 40*rg)*8}')
            I('s_add_u32 s5, s4, 64')
            I('s_add_u32 s6, s4, 128')
            I('s_mov_b32 s98, 0')
            top = uid('sf'); done = uid('sfd')
            L(top)
            I('s_load_dwordx16 s[48:63], s[92:93], s4 glc')
            I('s_load_dwordx16 s[64:79], s[92:93], s5 glc')
            I('s_load_dwordx8 s[80:87], s[92:93], s6 glc')
            I('s_waitcnt lgkmcnt(0)')
            I('s_mov_b64 s[88:89], 0')
            for i in range(20):
                I(f's_xor_b64 s[{48+2*i}:{49+2*i}], s[{48+2*i}:{49+2*i}], s[96:97]')
                I(f's_or_b64 s[88:89], s[88:89], s[{48+2*i}:{49+2*i}]')
            I(f's_cbranch_scc0 {done}')
            I('s_add_u32 s98, s98, 1')
            I(f's_cmp_gt_u32 s98, {SPIN_LIMIT}')
            I('s_cbranch_scc1 L_end')
            I('s_sleep 2')
            I(f's_branch {top}')
            L(done)
    else:
        flags_wait(0, 128, 128)
    stamp(1, 5)
    I('s_mul_i32 s4, s46, 15360')
    I('s_lshl_b32 s5, s45, 2')
    I('s_add_u32 s4, s4, s5')
    I(f's_add_u32 s48, s4, {MOD}')
    for kq in range(1, 4): I(f's_add_u32 s{48+kq}, s48, {kq*30720}')
    I('v_lshlrev_b32 v2, 5, v1')
    I('s_mul_i32 s4, s46, 640')
    I(f's_add_u32 s4, s4, {L_HD}')
    I('v_add_u32 v3, s4, v13')
    setexec(0xffffffff, 0xff)
    lab = spin_begin()
    for kq in range(4):
        I(f'buffer_load_dwordx4 {vr(96+16*kq)}, v2, {S(WS)}, s{48+kq} offen sc1')
        I(f'buffer_load_dwordx4 {vr(100+16*kq)}, v2, {S(WS)}, s{48+kq} offen offset:16 sc1')
        I(f'buffer_load_dwordx4 {vr(104+16*kq)}, v2, {S(WS)}, s{48+kq} offen offset:2560 sc1')
        I(f'buffer_load_dwordx4 {vr(108+16*kq)}, v2, {S(WS)}, s{48+kq} offen offset:2576 sc1')
    I('s_waitcnt vmcnt(0)')
    anysent(range(96, 160), 12)
    spin_end(lab)
    for r in range(16):
        I(f'v_add_f32 v{96+r}, v{96+r}, v{112+r}')
        I(f'v_add_f32 v{128+r}, v{128+r}, v{144+r}')
        I(f'v_add_f32 v{96+r}, v{96+r}, v{128+r}')
        bfround(96 + r)
    for r in range(8):
        I(f'v_add_f32 v{104+r}, 1.0, v{104+r}')
        bfround(104 + r)
        I(f'v_mul_f32 v{104+r}, v{72+r}, v{104+r}')
        bfround(104 + r)
        I(f'v_add_f32 v{104+r}, v{104+r}, v{96+r}')
    for q in range(4):
        I(f'v_cvt_pk_bf16_f32 v{96+q}, v{104+2*q}, v{105+2*q}')
    I('ds_write_b128 v3, v[96:99]')
    fullexec()
    I('s_waitcnt lgkmcnt(0)')
    L('L_a_main')
    barrier()
    stamp(2)
    tick(0)
    if not LATEC:
        sk = uid('nofc')
        I('s_cmp_lg_u32 s3, 6')
        skip_if(sk)
        flag_store(2, 8)
        L(sk)
    sk = uid('nop1')
    sk57 = uid('w57')
    I('s_cmp_lt_u32 s3, 5')
    I(f's_cbranch_scc1 {sk57}')
    REM = 64 - 4 * WU0
    if REM: wuk_dma(4 * WU0, ((REM + 2) // 3 + 3) // 4 * 4, 5, 3)
    I(f's_branch {sk}')
    L(sk57)
    I('v_bfe_u32 v2, v1, 2, 1')
    I('v_mul_u32_u24 v2, 640, v2')
    I('v_lshl_add_u32 v2, v14, 5, v2')
    I('s_lshl_b32 s4, s3, 7')
    I(f's_add_u32 s4, s4, {L_HD}')
    I('v_add_u32 v2, s4, v2')
    for q in range(2):
        I(f'ds_read_b128 {vr(84+4*q)}, v2 offset:{q*16}')
    I('v_lshlrev_b32 v2, 9, v14')
    I('v_lshl_add_u32 v2, v15, 4, v2')
    I('s_lshl_b32 s4, s3, 10')
    I(f's_add_u32 s4, s4, {L_RED}')
    I('v_add_u32 v2, s4, v2')
    I('s_waitcnt lgkmcnt(0)')
    tick(1)
    gemv_pair(8, lambda p: 84 + p, 16, [100, 104], lambda blk, t: 20 + 4 * t, [108], [112])
    I(f'v_mov_b32 v4, {L_CNT + 4}')
    I('v_mov_b32 v5, 1')
    setexec(0xffffffff)
    I('ds_write_b128 v2, v[108:111]')
    I('ds_write_b128 v2, v[112:115] offset:256')
    setexec(1)
    I('s_waitcnt lgkmcnt(0)')
    I('ds_add_u32 v4, v5')
    fullexec()
    L(sk)
    tick(2)
    tick(3)
    sk = uid('nop1r')
    skw = uid('w0p')
    I('s_cmp_eq_u32 s3, 0')
    I(f's_cbranch_scc1 {skw}')
    cnt_add()
    lab = spin_begin()
    I('ds_read_b32 v5, v4')
    I('s_waitcnt lgkmcnt(0)')
    I('v_cmp_ne_u32 vcc, 7, v5')
    spin_end(lab, 1)
    wuk_reads()
    I(f's_branch {sk}')
    L(skw)
    lab = spin_begin()
    I('ds_read_b32 v5, v4')
    I('s_waitcnt lgkmcnt(0)')
    I('v_cmp_ne_u32 vcc, 5, v5')
    spin_end(lab, 0)
    I(f'v_add_u32 v2, {L_RED}, v13')
    for w in range(5):
        I(f'ds_read_b128 {vr(164+4*w)}, v2 offset:{w*1024}')
    I('s_lshl_b32 s4, s2, 10')
    I(f's_add_u32 s4, s4, {QP}')
    I('s_waitcnt lgkmcnt(0)')
    for r in range(4):
        I(f'v_add_f32 v{164+r}, v{164+r}, v{168+r}')
        I(f'v_add_f32 v{172+r}, v{172+r}, v{176+r}')
        I(f'v_add_f32 v{164+r}, v{164+r}, v{180+r}')
        I(f'v_add_f32 v{164+r}, v{164+r}, v{172+r}')
        I(f'v_min_u32 v{164+r}, 0xfffffffe, v{164+r}')
    I(f'buffer_store_dwordx4 v[164:167], v13, {S(WS)}, s4 offen sc1')
    stamp(3)
    tick(4)
    tick(5)
    I('s_xor_b32 s4, s2, 1')
    I('s_lshl_b32 s4, s4, 10')
    I(f's_add_u32 s4, s4, {QP}')
    lab = spin_begin()
    I(f'buffer_load_dwordx4 v[168:171], v13, {S(WS)}, s4 offen sc1')
    I('s_waitcnt vmcnt(0)')
    anysent(range(168, 172), 2)
    spin_end(lab)
    tick(6)
    for r in range(4):
        I(f'v_add_f32 v{168+r}, v{168+r}, v{164+r}')
    I('v_lshrrev_b32 v2, 1, v14')
    I('v_lshlrev_b32 v2, 8, v2')
    I('v_lshl_add_u32 v2, v15, 4, v2')
    I('v_and_b32 v3, 1, v14')
    I('v_lshl_add_u32 v2, v3, 1, v2')
    I(f'v_add_u32 v2, {L_QT2}, v2')
    for r in range(4):
        I(f'v_cvt_pk_bf16_f32 v{168+r}, v{168+r}, v{168+r}')
        I(f'ds_write_b16 v2, v{168+r} offset:{4*r}')
    L(sk)

    I('s_waitcnt lgkmcnt(0)')
    tick(7)
    barrier()
    tick(8)
    delay(1)
    stamp(4)
    I('v_and_b32 v2, 1, v15')
    I('v_lshlrev_b32 v2, 8, v2')
    I('v_lshl_add_u32 v2, v14, 4, v2')
    I(f'v_add_u32 v2, {L_QT2}, v2')
    for t in range(4):
        I(f'ds_read_b128 {vr(164+4*t)}, v2 offset:{t*64}')
    sk = uid('w0r')
    I('s_cmp_lg_u32 s3, 0')
    I(f's_cbranch_scc1 {sk}')
    wuk_reads()
    L(sk)
    I('v_lshlrev_b32 v2, 15, v15')
    I('v_lshl_add_u32 v2, v14, 3, v2')
    I('s_lshl_b32 s4, s2, 9')
    I('s_lshl_b32 s5, s3, 6')
    I('s_add_u32 s4, s4, s5')
    I(f's_add_u32 s4, s4, {QA}')
    tick(9)
    I('s_mov_b32 s5, 0x3e0293ee')
    for t in range(4):
        if t == 0: I('s_waitcnt lgkmcnt(0)')
        for n in range(2):
            c = '0' if t == 0 else vr(180 + 4 * n)
            I(f'v_mfma_f32_16x16x32_bf16 {vr(180+4*n)}, {vr(20+16*n+4*t)}, {vr(164+4*t)}, {c}')
    nop(9)
    tick(10)
    for r in range(8): I(f'v_mul_f32 v{180+r}, s5, v{180+r}')
    for q in range(4):
        I(f'v_cvt_pk_bf16_f32 v{188+q}, v{180+2*q}, v{181+2*q}')
        I(f'v_min_u32 v{188+q}, 0xfffffffe, v{188+q}')
    setexec(0x00030003, 0x00030003)
    I(f'buffer_store_dwordx2 v[188:189], v2, {S(WS)}, s4 offen sc1')
    I(f'buffer_store_dwordx2 v[190:191], v2, {S(WS)}, s4 offen offset:32 sc1')
    fullexec()
    tick(11)
    tick_dump(12)
    stamp(5)
    if LATEC == 1:
        sk = uid('nofc')
        I('s_cmp_lg_u32 s3, 6')
        skip_if(sk)
        flag_store(2, 8)
        L(sk)
    I('s_cmp_lg_u32 s2, 0')
    I('s_cbranch_scc1 L_end')
    I('s_cmp_lg_u32 s3, 0')
    I('s_cbranch_scc1 L_end')
    flags_wait(0, 0, 256)
    I('v_mov_b32 v10, s96')
    I('v_mov_b32 v11, s97')
    I('v_mov_b32 v12, 0')
    setexec(1)
    I(f'buffer_store_dwordx2 v[10:11], v12, {S(WS)}, 0 offen sc1')
    fullexec()
    I('s_branch L_end')

def role_P3():
    L('L_p3')
    CKV = 12
    srd(CKV, 'ckv')
    I('s_sub_u32 s40, s2, 64')
    I('s_lshr_b32 s42, s40, 5')
    I('s_and_b32 s43, s40, 31')
    sk = uid('nofa')
    I('s_cmp_lg_u32 s3, 7')
    I(f's_cbranch_scc1 {sk}')
    flag_store(0, 8)
    L(sk)
    tag_compute()
    if P3GATE:
        flags_wait(2, 0, 64, 4)
    if AGATE & 2:
        flags_wait(0, 128, 128, 2)
    delay(7)
    I('s_lshl_b32 s4, s40, 17')
    I('s_lshl_b32 s5, s3, 14')
    I('s_add_u32 s4, s4, s5')
    I(f's_mul_i32 s5, s3, {16*CKS}')
    for r in range(16):
        I('s_mov_b32 m0, s5')
        nop(1)
        I(f'buffer_load_dwordx4 v13, {S(CKV)}, s4 offen nt lds')
        if r < 15:
            I('s_add_u32 s4, s4, 1024')
            I(f's_add_u32 s5, s5, {CKS}')
    if DRY:
        I('s_cmp_lg_u32 s3, 7')
        I('s_cbranch_scc1 L_p3_real')
        enter_dry('L_p3_main')
    L('L_p3_real')
    I('s_waitcnt vmcnt(0)')
    barrier()
    L('L_p3_main')
    stamp(1)
    I(f'v_mul_u32_u24 v2, {CKS}, v15')
    I('v_lshl_add_u32 v2, v14, 4, v2')
    I(f's_mul_i32 s4, s3, {16*CKS}')
    I('v_add_u32 v2, s4, v2')
    for t in range(16):
        I(f'ds_read_b128 {vr(20+4*t)}, v2 offset:{t*64}')
    I('v_lshrrev_b32 v2, 2, v15')
    I('v_lshl_add_u32 v2, v14, 3, v2')
    I(f'v_mul_u32_u24 v2, {CKS}, v2')
    I('v_and_b32 v3, 3, v15')
    I('v_lshl_add_u32 v2, v3, 4, v2')
    I('s_lshl_b32 s4, s3, 7')
    I('v_add_u32 v2, s4, v2')
    I(f'v_add_u32 v3, {64*CKS}, v2')
    for n in range(4):
        for t in range(4):
            base = 84 + 16 * n + 4 * t
            ad = 'v2' if t < 2 else 'v3'
            off = (t % 2) * 32 * CKS + (n >> 1) * 64 + (n & 1) * 8
            I(f'ds_read_b64_tr_b16 {vr(base,2)}, {ad} offset:{off}')
            I(f'ds_read_b64_tr_b16 {vr(base+2,2)}, {ad} offset:{off + 4*CKS}')
    for r in range(4): I(f'v_mov_b32 v{16+r}, 0x3f803f80')
    I('s_waitcnt lgkmcnt(0)')
    sk = uid('noh2l')
    I('s_cmp_lg_u32 s3, 0')
    skip_if(sk)
    flags_wait(0, 0, 64)
    flags_wait(1, 192, 64)
    I('v_lshlrev_b32 v2, 9, v1')
    I('s_lshl_b32 s4, s42, 15')
    I(f's_add_u32 s4, s4, {QA + 508}')
    light_poll(lambda r: I(f'buffer_load_dword v{r}, v2, {S(WS)}, s4 offen sc1'), 1, 4, 24 * THR)
    L(sk)
    barrier()
    stamp(6)
    tick(0)
    I('s_lshl_b32 s4, s42, 15')
    I('s_lshl_b32 s5, s3, 12')
    I('s_add_u32 s4, s4, s5')
    I(f's_add_u32 s4, s4, {QA}')
    lab = spin_begin()
    for k in range(4):
        I(f'buffer_load_dwordx4 {vr(148+4*k)}, v13, {S(WS)}, s4 offen offset:{k*1024} sc1')
    I('s_waitcnt vmcnt(0)')
    anysent(range(148, 164), 2)
    spin_end(lab)
    tick(1)
    I('s_lshl_b32 s4, s3, 12')
    I('s_and_b32 s5, s3, 3')
    I('s_lshl_b32 s5, s5, 2')
    for k in range(4):
        I(f's_add_u32 s6, s5, {k}')
        I('v_xor_b32 v2, s6, v1')
        I('v_lshlrev_b32 v2, 4, v2')
        I('v_add_u32 v2, s4, v2')
        I(f'ds_write_b128 v2, {vr(148+4*k)} offset:{L_QT + k*1024}')
    I('v_and_b32 v2, 3, v15')
    I('v_xor_b32 v2, v2, v14')
    I('v_and_b32 v3, 12, v15')
    I('v_or_b32 v2, v2, v3')
    for q in range(4):
        I(f'v_xor_b32 v3, {4*q}, v2')
        I('v_lshlrev_b32 v3, 4, v3')
        I(f'v_lshl_add_u32 v{8+q}, v15, 10, v3')
    I('v_lshlrev_b32 v4, 5, v15')
    I(f'v_add_u32 v4, {L_MX}, v4')
    I('s_lshl_b32 s4, s3, 2')
    I('v_add_u32 v3, s4, v4')
    I('s_waitcnt lgkmcnt(0)')
    tick(2)
    barrier()
    tick(3)
    stamp(7)
    for t in range(16):
        I(f'ds_read_b128 {vr(148+4*t)}, v{8+t%4} offset:{L_QT + (t//4)*256}')
    for t in range(16):
        I(f's_waitcnt lgkmcnt({15 if t else 15})') if False else I('s_waitcnt lgkmcnt(15)')
        c = '0' if t == 0 else 'v[212:215]'
        I(f'v_mfma_f32_16x16x32_bf16 v[212:215], {vr(20+4*t)}, {vr(148+4*t)}, {c}')
        I(f'ds_read_b128 {vr(148+4*t)}, v{8+t%4} offset:{L_QT + 16384 + (t//4)*256}')
    for t in range(16):
        I(f's_waitcnt lgkmcnt({15-t})')
        c = '0' if t == 0 else 'v[216:219]'
        I(f'v_mfma_f32_16x16x32_bf16 v[216:219], {vr(20+4*t)}, {vr(148+4*t)}, {c}')
    tick(4)
    I('v_max_f32 v220, v212, v213')
    I('v_max3_f32 v220, v220, v214, v215')
    allreduce('v_max_f32', 220, 222, skip_row=True)
    I('v_max_f32 v221, v216, v217')
    I('v_max3_f32 v221, v221, v218, v219')
    allreduce('v_max_f32', 221, 222, skip_row=True)
    I('ds_write_b32 v3, v220')
    I('ds_write_b32 v3, v221 offset:512')
    I(f'v_mul_u32_u24 v5, {PTS}, v15')
    I(f'v_add_u32 v5, {L_PT}, v5')
    I('v_lshl_add_u32 v3, v14, 3, v5')
    I('s_lshl_b32 s4, s3, 5')
    I('v_add_u32 v3, s4, v3')
    I('v_lshl_add_u32 v5, v14, 4, v5')
    I('s_waitcnt lgkmcnt(0)')
    tick(5)
    barrier()
    tick(6)
    for ht in range(2):
        I(f'ds_read_b128 {vr(148+8*ht)}, v4 offset:{ht*512}')
        I(f'ds_read_b128 {vr(152+8*ht)}, v4 offset:{ht*512+16}')
    I('s_waitcnt lgkmcnt(0)')
    for ht in range(2):
        q = 148 + 8 * ht
        I(f'v_max3_f32 v{220+ht}, v{q}, v{q+1}, v{q+2}')
        I(f'v_max3_f32 v{220+ht}, v{220+ht}, v{q+3}, v{q+4}')
        I(f'v_max3_f32 v{220+ht}, v{220+ht}, v{q+5}, v{q+6}')
        I(f'v_max_f32 v{220+ht}, v{220+ht}, v{q+7}')
    for ht in range(2):
        for r in range(4):
            I(f'v_sub_f32 v{212+4*ht+r}, v{212+4*ht+r}, v{220+ht}')
    for r in range(8):
        I(f'v_exp_f32 v{212+r}, v{212+r}')
    nop(1)
    for q in range(4):
        I(f'v_cvt_pk_bf16_f32 v{224+q}, v{212+2*q}, v{213+2*q}')
    I('ds_write_b64 v3, v[224:225]')
    I(f'ds_write_b64 v3, v[226:227] offset:{16*PTS}')
    I('v_lshlrev_b32 v2, 15, v15')
    I('v_lshl_add_u32 v2, v14, 4, v2')
    I('s_lshl_b32 s4, s42, 20')
    I('s_lshl_b32 s5, s43, 10')
    I('s_add_u32 s4, s4, s5')
    I('s_lshl_b32 s5, s3, 7')
    I('s_add_u32 s4, s4, s5')
    I(f's_add_u32 s4, s4, {OP}')
    I('s_add_u32 s5, s4, 0x80000')
    I('s_waitcnt lgkmcnt(0)')
    tick(7)
    barrier()
    tick(8)
    for ht in range(2):
        for t in range(4):
            I(f'ds_read_b128 {vr(148+16*ht+4*t)}, v5 offset:{ht*16*PTS + t*64}')
    I('s_cmp_gt_u32 s3, 1')
    I('s_cbranch_scc1 L_p3_nol')
    I('s_waitcnt lgkmcnt(0)')
    I('s_cmp_gt_u32 s3, 1')
    I('s_cbranch_scc1 L_p3_nol')
    for ht in range(2):
        for t in range(4):
            acc = 36 + 4 * ht
            c = '0' if t == 0 else vr(acc)
            I(f'v_mfma_f32_16x16x32_bf16 {vr(acc)}, v[16:19], {vr(148+16*ht+4*t)}, {c}')
    I('v_lshlrev_b32 v3, 8, v1')
    I('s_lshl_b32 s6, s42, 13')
    I('s_lshl_b32 s7, s3, 12')
    I('s_add_u32 s6, s6, s7')
    I('s_lshl_b32 s7, s43, 3')
    I('s_add_u32 s6, s6, s7')
    I(f's_add_u32 s6, s6, {ML}')
    I('s_cmp_eq_u32 s3, 0')
    I('s_cselect_b64 vcc, -1, 0')
    nop(2)
    I('v_cndmask_b32 v44, v221, v220, vcc')
    I('v_cndmask_b32 v45, v40, v36, vcc')
    I('v_min_u32 v44, 0xfffffffe, v44')
    I('v_min_u32 v45, 0xfffffffe, v45')
    setexec(0xffff)
    I(f'buffer_store_dwordx2 v[44:45], v3, {S(WS)}, s6 offen sc1')
    fullexec()
    L('L_p3_nol')
    for ht in range(2):
        for t in range(4):
            I(f's_waitcnt lgkmcnt({7-4*ht-t})')
            for n in range(4):
                acc = 180 + 16 * ht + 4 * n
                c = '0' if t == 0 else vr(acc)
                I(f'v_mfma_f32_16x16x32_bf16 {vr(acc)}, {vr(84+16*n+4*t)}, {vr(148+16*ht+4*t)}, {c}')
    tick(9)
    nop(1)
    for ht in range(2):
        for n in range(4):
            I(f'v_cvt_pk_bf16_f32 v{20+8*ht+2*n}, v{180+16*ht+4*n}, v{181+16*ht+4*n}')
            I(f'v_cvt_pk_bf16_f32 v{21+8*ht+2*n}, v{182+16*ht+4*n}, v{183+16*ht+4*n}')
        for r in range(8): I(f'v_min_u32 v{20+8*ht+r}, 0xfffffffe, v{20+8*ht+r}')
        so = 's4' if ht == 0 else 's5'
        I(f'buffer_store_dwordx4 {vr(20+8*ht)}, v2, {S(WS)}, {so} offen sc1')
        I(f'buffer_store_dwordx4 {vr(24+8*ht)}, v2, {S(WS)}, {so} offen offset:64 sc1')
    L('L_p3_done')
    tick(11)
    tick_dump(12)
    stamp(8)
    role_end('L_p3_real')

def role_DE_common():
    L('L_de')
    C_, WM = 12, 16
    srd(C_, 'c'); srd(WM, 'wmod')
    I('s_sub_u32 s40, s2, 128')
    I('v_lshrrev_b32 v14, 4, v1')
    I('v_and_b32 v15, 15, v1')
    I('v_lshlrev_b32 v13, 4, v1')
    if XSPLIT:
        I('s_and_b32 s4, s40, 63')
        I('s_and_b32 s5, s4, 3')
        I('s_lshr_b32 s6, s4, 3')
        I('s_lshl_b32 s6, s6, 2')
        I('s_add_u32 s42, s6, s5')
        I('s_bfe_u32 s43, s4, 0x10002')
        I('s_mov_b32 s47, 0')
        I('s_cmp_lt_u32 s40, 64')
        I('s_cbranch_scc1 L_dec_done')
        I('s_cmp_ge_u32 s42, 27')
        I('s_cselect_b32 s47, 1, 0')
    else:
        I('s_cmp_ge_u32 s40, 118')
        I('s_cselect_b32 s47, 1, 0')
        I('s_cmp_ge_u32 s40, 64')
        I('s_cbranch_scc1 L_dec_e')
        I('s_lshr_b32 s4, s40, 4')
        I('s_lshl_b32 s4, s4, 3')
        I('s_and_b32 s5, s40, 7')
        I('s_add_u32 s42, s4, s5')
        I('s_bfe_u32 s43, s40, 0x10003')
        I('s_branch L_dec_done')
        L('L_dec_e')
        I('s_sub_u32 s6, s40, 64')
        I('s_lshr_b32 s4, s6, 4')
        I('s_lshl_b32 s4, s4, 3')
        I('s_and_b32 s5, s6, 7')
        I('s_add_u32 s42, s4, s5')
        I('s_bfe_u32 s43, s6, 0x10003')
        I('s_cmp_lt_u32 s6, 48')
        I('s_cbranch_scc1 L_dec_done')
        I('s_sub_u32 s6, s6, 48')
        I('s_cmp_ge_u32 s6, 3')
        I('s_cselect_b32 s43, 1, 0')
        I('s_mul_i32 s4, s43, 3')
        I('s_sub_u32 s6, s6, s4')
        I('s_add_u32 s42, s6, 24')
    L('L_dec_done')
    sk = uid('noclr')
    I('s_cmp_lg_u32 s3, 7')
    I(f's_cbranch_scc1 {sk}')
    for r in range(4, 8): I(f'v_mov_b32 v{r}, -1')
    I('v_lshrrev_b32 v2, 5, v1')
    I('v_lshlrev_b32 v2, 13, v2')
    I('v_bfe_u32 v3, v1, 4, 1')
    I('v_mul_u32_u24 v3, 15360, v3')
    I('v_add_u32 v2, v2, v3')
    I('v_lshl_add_u32 v2, v15, 4, v2')
    I('s_and_b32 s4, s40, 3')
    I('s_mul_i32 s4, s4, 30720')
    I('s_lshr_b32 s5, s40, 2')
    I('s_lshl_b32 s5, s5, 8')
    I('s_add_u32 s4, s4, s5')
    I(f's_add_u32 s4, s4, {MOD}')
    I('s_cmp_lt_u32 s40, 112')
    I('s_cselect_b32 exec_hi, -1, 0')
    I(f'buffer_store_dwordx4 v[4:7], v2, {S(WS)}, s4 offen sc1')
    fullexec()
    I('s_cmp_ge_u32 s40, 64')
    I('s_cbranch_scc1 L_clr_e')
    I('s_lshl_b32 s4, s43, 5')
    I('s_add_u32 s4, s4, s42')
    I('s_mul_i32 s4, s4, 1280')
    I(f's_add_u32 s4, s4, {AP}')
    I(f'buffer_store_dwordx4 v[4:7], v13, {S(WS)}, s4 offen sc1')
    setexec(0xffff)
    I(f'buffer_store_dwordx4 v[4:7], v13, {S(WS)}, s4 offen offset:1024 sc1')
    fullexec()
    I('s_branch L_clr_done')
    L('L_clr_e')
    I('s_cmp_lg_u32 s47, 0')
    I('s_cbranch_scc1 L_clr_done')
    I('s_mul_i32 s4, s43, 27')
    I('s_add_u32 s4, s4, s42')
    I('s_mul_i32 s4, s4, 2560')
    I(f's_add_u32 s4, s4, {FP}')
    I(f'buffer_store_dwordx4 v[4:7], v13, {S(WS)}, s4 offen sc1')
    I(f'buffer_store_dwordx4 v[4:7], v13, {S(WS)}, s4 offen offset:1024 sc1')
    setexec(0xffffffff)
    I(f'buffer_store_dwordx4 v[4:7], v13, {S(WS)}, s4 offen offset:2048 sc1')
    fullexec()
    L('L_clr_done')
    flag_store(0, 8)
    stamp(9, 7)
    L(sk)
    I('s_and_b32 s45, s40, 3')
    I('s_lshr_b32 s46, s40, 2')
    def dma_addr():
        I('v_lshrrev_b32 v2, 3, v1')
        I('v_and_b32 v3, 7, v1')
        I('v_xor_b32 v3, v3, v2')
        I('v_mul_u32_u24 v2, 7680, v2')
        I('v_lshl_add_u32 v2, v3, 4, v2')
        I('s_mul_i32 s4, s45, 1228800')
        I('s_lshl_b32 s5, s46, 7')
        I('s_add_u32 s4, s4, s5')
    def dma_n(n):
        for q in range(n):
            I('s_mov_b32 m0, s5')
            nop(1)
            I(f'buffer_load_dwordx4 v2, {S(WM)}, s4 offen nt lds')
            if q < n - 1:
                I('s_add_u32 s4, s4, 61440')
                I('s_add_u32 s5, s5, 1024')
    def tr_base(wt):
        I('v_lshrrev_b32 v2, 2, v15')
        I('v_lshl_add_u32 v2, v14, 2, v2')
        I('v_and_b32 v3, 7, v2')
        I('v_bfe_u32 v4, v15, 1, 1')
        I('v_xor_b32 v3, v3, v4')
        I('v_lshlrev_b32 v2, 7, v2')
        I('v_and_b32 v4, 1, v15')
        I('v_lshl_add_u32 v2, v4, 3, v2')
        if wt: I(f'v_add_u32 v2, {wt}, v2')
    def st_reads():
        I('v_and_b32 v5, 1, v15')
        I('v_mul_u32_u24 v5, 320, v5')
        I('v_lshl_add_u32 v5, v14, 4, v5')
        for t in range(5):
            I(f'ds_read_b128 {vr(20+4*t)}, v5 offset:{L_ST + t*64}')
    I('s_cmp_gt_u32 s3, 3')
    I('s_cbranch_scc1 L_c_hi')
    dma_addr()
    I('s_mul_i32 s6, s3, 307200')
    I('s_add_u32 s4, s4, s6')
    I('s_mul_i32 s5, s3, 5120')
    dma_n(5)
    tr_base(0)
    I('s_lshl_b32 s6, s3, 1')
    I('v_xor_b32 v4, s6, v3')
    I('v_lshl_add_u32 v8, v4, 4, v2')
    I('v_mul_u32_u24 v9, 15360, v15')
    I('v_lshl_add_u32 v9, v14, 4, v9')
    I('s_mul_i32 s4, s45, 30720')
    I('s_lshl_b32 s5, s46, 8')
    I('s_add_u32 s4, s4, s5')
    I('s_lshl_b32 s5, s3, 6')
    I('s_add_u32 s4, s4, s5')
    I(f's_add_u32 s44, s4, {MOD}')
    I('s_waitcnt vmcnt(0)')
    I('s_branch L_c_bar')
    L('L_c_hi')
    I('s_cmp_gt_u32 s3, 5')
    I('s_cbranch_scc1 L_c_bar')
    I('s_sub_u32 s6, s3, 4')
    I('s_mul_i32 s4, s6, 1280')
    I('s_mul_i32 s5, s45, 320')
    I('s_add_u32 s4, s4, s5')
    I('v_lshlrev_b32 v2, 3, v1')
    I(f'buffer_load_dwordx2 v[4:5], v2, {S(C_)}, s4 offen')
    I('v_lshrrev_b32 v8, 3, v1')
    I('v_and_b32 v9, 3, v1')
    I('v_bfe_u32 v10, v1, 2, 1')
    I('v_lshlrev_b32 v6, 6, v8')
    I('v_lshl_add_u32 v6, v9, 4, v6')
    I('v_lshl_add_u32 v6, v10, 3, v6')
    I('s_mul_i32 s4, s6, 320')
    I(f's_add_u32 s4, s4, {L_ST}')
    I('v_add_u32 v6, s4, v6')
    I(f'v_mov_b32 v12, {L_FC}')
    I('v_mov_b32 v7, 0')
    I('ds_write_b32 v12, v7')
    I('s_waitcnt vmcnt(0)')
    I('v_lshlrev_b32 v8, 16, v4')
    I('v_and_b32 v9, 0xffff0000, v4')
    I('v_lshlrev_b32 v10, 16, v5')
    I('v_and_b32 v11, 0xffff0000, v5')
    for r in range(4): I(f'v_mul_f32 v{16+r}, 0xbfb8aa3b, v{8+r}')
    for r in range(4): I(f'v_exp_f32 v{16+r}, v{16+r}')
    for r in range(4): I(f'v_add_f32 v{16+r}, 1.0, v{16+r}')
    for r in range(4): I(f'v_rcp_f32 v{16+r}, v{16+r}')
    for r in range(4): I(f'v_mul_f32 v{16+r}, v{8+r}, v{16+r}')
    I('v_cvt_pk_bf16_f32 v4, v16, v17')
    I('v_cvt_pk_bf16_f32 v5, v18, v19')
    setexec(0xffffffff, 0xff)
    I('ds_write_b64 v6, v[4:5]')
    fullexec()
    I('s_waitcnt lgkmcnt(0)')
    L('L_c_bar')
    barrier()
    I('s_cmp_gt_u32 s3, 3')
    I('s_cbranch_scc1 L_c_hi2')
    delay(4)
    st_reads()
    for t in range(5):
        I(f'ds_read_b64_tr_b16 {vr(40+4*t,2)}, v8 offset:{t*4096}')
        I(f'ds_read_b64_tr_b16 {vr(42+4*t,2)}, v8 offset:{t*4096+2048}')
    for t in range(5):
        I(f's_waitcnt lgkmcnt({8-2*t})')
        c = '0' if t == 0 else 'v[60:63]'
        I(f'v_mfma_f32_16x16x32_bf16 v[60:63], {vr(40+4*t)}, {vr(20+4*t)}, {c}')
    nop(9)
    for r in range(4): I(f'v_min_u32 v{60+r}, 0xfffffffe, v{60+r}')
    setexec(0x00030003, 0x00030003)
    I(f'buffer_store_dwordx4 v[60:63], v9, {S(WS)}, s44 offen sc1')
    fullexec()
    tag_compute()
    I('s_branch L_c_done')
    L('L_c_hi2')
    tag_compute()
    I('s_cmp_lg_u32 s3, 6')
    I('s_cbranch_scc1 L_c_n6')
    I('s_cmp_lt_u32 s40, 64')
    I('s_cbranch_scc1 L_c_done')
    for r in range(4, 8): I(f'v_mov_b32 v{r}, -1')
    I('s_sub_u32 s6, s40, 64')
    I('s_lshl_b32 s7, s6, 15')
    I(f's_add_u32 s7, s7, {OP}')
    for i in range(32):
        I(f'buffer_store_dwordx4 v[4:7], v13, {S(WS)}, s7 offen offset:{(i%4)*1024} sc1')
        if i % 4 == 3 and i < 31: I('s_add_u32 s7, s7, 4096')
    I('s_lshl_b32 s7, s6, 8')
    I(f's_add_u32 s7, s7, {ML}')
    setexec(0xffff)
    I(f'buffer_store_dwordx4 v[4:7], v13, {S(WS)}, s7 offen sc1')
    fullexec()
    flag_store(1, 8)
    stamp(10, 6)
    I('s_branch L_c_done')
    L('L_c_n6')
    if EGATE or W1GATE:
        I('s_cmp_lg_u32 s3, 4')
        I('s_cbranch_scc1 L_c_n4')
        flags_wait(2, 0, 64, 2)
        I(f'v_mov_b32 v4, {L_FC}')
        I('v_mov_b32 v5, 1')
        I('ds_write_b32 v4, v5')
        I('s_waitcnt lgkmcnt(0)')
        I('s_branch L_c_done')
        L('L_c_n4')
    I('s_cmp_lg_u32 s3, 5')
    I('s_cbranch_scc1 L_c_done')
    I('s_cmp_ge_u32 s40, 112')
    I('s_cbranch_scc1 L_c_done')
    if W1GATE: lds_gate()
    I('s_add_u32 s46, s46, 32')
    dma_addr()
    I(f's_mov_b32 s5, {L_WT1}')
    dma_n(20)
    st_reads()
    tr_base(L_WT1)
    for n in range(4):
        I(f'v_xor_b32 v4, {2*n}, v3')
        I(f'v_lshl_add_u32 v{8+n}, v4, 4, v2')
    I('s_waitcnt vmcnt(0)')
    for n in range(4):
        for t in range(5):
            I(f'ds_read_b64_tr_b16 {vr(40+20*n+4*t,2)}, v{8+n} offset:{t*4096}')
            I(f'ds_read_b64_tr_b16 {vr(42+20*n+4*t,2)}, v{8+n} offset:{t*4096+2048}')
    I('s_waitcnt lgkmcnt(0)')
    for t in range(5):
        for n in range(4):
            c = '0' if t == 0 else vr(120 + 4 * n)
            I(f'v_mfma_f32_16x16x32_bf16 {vr(120+4*n)}, {vr(40+20*n+4*t)}, {vr(20+4*t)}, {c}')
    nop(9)
    for r in range(16): I(f'v_min_u32 v{120+r}, 0xfffffffe, v{120+r}')
    I('v_mul_u32_u24 v2, 15360, v15')
    I('v_lshl_add_u32 v2, v14, 4, v2')
    I('s_mul_i32 s4, s45, 30720')
    I('s_lshl_b32 s5, s46, 8')
    I('s_add_u32 s4, s4, s5')
    I(f's_add_u32 s4, s4, {MOD}')
    setexec(0x00030003, 0x00030003)
    for n in range(4):
        I(f'buffer_store_dwordx4 {vr(120+4*n)}, v2, {S(WS)}, s4 offen offset:{n*64} sc1')
    fullexec()
    L('L_c_done')
    stamp(1)
    I('s_cmp_ge_u32 s40, 64')
    I('s_cbranch_scc1 L_role_e')

def role_D():
    WUV, WO = 20, 24
    srd(WUV, 'wuv'); srd(WO, 'wo')
    make_masks(16, True)
    make_masks4(244, 1)
    delay(5)
    if SLOWN == 0: lds_gate()
    I('v_lshlrev_b32 v2, 17, v14')
    I('v_lshl_add_u32 v2, v15, 4, v2')
    I('s_lshl_b32 s4, s3, 19')
    I('s_lshl_b32 s5, s42, 8')
    I('s_add_u32 s4, s4, s5')
    for t in range(16):
        I(f'buffer_load_dwordx4 {vr(20+4*t)}, v2, {S(WUV)}, s4 offen nt')
        if t < 15: I('s_add_u32 s4, s4, 8192')
    I('s_mul_i32 s5, s42, 163840')
    I('s_cmp_gt_u32 s3, 3')
    I('s_cbranch_scc1 L_d_hi')
    I('v_mul_u32_u24 v3, 40960, v14')
    I('v_lshl_add_u32 v3, v15, 4, v3')
    I('s_lshl_b32 s6, s3, 8')
    I('s_add_u32 s5, s5, s6')
    for t in range(32):
        I(f'buffer_load_dwordx4 {vr(84+4*t)}, v3, {S(WO)}, s5 offen offset:{(t%3)*1280} nt')
        if t % 3 == 2: I('s_add_u32 s5, s5, 3840')
    I('s_waitcnt vmcnt(0)')
    pairperm([(20 + 8 * p, 24 + 8 * p) for p in range(24)], 6)
    I('s_branch L_d_main')
    L('L_d_hi')
    I('v_mul_u32_u24 v3, 10240, v14')
    I('v_lshl_add_u32 v3, v15, 4, v3')
    I('s_sub_u32 s6, s3, 4')
    I('s_mul_i32 s6, s6, 40960')
    I('s_add_u32 s5, s5, s6')
    I('s_add_u32 s5, s5, 1024')
    for t in range(8):
        I(f'buffer_load_dwordx4 {vr(84+4*t)}, v3, {S(WO)}, s5 offen offset:{(t%3)*1280} nt')
        if t % 3 == 2: I('s_add_u32 s5, s5, 3840')
    I('s_waitcnt vmcnt(0)')
    pairperm([(20 + 8 * p, 24 + 8 * p) for p in range(12)], 6)
    L('L_d_main')
    stamp(2)
    I('v_and_b32 v2, 31, v1')
    I('v_lshlrev_b32 v2, 3, v2')
    I('s_lshl_b32 s4, s43, 5')
    I('s_add_u32 s4, s4, s42')
    I('s_lshl_b32 s5, s4, 8')
    I(f's_add_u32 s5, s5, {ML}')
    sk = uid('nolp')
    I('s_cmp_lg_u32 s3, 4')
    I(f's_cbranch_scc1 {sk}')
    I('v_mov_b32 v12, v2')
    flags_wait(1, 192, 64)
    I('v_mov_b32 v2, v12')
    light_poll(lambda r: I(f'buffer_load_dwordx2 v[{r}:{r+1}], v2, {S(WS)}, s5 offen sc1'), 2, 120, 24 * THR)
    L(sk)
    barrier()
    stamp(6)
    sk = uid('noz')
    I('s_cmp_lt_u32 s3, 4')
    I(f's_cbranch_scc1 {sk}')
    I('v_lshlrev_b32 v3, 13, v14')
    I('v_lshl_add_u32 v3, v15, 4, v3')
    I('s_lshl_b32 s6, s4, 15')
    I('s_sub_u32 s46, s3, 4')
    I('s_lshl_b32 s7, s46, 8')
    I('s_add_u32 s6, s6, s7')
    I(f's_add_u32 s48, s6, {OP}')
    I('s_add_u32 s49, s48, 4096')
    lab = spin_begin()
    I(f'buffer_load_dwordx2 v[4:5], v2, {S(WS)}, s5 offen sc1')
    for t in range(8):
        I(f'buffer_load_dwordx4 {vr(164+4*t)}, v3, {S(WS)}, s{48+t//4} offen offset:{(t%4)*1024} sc1')
    I('s_waitcnt vmcnt(0)')
    anysent([4, 5] + list(range(164, 196)), 6)
    spin_end(lab)
    stamp(3, 4)
    I('v_mov_b32 v6, v4')
    allreduce('v_max_f32', 6, 7, half=True)
    I('v_sub_f32 v4, v4, v6')
    I('v_exp_f32 v4, v4')
    I('v_lshlrev_b32 v2, 2, v1')
    I(f's_add_u32 s7, s7, {L_D_WD}')
    I('v_add_u32 v2, s7, v2')
    I('v_cvt_pk_bf16_f32 v8, v4, v4')
    I('ds_write_b32 v2, v8')
    I('v_and_b32 v4, 0xffff0000, v8')
    I('v_mul_f32 v5, v4, v5')
    I('v_lshlrev_b32 v2, 5, v14')
    I('v_add_u32 v2, s7, v2')
    I('s_waitcnt lgkmcnt(0)')
    for q in range(2):
        I(f'ds_read_b128 {vr(196+4*q)}, v2 offset:{q*16}')
    allreduce('v_add_f32', 5, 7, half=True)
    I('v_rcp_f32 v5, v5')
    I('v_lshlrev_b32 v2, 4, v15')
    I('v_lshl_add_u32 v2, v14, 3, v2')
    I('s_lshl_b32 s4, s46, 8')
    I(f's_add_u32 s4, s4, {L_D_CD}')
    I('v_add_u32 v2, s4, v2')
    I('s_waitcnt lgkmcnt(0)')
    gemv_diag(8, lambda t: 196 + t, 16, [204, 208], lambda blk, t: 164 + 4 * t, [8])
    for r in range(4):
        I(f'v_mul_f32 v{8+r}, v{8+r}, v5')
    I('v_cvt_pk_bf16_f32 v8, v8, v9')
    I('v_cvt_pk_bf16_f32 v9, v10, v11')
    setexec(0xffffffff)
    I('ds_write_b64 v2, v[8:9]')
    fullexec()
    L(sk)
    I('v_lshlrev_b32 v2, 5, v14')
    I('s_lshl_b32 s4, s3, 7')
    I(f's_add_u32 s4, s4, {L_D_CD}')
    I('v_add_u32 v2, s4, v2')
    I('s_lshl_b32 s4, s3, 9')
    I(f's_add_u32 s4, s4, {L_D_RED}')
    I('v_add_u32 v3, s4, v13')
    I('s_waitcnt lgkmcnt(0)')
    barrier()
    stamp(4)
    for q in range(2):
        I(f'ds_read_b128 {vr(212+4*q)}, v2 offset:{q*16}')
    I('s_waitcnt lgkmcnt(0)')
    gemv_pair(8, lambda p: 212 + p, 244, [228, 232], lambda blk, t: 20 + 4 * t, [236], [240])
    setexec(0xffff)
    I('ds_write_b128 v3, v[236:239]')
    I('ds_write_b128 v3, v[240:243] offset:256')
    fullexec()
    I('s_waitcnt lgkmcnt(0)')
    barrier()
    sk = uid('nored')
    I('s_cmp_lg_u32 s3, 0')
    I(f's_cbranch_scc1 {sk}')
    I('v_lshlrev_b32 v3, 3, v1')
    I(f'v_add_u32 v3, {L_D_RED}, v3')
    I('v_add_u32 v2, 2048, v3')
    setexec(0xffffffff)
    for w in range(8):
        ad = 'v3' if w < 4 else 'v2'
        I(f'ds_read2_b64 {vr(20+4*w)}, {ad} offset0:{(w%4)*64} offset1:{(w%4)*64+32}')
    I('v_lshlrev_b32 v3, 3, v1')
    I(f'v_add_u32 v3, {L_D_CD}, v3')
    I('s_waitcnt lgkmcnt(0)')
    for st in (1, 2, 4):
        for w in range(0, 8, 2 * st):
            I(f'v_pk_add_f32 {vr(20+4*w,2)}, {vr(20+4*w,2)}, {vr(20+4*(w+st),2)}')
            I(f'v_pk_add_f32 {vr(22+4*w,2)}, {vr(22+4*w,2)}, {vr(22+4*(w+st),2)}')
    I('v_cvt_pk_bf16_f32 v20, v20, v22')
    I('v_cvt_pk_bf16_f32 v21, v21, v23')
    I('ds_write_b64 v3, v[20:21]')
    fullexec()
    I('s_waitcnt lgkmcnt(0)')
    L(sk)
    I('s_lshl_b32 s4, s43, 5')
    I('s_add_u32 s4, s4, s42')
    I('s_mul_i32 s4, s4, 1280')
    I(f's_add_u32 s4, s4, {AP}')
    barrier()
    delay(2)
    I('s_cmp_gt_u32 s3, 3')
    I('s_cbranch_scc1 L_d_hi2')
    I('v_lshlrev_b32 v2, 6, v14')
    I(f'v_add_u32 v2, {L_D_CD}, v2')
    for q in range(4):
        I(f'ds_read_b128 {vr(212+4*q)}, v2 offset:{q*16}')
    I('s_lshl_b32 s5, s3, 8')
    I('s_add_u32 s4, s4, s5')
    I('s_waitcnt lgkmcnt(0)')
    gemv_pair(16, lambda p: 212 + p, 244, [228, 232], lambda blk, t: 84 + 4 * t, [236], [240])
    for r in range(4):
        I(f'v_cvt_pk_bf16_f32 v{236+r}, v{236+r}, v{240+r}')
        I(f'v_min_u32 v{236+r}, 0xfffffffe, v{236+r}')
    setexec(0xffff)
    I(f'buffer_store_dwordx4 v[236:239], v13, {S(WS)}, s4 offen sc1')
    fullexec()
    stamp(5)
    barrier()
    I('s_branch L_end')
    L('L_d_hi2')
    I('v_lshlrev_b32 v2, 4, v14')
    I('s_lshl_b32 s5, s46, 6')
    I(f's_add_u32 s5, s5, {L_D_CD}')
    I('v_add_u32 v2, s5, v2')
    I('ds_read_b128 v[212:215], v2')
    I('s_lshl_b32 s5, s46, 9')
    I(f's_add_u32 s5, s5, {L_D_RED}')
    I('v_add_u32 v3, s5, v13')
    I('s_waitcnt lgkmcnt(0)')
    gemv_pair(4, lambda p: 212 + p, 244, [228, 232], lambda blk, t: 84 + 4 * t, [236], [240])
    setexec(0xffff)
    I('ds_write_b128 v3, v[236:239]')
    I('ds_write_b128 v3, v[240:243] offset:256')
    fullexec()
    I('s_waitcnt lgkmcnt(0)')
    barrier()
    I('s_cmp_lg_u32 s3, 4')
    I('s_cbranch_scc1 L_end')
    I(f'v_add_u32 v3, {L_D_RED}, v13')
    setexec(0xffff)
    for w in range(4):
        I(f'ds_read_b128 {vr(20+8*w)}, v3 offset:{w*512}')
        I(f'ds_read_b128 {vr(24+8*w)}, v3 offset:{w*512+256}')
    I('s_waitcnt lgkmcnt(0)')
    for q in range(4):
        I(f'v_pk_add_f32 {vr(20+2*q,2)}, {vr(20+2*q,2)}, {vr(28+2*q,2)}')
        I(f'v_pk_add_f32 {vr(36+2*q,2)}, {vr(36+2*q,2)}, {vr(44+2*q,2)}')
        I(f'v_pk_add_f32 {vr(20+2*q,2)}, {vr(20+2*q,2)}, {vr(36+2*q,2)}')
    for r in range(4):
        I(f'v_cvt_pk_bf16_f32 v{20+r}, v{20+r}, v{24+r}')
        I(f'v_min_u32 v{20+r}, 0xfffffffe, v{20+r}')
    I(f'buffer_store_dwordx4 v[20:23], v13, {S(WS)}, s4 offen offset:1024 sc1')
    fullexec()
    stamp(7, 4)
    I('s_branch L_end')

def role_E():
    L('L_role_e')
    WG, WU, WD, X_, OUT = 20, 24, 28, 32, 36
    srd(WG, 'wg'); srd(WU, 'wu'); srd(WD, 'wd'); srd(X_, 'x'); srd(OUT, 'out')
    make_masks(16, True)
    make_masks4(240, 1)
    L('L_e_init')
    delay(6)
    if EGATE: lds_gate()
    I('s_cmp_lg_u32 s47, 0')
    I('s_cbranch_scc1 L_end')
    I('v_mul_u32_u24 v2, 69120, v14')
    I('v_and_b32 v3, 7, v15')
    I('v_lshl_add_u32 v2, v3, 4, v2')
    I('s_mul_i32 s4, s3, 276480')
    I('s_lshl_b32 s5, s42, 7')
    I('s_add_u32 s4, s4, s5')
    I('s_mov_b32 s6, 0x00ff00ff')
    I('s_mov_b32 s7, 0x00ff00ff')
    I('s_mov_b32 s48, 0xff00ff00')
    I('s_mov_b32 s49, 0xff00ff00')
    lds = []
    for t in range(20):
        lds.append(([] if t == 0 else ['s_add_u32 s4, s4, 3456']) + ['s_mov_b64 exec, s[6:7]',
                   f'buffer_load_dwordx4 {vr(20+4*t)}, v2, {S(WG)}, s4 offen nt'])
        lds.append(['s_mov_b64 exec, s[48:49]', f'buffer_load_dwordx4 {vr(20+4*t)}, v2, {S(WU)}, s4 offen nt'])
    paced(lds, 2 * EPACE)
    fullexec()
    I('s_mul_i32 s4, s42, 81920')
    I('s_cmp_gt_u32 s3, 3')
    I('s_cbranch_scc1 L_e_hi')
    I('v_mul_u32_u24 v2, 20480, v14')
    I('v_lshl_add_u32 v2, v15, 4, v2')
    I('s_lshl_b32 s5, s3, 8')
    I('s_add_u32 s4, s4, s5')
    for t in range(16):
        I(f'buffer_load_dwordx4 {vr(100+4*t)}, v2, {S(WD)}, s4 offen nt')
        if t < 15: I('s_add_u32 s4, s4, 1280')
    I('s_waitcnt vmcnt(0)')
    pairperm([(20 + 8 * p, 24 + 8 * p) for p in range(18)], 6)
    I('s_branch L_e_main')
    L('L_e_hi')
    I('v_mul_u32_u24 v2, 5120, v14')
    I('v_lshl_add_u32 v2, v15, 4, v2')
    I('s_sub_u32 s5, s3, 4')
    I('s_mul_i32 s5, s5, 20480')
    I('s_add_u32 s4, s4, s5')
    I('s_add_u32 s4, s4, 1024')
    for t in range(4):
        I(f'buffer_load_dwordx4 {vr(100+4*t)}, v2, {S(WD)}, s4 offen nt')
        if t < 3: I('s_add_u32 s4, s4, 1280')
    I('s_waitcnt vmcnt(0)')
    pairperm([(20 + 8 * p, 24 + 8 * p) for p in range(12)], 6)
    if DRY:
        I('s_cmp_lg_u32 s3, 7')
        I('s_cbranch_scc1 L_e_main')
        enter_dry('L_e_main')
    L('L_e_main')
    sk = uid('nofw')
    I('s_cmp_lg_u32 s3, 0')
    skip_if(sk)
    flags_wait(0)
    L(sk)
    barrier()
    stamp(2)
    I('v_and_b32 v2, 1, v14')
    I('v_lshlrev_b32 v2, 2, v2')
    I('v_lshl_add_u32 v2, v15, 3, v2')
    I('s_lshl_b32 s4, s3, 7')
    I('v_add_u32 v12, s4, v2')
    sk5 = uid('w5')
    I('s_cmp_gt_u32 s3, 4')
    skip_if(sk5)
    I('v_lshlrev_b32 v2, 1, v12')
    I('s_mul_i32 s4, s43, 1280')
    I(f'buffer_load_dwordx2 v[4:5], v2, {S(X_)}, s4 offen')
    I('v_lshlrev_b32 v2, 2, v12')
    I('s_mul_i32 s4, s43, 15360')
    I(f's_add_u32 s48, s4, {MOD + 2*2560}')
    for i in range(1, 12):
        p, kq = i % 3, i // 3
        I(f's_add_u32 s{48+i}, s48, {p*2560 + kq*30720}')
    lab = spin_begin()
    for i in range(12):
        I(f'buffer_load_dwordx4 {vr(164+4*i)}, v2, {S(WS)}, s{48+i} offen sc1')
    I('s_waitcnt vmcnt(0)')
    anysent(range(164, 212), 6)
    spin_end(lab)
    for p in range(3):
        for r in range(4):
            a = 164 + 4 * p + r
            I(f'v_add_f32 v{a}, v{a}, v{a+12}')
            I(f'v_add_f32 v{a+24}, v{a+24}, v{a+36}')
            I(f'v_add_f32 v{a}, v{a}, v{a+24}')
            bfround(a)
    I('v_lshlrev_b32 v176, 16, v4')
    I('v_and_b32 v177, 0xffff0000, v4')
    I('v_lshlrev_b32 v178, 16, v5')
    I('v_and_b32 v179, 0xffff0000, v5')
    for r in range(4):
        I(f'v_add_f32 v{172+r}, 1.0, v{172+r}')
        bfround(172 + r)
    for d in range(4): I(f'v_and_b32 v{204+d}, 0x3f803f80, v{16+d}')
    I('v_mul_u32_u24 v3, 10240, v14')
    I('v_lshl_add_u32 v3, v15, 4, v3')
    I('s_mul_i32 s4, s43, 40960')
    I('s_lshl_b32 s5, s3, 8')
    I('s_add_u32 s4, s4, s5')
    I(f's_add_u32 s4, s4, {AP}')
    I('s_add_u32 s5, s4, 3840')
    I('s_add_u32 s6, s4, 7680')
    L(sk5)
    sk = uid('nolp')
    I('s_cmp_lg_u32 s3, 5')
    skip_if(sk)
    I('v_and_b32 v2, 31, v1')
    I('v_mul_u32_u24 v2, 1280, v2')
    I('s_mul_i32 s4, s43, 40960')
    I(f's_add_u32 s4, s4, {AP + 252}')
    light_poll(lambda r: I(f'buffer_load_dword v{r}, v2, {S(WS)}, s4 offen sc1'), 1, 4, 24 * THR)
    L(sk)
    barrier()
    stamp(6)
    tick(0)
    sk5 = uid('w5a')
    I('s_cmp_gt_u32 s3, 4')
    skip_if(sk5)
    lab = spin_begin()
    for t in range(8):
        so = ['s4', 's5', 's6'][t // 3]
        I(f'buffer_load_dwordx4 {vr(208+4*t)}, v3, {S(WS)}, {so} offen offset:{(t%3)*1280} sc1')
    I('s_waitcnt vmcnt(0)')
    anysent(range(208, 240), 6)
    spin_end(lab)
    stamp(3)
    tick(1)
    for t in range(8):
        c = '0' if t == 0 else 'v[180:183]'
        I(f'v_mfma_f32_16x16x32_bf16 v[180:183], v[204:207], {vr(208+4*t)}, {c}')
    nop(9)
    for r in range(4):
        bfround(180 + r)
        I(f'v_mul_f32 v{180+r}, v{164+r}, v{180+r}')
        bfround(180 + r)
        I(f'v_add_f32 v{180+r}, v{176+r}, v{180+r}')
        bfround(180 + r)
    tick(2)
    I('v_cmp_gt_u32 vcc, 32, v1')
    I('v_add_f32 v6, v180, v181')
    I('v_add_f32 v7, v182, v183')
    I('v_add_f32 v6, v6, v7')
    I('v_cndmask_b32 v6, 0, v6, vcc')
    allreduce('v_add_f32', 6, 7)
    I('v_mul_f32 v6, 0x3c000000, v6')
    for r in range(4): I(f'v_sub_f32 v{184+r}, v{180+r}, v6')
    I('v_mul_f32 v8, v184, v184')
    for r in range(1, 4): I(f'v_fmac_f32 v8, v{184+r}, v{184+r}')
    I('v_cndmask_b32 v8, 0, v8, vcc')
    allreduce('v_add_f32', 8, 7)
    I('v_mov_b32 v7, v8')
    I('s_lshl_b32 s4, s3, 3')
    I(f's_add_u32 s4, s4, {L_E_STAT}')
    I('v_mov_b32 v2, s4')
    I('v_lshlrev_b32 v3, 2, v12')
    I(f'v_add_u32 v3, {L_E_X1}, v3')
    setexec(1)
    I('ds_write_b64 v2, v[6:7]')
    setexec(0xffffffff)
    I('ds_write_b128 v3, v[180:183]')
    fullexec()
    I('s_waitcnt lgkmcnt(0)')
    L(sk5)
    tick(3)
    barrier()
    tick(4)
    sk5 = uid('w5b')
    I('s_cmp_gt_u32 s3, 4')
    skip_if(sk5)
    I(f'v_mov_b32 v2, {L_E_STAT}')
    I('ds_read_b128 v[184:187], v2')
    I('ds_read_b128 v[188:191], v2 offset:16')
    I('ds_read_b64 v[192:193], v2 offset:32')
    I('s_waitcnt lgkmcnt(0)')
    I('v_add_f32 v6, v184, v186')
    I('v_add_f32 v6, v6, v188')
    I('v_add_f32 v6, v6, v190')
    I('v_add_f32 v6, v6, v192')
    I('v_mul_f32 v6, 0x3e4ccccd, v6')
    I('v_add_f32 v7, v185, v187')
    I('v_add_f32 v7, v7, v189')
    I('v_add_f32 v7, v7, v191')
    I('v_add_f32 v7, v7, v193')
    for k in range(5):
        I(f'v_sub_f32 v8, v{184+2*k}, v6')
        I('v_mul_f32 v8, v8, v8')
        I('v_fmac_f32 v7, 0x43000000, v8')
    I('v_mul_f32 v7, 0x3acccccd, v7')
    bfround(6); bfround(7)
    I('v_add_f32 v7, 0x3727c5ac, v7')
    bfround(7)
    I('v_sqrt_f32 v7, v7')
    nop(1)
    bfround(7)
    I('v_rcp_f32 v7, v7')
    for r in range(4):
        I(f'v_sub_f32 v{184+r}, v{180+r}, v6')
        bfround(184 + r)
        I(f'v_mul_f32 v{184+r}, v{184+r}, v7')
        bfround(184 + r)
        I(f'v_mul_f32 v{184+r}, v{184+r}, v{172+r}')
        bfround(184 + r)
        I(f'v_add_f32 v{184+r}, v{184+r}, v{168+r}')
    I('v_cvt_pk_bf16_f32 v184, v184, v185')
    I('v_cvt_pk_bf16_f32 v185, v186, v187')
    I('v_lshlrev_b32 v3, 1, v12')
    I(f'v_add_u32 v3, {L_E_HT}, v3')
    setexec(0xffffffff)
    I('ds_write_b64 v3, v[184:185]')
    fullexec()
    I('s_waitcnt lgkmcnt(0)')
    L(sk5)
    tick(5)
    barrier()
    tick(6)
    stamp(4)
    I('v_mul_u32_u24 v2, 40, v14')
    I('s_mul_i32 s4, s3, 160')
    I(f's_add_u32 s4, s4, {L_E_HT}')
    I('v_add_u32 v2, s4, v2')
    for q in range(5):
        I(f'ds_read_b64 {vr(164+2*q,2)}, v2 offset:{q*8}')
    I('s_lshl_b32 s4, s3, 9')
    I(f's_add_u32 s4, s4, {L_E_RED}')
    I('v_add_u32 v3, s4, v13')
    I('s_waitcnt lgkmcnt(0)')
    gemv_pair(10, lambda p: 164 + p, 240, [204, 208], lambda blk, t: 20 + 4 * t, [212], [216])
    setexec(0xffff)
    I('ds_write_b128 v3, v[212:215]')
    I('ds_write_b128 v3, v[216:219] offset:256')
    fullexec()
    I('s_waitcnt lgkmcnt(0)')
    tick(7)
    barrier()
    tick(8)
    sk = uid('nohh')
    I('s_cmp_lg_u32 s3, 0')
    skip_if(sk)
    I('v_lshrrev_b32 v2, 5, v1')
    I('v_and_b32 v3, 31, v1')
    I('v_lshlrev_b32 v3, 2, v3')
    I('v_lshl_add_u32 v3, v2, 8, v3')
    I(f'v_add_u32 v3, {L_E_RED}, v3')
    for w in range(8):
        I(f'ds_read2_b32 {vr(164+2*w,2)}, v3 offset0:{(w%2)*128} offset1:{(w%2)*128+32}' if w < 2 else
          f'ds_read2_b32 {vr(164+2*w,2)}, v{4+w//2} offset0:{(w%2)*128} offset1:{(w%2)*128+32}')
        if w % 2 == 1 and w < 7: I(f'v_add_u32 v{5+w//2}, {1024*(w//2+1)}, v3')
    I('v_and_b32 v3, 31, v1')
    I('v_lshlrev_b32 v3, 2, v3')
    I('v_lshl_add_u32 v3, v2, 1, v3')
    I(f'v_add_u32 v3, {L_E_HH}, v3')
    I('s_waitcnt lgkmcnt(0)')
    for st in (1, 2, 4):
        for w in range(0, 8, 2 * st):
            I(f'v_pk_add_f32 {vr(164+2*w,2)}, {vr(164+2*w,2)}, {vr(164+2*(w+st),2)}')
    I('v_cvt_pk_bf16_f32 v166, v164, v165')
    I('v_lshlrev_b32 v164, 16, v166')
    I('v_and_b32 v165, 0xffff0000, v166')
    I('v_mul_f32 v164, 0xbfb8aa3b, v164')
    I('v_exp_f32 v164, v164')
    nop(1)
    I('v_add_f32 v164, 1.0, v164')
    I('v_rcp_f32 v164, v164')
    nop(1)
    bfround(164)
    I('v_mul_f32 v164, v164, v165')
    I('v_cvt_pk_bf16_f32 v164, v164, v164')
    I('ds_write_b16 v3, v164')
    I('s_waitcnt lgkmcnt(0)')
    L(sk)
    I('s_mul_i32 s4, s43, 27')
    I('s_add_u32 s4, s4, s42')
    I('s_mul_i32 s4, s4, 2560')
    I(f's_add_u32 s4, s4, {FP}')
    tick(9)
    barrier()
    delay(3)
    tick(10)
    I('s_cmp_gt_u32 s3, 3')
    I('s_cbranch_scc1 L_e_hi2')
    I('v_lshlrev_b32 v2, 5, v14')
    I(f'v_add_u32 v2, {L_E_HH}, v2')
    for q in range(2):
        I(f'ds_read_b128 {vr(164+4*q)}, v2 offset:{q*16}')
    I('s_lshl_b32 s5, s3, 9')
    I('s_add_u32 s4, s4, s5')
    I('s_waitcnt lgkmcnt(0)')
    gemv_pair(8, lambda p: 164 + p, 240, [204, 208], lambda blk, t: 100 + 4 * t, [212], [216])
    for r in range(8): I(f'v_min_u32 v{212+r}, 0xfffffffe, v{212+r}')
    setexec(0xffff)
    I(f'buffer_store_dwordx4 v[212:215], v13, {S(WS)}, s4 offen sc1')
    I(f'buffer_store_dwordx4 v[216:219], v13, {S(WS)}, s4 offen offset:256 sc1')
    fullexec()
    tick(11)
    tick_dump(12)
    stamp(5)
    barrier()
    I('s_branch L_end')
    L('L_e_hi2')
    I('s_sub_u32 s46, s3, 4')
    I('v_lshlrev_b32 v2, 3, v14')
    I('s_lshl_b32 s5, s46, 5')
    I(f's_add_u32 s5, s5, {L_E_HH}')
    I('v_add_u32 v2, s5, v2')
    I('ds_read_b64 v[164:165], v2')
    I('s_lshl_b32 s5, s46, 9')
    I(f's_add_u32 s5, s5, {L_E_RED}')
    I('v_add_u32 v3, s5, v13')
    I('s_waitcnt lgkmcnt(0)')
    gemv_pair(2, lambda p: 164 + p, 240, [204, 208], lambda blk, t: 100 + 4 * t, [212], [216])
    setexec(0xffff)
    I('ds_write_b128 v3, v[212:215]')
    I('ds_write_b128 v3, v[216:219] offset:256')
    fullexec()
    I('s_waitcnt lgkmcnt(0)')
    barrier()
    I('s_cmp_lg_u32 s3, 4')
    I('s_cbranch_scc1 L_final')
    I(f'v_add_u32 v3, {L_E_RED}, v13')
    setexec(0xffff)
    for w in range(4):
        I(f'ds_read_b128 {vr(20+8*w)}, v3 offset:{w*512}')
        I(f'ds_read_b128 {vr(24+8*w)}, v3 offset:{w*512+256}')
    I('s_waitcnt lgkmcnt(0)')
    for q in range(4):
        I(f'v_pk_add_f32 {vr(20+2*q,2)}, {vr(20+2*q,2)}, {vr(28+2*q,2)}')
        I(f'v_pk_add_f32 {vr(36+2*q,2)}, {vr(36+2*q,2)}, {vr(44+2*q,2)}')
        I(f'v_pk_add_f32 {vr(20+2*q,2)}, {vr(20+2*q,2)}, {vr(36+2*q,2)}')
    for r in range(8): I(f'v_min_u32 v{20+r}, 0xfffffffe, v{20+r}')
    I('s_add_u32 s4, s4, 2048')
    I(f'buffer_store_dwordx4 v[20:23], v13, {S(WS)}, s4 offen sc1')
    I(f'buffer_store_dwordx4 v[24:27], v13, {S(WS)}, s4 offen offset:256 sc1')
    fullexec()
    I('s_branch L_end')
    L('L_final')
    I('s_cmp_lg_u32 s3, 5')
    skip_if('L_end')
    I('s_cmp_ge_u32 s42, 10')
    skip_if('L_end')
    I('s_waitcnt vmcnt(0)')
    I('s_lshl_b32 s4, s42, 6')
    I('v_add_u32 v12, s4, v1')
    I('v_lshlrev_b32 v2, 2, v12')
    I(f'v_add_u32 v3, {L_E_X1}, v2')
    I('ds_read_b32 v10, v3')
    I('v_lshrrev_b32 v4, 7, v12')
    I('v_lshlrev_b32 v4, 9, v4')
    I('v_and_b32 v5, 1, v12')
    I('v_lshl_add_u32 v4, v5, 8, v4')
    I('v_bfe_u32 v5, v12, 3, 4')
    I('v_lshl_add_u32 v4, v5, 4, v4')
    I('v_bfe_u32 v5, v12, 1, 2')
    I('v_lshl_add_u32 v4, v5, 2, v4')
    I('s_mul_i32 s4, s43, 15360')
    I(f's_add_u32 s4, s4, {MOD + 5*2560}')
    I('s_mul_i32 s5, s43, 69120')
    I(f's_add_u32 s5, s5, {FP}')
    lab = spin_begin()
    I('s_mov_b32 s6, s4')
    for kq in range(4):
        I(f'buffer_load_dword v{48+kq}, v2, {S(WS)}, s6 offen sc1')
        if kq < 3: I('s_add_u32 s6, s6, 30720')
    I('s_waitcnt vmcnt(0)')
    anysent(list(range(48, 52)), 6)
    spin_end(lab)
    for p in range(9): I(f's_add_u32 s{48+p}, s5, {p*7680}')
    def fissue(base):
        for p in range(27):
            I(f'buffer_load_dword v{base+p}, v4, {S(WS)}, s{48+p//3} offen offset:{(p%3)*2560 if (p%3)*2560 < 4096 else 0} sc1'
              if p % 3 < 2 else f'buffer_load_dword v{base+p}, v5, {S(WS)}, s{48+p//3} offen sc1')
    I('v_add_u32 v5, 5120, v4')
    I('s_mov_b32 s98, 0')
    fissue(20)
    I('s_sleep 6')
    L('L_fin_top')
    fissue(60)
    I('s_waitcnt vmcnt(27)')
    anysent(list(range(20, 47)), 6)
    I('s_cbranch_vccz L_fin_done')
    fissue(20)
    I('s_waitcnt vmcnt(27)')
    anysent(list(range(60, 87)), 6)
    I('s_cbranch_vccz L_fin_b')
    I('s_add_u32 s98, s98, 1')
    I(f's_cmp_gt_u32 s98, {SPIN_LIMIT}')
    I('s_cbranch_scc1 L_end')
    I('s_branch L_fin_top')
    L('L_fin_b')
    I('s_waitcnt vmcnt(0)')
    for p in range(27): I(f'v_mov_b32 v{20+p}, v{60+p}')
    L('L_fin_done')
    I('v_add_f32 v11, v48, v49')
    I('v_add_f32 v50, v50, v51')
    I('v_add_f32 v11, v11, v50')
    bfround(11)
    for p in range(1, 27): I(f'v_add_f32 v20, v20, v{20+p}')
    bfround(20)
    I('v_mul_f32 v20, v11, v20')
    bfround(20)
    I('s_waitcnt lgkmcnt(0)')
    I('v_add_f32 v20, v10, v20')
    I('v_cvt_pk_bf16_f32 v20, v20, v20')
    I('v_lshlrev_b32 v2, 1, v12')
    I('s_mul_i32 s4, s43, 1280')
    I(f'buffer_store_short v20, v2, {S(OUT)}, s4 offen')
    stamp(7, 5)
    if DBGT:
        I('s_memrealtime s[60:61]')
        I('s_mov_b32 s20, s90')
        I('s_and_b32 s21, s91, 0xffff')
        I('s_mov_b32 s22, 256')
        I('s_mov_b32 s23, 0x00020000')
        I('s_waitcnt lgkmcnt(0)')
        I('s_sub_u32 s60, s60, s56')
        I('v_mov_b32 v4, s60')
        I('s_mul_i32 s5, s43, 10')
        I('s_add_u32 s5, s5, s42')
        I('s_lshl_b32 s5, s5, 2')
        I('v_mov_b32 v5, 0')
        setexec(1)
        I('buffer_store_dword v4, v5, s[20:23], s5 offen')
        fullexec()
    role_end('L_e_main')

prologue()
role_P12()
role_P3()
role_DE_common()
role_D()
role_E()
L('L_end')
I('s_endpgm')

def wrap_vm(ls):
    out = []; i = 0; n = 0
    while i < len(ls):
        x = ls[i].strip()
        def isvm(k):
            y = ls[k].strip()
            return y.startswith('buffer_store') or (not INSPIN[k] and (y.startswith('s_waitcnt vmcnt') or (y.startswith('buffer_load') and ' nt' not in y)))
        if isvm(i):
            j = i
            while j < len(ls) and isvm(j):
                j += 1
            n += 1
            out.append(f'    s_cbranch_execz L_vs_{n}')
            out += ls[i:j]
            out.append(f'L_vs_{n}:')
            i = j
        else:
            out.append(ls[i]); i += 1
    return out
if DRY:
    INSPIN = []
    ins = False
    for x in lines:
        t = x.strip()
        if re.match(r'L_spin_\d+:$', t): ins = True
        if re.match(r'L_spin_\d+_x:$', t): ins = False
        INSPIN.append(ins)
    lines = wrap_vm(lines)
hdr = open('cdna_kernels/' + NAME + '.s.ref').read().split('\n')
out = []
for ln in hdr:
    if ln.startswith('; @launch'):
        out.append(f'; @launch grid=(256,1,1) block=(512,1,1) lds={LDS_BYTES}')
    elif ln.startswith(';'):
        out.append(ln)
    else:
        break
out += ['.amdgcn_target "amdgcn-amd-amdhsa--gfx950"', '.text', f'.globl {NAME}_kernel', '.p2align 8',
        f'.type {NAME}_kernel,@function', f'{NAME}_kernel:']
out += lines
out += ['.section .rodata,"a"', '.p2align 6', f'.amdhsa_kernel {NAME}_kernel',
        '  .amdhsa_next_free_vgpr 256', '  .amdhsa_next_free_sgpr 102', '  .amdhsa_accum_offset 256',
        '  .amdhsa_group_segment_fixed_size 0', '  .amdhsa_kernarg_size 120', '  .amdhsa_user_sgpr_count 2',
        '  .amdhsa_user_sgpr_kernarg_segment_ptr 1', '  .amdhsa_system_sgpr_workgroup_id_x 1',
        '.end_amdhsa_kernel', '']
open(sys.argv[1], 'w').write('\n'.join(out))
```
